```python
import torch

def _softmax(x, axis=-1):
    return torch.softmax(x, dim=axis)
def _gelu(x):
    return torch.nn.functional.gelu(x, approximate="tanh")
def _silu(x):
    return torch.nn.functional.silu(x)
def _sigmoid(x):
    return torch.sigmoid(x)
def _layernorm(x, axis=-1, eps=1e-5):
    m = x.mean(dim=axis, keepdim=True)
    v = x.var(dim=axis, keepdim=True, unbiased=False)
    return (x - m) / torch.sqrt(v + eps)
def _scatter_add(tgt, idx, src, axis=0):
    return tgt.clone().index_add_(axis, idx, src)
def _segment_sum(src, seg, n):
    out = torch.zeros((n,) + src.shape[1:], dtype=src.dtype)
    return out.index_add_(0, seg, src)
def _pad(x, pw):
    flat = tuple(v for pair in reversed(pw) for v in pair)
    return torch.nn.functional.pad(x, flat)

kernel_name = 'recurrent_scan__ssm_conv_s4__mixer_channel_mlp__prompt'

def setup_inputs():

    _w = (lambda a: (lambda t: t.to(torch.bfloat16) if t.is_floating_point() else t)(torch.as_tensor(a)))
    def _A_setup():
        B, L, D, N = 1, 2048, 640, 192
        A_re = -(lambda _x: torch.exp(torch.as_tensor(_x)))((lambda *s: torch.randn(*s, dtype=torch.bfloat16) * 3.2)(D, N))
        A_im = torch.pi * (lambda *s: torch.randn(*s, dtype=torch.bfloat16) * 0.05)(D, N)
        B_re = (lambda *s: torch.randn(*s, dtype=torch.bfloat16) * 0.1)(D, N)
        B_im = (lambda *s: torch.randn(*s, dtype=torch.bfloat16) * 0.1)(D, N)
        C_re = (lambda *s: torch.randn(*s, dtype=torch.bfloat16) * 0.1)(D, N)
        C_im = (lambda *s: torch.randn(*s, dtype=torch.bfloat16) * 0.1)(D, N)
        log_dt = (lambda *s: torch.randn(*s, dtype=torch.bfloat16) * 0.05)(D) * 0.5 - 4.0
        Dskip = (lambda *s: torch.randn(*s, dtype=torch.bfloat16) * 0.05)(D)
        return {
            "u": _w((lambda *s: torch.randn(*s, dtype=torch.bfloat16) * 0.05)(B, L, D)),
            "A_re": _w(A_re),
            "A_im": _w(A_im),
            "B_re": _w(B_re),
            "B_im": _w(B_im),
            "C_re": _w(C_re),
            "C_im": _w(C_im),
            "log_dt": _w(log_dt),
            "Dskip": _w(Dskip),
        }
    _A_in = _A_setup()

    def _B_setup():
        B, S, D, F = 1, 2048, 640, 1536
        return {
            "x": _w((lambda *s: torch.randn(*s, dtype=torch.bfloat16) * 0.05)(B, S, D)),
            "w1": _w((lambda *s: torch.randn(*s, dtype=torch.bfloat16) * 3.2)(D, F) * (D ** -0.5)),
            "b1": _w((lambda *s: torch.randn(*s, dtype=torch.bfloat16) * 1.6)(F)),
            "w2": _w((lambda *s: torch.randn(*s, dtype=torch.bfloat16) * 0.05)(F, D) * (F ** -0.5)),
            "b2": _w((lambda *s: torch.randn(*s, dtype=torch.bfloat16) * 0.1)(D)),
        }
    _B_in = _B_setup()

    return {
        "A_u": _A_in["u"],
        "A_A_re": _A_in["A_re"],
        "A_A_im": _A_in["A_im"],
        "A_B_re": _A_in["B_re"],
        "A_B_im": _A_in["B_im"],
        "A_C_re": _A_in["C_re"],
        "A_C_im": _A_in["C_im"],
        "A_log_dt": _A_in["log_dt"],
        "A_Dskip": _A_in["Dskip"],
        "B_x": _B_in["x"],
        "B_w1": _B_in["w1"],
        "B_b1": _B_in["b1"],
        "B_w2": _B_in["w2"],
        "B_b2": _B_in["b2"],
    }

def reference(A_u, A_A_re, A_A_im, A_B_re, A_B_im, A_C_re, A_C_im, A_log_dt, A_Dskip, B_x, B_w1, B_b1, B_w2, B_b2):
    def _A_ref(u, A_re, A_im, B_re, B_im, C_re, C_im, log_dt, Dskip):
        Bsz, L, D = u.shape
        dt = torch.exp(log_dt)[:, None]
        A = A_re + 1j * A_im
        Bc = B_re + 1j * B_im
        Cc = C_re + 1j * C_im
        logdA = dt * A
        dB = dt * Bc
        l = (lambda x, dt: x.to(dt))(torch.arange(L), A_re.dtype)
        P = torch.exp(logdA[:, :, None] * l[None, None, :])
        K = torch.einsum("dn,dnl,dn->dl", Cc, P, dB).real
        L2 = 2 * L
        Kp = _pad(K, ((0, 0), (0, L)))
        up = (lambda x, *d: x.permute(*d))(u, 0, 2, 1)
        up = _pad(up, ((0, 0), (0, 0), (0, L)))
        Kf = (lambda x, axes=(-2,-1): torch.fft.rfft2(x.float(), dim=axes))(Kp[:, None, :], axes=(-2, -1))
        Uf = (lambda x, axes=(-2,-1): torch.fft.rfft2(x.float(), dim=axes))(up[:, :, None, :], axes=(-2, -1))
        Yf = Uf * Kf[None, :, :, :]
        y = (lambda x, s, axes=(-2,-1): torch.fft.irfft2(x, s=s, dim=axes).to(torch.bfloat16))(Yf, (1, L2), axes=(-2, -1))[:, :, 0, :L]
        y = (lambda x, *d: x.permute(*d))(y, 0, 2, 1) + u * Dskip[None, None, :]
        return y

    def _B_ref(x, w1, b1, w2, b2):
        y = _layernorm(x, axis=-1)
        h = _gelu(torch.einsum("bsd,df->bsf", y, w1) + b1)
        return torch.einsum("bsf,fd->bsd", h, w2) + b2

    x = A_u
    xn = _layernorm(x, axis=-1)
    s = _A_ref(xn, A_A_re, A_A_im, A_B_re, A_B_im, A_C_re, A_C_im, A_log_dt, A_Dskip)
    g = _silu(_B_ref(xn, B_w1, B_b1, B_w2, B_b2))
    return x + s * g
```

```python
import re

TRANS = ("v_exp_f32", "v_log_f32", "v_rcp_f32", "v_rsq_f32", "v_sqrt_f32", "v_sin_f32", "v_cos_f32")
REG_RE = re.compile(r"^(-|abs\(|\|)?([vas])(\d+|\[(\d+):(\d+)\])\)?\|?$")


def regs_of(tok):
    tok = tok.strip()
    if tok == "vcc":
        return {("s", "vcc")}
    if tok in ("vcc_lo", "vcc_hi"):
        return {("s", "vcc")}
    if tok == "exec":
        return {("s", "exec")}
    if tok == "m0":
        return {("s", "m0")}
    m = REG_RE.match(tok)
    if not m:
        return set()
    k = m.group(2)
    if m.group(4) is not None:
        return {(k, i) for i in range(int(m.group(4)), int(m.group(5)) + 1)}
    return {(k, int(m.group(3)))}


def split_ops(rest):
    ops, depth, cur = [], 0, ""
    for ch in rest:
        if ch in "[(":
            depth += 1
        if ch in "])":
            depth -= 1
        if ch == "," and depth == 0:
            ops.append(cur.strip())
            cur = ""
        else:
            cur += ch
    if cur.strip():
        ops.append(cur.strip())
    mods = ""
    if ops:
        parts = ops[-1].split(None, 1)
        ops[-1] = parts[0]
        if len(parts) > 1:
            mods = parts[1]
    return ops, mods


class Ins:
    def __init__(self, text):
        self.text = text
        t = text.split(";")[0].strip()
        self.label = t.endswith(":")
        self.directive = t.startswith(".")
        self.mn = ""
        self.w = set()
        self.r = set()
        self.srcc = set()
        self.srcab = set()
        self.sdata = set()
        self.ws = 1
        if self.label or self.directive or not t:
            self.ws = 0
            return
        p = t.split(None, 1)
        mn = self.mn = p[0]
        ops, mods = split_ops(p[1]) if len(p) > 1 else ([], "")
        self.ops, self.mods = ops, mods
        R = [regs_of(o) for o in ops]
        self.mfma = mn.startswith("v_mfma")
        self.valu = mn.startswith("v_") and not self.mfma
        self.trans = any(mn.startswith(x) for x in TRANS)
        self.ds = mn.startswith("ds_")
        self.vmem = mn.startswith("buffer_") or mn.startswith("global_")
        self.salu = mn.startswith("s_")
        self.dpp = "_dpp" in mn
        self.dot = mn.startswith("v_dot")
        self.ldsdma = self.vmem and (" lds" in (" " + mods) or "load_lds" in mn)
        if mn == "s_nop":
            self.ws = int(ops[0], 0) + 1
            return
        if self.mfma:
            self.passes = 8 if "32x32" in mn else 4
            self.w = R[0]
            self.srcab = R[1] | R[2]
            self.srcc = R[3]
            self.r = self.srcab | self.srcc
        elif self.valu:
            if mn.startswith("v_permlane"):
                self.w = R[0] | R[1]
                self.r = R[0] | R[1]
            elif mn.startswith("v_cmp"):
                self.w = R[0]
                self.r = set().union(*R[1:])
            elif "_co_" in mn:
                self.w = R[0] | R[1]
                self.r = set().union(*R[2:])
            else:
                self.w = R[0]
                self.r = set().union(*R[1:]) if len(R) > 1 else set()
                if mn.startswith(("v_fmac", "v_dot2c", "v_writelane")) or self.dpp:
                    self.r |= R[0]
        elif self.ds:
            if mn.startswith(("ds_read", "ds_bpermute", "ds_permute", "ds_swizzle")):
                self.w = R[0]
                self.r = set().union(*R[1:])
                if "d16" in mn:
                    self.r |= R[0]
            elif "_rtn" in mn:
                self.w = R[0]
                self.r = set().union(*R[1:])
            else:
                self.r = set().union(*R)
        elif self.vmem:
            if mn.startswith(("buffer_inv", "buffer_wb")):
                pass
            elif self.ldsdma:
                self.r = set().union(*R) | {("s", "m0")}
            elif "_load" in mn:
                self.w = R[0]
                self.r = set().union(*R[1:])
            else:
                self.r = set().union(*R)
                data = R[0] if mn.startswith("buffer_") else R[1]
                if mn.endswith(("x3", "x4")):
                    self.sdata = data
                if "atomic" in mn and "sc0" in mods and mn.startswith("buffer_"):
                    self.w = R[0]
        elif self.salu:
            if mn.startswith(("s_cmp", "s_cbranch", "s_branch", "s_waitcnt", "s_barrier", "s_endpgm", "s_sleep",
                              "s_setprio", "s_bitcmp")):
                self.r = set().union(*R) if R else set()
            else:
                self.w = R[0] if R else set()
                self.r = set().union(*R[1:]) if len(R) > 1 else set()
                if "saveexec" in mn:
                    self.w = self.w | {("s", "exec")}


def need(P, C):
    n = 0
    if not P.mn or not C.mn or P.mn == "s_nop" or C.mn == "s_nop":
        return 0
    Pvw = {r for r in P.w if r[0] in "va"}
    Psw = {r for r in P.w if r[0] == "s"}
    if P.valu:
        if C.mfma and Pvw & C.r:
            n = max(n, 2)
        if P.trans and C.valu and not C.trans and Pvw & C.r:
            n = max(n, 1)
        if C.valu and C.dpp and Pvw & C.r:
            n = max(n, 2)
        if C.mn.startswith(("v_readlane", "v_readfirstlane")) and Pvw & C.r:
            n = max(n, 1)
        if C.mn.startswith("v_permlane") and Pvw & C.r:
            n = max(n, 2)
        if Psw:
            if C.valu and Psw & C.r:
                n = max(n, 4 if C.mn.startswith(("v_readlane", "v_writelane")) else 2)
            if C.vmem and Psw & C.r:
                n = max(n, 5)
            if C.salu and Psw & C.r:
                n = max(n, 1)
        if P.dot and (C.valu or C.mfma or C.vmem or C.ds) and Pvw & (C.r | C.w):
            if not (C.mn == P.mn and not (Pvw & set().union(*[regs_of(o) for o in C.ops[1:3]]))):
                n = max(n, 3)
        if ("sdwa" in P.mn) and C.valu and Pvw & (C.r | C.w):
            n = max(n, 1)
    if P.mfma:
        big = P.passes == 8
        if C.mfma:
            if P.w & C.srcc:
                if not (P.w == C.srcc and P.passes == C.passes):
                    n = max(n, 10 if big else 6)
            if P.w & C.srcab:
                n = max(n, 12 if big else 8)
        elif C.valu or C.vmem or C.ds:
            if P.w & (C.r | C.w):
                n = max(n, 12 if big else 8)
            if C.valu and P.srcc & C.w:
                n = max(n, 7 if big else 3)
    if P.vmem and P.sdata and P.sdata & C.w:
        n = max(n, 2 if C.valu else 1)
    if P.salu and ("s", "m0") in P.w and C.ldsdma:
        n = max(n, 1)
    return n


WAIT_RE = re.compile(r"(vmcnt|lgkmcnt)\((\d+)\)")


class Asm:
    def __init__(self, auto=False):
        self.ins = []
        self.nops = 0
        self.auto = auto
        self.vmq = []
        self.lgq = []

    def _need(self, q, regs=None, tag=None):
        idx = -1
        for i, (r, t) in enumerate(q):
            if (regs and r & regs) or (tag and tag in t):
                idx = i
        return None if idx < 0 else len(q) - 1 - idx

    def _emit_wait(self, nv, nl):
        parts = []
        if nv is not None:
            nv = min(nv, 62)
            parts.append(f"vmcnt({nv})")
            self.vmq = self.vmq[len(self.vmq) - nv:] if nv else []
        if nl is not None:
            nl = min(nl, 14)
            parts.append(f"lgkmcnt({nl})")
            self.lgq = self.lgq[len(self.lgq) - nl:] if nl else []
        if parts:
            self.ins.append(Ins("s_waitcnt " + " ".join(parts)))

    def wait_vm(self, tag):
        self._emit_wait(self._need(self.vmq, tag=tag), None)

    def wait_lgkm(self, tag):
        self._emit_wait(None, self._need(self.lgq, tag=tag))

    def state(self):
        return ([(set(r), set(t)) for r, t in self.vmq], [(set(r), set(t)) for r, t in self.lgq])

    def set_state(self, st):
        self.vmq = [(set(r), set(t)) for r, t in st[0]]
        self.lgq = [(set(r), set(t)) for r, t in st[1]]

    def merge(self, states):
        res = []
        for k in (0, 1):
            n = max(len(st[k]) for st in states)
            q = [(set(), set()) for _ in range(n)]
            for st in states:
                m = len(st[k])
                for i, (r, t) in enumerate(st[k]):
                    q[n - m + i][0].update(r)
                    q[n - m + i][1].update(t)
            res.append(q)
        self.set_state(tuple(res))

    def __call__(self, text):
        for line in text.split("\n"):
            line = line.strip()
            if not line or line.startswith(";"):
                continue
            if line.startswith("WAITVM "):
                self.wait_vm(line.split()[1]); continue
            if line.startswith("WAITLG "):
                self.wait_lgkm(line.split()[1]); continue
            tags = set()
            if " @" in line:
                line, tg = line.rsplit(" @", 1)
                tags = {tg.strip()}
            I = Ins(line)
            if self.auto and I.mn:
                if I.mn == "s_waitcnt":
                    for k, n in WAIT_RE.findall(line):
                        n = int(n)
                        if k == "vmcnt":
                            self.vmq = self.vmq[max(0, len(self.vmq) - n):] if n else []
                        else:
                            self.lgq = self.lgq[max(0, len(self.lgq) - n):] if n else []
                elif I.mn != "s_nop":
                    regs = {r for r in (I.r | I.w) if r[0] in "va"}
                    rv = {r for r in I.r if r[0] in "va"} if I.vmem else regs
                    rl = {r for r in I.r if r[0] in "va"} if I.ds else regs
                    self._emit_wait(self._need(self.vmq, regs=rv), self._need(self.lgq, regs=rl))
                    if I.vmem and not I.mn.startswith(("buffer_inv", "buffer_wb")):
                        self.vmq.append(({r for r in I.w}, tags))
                    elif I.ds:
                        self.lgq.append(({r for r in I.w}, tags))
                    elif I.mn.startswith(("s_load", "s_memtime", "s_memrealtime")):
                        self.lgq.append((set(), {"SMEM"}))
            self.ins.append(I)

    def label(self, name):
        self.ins.append(Ins(name + ":"))

    def _pad(self, out, C):
        dist = 0
        req = 0
        for P in reversed(out):
            if dist >= 20:
                break
            if P.ws == 0:
                continue
            k = need(P, C) - dist
            if k > req:
                req = k
            dist += P.ws
        return req

    def finish(self):
        out = []
        for C in self.ins:
            if C.mn:
                req = self._pad(out, C)
                if req > 0:
                    out.append(Ins(f"s_nop {req-1}"))
                    self.nops += 1
            out.append(C)
        labels = {I.text.split(";")[0].strip()[:-1]: i for i, I in enumerate(out) if I.label}
        for i, I in enumerate(out):
            if I.mn.startswith(("s_cbranch", "s_branch")):
                tgt = labels[I.ops[0]]
                hist = out[max(0, i - 40): i + 1]
                dist = 0
                j = tgt
                hist = list(hist)
                while j < len(out) and dist < 20:
                    C = out[j]
                    if C.mn:
                        req = self._pad(hist, C)
                        if req > 0:
                            raise RuntimeError(f"hazard across branch '{I.text}' at '{C.text}' needs {req} more wait states")
                        dist += C.ws
                        if C.mn in ("s_branch", "s_endpgm"):
                            break
                    hist.append(C)
                    j += 1
        txt = []
        for I in out:
            txt.append(I.text if (I.label or I.directive) else "    " + I.text)
        return "\n".join(txt) + "\n"


def interleave(main, fill, ratio=None):
    out = []
    n, m = len(main), len(fill)
    k = 0
    for i, x in enumerate(main):
        out.append(x)
        tgt = (i + 1) * m // n if ratio is None else min(m, int((i + 1) * ratio))
        while k < tgt:
            out.append(fill[k])
            k += 1
    out.extend(fill[k:])
    return out


def spread(slots, items, lo, hi):
    n = len(items)
    span = hi - lo
    for i, x in enumerate(items):
        slots[lo + (i * span) // n].append(x)


def cost(x):
    c = 0
    for line in x.split("\n"):
        mn = line.strip().split(None, 1)[0] if line.strip() else ""
        if not mn:
            continue
        c += 2 if any(mn.startswith(t) for t in TRANS) or mn.startswith("v_permlane") else 1
    return c


def spread_cost(slots, items, lo, hi):
    have = [sum(cost(x) for x in slots[m]) for m in range(lo, hi)]
    total = sum(have) + sum(cost(x) for x in items)
    per = total / (hi - lo)
    k = 0
    acc = 0.0
    for m in range(lo, hi):
        acc += have[m - lo]
        while k < len(items) and (acc + cost(items[k]) / 2 <= per * (m - lo + 1) or m == hi - 1):
            slots[m].append(items[k])
            acc += cost(items[k])
            k += 1


def pool_sched(uses, reads, pool, maxper, gate=None, pre=0):
    order = []
    last = {}
    first = {}
    for m, fs in enumerate(uses):
        for f in fs:
            if f not in first:
                first[f] = m
                order.append(f)
            last[f] = m
    free = list(pool)
    reg = {}
    slots = [[] for _ in uses]
    pro = []
    k = 0
    while k < len(order) and k < pre:
        reg[order[k]] = free.pop(0)
        pro += reads(order[k], reg[order[k]])
        k += 1
    minlead = 10 ** 9
    credit = 0.0
    for m, fs in enumerate(uses):
        for f in fs:
            assert f in reg, f"fragment {f} not loaded before use at {m}"
            if last[f] == m:
                free.append(reg[f])
        credit = min(credit + maxper(m), max(1.0, maxper(m)) + 0.999)
        while k < len(order) and free and credit >= 1 and (gate is None or gate(order[k], m)):
            f = order[k]
            reg[f] = free.pop(0)
            slots[m] += reads(f, reg[f])
            minlead = min(minlead, first[f] - m)
            k += 1
            credit -= 1
    return reg, pro, slots, minlead
```

```python
import sys, struct, math
from dsl import Asm, interleave

NAME = "recurrent_scan__ssm_conv_s4__mixer_channel_mlp__prompt"
def fbits(x): return "0x%08x" % struct.unpack("<I", struct.pack("<f", x))[0]

Y2F = 0x000000
XNT = 0x280000
W2F = 0x500000
HF  = 0x700000
ST  = 0xD00000
FLG = 0x1000000
PROF = 0x1080000
WS_BYTES = 0x1100000
W1L = 0
LB  = 122880
YT, PY = LB, 1312
XT, PX = LB + 10496, 1344
TAB = LB
TABSZ = 9216
W2S = LB + 27648
KC_OFF, R_OFF = 0, 2816
CBP = 21248
CPITCH = 4160
U_OFF = 16640
PART = 3 * CBP
LDS_BYTES = 163840

P = {n: 16 + 2 * i for i, n in enumerate(
    "x are aim bre bim cre cim ldt dsk bx w1 b1 w2 b2 out dbg ws".split())}
def sp(n): return f"s[{P[n]}:{P[n]+1}]"
SX, SW1, SW2, SOUT, SWS = "s[52:55]", "s[56:59]", "s[60:63]", "s[64:67]", "s[68:71]"
WAVE, XCD, JJ, SID = "s3", "s4", "s5", "s6"

def vr(b, n): return f"v[{b}:{b+n-1}]" if n > 1 else f"v{b}"
def ar(b, n): return f"a[{b}:{b+n-1}]" if n > 1 else f"a{b}"

class G:
    STAMPS = [34, 35, 46, 47, 50, 51, 91, 92, 93, 94, 95, 96, 97, 98]
    def __init__(self, fused, prof=False):
        self.fused = fused
        self.prof = prof
        self.sc = " sc1" if fused else ""
        self.nst = 0
        self.names = []

    def stamp(self, a, name):
        if not self.prof: return
        a(f"s_memtime s[100:101]\ns_waitcnt lgkmcnt(0)\ns_mov_b32 s{self.STAMPS[self.nst]}, s100")
        self.names.append(name)
        self.nst += 1

    def stamp_begin(self, a):
        if not self.prof: return
        self.nst = 0
        a("s_memrealtime s[100:101]\ns_waitcnt lgkmcnt(0)\ns_mov_b32 s99, s100")
        for r in self.STAMPS: a(f"s_mov_b32 s{r}, 0")

    def stamp_dump(self, a, kidx):
        if not self.prof: return
        a("s_mov_b64 exec, -1\ns_waitcnt vmcnt(0)")
        self.stamp(a, "end")
        a("s_memrealtime s[100:101]\ns_waitcnt lgkmcnt(0)")
        for i, r in enumerate(self.STAMPS + [99, 100]):
            a(f"v_mov_b32 v{16+i}, s{r}")
        a(f"""
        s_lshl_b32 s7, s2, 2
        s_add_u32 s7, s7, {WAVE}
        s_lshl_b32 s7, s7, 6
        s_add_u32 s7, s7, {PROF + kidx*65536}
        v_mov_b32 v1, 0
        s_mov_b64 exec, 1
        """)
        for q in range(4):
            a(f"buffer_store_dwordx4 {vr(16+4*q,4)}, v1, {SWS}, s7 offen offset:{16*q}")

    def prologue(self, a, end):
        a(f"""
        s_load_dwordx16 s[16:31], s[0:1], 0
        s_load_dwordx16 s[32:47], s[0:1], 64
        s_load_dwordx2 s[48:49], s[0:1], 128
        s_cmp_ge_u32 s2, 256
        s_cbranch_scc1 {end}
        v_lshrrev_b32 v1, 6, v0
        v_and_b32 v0, 63, v0
        v_readfirstlane_b32 {WAVE}, v1
        s_and_b32 {XCD}, s2, 7
        s_lshr_b32 {JJ}, s2, 3
        s_lshl_b32 {SID}, {XCD}, 5
        s_add_u32 {SID}, {SID}, {JJ}
        s_mov_b32 s54, 2621440
        s_mov_b32 s55, 0x20000
        s_mov_b32 s58, 1966080
        s_mov_b32 s59, 0x20000
        s_mov_b32 s62, 1966080
        s_mov_b32 s63, 0x20000
        s_mov_b32 s66, 2621440
        s_mov_b32 s67, 0x20000
        s_mov_b32 s70, {WS_BYTES}
        s_mov_b32 s71, 0x20000
        s_waitcnt lgkmcnt(0)
        s_mov_b64 s[52:53], {sp('x')}
        s_mov_b64 s[56:57], {sp('w1')}
        s_mov_b64 s[60:61], {sp('w2')}
        s_mov_b64 s[64:65], {sp('out')}
        s_mov_b64 s[68:69], {sp('ws')}
        """)

    def s_loads(self, a):
        a(f"""
        v_lshrrev_b32 v2, 5, v0
        v_and_b32 v3, 31, v0
        v_mul_u32_u24 v1, 1280, v2
        v_lshl_add_u32 v1, v3, 3, v1
        s_lshl_b32 s72, {SID}, 2
        s_add_u32 s72, s72, {WAVE}
        s_mul_i32 s72, s72, 2560
        """)
        for i in range(5):
            a(f"buffer_load_dwordx2 {vr(110+2*i,2)}, v1, {SX}, s72 offen offset:{256*i}")

    def reduce32(self, a, v, t):
        a(f"""
        v_add_f32_dpp v{v}, v{v}, v{v} quad_perm:[1,0,3,2] row_mask:0xf bank_mask:0xf
        v_add_f32_dpp v{v}, v{v}, v{v} quad_perm:[2,3,0,1] row_mask:0xf bank_mask:0xf
        v_add_f32_dpp v{v}, v{v}, v{v} row_half_mirror row_mask:0xf bank_mask:0xf
        v_add_f32_dpp v{v}, v{v}, v{v} row_mirror row_mask:0xf bank_mask:0xf
        v_mov_b32 v{t}, v{v}
        v_permlane16_swap_b32 v{v}, v{t}
        v_add_f32 v{v}, v{v}, v{t}
        """)

    def rbf(self, a, d, s):
        a(f"v_cvt_pk_bf16_f32 v{d}, v{s}, v{s}\nv_lshlrev_b32 v{d}, 16, v{d}")

    def s_compute(self, a, wait):
        X = 120
        a(f"""
        s_lshl_b32 s73, {WAVE}, 1
        v_add_u32 v4, s73, v2
        v_mul_u32_u24 v5, {PY}, v4
        v_mul_u32_u24 v6, {PX}, v4
        v_lshl_add_u32 v5, v3, 3, v5
        v_lshl_add_u32 v6, v3, 3, v6
        v_add_u32 v5, {YT}, v5
        v_add_u32 v6, {XT}, v6
        s_mov_b32 s74, {fbits(1/640)}
        s_mov_b32 s75, {fbits(1e-5)}
        {wait}
        """)
        for k in range(10):
            a(f"v_lshlrev_b32 v{X+2*k}, 16, v{110+k}\nv_and_b32 v{X+2*k+1}, 0xffff0000, v{110+k}")
        a(f"v_pk_add_f32 v[140:141], {vr(X,2)}, {vr(X+2,2)}")
        for k in range(2, 10):
            a(f"v_pk_add_f32 v[140:141], v[140:141], {vr(X+2*k,2)}")
        a("v_add_f32 v140, v140, v141")
        self.reduce32(a, 140, 141)
        a("v_mul_f32 v142, s74, v140")
        for k in range(10):
            a(f"v_pk_add_f32 {vr(X+2*k,2)}, {vr(X+2*k,2)}, v[142:143] op_sel_hi:[1,0] neg_lo:[0,1] neg_hi:[0,1]")
        a(f"v_pk_mul_f32 v[140:141], {vr(X,2)}, {vr(X,2)}")
        for k in range(1, 10):
            a(f"v_pk_fma_f32 v[140:141], {vr(X+2*k,2)}, {vr(X+2*k,2)}, v[140:141]")
        a("v_add_f32 v140, v140, v141")
        self.rbf(a, 148, 142)
        self.reduce32(a, 140, 141)
        a("v_mul_f32 v140, s74, v140")
        a("v_sub_f32 v148, v142, v148")
        self.rbf(a, 141, 140)
        a("v_add_f32 v141, s75, v141")
        self.rbf(a, 141, 141)
        a("v_sqrt_f32 v141, v141")
        self.rbf(a, 141, 141)
        a("v_rcp_f32 v144, v141")
        a("v_mul_f32 v140, v140, v144\nv_mul_f32 v140, v140, v144")
        self.rbf(a, 141, 140)
        a("v_add_f32 v141, s75, v141")
        self.rbf(a, 141, 141)
        a("v_sqrt_f32 v141, v141")
        self.rbf(a, 141, 141)
        a("v_rcp_f32 v146, v141")
        a("v_mul_f32 v148, v148, v144")
        a("v_mul_f32 v146, v146, v144")
        for i in range(5):
            for k in (2*i, 2*i+1):
                a(f"v_pk_mul_f32 v[150:151], {vr(X+2*k,2)}, v[146:147] op_sel_hi:[1,0]")
                a(f"v_cvt_pk_bf16_f32 v{110+k}, v150, v151")
            a(f"ds_write_b64 v5, {vr(110+2*i,2)} offset:{256*i}")
        for i in range(5):
            for k in (2*i, 2*i+1):
                a(f"v_pk_fma_f32 v[150:151], {vr(X+2*k,2)}, v[144:145], v[148:149] op_sel_hi:[1,0,0]")
                a(f"v_cvt_pk_bf16_f32 v{152+k}, v150, v151")
            a(f"ds_write_b64 v6, {vr(152+2*i,2)} offset:{256*i}")

    def s_readtiles(self, a):
        a(f"""
        v_and_b32 v4, 7, v0
        v_lshrrev_b32 v5, 3, v0
        v_mul_u32_u24 v6, {PY}, v4
        v_lshl_add_u32 v6, v5, 4, v6
        v_add_u32 v6, {YT}, v6
        v_lshlrev_b32 v7, 9, v5
        v_lshl_add_u32 v7, v4, 4, v7
        v_bfe_u32 v4, v0, 2, 2
        v_mul_u32_u24 v8, {PX}, v4
        v_lshrrev_b32 v4, 4, v0
        v_lshl_add_u32 v8, v4, 5, v8
        v_and_b32 v4, 3, v0
        v_lshl_add_u32 v8, v4, 3, v8
        v_add_u32 v8, {XT}, v8
        v_lshlrev_b32 v9, 4, v0
        """)

    def s_publish(self, a):
        for I in range(10):
            a(f"ds_read_b128 {vr(110+4*I,4)}, v6 offset:{128*I}")
        for I in range(10):
            a(f"ds_read_b64_tr_b16 {vr(150+4*I,2)}, v8 offset:{128*I}")
            a(f"ds_read_b64_tr_b16 {vr(152+4*I,2)}, v8 offset:{128*I+4*PX}")
        a(f"""
        s_lshr_b32 s72, {SID}, 2
        s_mul_i32 s72, s72, 40960
        s_and_b32 s73, {SID}, 3
        s_lshl_b32 s73, s73, 7
        s_add_u32 s72, s72, s73
        s_mul_i32 s73, {SID}, 10240
        s_add_u32 s73, s73, {XNT}
        s_waitcnt lgkmcnt(0)
        """)

    def s_store_y(self, a):
        for I in range(10):
            a(f"buffer_store_dwordx4 {vr(110+4*I,4)}, v7, {SWS}, s72 offen{self.sc}")
            if I < 9: a("s_add_u32 s72, s72, 4096")

    def s_store_x(self, a):
        for I in range(10):
            if I in (4, 8): a("s_add_u32 s73, s73, 4096")
            a(f"buffer_store_dwordx4 {vr(150+4*I,4)}, v9, {SWS}, s73 offen offset:{1024*(I%4)}{self.sc}")

    def w2_load(self, a):
        a(f"""
        s_mul_i32 s76, s2, 52429
        s_lshr_b32 s76, s76, 18
        s_mul_i32 s77, s76, 5
        s_sub_u32 s77, s2, s77
        v_lshrrev_b32 v12, 4, v0
        v_mul_u32_u24 v12, 1280, v12
        v_and_b32 v13, 15, v0
        v_lshl_add_u32 v12, v13, 4, v12
        s_mul_i32 s78, s76, 40960
        s_lshl_b32 s79, s77, 8
        s_add_u32 s78, s78, s79
        """)
        for i in range(8):
            a(f"s_mov_b32 m0, {W2S+1024*i}")
            a(f"buffer_load_dwordx4 v12, {SW2}, s78 offen lds")
            if i < 7: a("s_add_u32 s78, s78, 5120")

    def w2_store(self, a):
        a(f"""
        v_lshrrev_b32 v12, 5, v0
        v_lshlrev_b32 v12, 12, v12
        v_bfe_u32 v13, v0, 2, 3
        v_lshl_add_u32 v12, v13, 8, v12
        v_and_b32 v13, 3, v0
        v_lshl_add_u32 v12, v13, 3, v12
        v_add_u32 v12, {W2S}, v12
        v_lshlrev_b32 v9, 4, v0
        """)
        for db in range(8):
            a(f"ds_read_b64_tr_b16 {vr(190+4*db,2)}, v12 offset:{32*db}")
            a(f"ds_read_b64_tr_b16 {vr(192+4*db,2)}, v12 offset:{32*db+2048}")
        a(f"""
        s_mul_i32 s78, s77, {8*48}
        s_add_u32 s78, s78, s76
        s_lshl_b32 s78, s78, 10
        s_add_u32 s78, s78, {W2F}
        s_waitcnt lgkmcnt(0)
        """)
        for db in range(8):
            a(f"buffer_store_dwordx4 {vr(190+4*db,4)}, v9, {SWS}, s78 offen{self.sc}")
            if db < 7: a(f"s_add_u32 s78, s78, {48*1024}")

    def g1_ids(self, a):
        a(f"""
        s_lshr_b32 s8, {XCD}, 1
        s_lshl_b32 s8, s8, 2
        s_and_b32 s7, {JJ}, 3
        s_add_u32 s8, s8, s7
        s_and_b32 s9, {XCD}, 1
        s_lshl_b32 s9, s9, 3
        s_lshr_b32 s7, {JJ}, 2
        s_add_u32 s9, s9, s7
        """)

    def w1_addr(self, a, b):
        for p in range(3):
            a(f"""
            v_add_u32 v{b+p}, {64*p}, v0
            v_mul_u32_u24 v{b+3}, 5462, v{b+p}
            v_lshrrev_b32 v{b+3}, 16, v{b+3}
            v_mul_u32_u24 v{b+4}, 12, v{b+3}
            v_sub_u32 v{b+p}, v{b+p}, v{b+4}
            v_lshlrev_b32 v{b+p}, 4, v{b+p}
            v_mul_u32_u24 v{b+3}, 3072, v{b+3}
            v_add_u32 v{b+p}, v{b+p}, v{b+3}
            """)

    def w1_dma_simple(self, a, b):
        a(f"""
        s_mul_i32 s80, s9, 192
        s_mul_i32 s7, {WAVE}, {160*3072}
        s_add_u32 s80, s80, s7
        s_mul_i32 s81, {WAVE}, {160*192}
        """)
        for gq in range(10):
            for p in range(3):
                a(f"s_add_u32 m0, s81, {W1L+3072*gq+1024*p}")
                a(f"buffer_load_dwordx4 v{b+p}, {SW1}, s80 offen lds")
            if gq < 9: a(f"s_add_u32 s80, s80, {16*3072}")

    def kg_loads(self, a):
        a(f"""
        s_mul_i32 s10, {XCD}, 80
        s_mul_i32 s7, {JJ}, 3
        s_add_u32 s10, s10, s7
        s_add_u32 s11, s10, {WAVE}
        s_min_u32 s11, s11, 639
        s_mul_i32 s7, s11, 384
        v_lshlrev_b32 v8, 1, v0
        v_add_u32 v8, s7, v8
        s_lshl_b32 s7, s11, 1
        v_mov_b32 v9, s7
        """)
        a(f"global_load_ushort v28, v9, {sp('ldt')}")
        a(f"global_load_ushort v29, v9, {sp('dsk')}")
        for c in range(3):
            for k, n in enumerate(("are", "aim", "bre", "bim", "cre", "cim")):
                a(f"global_load_ushort v{10+6*c+k}, v8, {sp(n)} offset:{128*c}")

    @staticmethod
    def cmul(d, x, y):
        return [f"v_pk_mul_f32 {vr(d,2)}, {vr(x,2)}, {vr(y,2)} op_sel:[0,0] op_sel_hi:[1,0]",
                f"v_pk_fma_f32 {vr(d,2)}, {vr(x,2)}, {vr(y,2)}, {vr(d,2)} op_sel:[1,1,0] op_sel_hi:[0,1,1] neg_lo:[0,1,0]"]

    def kgen(self, a, wait, first_write_sync=""):
        ACC, VF, UF = 32, 48, 80
        PK = 112
        U = 144
        W1, W8, W256 = 186, 188, 190
        PA, PB = 192, 194
        T = 196
        DT, DTL = 30, 31
        L2E = 1.4426950408889634
        L2E_HI = struct.unpack("<f", struct.pack("<f", L2E))[0]
        L2E_LO = L2E - L2E_HI
        I2P = 1 / (2 * math.pi)
        I2P_HI = struct.unpack("<f", struct.pack("<f", I2P))[0]
        I2P_LO = I2P - I2P_HI
        a(f"""
        s_mul_i32 s82, {WAVE}, {TABSZ}
        s_add_u32 s82, s82, {TAB}
        v_mul_u32_u24 v2, 144, v0
        v_add_u32 v2, s82, v2
        v_lshrrev_b32 v4, 5, v0
        v_bfe_u32 v5, v0, 3, 1
        v_lshl_add_u32 v4, v5, 2, v4
        v_mul_u32_u24 v3, 288, v4
        v_bfe_u32 v5, v0, 2, 1
        v_lshl_add_u32 v3, v5, 6, v3
        v_bfe_u32 v5, v0, 4, 1
        v_lshl_add_u32 v3, v5, 5, v3
        v_and_b32 v5, 3, v0
        v_lshl_add_u32 v3, v5, 3, v3
        v_add_u32 v3, s82, v3
        s_mov_b32 s83, {fbits(L2E_HI)}
        s_mov_b32 s84, {fbits(L2E_LO)}
        s_mov_b32 s85, {fbits(I2P_HI)}
        s_mov_b32 s86, {fbits(I2P_LO)}
        s_mov_b32 s87, {fbits(math.log(2))}
        s_mov_b32 s88, {fbits(256.0)}
        s_mov_b32 s90, {fbits(8.0)}
        """)
        for r in range(16): a(f"v_mov_b32 v{ACC+r}, 0")
        for r in range(8):
            for q in range(4):
                a(f"v_mov_b32 v{VF+4*r+q}, 0\nv_mov_b32 v{UF+4*r+q}, 0")
        a(f"""
        {wait}
        v_lshlrev_b32 v28, 16, v28
        v_mul_f32 v{T}, s83, v28
        v_fma_f32 v{T+1}, v28, s83, -v{T}
        v_fma_f32 v{T+1}, v28, s84, v{T+1}
        v_exp_f32 v{T}, v{T}
        v_mul_f32 v{T+1}, s87, v{T+1}
        v_fma_f32 v{T}, v{T}, v{T+1}, v{T}
        """)
        self.rbf(a, DT, T)
        a(f"v_mul_f32 v{DTL}, s83, v{DT}")
        a("s_mov_b32 s89, 0")
        a.label("L_kg")
        a(f"""
        v_lshlrev_b32 v{T}, 16, v10
        v_lshlrev_b32 v{T+1}, 16, v11
        v_lshlrev_b32 v{T+2}, 16, v12
        v_lshlrev_b32 v{T+3}, 16, v13
        v_lshlrev_b32 v{T+4}, 16, v14
        v_lshlrev_b32 v{T+5}, 16, v15
        v_mul_f32 v{T}, v{T}, v{DTL}              ; a2
        v_mul_f32 v{T+1}, v{T+1}, v{DT}           ; b
        v_mul_f32 v{T+6}, s85, v{T+1}             ; fh
        v_fma_f32 v{T+7}, v{T+1}, s85, -v{T+6}
        v_fma_f32 v{T+7}, v{T+1}, s86, v{T+7}     ; fl
        """)
        for x in self.cmul(T+8, T+4, T+2): a(x)
        a(f"v_pk_mul_f32 {vr(U,2)}, {vr(T+8,2)}, {vr(DT,2)} op_sel_hi:[1,0]")
        for W, sL in ((W8, "s90"), (W1, None), (W256, "s88")):
            if sL:
                a(f"""
                v_mul_f32 v{T+8}, {sL}, v{T}
                v_mul_f32 v{T+9}, {sL}, v{T+6}
                v_exp_f32 v{T+8}, v{T+8}
                v_fract_f32 v{T+9}, v{T+9}
                v_fma_f32 v{T+9}, v{T+7}, {sL}, v{T+9}
                """)
            else:
                a(f"""
                v_exp_f32 v{T+8}, v{T}
                v_fract_f32 v{T+9}, v{T+6}
                v_add_f32 v{T+9}, v{T+7}, v{T+9}
                """)
            a(f"""
            v_cos_f32 v{T+10}, v{T+9}
            v_sin_f32 v{T+11}, v{T+9}
            v_pk_mul_f32 {vr(W,2)}, {vr(T+10,2)}, {vr(T+8,2)} op_sel_hi:[1,0]
            """)
        a(f"v_cvt_pk_bf16_f32 v{PK}, 1.0, v{W8}\nv_cvt_pk_bf16_f32 v{PK+16}, 0, v{W8+1}")
        prev = W8
        for k in range(1, 16):
            for x in self.cmul(PA, prev, W8): a(x)
            nb = PB if (k & 1) else T + 12
            for x in self.cmul(nb, PA, W8): a(x)
            a(f"v_cvt_pk_bf16_f32 v{PK+k}, v{PA}, v{nb}\nv_cvt_pk_bf16_f32 v{PK+16+k}, v{PA+1}, v{nb+1}")
            prev = nb
        a("s_waitcnt lgkmcnt(0)")
        for k in range(8):
            a(f"v_mfma_f32_32x32x16_bf16 {vr(ACC,16)}, {vr(UF+4*k,4)}, {vr(VF+4*k,4)}, {vr(ACC,16)}")
        if first_write_sync:
            a(f"s_cmp_lg_u32 s89, 0\ns_cbranch_scc1 L_kg_ns\n{first_write_sync}")
            a.label("L_kg_ns")
        for q in range(8):
            a(f"ds_write_b128 v2, {vr(PK+4*q,4)} offset:{16*q}")
        def reads(F):
            for k in range(8):
                n0 = 16 * (k >> 1) + 4 * (k & 1)
                for rd in range(2):
                    a(f"ds_read_b64_tr_b16 {vr(F+4*k+2*rd,2)}, v3 offset:{(n0+rd)*144}")
        reads(VF)
        def Ur(i): return U + 2 * i
        for i in range(1, 8):
            for x in self.cmul(Ur(i), Ur(i-1), W1): a(x)
        for i, s in ((8, 0), (9, 2), (10, 4), (11, 6), (12, 8), (13, 10), (14, 12), (15, 13), (16, 14), (17, 16), (18, 17), (19, 18), (20, 19)):
            for x in self.cmul(Ur(i), Ur(s), W256): a(x)
        for k in range(11):
            hi = min(2 * k + 1, 20)
            a(f"v_cvt_pk_bf16_f32 v{PK+k}, v{Ur(2*k)}, v{Ur(hi)}")
            a(f"v_cvt_pk_bf16_f32 v{PK+16+k}, -v{Ur(2*k)+1}, -v{Ur(hi)+1}")
        for q in range(3):
            a(f"ds_write_b128 v2, {vr(PK+4*q,4)} offset:{16*q}")
            a(f"ds_write_b128 v2, {vr(PK+16+4*q,4)} offset:{64+16*q}")
        reads(UF)
        for k in range(12): a(f"v_mov_b32 v{10+k}, v{16+k}")
        a("s_add_u32 s89, s89, 1\ns_cmp_lt_u32 s89, 3\ns_cbranch_scc1 L_kg")
        a(f"""
        v_and_b32 v4, 31, v0                      ; j
        v_lshrrev_b32 v5, 5, v0                   ; hh
        v_lshlrev_b32 v6, 5, v4
        v_lshl_add_u32 v6, v5, 4, v6
        v_add_u32 v6, s82, v6
        v_cmp_eq_u32 vcc, 0, v5
        v_lshlrev_b32 v7, 4, v4
        v_add_u32 v7, 1024, v7                    ; hh=0: (256+4j)*4
        v_lshlrev_b32 v8, 3, v4
        v_add_u32 v8, 1536, v8                    ; hh=1: (384+2j)*4
        v_cndmask_b32 v9, v8, v7, vcc
        v_add_u32 v7, 8, v7
        v_add_u32 v8, 256, v8
        v_cndmask_b32 v10, v8, v7, vcc
        v_add_u32 v9, s82, v9
        v_add_u32 v10, s82, v10
        v_lshlrev_b32 v11, 2, v4
        v_lshl_add_u32 v11, v5, 9, v11
        v_add_u32 v11, s82, v11
        v_lshlrev_b32 v29, 16, v29
        v_cmp_eq_u32 vcc, 0, v0
        v_cndmask_b32 v29, 0, v29, vcc
        v_sub_u32 v12, 63, v0
        v_lshlrev_b32 v13, 3, v12
        v_add_u32 v13, s82, v13                   ; 2*(63-q)*4
        v_lshlrev_b32 v14, 4, v12
        v_add_u32 v14, s82, v14                   ; seg0: 4*(63-q)*4
        v_lshlrev_b32 v15, 5, v0
        v_add_u32 v15, s82, v15
        v_lshlrev_b32 v16, 4, v0
        v_add_u32 v16, s82, v16
        v_lshlrev_b32 v17, 3, v0
        v_add_u32 v17, s82, v17
        s_waitcnt lgkmcnt(0)
        """)
        for k in range(8):
            a(f"v_mfma_f32_32x32x16_bf16 {vr(ACC,16)}, {vr(UF+4*k,4)}, {vr(VF+4*k,4)}, {vr(ACC,16)}")
        a(f"""
        v_add_f32 v{ACC}, v{ACC}, v29
        ds_write_b128 v6, {vr(ACC,4)} offset:{KC_OFF}
        ds_write_b64 v9, {vr(ACC+4,2)} offset:{KC_OFF}
        ds_write_b64 v10, {vr(ACC+6,2)} offset:{KC_OFF}
        ds_write_b32 v11, v{ACC+8} offset:{KC_OFF+2048}
        s_mov_b64 exec, 0xffffffff
        ds_write_b32 v11, v{ACC+9} offset:{KC_OFF+2048+128}
        ds_write_b32 v11, v{ACC+10} offset:{KC_OFF+2048+256}
        ds_write_b32 v11, v{ACC+11} offset:{KC_OFF+2048+384}
        s_mov_b64 exec, -1
        ds_read_b64 v[48:49], v13 offset:{KC_OFF+512*4}
        ds_read_b32 v50, v13 offset:{KC_OFF+512*4+8}
        ds_read_b64 v[52:53], v13 offset:{KC_OFF+384*4}
        ds_read_b32 v54, v13 offset:{KC_OFF+384*4+8}
        ds_read_b64 v[56:57], v13 offset:{KC_OFF+256*4}
        ds_read_b32 v58, v13 offset:{KC_OFF+256*4+8}
        ds_read_b128 v[60:63], v14 offset:{KC_OFF}
        v_mov_b32 v84, 0
        v_mov_b32 v85, 0
        s_waitcnt lgkmcnt(0)
        v_cvt_pk_bf16_f32 v64, v50, v50
        v_cvt_pk_bf16_f32 v65, v50, v50
        v_cvt_pk_bf16_f32 v66, v49, v49
        v_cvt_pk_bf16_f32 v67, v49, v49
        v_cvt_pk_bf16_f32 v68, v49, v49
        v_cvt_pk_bf16_f32 v69, v49, v48
        v_cvt_pk_bf16_f32 v70, v48, v48
        v_cvt_pk_bf16_f32 v71, v48, v48
        v_cvt_pk_bf16_f32 v72, v54, v54
        v_cvt_pk_bf16_f32 v73, v53, v53
        v_cvt_pk_bf16_f32 v74, v53, v52
        v_cvt_pk_bf16_f32 v75, v52, v52
        v_cvt_pk_bf16_f32 v76, v58, v57
        v_cvt_pk_bf16_f32 v77, v56, v56
        v_cvt_pk_bf16_f32 v78, v63, v62
        v_cvt_pk_bf16_f32 v79, v61, v60
        ds_write_b128 v15, v[64:67] offset:{R_OFF}
        ds_write_b128 v15, v[68:71] offset:{R_OFF+16}
        ds_write_b128 v16, v[72:75] offset:{R_OFF+2048}
        ds_write_b64 v17, v[76:77] offset:{R_OFF+3072}
        ds_write_b64 v17, v[78:79] offset:{R_OFF+3584}
        s_mov_b64 exec, 0xffff
        ds_write_b64 v17, v[84:85] offset:{R_OFF+4096}
        s_mov_b64 exec, -1
        """)

    G1_Y, G1_ACC, G1_A = 96, 48, 16
    def g1_bias_load(self, a):
        a(f"""
        v_lshrrev_b32 v4, 5, v0
        v_lshlrev_b32 v4, 3, v4
        s_mul_i32 s7, s9, 192
        v_add_u32 v4, s7, v4
        """)
        for q in range(12):
            a(f"global_load_dwordx2 {vr(16+2*q,2)}, v4, {sp('b1')} offset:{16*q}")

    def g1_bias_unpack(self, a):
        for q in range(24):
            a(f"v_lshlrev_b32 v{self.G1_ACC+2*q}, 16, v{16+q}\nv_and_b32 v{self.G1_ACC+2*q+1}, 0xffff0000, v{16+q}")

    def g1_addr(self, a):
        a(f"""
        v_lshrrev_b32 v4, 5, v0
        v_bfe_u32 v5, v0, 2, 2
        v_lshl_add_u32 v5, v4, 3, v5
        v_mul_u32_u24 v2, 192, v5
        v_bfe_u32 v5, v0, 4, 1
        v_lshl_add_u32 v2, v5, 5, v2
        v_and_b32 v6, 3, v0
        v_lshl_add_u32 v2, v6, 3, v2              ; A base0
        v_add_u32 v3, 61440, v2                   ; A base1
        v_mul_u32_u24 v7, 49152, v5
        v_lshl_add_u32 v7, v4, 8, v7
        v_and_b32 v6, 15, v0
        v_lshl_add_u32 v7, v6, 4, v7
        v_lshlrev_b32 v1, 4, v0
        s_lshl_b32 s72, s8, 2
        s_add_u32 s72, s72, {WAVE}
        s_mul_i32 s73, s72, 96
        s_mul_i32 s72, s72, 40960                 ; y2f soffset
        s_mul_i32 s7, s9, 3
        s_add_u32 s73, s73, s7
        s_lshl_b32 s73, s73, 10
        s_add_u32 s73, s73, {HF}
        s_mov_b32 s74, {fbits(-1.5957691216057308*1.4426950408889634)}
        s_mov_b32 s75, {fbits(-1.5957691216057308*0.044715*1.4426950408889634)}
        """)

    def g1_yloads(self, a):
        for ks in range(40):
            a(f"buffer_load_dwordx4 {vr(self.G1_Y+4*ks,4)}, v1, {SWS}, s72 offen offset:{1024*(ks%4)}{self.sc}")
            if ks % 4 == 3 and ks < 39: a("s_add_u32 s72, s72, 4096")

    def g1_aread(self, dst, fb, ks):
        base = "v2" if ks < 20 else "v3"
        off = W1L + (ks % 20) * 3072 + fb * 64
        return [f"ds_read_b64_tr_b16 {vr(dst,2)}, {base} offset:{off}",
                f"ds_read_b64_tr_b16 {vr(dst+2,2)}, {base} offset:{off+768}"]

    def gelu_scalar(self, acc, out, t):
        L = []
        for k in range(8):
            x0, x1 = acc + 2*k, acc + 2*k + 1
            L += [f"v_mul_f32 v{t}, v{x0}, v{x0}", f"v_mul_f32 v{t+1}, v{x1}, v{x1}",
                  f"v_fma_f32 v{t}, v{t}, s75, v8", f"v_fma_f32 v{t+1}, v{t+1}, s75, v8",
                  f"v_mul_f32 v{t}, v{t}, v{x0}", f"v_mul_f32 v{t+1}, v{t+1}, v{x1}",
                  f"v_exp_f32 v{t}, v{t}", f"v_exp_f32 v{t+1}, v{t+1}",
                  f"v_add_f32 v{t}, 1.0, v{t}", f"v_add_f32 v{t+1}, 1.0, v{t+1}",
                  f"v_rcp_f32 v{t}, v{t}", f"v_rcp_f32 v{t+1}, v{t+1}",
                  f"v_mul_f32 v{t}, v{t}, v{x0}", f"v_mul_f32 v{t+1}, v{t+1}, v{x1}",
                  f"v_cvt_pk_bf16_f32 v{out+k}, v{t}, v{t+1}"]
        return L

    def gelu_packed(self, acc, out, t):
        L = []
        for k in range(0, 8, 2):
            xs = [acc + 2*k, acc + 2*k + 2]
            ts = [t, t + 2]
            for x, q in zip(xs, ts): L.append(f"v_pk_mul_f32 {vr(q,2)}, {vr(x,2)}, {vr(x,2)}")
            for x, q in zip(xs, ts): L.append(f"v_pk_fma_f32 {vr(q,2)}, {vr(q,2)}, v[8:9], v[8:9] op_sel:[0,1,0] op_sel_hi:[1,1,0]")
            for x, q in zip(xs, ts): L.append(f"v_pk_mul_f32 {vr(q,2)}, {vr(q,2)}, {vr(x,2)}")
            for q in range(t, t + 4): L.append(f"v_exp_f32 v{q}, v{q}")
            for x, q in zip(xs, ts): L.append(f"v_pk_add_f32 {vr(q,2)}, {vr(q,2)}, v[10:11]")
            for q in range(t, t + 4): L.append(f"v_rcp_f32 v{q}, v{q}")
            for x, q in zip(xs, ts): L.append(f"v_pk_mul_f32 {vr(q,2)}, {vr(q,2)}, {vr(x,2)}")
            for i, q in enumerate(ts): L.append(f"v_cvt_pk_bf16_f32 v{out+k+i}, v{q}, v{q+1}")
        return L

    def g1_store(self, out, fb):
        return [f"buffer_store_dwordx4 {vr(out+4*c,4)}, v7, {SWS}, s73 offen offset:{1024*fb+512*c}{self.sc}" for c in range(2)]

    def gemm1(self, a, younger=0):
        Y, ACC, A = self.G1_Y, self.G1_ACC, self.G1_A
        a("v_mov_b32 v8, s74\nv_mov_b32 v9, s75\nv_mov_b32 v10, 1.0\nv_mov_b32 v11, 1.0")
        D = 3
        def slot(ks, fb): return A + ((ks % 4) * 2 + fb) * 4
        for ks in range(D):
            for fb in range(2):
                for x in self.g1_aread(slot(ks, fb), fb, ks): a(x)
        for ks in range(40):
            nxt = []
            if ks + D < 40:
                for fb in range(2): nxt += self.g1_aread(slot(ks + D, fb), fb, ks + D)
            else:
                k2 = ks + D - 40
            rem = min(D, 40 - ks) - 1
            a(f"s_waitcnt vmcnt({min(63, 39-ks+younger)}) lgkmcnt({4*rem})")
            a(f"v_mfma_f32_32x32x16_bf16 {vr(ACC,16)}, {vr(slot(ks,0),4)}, {vr(Y+4*ks,4)}, {vr(ACC,16)}")
            for x in nxt[:2]: a(x)
            a(f"v_mfma_f32_32x32x16_bf16 {vr(ACC+16,16)}, {vr(slot(ks,1),4)}, {vr(Y+4*ks,4)}, {vr(ACC+16,16)}")
            for x in nxt[2:]: a(x)
        self.stamp(a, 'g1.pass1')
        D2 = 3
        def slot2(ks): return A + (ks % 4) * 4
        for ks in range(D2):
            for x in self.g1_aread(slot2(ks), 2, ks): a(x)
        fill = self.gelu_scalar(ACC, 32, 12) + self.g1_store(32, 0)
        k = 0
        for ks in range(40):
            rem = min(D2, 40 - ks) - 1
            a(f"s_waitcnt lgkmcnt({2*rem})")
            a(f"v_mfma_f32_32x32x16_bf16 {vr(ACC+32,16)}, {vr(slot2(ks),4)}, {vr(Y+4*ks,4)}, {vr(ACC+32,16)}")
            if ks + D2 < 40:
                for x in self.g1_aread(slot2(ks + D2), 2, ks + D2): a(x)
            tgt = (ks + 1) * len(fill) // 40
            while k < tgt:
                a(fill[k]); k += 1
        self.stamp(a, 'g1.pass2')
        for x in self.gelu_packed(ACC + 16, 40, 12) + self.g1_store(40, 1): a(x)
        for x in self.gelu_packed(ACC + 32, 16, 12) + self.g1_store(16, 2): a(x)

    def u_loads(self, a):
        for i in range(3):
            a(f"""
            s_mul_i32 s7, {WAVE}, 192
            s_add_u32 s7, s7, {64*i}
            v_add_u32 v12, s7, v0
            v_mul_u32_u24 v13, 21846, v12
            v_lshrrev_b32 v13, 16, v13                ; tb8
            v_mul_u32_u24 v14, 3, v13
            v_sub_u32 v12, v12, v14                   ; ch
            v_mul_u32_u24 v14, 10240, v13
            v_lshl_add_u32 v14, v12, 4, v14
            s_lshl_b32 s7, s10, 4
            s_add_u32 s7, s7, {XNT}
            buffer_load_dwordx4 {ar(240+4*i,4)}, v14, {SWS}, s7 offen{self.sc}
            v_mul_u32_u24 v12, {CBP}, v12
            v_lshl_add_u32 v12, v13, 4, v12
            v_accvgpr_write_b32 a{252+i}, v12
            """)

    def conv_setup(self, a, wait):
        a(f"""
        v_accvgpr_read_b32 v12, a252
        v_accvgpr_read_b32 v13, a253
        v_accvgpr_read_b32 v14, a254
        s_cmp_eq_u32 {WAVE}, 3
        s_cbranch_scc1 L_cv_noexp
        s_mul_i32 s82, {WAVE}, {TABSZ}
        s_add_u32 s82, s82, {TAB+R_OFF}
        s_mul_i32 s83, {WAVE}, {CBP}
        v_lshlrev_b32 v4, 4, v0
        v_add_u32 v5, s83, v4
        v_add_u32 v4, s82, v4
        """)
        for p in range(5):
            a(f"ds_read_b128 {vr(20+8*p,4)}, v4 offset:{1024*p}\nds_read_b64 {vr(24+8*p,2)}, v4 offset:{1024*p+16}")
        a(f"""
        v_mov_b32 v16, 0
        v_mov_b32 v17, 0
        v_lshlrev_b32 v6, 3, v0
        v_add_u32 v6, s83, v6
        ds_write_b64 v6, v[16:17] offset:{U_OFF}
        """)
        for p in range(5):
            E = 20 + 8 * p
            O = 64 + 12 * p
            a(f"s_waitcnt lgkmcnt({min(15, 2*(4-p)+1+4*p)})")
            if p == 4: a("s_mov_b64 exec, 0xf")
            a(f"ds_write_b128 v5, {vr(E,4)} offset:{1024*p}")
            for k in range(4): a(f"v_alignbit_b32 v{O+k}, v{E+k+1}, v{E+k}, 16")
            a(f"ds_write_b128 v5, {vr(O,4)} offset:{1024*p+CPITCH}")
            a(f"v_pk_mov_b32 {vr(O+4,2)}, {vr(E,2)}, {vr(E+2,2)} op_sel:[1,0]")
            a(f"v_pk_mov_b32 {vr(O+6,2)}, {vr(E+2,2)}, {vr(E+4,2)} op_sel:[1,0]")
            a(f"ds_write_b128 v5, {vr(O+4,4)} offset:{1024*p+2*CPITCH}")
            for k in range(4): a(f"v_alignbit_b32 v{O+8+k}, v{E+k+2}, v{E+k+1}, 16")
            a(f"ds_write_b128 v5, {vr(O+8,4)} offset:{1024*p+3*CPITCH}")
        a("s_mov_b64 exec, -1")
        a.label("L_cv_noexp")
        a(wait)
        for i in range(3):
            a(f"ds_write_b128 v{12+i}, {ar(240+4*i,4)} offset:{U_OFF+512}")

    def conv_main(self, a):
        ACC = 16
        SET = (48, 112)
        a(f"""
        v_and_b32 v4, 15, v0
        v_lshrrev_b32 v5, 4, v0
        v_sub_u32 v6, 15, v4                      ; i'
        v_and_b32 v7, 3, v6
        v_mul_u32_u24 v2, {CPITCH}, v7
        v_and_b32 v7, 12, v6
        v_lshl_add_u32 v2, v7, 1, v2
        v_lshl_add_u32 v2, v5, 4, v2
        v_lshlrev_b32 v3, 5, v4
        v_lshl_add_u32 v3, v5, 4, v3
        s_cmp_eq_u32 {WAVE}, 3
        s_cselect_b32 s82, 0, {WAVE}
        s_cselect_b32 s83, {-6*64}, 0
        s_cselect_b32 s84, {CBP+128}, 0
        s_sub_u32 s84, s84, 64
        s_mul_i32 s82, s82, {CBP}
        s_add_u32 s82, s82, s83
        s_add_u32 s82, s82, 448
        v_add_u32 v2, s82, v2
        v_add_u32 v3, s82, v3
        v_lshlrev_b32 v8, 4, v0
        v_add_u32 v8, {PART}, v8
        """)
        for r in range(32): a(f"v_mov_b32 v{ACC+r}, 0")
        def reads(S):
            L = []
            for e in range(8):
                L.append(f"ds_read_b128 {vr(S+32+4*e,4)}, v3 offset:{U_OFF+32+512*e}")
                o = 64 * (56 - 8 * e)
                L.append(f"ds_read_b64 {vr(S+4*e,2)}, v2 offset:{o}")
                L.append(f"ds_read_b64 {vr(S+4*e+2,2)}, v2 offset:{o+8}")
            return L
        def mfmas(S):
            L = []
            for c in range(8):
                for e in range(8 - c):
                    L.append(f"v_mfma_f32_16x16x32_bf16 {vr(ACC+4*(e+c),4)}, {vr(S+4*e,4)}, {vr(S+32+4*c,4)}, {vr(ACC+4*(e+c),4)}")
            return L
        a("s_waitcnt lgkmcnt(0)\ns_barrier")
        for x in reads(SET[0]): a(x)
        a("s_mov_b32 s85, 0")
        a.label("L_cv")
        a("v_add_u32 v2, -64, v2\nv_add_u32 v3, -64, v3\ns_waitcnt lgkmcnt(0)")
        for x in interleave(mfmas(SET[0]), reads(SET[1]), 0.9): a(x)
        a("v_add_u32 v2, s84, v2\nv_add_u32 v3, s84, v3\ns_waitcnt lgkmcnt(0)")
        for x in interleave(mfmas(SET[1]), reads(SET[0]), 0.9): a(x)
        a(f"s_cmp_lg_u32 {WAVE}, 3\ns_cbranch_scc1 L_cv_nd")
        for b in range(8):
            a(f"ds_write_b128 v8, {vr(ACC+4*b,4)} offset:{1024*b}")
        a("v_add_u32 v8, 8192, v8")
        for r in range(32): a(f"v_mov_b32 v{ACC+r}, 0")
        a.label("L_cv_nd")
        a("s_add_u32 s85, s85, 1\ns_cmp_lt_u32 s85, 3\ns_cbranch_scc1 L_cv")
        a("s_waitcnt lgkmcnt(0)\ns_barrier")

    def conv_out(self, a):
        ACC = 16
        a(f"""
        s_lshl_b32 s7, {WAVE}, 13
        v_add_u32 v8, s7, v8
        """)
        for b in range(8): a(f"ds_read_b128 {vr(48+4*b,4)}, v8 offset:{1024*b}")
        a(f"""
        s_mul_i32 s83, {WAVE}, {CBP}
        v_and_b32 v4, 15, v0
        v_lshrrev_b32 v5, 4, v0
        v_lshlrev_b32 v6, 5, v4
        v_lshl_add_u32 v6, v5, 3, v6
        v_add_u32 v6, s83, v6
        v_lshlrev_b32 v1, 4, v0
        v_add_u32 v7, s83, v1
        s_add_u32 s7, s10, {WAVE}
        s_lshl_b32 s7, s7, 12
        s_add_u32 s7, s7, {ST}
        """)
        for b in range(8):
            a(f"s_waitcnt lgkmcnt({7-b+b})" if False else f"s_waitcnt lgkmcnt(7)")
            a(f"v_pk_add_f32 {vr(ACC+4*b,2)}, {vr(ACC+4*b,2)}, {vr(48+4*b,2)}")
            a(f"v_pk_add_f32 {vr(ACC+4*b+2,2)}, {vr(ACC+4*b+2,2)}, {vr(50+4*b,2)}")
            a(f"v_cvt_pk_bf16_f32 v{80+2*b}, v{ACC+4*b}, v{ACC+4*b+1}")
            a(f"v_cvt_pk_bf16_f32 v{81+2*b}, v{ACC+4*b+2}, v{ACC+4*b+3}")
            a(f"ds_write_b64 v6, {vr(80+2*b,2)} offset:{512*b}")
        for q in range(4): a(f"ds_read_b128 {vr(96+4*q,4)}, v7 offset:{1024*q}")
        for q in range(4):
            a(f"s_waitcnt lgkmcnt({3-q})")
            a(f"buffer_store_dwordx4 {vr(96+4*q,4)}, v1, {SWS}, s7 offen offset:{1024*q}{self.sc}")

    def g2_ids(self, a):
        a(f"""
        s_lshl_b32 s12, {XCD}, 2
        s_and_b32 s7, {JJ}, 3
        s_add_u32 s12, s12, s7
        s_lshr_b32 s13, {JJ}, 2
        """)

    def w2f_loads(self, vaddr, sreg):
        L = [f"s_mul_i32 {sreg}, s13, {5*48}", f"s_mul_i32 s7, {WAVE}, 12", f"s_add_u32 {sreg}, {sreg}, s7",
             f"s_lshl_b32 {sreg}, {sreg}, 10", f"s_add_u32 {sreg}, {sreg}, {W2F}"]
        for jb in range(5):
            for kk in range(12):
                L.append(f"buffer_load_dwordx4 {ar((kk*5+jb)*4,4)}, {vaddr}, {SWS}, {sreg} offen offset:{1024*(kk%4)}{self.sc}")
                if kk % 4 == 3:
                    L.append(f"s_add_u32 {sreg}, {sreg}, {4096 if kk < 11 else 4096+36*1024}")
        return L[:-1]

    G2_B = 64
    def g2_hloads(self, a):
        a("v_lshlrev_b32 v1, 4, v0")
        for rho in range(4):
            a(f"""
            s_add_u32 s7, {WAVE}, {rho+1}
            s_and_b32 s7, s7, 3
            s_lshl_b32 s72, s12, 2
            s_add_u32 s72, s72, s7
            s_lshl_b32 s72, s72, 2
            s_add_u32 s72, s72, {WAVE}
            s_mul_i32 s72, s72, {12*1024}
            s_add_u32 s72, s72, {HF}
            """)
            for kk in range(12):
                a(f"buffer_load_dwordx4 {vr(self.G2_B+(rho*12+kk)*4,4)}, v1, {SWS}, s72 offen offset:{1024*(kk%4)}{self.sc}")
                if kk % 4 == 3 and kk < 11: a("s_add_u32 s72, s72, 4096")

    G2P = 0
    G2W = 98304
    G2X = 0
    G2S = 3072
    def g2_side_loads(self, a):
        a(f"""
        v_lshrrev_b32 v4, 4, v0
        v_lshlrev_b32 v4, 3, v4
        s_mul_i32 s7, s13, 160
        v_add_u32 v4, s7, v4
        """)
        for jb in range(5):
            a(f"global_load_dwordx2 {vr(54+2*jb,2)}, v4, {sp('b2')} offset:{32*jb}")
        for i in range(3):
            a(f"""
            v_add_u32 v5, {64*i}, v0
            v_mul_u32_u24 v6, 6554, v5
            v_lshrrev_b32 v6, 16, v6
            v_mul_u32_u24 v7, 10, v6
            v_sub_u32 v5, v5, v7
            v_mul_u32_u24 v6, 1280, v6
            v_lshl_add_u32 v{9+i}, v5, 4, v6
            """)
        a(f"""
        s_lshl_b32 s14, s12, 2
        s_add_u32 s14, s14, {WAVE}
        s_mul_i32 s14, s14, {16*1280}
        s_mul_i32 s7, s13, 160
        s_add_u32 s14, s14, s7
        s_mul_i32 s15, {WAVE}, 6144
        s_add_u32 s15, s15, {self.G2W}
        """)
        for i in range(3):
            a(f"s_add_u32 m0, s15, {self.G2X+1024*i}")
            a(f"buffer_load_dwordx4 v{9+i}, {SX}, s14 offen lds")

    def g2_sloads(self, a, dst):
        a(f"""
        v_lshrrev_b32 v5, 1, v0
        v_lshlrev_b32 v5, 12, v5
        v_and_b32 v6, 1, v0
        v_lshl_add_u32 v5, v6, 4, v5
        s_mul_i32 s76, s13, {80*4096}
        s_lshl_b32 s7, s12, 2
        s_add_u32 s7, s7, {WAVE}
        s_lshl_b32 s7, s7, 5
        s_add_u32 s76, s76, s7
        s_add_u32 s76, s76, {ST}
        buffer_load_dwordx4 {vr(dst,4)}, v5, {SWS}, s76 offen{self.sc}
        s_add_u32 s76, s76, {32*4096}
        buffer_load_dwordx4 {vr(dst+4,4)}, v5, {SWS}, s76 offen{self.sc}
        s_add_u32 s76, s76, {32*4096}
        s_mov_b64 exec, 0xffffffff
        buffer_load_dwordx4 {vr(dst+8,4)}, v5, {SWS}, s76 offen{self.sc}
        s_mov_b64 exec, -1
        """)

    def gemm2(self, a, spoll=None):
        B = self.G2_B
        AC = (14, 34)
        a(f"""
        v_lshlrev_b32 v1, 4, v0
        """)
        for rho in range(4):
            acc = AC[rho & 1]
            fill = []
            if rho >= 1:
                pacc = AC[(rho - 1) & 1]
                fill += [f"s_add_u32 s7, {WAVE}, {rho}", "s_and_b32 s7, s7, 3", "s_mul_i32 s7, s7, 15360",
                         f"s_add_u32 s7, s7, {self.G2P+5120*(rho-1)}", "v_add_u32 v2, s7, v1"]
                fill += [f"ds_write_b128 v2, {vr(pacc+4*jb,4)} offset:{1024*jb}" for jb in range(5)]
            if rho == 2:
                nacc = AC[1]
                fill += ["s_nop 0"] * 4
                for q in range(10):
                    fill += [f"v_lshlrev_b32 v{nacc+2*q}, 16, v{54+q}", f"v_and_b32 v{nacc+2*q+1}, 0xffff0000, v{54+q}"]
            if rho == 3:
                fill += ["s_waitcnt lgkmcnt(0)", "s_barrier", f"s_mul_i32 s7, {WAVE}, 15360", f"v_add_u32 v2, s7, v1"]
                fill += [f"ds_read_b128 {vr(B+4*q,4)}, v2 offset:{self.G2P+1024*q}" for q in range(15)]
                fill += ["s_waitcnt lgkmcnt(0)"]
                fill += [f"v_add_f32 v{B+q}, v{B+q}, v{B+20+q}" for q in range(20)]
                fill += [f"v_add_f32 v{B+q}, v{B+q}, v{B+40+q}" for q in range(20)]
            main = []
            for kk in range(12):
                for jb in range(5):
                    c = vr(acc + 4*jb, 4) if (kk > 0 or rho == 3) else "0"
                    m = f"v_mfma_f32_16x16x32_bf16 {vr(acc+4*jb,4)}, {ar((kk*5+jb)*4,4)}, {vr(B+(rho*12+kk)*4,4)}, {c}"
                    if jb == 0:
                        left = 47 - (rho * 12 + kk)
                        extra = 3 if rho == 3 else 0
                        m = f"s_waitcnt vmcnt({left+extra})\n" + m
                    main.append(m)
            if rho == 3:
                if spoll: spoll(a)
                self.g2_sloads(a, B + 64)
            seq = main[:4] + interleave(main[4:], fill, 1.4)
            for x in seq: a(x)
        self.stamp(a, 'g2.mfma')
        acc = AC[1]
        S = B + 64
        a(f"""
        v_add_u32 v2, s15, v1
        v_lshlrev_b32 v3, 3, v0
        v_add_u32 v3, s15, v3
        v_and_b32 v4, 15, v0
        v_mul_u32_u24 v4, 160, v4
        v_lshrrev_b32 v5, 4, v0
        v_lshl_add_u32 v4, v5, 3, v4
        v_add_u32 v4, s15, v4
        s_mov_b32 s74, {fbits(-1.4426950408889634)}
        v_mov_b32 v12, s74
        v_mov_b32 v13, 1.0
        s_waitcnt vmcnt(0)
        """)
        for i in range(3): a(f"ds_write_b128 v2, {vr(S+4*i,4)} offset:{self.G2S+1024*i}")
        for jb in range(5): a(f"ds_read_b64_tr_b16 {vr(S+12+2*jb,2)}, v3 offset:{self.G2S+512*jb}")
        for jb in range(5): a(f"ds_read_b64 {vr(S+22+2*jb,2)}, v4 offset:{self.G2X+32*jb}")
        Z, T = acc, B + 20
        for q in range(10): a(f"v_pk_add_f32 {vr(Z+2*q,2)}, {vr(Z+2*q,2)}, {vr(B+2*q,2)}")
        for q in range(10): a(f"v_pk_mul_f32 {vr(T+2*q,2)}, {vr(Z+2*q,2)}, v[12:13] op_sel_hi:[1,0]")
        for q in range(20): a(f"v_exp_f32 v{T+q}, v{T+q}")
        for q in range(10): a(f"v_pk_add_f32 {vr(T+2*q,2)}, {vr(T+2*q,2)}, v[12:13] op_sel:[0,1]")
        for q in range(20): a(f"v_rcp_f32 v{T+q}, v{T+q}")
        for q in range(10): a(f"v_pk_mul_f32 {vr(Z+2*q,2)}, {vr(Z+2*q,2)}, {vr(T+2*q,2)}")
        a("s_waitcnt lgkmcnt(0)")
        for q in range(10):
            a(f"""
            v_lshlrev_b32 v{T}, 16, v{S+12+q}
            v_and_b32 v{T+1}, 0xffff0000, v{S+12+q}
            v_lshlrev_b32 v{T+2}, 16, v{S+22+q}
            v_and_b32 v{T+3}, 0xffff0000, v{S+22+q}
            v_pk_fma_f32 {vr(T,2)}, {vr(T,2)}, {vr(Z+2*q,2)}, {vr(T+2,2)}
            v_cvt_pk_bf16_f32 v{S+22+q}, v{T}, v{T+1}
            """)
            if q & 1: a(f"ds_write_b64 v4, {vr(S+22+q-1,2)} offset:{self.G2X+32*(q>>1)}")
        for i in range(3): a(f"ds_read_b128 {vr(S+4*i,4)}, v2 offset:{self.G2X+1024*i}")
        for i in range(3):
            a(f"s_waitcnt lgkmcnt({2-i})")
            if i == 2: a("s_mov_b64 exec, 0xffffffff")
            a(f"buffer_store_dwordx4 {vr(S+4*i,4)}, v{9+i}, {SOUT}, s14 offen")


def kdesc(name):
    return f""".amdhsa_kernel {name}
  .amdhsa_next_free_vgpr 512
  .amdhsa_next_free_sgpr 102
  .amdhsa_accum_offset 256
  .amdhsa_group_segment_fixed_size 0
  .amdhsa_kernarg_size 136
  .amdhsa_user_sgpr_count 2
  .amdhsa_user_sgpr_kernarg_segment_ptr 1
  .amdhsa_system_sgpr_workgroup_id_x 1
.end_amdhsa_kernel
"""

def khead(name):
    return f".globl {name}\n.p2align 8\n.type {name},@function\n{name}:\n"

def header():
    src = open(f"cdna_kernels/{NAME}.s.ref").read().splitlines()
    return "\n".join(l for l in src if l.startswith(";") and "@launch" not in l and not l.startswith("; Override") and not l.startswith("; grid=")) + "\n"

def build3(prof=False):
    g = G(False, prof)
    a = Asm()
    g.prologue(a, "L_end0")
    g.stamp_begin(a); g.stamp(a, "k0.start")
    g.s_loads(a)
    a(f"s_cmp_lg_u32 {WAVE}, 3\ns_cbranch_scc1 L0_a\ns_cmp_ge_u32 s2, 240\ns_cbranch_scc1 L0_a")
    g.w2_load(a)
    a.label("L0_a")
    if prof: a("s_waitcnt vmcnt(0)")
    g.stamp(a, "k0.loaded")
    g.s_compute(a, "s_waitcnt vmcnt(0)")
    g.stamp(a, "k0.computed")
    a(f"s_waitcnt lgkmcnt(0)\ns_barrier\ns_cmp_lg_u32 {WAVE}, 3\ns_cbranch_scc1 L_fin0")
    g.s_readtiles(a); g.s_publish(a); g.s_store_y(a); g.s_store_x(a)
    g.stamp(a, "k0.stores_issued")
    a("s_cmp_ge_u32 s2, 240\ns_cbranch_scc1 L_fin0")
    g.w2_store(a)
    a.label("L_fin0")
    g.stamp_dump(a, 0)
    a.label("L_end0")
    a("s_endpgm")
    k0 = a.finish()
    a = Asm()
    g.prologue(a, "L_end1")
    g.stamp_begin(a); g.stamp(a, "k1.start")
    g.g1_ids(a)
    g.kg_loads(a)
    g.w1_addr(a, 2)
    g.w1_dma_simple(a, 2)
    g.stamp(a, "k1.dma_issued")
    a(f"s_cmp_eq_u32 {WAVE}, 3\ns_cbranch_scc1 L1_a\ns_cmp_ge_u32 {JJ}, 27\ns_cbranch_scc1 L1_a")
    g.kgen(a, "s_waitcnt vmcnt(30)")
    a.label("L1_a")
    g.stamp(a, "k1.kgen_done")
    a("s_waitcnt vmcnt(0)")
    g.g1_bias_load(a)
    g.g1_addr(a)
    g.u_loads(a)
    a("s_waitcnt vmcnt(3)")
    g.g1_bias_unpack(a)
    g.g1_yloads(a)
    g.stamp(a, "k1.yissued")
    a("s_waitcnt lgkmcnt(0)\ns_barrier")
    g.stamp(a, "k1.bar")
    g.gemm1(a)
    g.stamp(a, "k1.g1done")
    a(f"s_cmp_ge_u32 {JJ}, 27\ns_cbranch_scc1 L_fin1")
    a("s_waitcnt lgkmcnt(0)\ns_barrier")
    g.conv_setup(a, "")
    g.stamp(a, "k1.cvsetup")
    g.conv_main(a)
    g.stamp(a, "k1.cvmain")
    a(f"s_cmp_eq_u32 {WAVE}, 3\ns_cbranch_scc1 L_fin1")
    g.conv_out(a)
    g.stamp(a, "k1.cvout")
    a.label("L_fin1")
    g.stamp_dump(a, 1)
    a.label("L_end1")
    a("s_endpgm")
    k1 = a.finish()
    a = Asm()
    g.prologue(a, "L_end2")
    g.stamp_begin(a); g.stamp(a, "k2.start")
    g.g2_ids(a)
    a("v_lshlrev_b32 v1, 4, v0")
    g.g2_side_loads(a)
    lw = g.w2f_loads("v1", "s72")
    for x in lw[:60]: a(x)
    a("s_waitcnt vmcnt(40)")
    for x in lw[60:]: a(x)
    a("s_waitcnt vmcnt(15)")
    g.stamp(a, "k2.w2issued")
    g.g2_hloads(a)
    g.stamp(a, "k2.hissued")
    g.gemm2(a)
    g.stamp(a, "k2.done")
    g.stamp_dump(a, 2)
    a.label("L_end2")
    a("s_endpgm")
    k2 = a.finish()
    out = header()
    for k in ("k0", "k1", "k2"):
        out += f"; @launch kernel={k}_kernel grid=(256,1,1) block=(256,1,1) lds={LDS_BYTES}\n"
    if prof: out += "; stamps: " + " ".join(g.names) + "\n"
    out += '.amdgcn_target "amdgcn-amd-amdhsa--gfx950"\n.text\n'
    for n, k in (("k0", k0), ("k1", k1), ("k2", k2)):
        out += khead(n + "_kernel") + k
    out += '.section .rodata,"a"\n.p2align 6\n'
    for n in ("k0", "k1", "k2"):
        out += kdesc(n + "_kernel") + ".p2align 6\n"
    return out

if __name__ == "__main__":
    mode = sys.argv[1] if len(sys.argv) > 1 else "3"
    path = sys.argv[2] if len(sys.argv) > 2 else f"cdna_kernels/{NAME}.s"
    txt = build3(prof=mode.endswith('p'))
    open(path, "w").write(txt)
    print("wrote", path, len(txt))
```

```python
import sys, struct, math
from dsl import Asm, interleave, spread, spread_cost, pool_sched, cost
import gen
from gen import (NAME, fbits, Y2F, XNT, W2F, HF, ST, FLG, PROF, WS_BYTES, LB, YT, PY, XT, PX, TAB, TABSZ, W2S,
                 CBP, CPITCH, U_OFF, LDS_BYTES, sp, SX, SW1, SW2, SOUT, SWS, WAVE, XCD, JJ, SID, vr, ar,
                 kdesc, khead, header)

KC_OFF, R_OFF = 0, 3072
SNG = 81920
G2P = 63744
G2X = G2P + 61440
G2S = G2X + 12288
FY, FX, FH, FS = FLG + 0x1000, FLG + 0x2000, FLG + 0x4000, FLG + 0x8000
TAG = "s50"
SC = " sc1"
S_PAIR, S_SNG, S_HA, S_HC, S_Y, S_ROW = "s90", "s91", "s92", "s93", "s94", "s95"
V_TW, V_TR, V_T = 212, 213, 214
V_P0, V_P1, V_S, V_HF, V_UG, V_UL, V_ES, V_ED, V_Z, V_SD, V_FX, V_FY = 223, 224, 225, 226, 227, 230, 233, 234, 235, 236, 237, 238
V_B1, V_ONE = 240, 252

class F(gen.G):
    STAMPS = [34, 35, 46, 47, 96, 97, 98, 16, 17, 36, 37, 40, 41, 44, 45, 18, 19, 20, 21, 22, 23, 24, 25, 26, 27, 28, 29, 30, 31, 32]
    def __init__(self, prof, opt):
        super().__init__(True, prof)
        self.slow = []
        self.o = opt

    def st(self, name):
        if not self.prof: return ""
        if name not in self.names: self.names.append(name)
        r = self.STAMPS[self.names.index(name)]
        return f"s_memtime s[100:101]\ns_waitcnt lgkmcnt(0)\ns_mov_b32 s{r}, s100"

    def dump(self, a):
        if not self.prof: return
        a("s_mov_b64 exec, -1\ns_waitcnt vmcnt(0)")
        a(self.st("end"))
        a("s_memrealtime s[100:101]\ns_waitcnt lgkmcnt(0)")
        for i, r in enumerate(self.STAMPS + [99, 100]):
            a(f"v_mov_b32 v{16+i}, s{r}")
        a(f"""
        s_lshl_b32 s7, s2, 2
        s_add_u32 s7, s7, {WAVE}
        s_lshl_b32 s7, s7, 7
        s_add_u32 s7, s7, {PROF}
        v_mov_b32 v1, 0
        s_mov_b64 exec, 1
        """)
        for q in range(8):
            a(f"buffer_store_dwordx4 {vr(16+4*q,4)}, v1, {SWS}, s7 offen offset:{16*q}")

    def poll_load(self, dst, wide, vaddr, soff):
        return f"buffer_load_dword{'x4' if wide else ''} {vr(dst, 4 if wide else 1)}, v{vaddr}, {SWS}, {soff} offen{SC}"

    def poll_cmp(self, dst, wide):
        if wide:
            return (f"v_cmp_ne_u64 vcc, s[50:51], {vr(dst,2)}\nv_cmp_ne_u64 s[88:89], s[50:51], {vr(dst+2,2)}\n"
                    f"s_or_b64 vcc, vcc, s[88:89]")
        return f"v_cmp_ne_u32 vcc, {TAG}, v{dst}\ns_cmp_lg_u64 vcc, 0"

    def poll_check(self, name, dst, wide, vaddr, soff):
        self.slow.append((name, dst, wide, vaddr, soff))
        return f"{self.poll_cmp(dst, wide)}\ns_cbranch_scc1 L_slow_{name}\nL_ok_{name}:"

    def slow_paths(self, a):
        for name, dst, wide, vaddr, soff in self.slow:
            a(f"""
            L_slow_{name}:
            s_mov_b32 s87, 0
            L_spin_{name}:
            s_sleep 2
            {self.poll_load(dst, wide, vaddr, soff)}
            s_add_u32 s87, s87, 1
            s_cmp_gt_u32 s87, 0x40000
            s_cbranch_scc1 L_ok_{name}
            s_waitcnt vmcnt(0)
            {self.poll_cmp(dst, wide)}
            s_cbranch_scc1 L_spin_{name}
            s_branch L_ok_{name}
            """)

    def flag_store(self, soff, t):
        return f"v_mov_b32 v{t}, {TAG}\ns_mov_b64 exec, 1\nbuffer_store_dword v{t}, off, {SWS}, {soff}{SC}\ns_mov_b64 exec, -1"

    def start(self, a):
        self.prologue(a, "L_end")
        if self.prof:
            a("s_memrealtime s[100:101]\ns_waitcnt lgkmcnt(0)\ns_mov_b32 s99, s100")
            a(self.st("start"))
        a(f"""
        v_lshrrev_b32 v2, 5, v0
        v_and_b32 v3, 31, v0
        v_mul_u32_u24 v7, 1280, v2
        v_lshl_add_u32 v7, v3, 3, v7
        s_lshl_b32 s72, {SID}, 2
        s_add_u32 s72, s72, {WAVE}
        s_mul_i32 s72, s72, 2560
        """)
        for i in range(5):
            a(f"buffer_load_dwordx2 {vr(110+2*i,2)}, v7, {SX}, s72 offen offset:{256*i}")
        a(f"s_mov_b32 s7, {FLG}\nbuffer_load_dword v109, off, {SWS}, s7{SC}")
        self.g1_ids(a); self.g2_ids(a)
        a(f"""
        s_mul_i32 s10, {XCD}, 80
        s_mul_i32 s7, {JJ}, 3
        s_add_u32 s10, s10, s7
        s_add_u32 s11, s10, {WAVE}
        s_min_u32 s11, s11, 639
        s_and_b32 s7, s9, 1
        s_mul_i32 {S_PAIR}, s9, 192
        s_add_u32 {S_SNG}, {S_PAIR}, 128
        s_lshl_b32 s73, s7, 6
        s_add_u32 {S_PAIR}, {S_PAIR}, s73
        s_lshl_b32 s73, s7, 7
        s_sub_u32 {S_SNG}, {S_SNG}, s73
        s_cmp_eq_u32 {WAVE}, 3
        s_cbranch_scc1 L_st3
        """)
        st0 = a.state()
        a(f"""
        s_mul_i32 s7, s11, 384
        v_lshlrev_b32 v8, 1, v0
        v_add_u32 v8, s7, v8
        s_lshl_b32 s7, s11, 1
        v_mov_b32 v9, s7
        """)
        for k in range(10, 30): a(f"v_mov_b32 v{k}, 0")
        a(f"global_load_short_d16_hi v28, v9, {sp('ldt')}")
        a(f"global_load_short_d16_hi v29, v9, {sp('dsk')}")
        for c in range(3):
            for k, n in enumerate(("are", "aim", "bre", "bim", "cre", "cim")):
                a(f"global_load_short_d16_hi v{10+6*c+k}, v8, {sp(n)} offset:{128*c}")
        a(f"""
        s_lshl_b32 s7, {WAVE}, 6
        v_add_u32 v8, s7, v0
        v_min_u32 v8, 159, v8
        v_mul_u32_u24 v8, 3072, v8
        s_and_b32 s7, {JJ}, 3
        s_mul_i32 s7, s7, {160*3072}
        s_add_u32 s73, s7, {S_PAIR}
        s_add_u32 s74, s7, {S_SNG}
        buffer_load_dword v239, v8, {SW1}, s73 offen
        buffer_load_dword v239, v8, {SW1}, s74 offen
        s_branch L_stj
        L_st3:
        """)
        st1 = a.state()
        a.set_state(st0)
        a(f"""
        s_getpc_b64 s[74:75]
        L_pc:
        s_and_b32 s7, {JJ}, 3
        s_lshl_b32 s7, s7, 13
        v_lshlrev_b32 v8, 7, v0
        v_add_u32 v8, s7, v8
        v_min_u32 v8, L_code_end-L_pc-4, v8
        global_load_dword v239, v8, s[74:75]
        s_min_u32 s7, s2, 239
        s_mul_i32 s76, s7, 52429
        s_lshr_b32 s76, s76, 18
        s_mul_i32 s77, s76, 5
        s_sub_u32 s77, s7, s77
        v_lshrrev_b32 v12, 4, v0
        v_mul_u32_u24 v12, 1280, v12
        v_and_b32 v13, 15, v0
        v_lshl_add_u32 v12, v13, 4, v12
        s_mul_i32 s78, s76, 40960
        s_lshl_b32 s79, s77, 8
        s_add_u32 s78, s78, s79
        """)
        for i in range(8):
            a(f"s_mov_b32 m0, {W2S+1024*i}")
            a(f"buffer_load_dwordx4 v12, {SW2}, s78 offen lds @w2dma")
            if i < 7: a("s_add_u32 s78, s78, 5120")
        a("L_stj:")
        a.merge([st1, a.state()])
        if self.prof:
            for r in self.STAMPS[1:]: a(f"s_mov_b32 s{r}, 0")
        a(f"v_lshlrev_b32 v8, 1, v3\nv_add_u32 v9, {S_SNG}, v8\nv_add_u32 v8, {S_PAIR}, v8")
        for k in range(V_B1, V_B1 + 8): a(f"v_mov_b32 v{k}, 0")
        a(f"""
        global_load_ushort v{V_B1}, v8, {sp('b1')}
        global_load_ushort v{V_B1+2}, v8, {sp('b1')} offset:64
        global_load_ushort v{V_B1+4}, v9, {sp('b1')}
        v_mov_b32 v8, 0x3f80
        v_cmp_gt_u32 vcc, 32, v0
        v_mov_b32 v{V_ONE+1}, 0
        v_mov_b32 v{V_ONE+2}, 0
        v_mov_b32 v{V_ONE+3}, 0
        v_cndmask_b32 v{V_ONE}, 0, v8, vcc
        """)
        self.addresses(a)

    def addresses(self, a):
        T = V_T
        a(f"""
        v_lshlrev_b32 v1, 4, v0
        s_mul_i32 s82, {WAVE}, {TABSZ}
        s_add_u32 s82, s82, {TAB}
        v_mul_u32_u24 v{V_TW}, 144, v0
        v_add_u32 v{V_TW}, s82, v{V_TW}
        v_bfe_u32 v5, v0, 3, 1
        v_lshl_add_u32 v4, v5, 2, v2
        v_mul_u32_u24 v{V_TR}, 288, v4
        v_bfe_u32 v5, v0, 2, 1
        v_lshl_add_u32 v{V_TR}, v5, 6, v{V_TR}
        v_bfe_u32 v5, v0, 4, 1
        v_and_b32 v6, 3, v0
        v_lshlrev_b32 v8, 3, v6
        v_lshl_add_u32 v8, v5, 5, v8
        v_add3_u32 v{V_TR}, v{V_TR}, v8, s82
        v_lshlrev_b32 v{T}, 5, v3
        v_lshl_add_u32 v{T}, v2, 4, v{T}
        v_add_u32 v{T}, s82, v{T}
        v_cmp_eq_u32 vcc, 0, v2
        v_lshlrev_b32 v4, 4, v3
        v_add_u32 v4, 1024, v4
        v_lshlrev_b32 v9, 3, v3
        v_add_u32 v9, 1536, v9
        v_cndmask_b32 v{T+1}, v9, v4, vcc
        v_add_u32 v4, 8, v4
        v_add_u32 v9, 256, v9
        v_cndmask_b32 v{T+2}, v9, v4, vcc
        v_add_u32 v{T+1}, s82, v{T+1}
        v_add_u32 v{T+2}, s82, v{T+2}
        v_lshlrev_b32 v{T+3}, 2, v3
        v_lshl_add_u32 v{T+3}, v2, 9, v{T+3}
        v_add_u32 v{T+3}, s82, v{T+3}
        v_sub_u32 v4, 63, v0
        v_lshl_add_u32 v{T+4}, v4, 3, s82
        v_lshl_add_u32 v{T+5}, v4, 4, s82
        v_lshl_add_u32 v{T+6}, v0, 5, s82
        v_lshl_add_u32 v{T+7}, v0, 4, s82
        v_lshl_add_u32 v{T+8}, v0, 3, s82
        v_bfe_u32 v4, v0, 2, 2
        v_lshl_add_u32 v4, v2, 3, v4              ; 8hh + r
        v_lshl_add_u32 v{V_P0}, v4, 7, v8
        v_bfe_u32 v9, v0, 3, 1
        v_lshl_add_u32 v{V_P0}, v9, 6, v{V_P0}
        v_xor_b32 v{V_P1}, 64, v{V_P0}
        v_lshl_add_u32 v{V_S}, v4, 6, v8
        v_add_u32 v{V_S}, {SNG}, v{V_S}
        v_mul_u32_u24 v{V_HF}, 49152, v5
        v_lshl_add_u32 v{V_HF}, v2, 8, v{V_HF}
        v_and_b32 v4, 15, v0
        v_lshl_add_u32 v{V_HF}, v4, 4, v{V_HF}
        s_lshl_b32 {S_Y}, s8, 2
        s_add_u32 {S_Y}, {S_Y}, {WAVE}
        s_mul_i32 {S_HA}, {S_Y}, 96
        s_mul_i32 {S_Y}, {S_Y}, 40960
        s_mul_i32 s7, s9, 3
        s_add_u32 {S_HA}, {S_HA}, s7
        s_lshl_b32 {S_HA}, {S_HA}, 10
        s_add_u32 {S_HA}, {S_HA}, {HF}
        s_add_u32 {S_HC}, {S_HA}, 2048
        s_and_b32 s7, s9, 1
        s_lshl_b32 s7, s7, 10
        s_add_u32 {S_HA}, {S_HA}, s7
        s_lshl_b32 s7, s7, 1
        s_sub_u32 {S_HC}, {S_HC}, s7
        s_cmp_lt_u32 {JJ}, 27
        s_cselect_b32 {S_ROW}, s10, 641
        s_lshl_b32 {S_ROW}, {S_ROW}, 12
        s_add_u32 {S_ROW}, {S_ROW}, {ST}
        """)
        for i in range(3):
            a(f"""
            s_mul_i32 s7, {WAVE}, 192
            s_add_u32 s7, s7, {64*i}
            v_add_u32 v4, s7, v0
            v_mul_u32_u24 v5, 21846, v4
            v_lshrrev_b32 v5, 16, v5
            v_mul_u32_u24 v9, 3, v5
            v_sub_u32 v4, v4, v9
            v_mul_u32_u24 v{V_UG+i}, 10240, v5
            v_lshl_add_u32 v{V_UG+i}, v4, 4, v{V_UG+i}
            v_mul_u32_u24 v{V_UL+i}, {CBP}, v4
            v_lshl_add_u32 v{V_UL+i}, v5, 4, v{V_UL+i}
            """)
        a(f"""
        s_lshl_b32 s7, {WAVE}, 10
        v_add_u32 v{V_ED}, s7, v1
        v_add_u32 v{V_ES}, {TAB+R_OFF}, v{V_ED}
        v_bfe_u32 v4, v0, 1, 2
        v_mul_u32_u24 v4, {CPITCH}, v4
        v_and_b32 v5, 1, v0
        v_lshl_add_u32 v4, v5, 4, v4
        v_add_u32 v4, 4096, v4
        v_add_u32 v5, {U_OFF}, v1
        v_cmp_gt_u32 vcc, 32, v0
        s_min_u32 s7, {WAVE}, 2
        s_mul_i32 s7, s7, {CBP}
        v_cndmask_b32 v{V_Z}, v4, v5, vcc
        v_add_u32 v{V_Z}, s7, v{V_Z}
        v_lshrrev_b32 v4, 2, v0
        v_mul_u32_u24 v{V_SD}, 3072, v4
        v_lshl_add_u32 v{V_SD}, v6, 4, v{V_SD}
        v_lshlrev_b32 v{V_FX}, 8, v4
        v_lshl_add_u32 v{V_FX}, v6, 4, v{V_FX}
        v_lshlrev_b32 v{V_FY}, 2, v6
        v_and_b32 v4, 15, v0
        v_lshrrev_b32 v5, 4, v0
        v_sub_u32 v6, 15, v4
        v_and_b32 v9, 3, v6
        v_mul_u32_u24 v8, {CPITCH}, v9
        v_and_b32 v9, 12, v6
        v_lshl_add_u32 v8, v9, 1, v8
        v_lshl_add_u32 v8, v5, 4, v8
        v_lshlrev_b32 v9, 5, v4
        v_lshl_add_u32 v9, v5, 4, v9
        s_cmp_eq_u32 {WAVE}, 3
        s_cselect_b32 s7, 0, {WAVE}
        s_mul_i32 s7, s7, {CBP}
        v_add_u32 v8, s7, v8
        v_add_u32 v9, s7, v9
        v_accvgpr_write_b32 a252, v8
        v_accvgpr_write_b32 a253, v9
        s_lshl_b32 s86, s8, 8
        s_lshl_b32 s7, {WAVE}, 4
        s_add_u32 s86, s86, s7
        s_add_u32 s86, s86, {FY}
        """)

    def yloads(self):
        L = []
        for ks in range(40):
            x = f"buffer_load_dwordx4 {ar(4*ks,4)}, v1, {SWS}, {S_Y} offen offset:{1024*(ks%4)}{SC}"
            if ks % 4 == 3 and ks < 39: x += f"\ns_add_u32 {S_Y}, {S_Y}, 4096"
            L.append(x)
        return L

    def wave3(self, a):
        self.s_readtiles(a)
        a(f"""
        v_lshrrev_b32 v12, 5, v0
        v_lshlrev_b32 v12, 12, v12
        v_bfe_u32 v13, v0, 2, 3
        v_lshl_add_u32 v12, v13, 8, v12
        v_and_b32 v13, 3, v0
        v_lshl_add_u32 v12, v13, 3, v12
        v_add_u32 v12, {W2S}, v12
        s_lshr_b32 s72, {SID}, 2
        s_mul_i32 s72, s72, 40960
        s_and_b32 s73, {SID}, 3
        s_lshl_b32 s73, s73, 7
        s_add_u32 s72, s72, s73
        s_mul_i32 s73, {SID}, 10240
        s_add_u32 s73, s73, {XNT}
        s_waitcnt lgkmcnt(0)
        s_barrier
        """)
        for I in range(10):
            a(f"ds_read_b128 {vr(110+4*I,4)}, v6 offset:{128*I}")
        for I in range(10):
            a(f"buffer_store_dwordx4 {vr(110+4*I,4)}, v7, {SWS}, s72 offen{SC} @yst")
            if I < 9: a("s_add_u32 s72, s72, 4096")
            a(f"ds_read_b64_tr_b16 {vr(150+4*I,2)}, v8 offset:{128*I}")
            a(f"ds_read_b64_tr_b16 {vr(152+4*I,2)}, v8 offset:{128*I+4*PX}")
        a("s_waitcnt lgkmcnt(0)\ns_barrier")
        a(self.st("w3.yst"))
        a("WAITVM w2dma")
        for db in range(8):
            a(f"ds_read_b64_tr_b16 {vr(48+4*db,2)}, v12 offset:{32*db}")
            a(f"ds_read_b64_tr_b16 {vr(50+4*db,2)}, v12 offset:{32*db+2048}")
        for I in range(10):
            if I in (4, 8): a("s_add_u32 s73, s73, 4096")
            a(f"buffer_store_dwordx4 {vr(150+4*I,4)}, v1, {SWS}, s73 offen offset:{1024*(I%4)}{SC} @xst")
        a(f"""
        s_mul_i32 s78, s77, {8*48}
        s_add_u32 s78, s78, s76
        s_lshl_b32 s78, s78, 10
        s_add_u32 s78, s78, {W2F}
        """)
        for db in range(8):
            a(f"buffer_store_dwordx4 {vr(48+4*db,4)}, v1, {SWS}, s78 offen{SC} @xst")
            if db < 7: a(f"s_add_u32 s78, s78, {48*1024}")
        a(f"""
        v_lshrrev_b32 v4, 3, v0
        v_mul_u32_u24 v40, 3072, v4
        v_lshrrev_b32 v4, 2, v0
        v_lshrrev_b32 v5, 4, v0
        v_xor_b32 v4, v4, v5
        v_and_b32 v4, 1, v4
        v_lshl_add_u32 v40, v4, 6, v40
        v_and_b32 v4, 3, v0
        v_lshl_add_u32 v40, v4, 4, v40
        v_add_u32 v41, {24576-1024}, v40
        v_add_u32 v42, {24576-1024}, v41
        v_add_u32 v43, {24576-1024}, v42
        s_mov_b32 s80, {S_PAIR}
        s_mov_b32 m0, 0
        s_lshr_b32 s81, {SID}, 4
        s_lshl_b32 s81, s81, 8
        s_and_b32 s7, {SID}, 15
        s_lshl_b32 s7, s7, 2
        s_add_u32 s81, s81, s7
        s_add_u32 s81, s81, {FY}
        """)
        def grp():
            for k in range(4):
                a(f"buffer_load_dwordx4 v{40+k}, {SW1}, s80 offen offset:{1024*k} lds @pair")
            a(f"s_add_u32 m0, m0, 4096\ns_add_u32 s80, s80, {4*24576}")
        n1, n2 = self.o.get("n1", 2), self.o.get("n2", 3)
        for _ in range(n1): grp()
        a("WAITVM yst")
        a(self.flag_store("s81", 4))
        a(self.st("w3.fy"))
        for _ in range(n2): grp()
        a("WAITVM xst")
        a(f"s_add_u32 s81, s81, {FX-FY}")
        a(self.flag_store("s81", 4))
        a(self.st("w3.fx"))
        a("L_pair:\ns_waitcnt vmcnt(40)")
        grp()
        a(f"s_cmp_lt_u32 m0, 81920\ns_cbranch_scc1 L_pair")
        a(self.poll_load(4, False, V_FY, "s86"))
        a(self.poll_check("y3", 4, False, V_FY, "s86"))
        a(self.st("ypoll"))
        for x in self.yloads(): a(x)

    def kgen2(self, a):
        ACC, VF, UF, PK, CH = 32, 48, 80, 112, 128
        W1, W8, W256, T = 192, 194, 196, 198
        C0 = 210
        DT, DTL = 30, 31
        L2E = 1.4426950408889634
        f32 = lambda x: struct.unpack("<f", struct.pack("<f", x))[0]
        I2P = 1 / (2 * math.pi)
        a(f"""
        s_mov_b32 s72, {fbits(f32(L2E))}
        s_mov_b32 s73, {fbits(L2E-f32(L2E))}
        s_mov_b32 s74, {fbits(f32(I2P))}
        s_mov_b32 s75, {fbits(I2P-f32(I2P))}
        s_mov_b32 s76, {fbits(math.log(2))}
        s_mov_b32 s77, {fbits(256.0)}
        s_mov_b32 s78, {fbits(8.0)}
        v_mul_f32 v{T}, s72, v28
        v_fma_f32 v{T+1}, v28, s72, -v{T}
        v_fma_f32 v{T+1}, v28, s73, v{T+1}
        v_exp_f32 v{T}, v{T}
        v_mul_f32 v{T+1}, s76, v{T+1}
        v_cmp_eq_u32 vcc, 0, v0
        v_fma_f32 v{T}, v{T}, v{T+1}, v{T}
        v_cvt_pk_bf16_f32 v{DT}, v{T}, v{T}
        v_lshlrev_b32 v{DT}, 16, v{DT}
        v_cndmask_b32 v29, 0, v29, vcc
        v_mul_f32 v{DTL}, s72, v{DT}
        """)
        def reads(Fr):
            L = []
            for k in range(8):
                n0 = 16 * (k >> 1) + 4 * (k & 1)
                for rd in range(2):
                    L.append(f"ds_read_b64_tr_b16 {vr(Fr+4*k+2*rd,2)}, v{V_TR} offset:{(n0+rd)*144}")
            return L
        def mf(first):
            return [f"v_mfma_f32_32x32x16_bf16 {vr(ACC,16)}, {vr(UF+4*k,4)}, {vr(VF+4*k,4)}, {'0' if first and k == 0 else vr(ACC,16)}" for k in range(8)]
        for c in range(3):
            p = 10 + 6 * c
            setup = [f"v_mul_f32 v{T}, v{p}, v{DTL}", f"v_mul_f32 v{T+1}, v{p+1}, v{DT}",
                     f"v_mul_f32 v{T+2}, s74, v{T+1}", f"v_fma_f32 v{T+3}, v{T+1}, s74, -v{T+2}",
                     f"v_fma_f32 v{T+3}, v{T+1}, s75, v{T+3}",
                     f"v_mul_f32 v{T+4}, s78, v{T}", f"v_mul_f32 v{T+5}, s78, v{T+2}",
                     f"v_mul_f32 v{T+6}, s77, v{T}", f"v_mul_f32 v{T+7}, s77, v{T+2}",
                     f"v_exp_f32 v{T+4}, v{T+4}", f"v_fract_f32 v{T+5}, v{T+5}",
                     f"v_exp_f32 v{T+6}, v{T+6}", f"v_fract_f32 v{T+7}, v{T+7}",
                     f"v_exp_f32 v{T+8}, v{T}", f"v_fract_f32 v{T+9}, v{T+2}",
                     f"v_fma_f32 v{T+5}, v{T+3}, s78, v{T+5}", f"v_fma_f32 v{T+7}, v{T+3}, s77, v{T+7}",
                     f"v_add_f32 v{T+9}, v{T+3}, v{T+9}",
                     f"v_cos_f32 v{W8}, v{T+5}", f"v_sin_f32 v{W8+1}, v{T+5}",
                     f"v_cos_f32 v{W256}, v{T+7}", f"v_sin_f32 v{W256+1}, v{T+7}",
                     f"v_cos_f32 v{W1}, v{T+9}", f"v_sin_f32 v{W1+1}, v{T+9}"]
            setup += self.cmul(T + 10, p + 4, p + 2)
            setup += [f"v_pk_mul_f32 {vr(W8,2)}, {vr(W8,2)}, {vr(T+4,2)} op_sel_hi:[1,0]",
                      f"v_pk_mul_f32 {vr(W256,2)}, {vr(W256,2)}, {vr(T+6,2)} op_sel_hi:[1,0]",
                      f"v_pk_mul_f32 {vr(W1,2)}, {vr(W1,2)}, {vr(T+8,2)} op_sel_hi:[1,0]",
                      f"v_pk_mul_f32 {vr(C0,2)}, {vr(T+10,2)}, {vr(DT,2)} op_sel_hi:[1,0]"]
            Vv = lambda j: W8 if j == 1 else CH + 2 * j
            vchain = []
            for j in range(2, 32): vchain += self.cmul(Vv(j), Vv(j - 1), W8)
            vcvt = []
            for q in range(4):
                R = PK + 8 * (q & 1)
                for k in range(4 * q, 4 * q + 4):
                    lo_r, lo_i = ("1.0", "0") if k == 0 else (f"v{Vv(2*k)}", f"v{Vv(2*k)+1}")
                    vcvt.append(f"v_cvt_pk_bf16_f32 v{R+(k&3)}, {lo_r}, v{Vv(2*k+1)}")
                vcvt.append(f"ds_write_b128 v{V_TW}, {vr(R,4)} offset:{16*q}")
                for k in range(4 * q, 4 * q + 4):
                    lo_i = "0" if k == 0 else f"v{Vv(2*k)+1}"
                    vcvt.append(f"v_cvt_pk_bf16_f32 v{R+4+(k&3)}, {lo_i}, v{Vv(2*k+1)+1}")
                vcvt.append(f"ds_write_b128 v{V_TW}, {vr(R+4,4)} offset:{64+16*q}")
            Ur = lambda i: C0 if i == 0 else CH + 2 * i
            uchain = []
            for i in range(1, 8): uchain += self.cmul(Ur(i), Ur(i - 1), W1)
            for i, s in ((8, 0), (9, 2), (10, 4), (11, 6), (12, 8), (13, 10), (14, 12), (15, 13), (16, 14), (17, 16), (18, 17), (19, 18), (20, 19)):
                uchain += self.cmul(Ur(i), Ur(s), W256)
            ucvt = []
            for q in range(3):
                R = PK + 8 * (q & 1)
                for k in range(4 * q, min(4 * q + 4, 11)):
                    ucvt.append(f"v_cvt_pk_bf16_f32 v{R+(k&3)}, v{Ur(2*k)}, v{Ur(min(2*k+1,20))}")
                ucvt.append(f"ds_write_b128 v{V_TW}, {vr(R,4)} offset:{16*q}")
                for k in range(4 * q, min(4 * q + 4, 11)):
                    ucvt.append(f"v_cvt_pk_bf16_f32 v{R+4+(k&3)}, -v{Ur(2*k)+1}, -v{Ur(min(2*k+1,20))+1}")
                ucvt.append(f"ds_write_b128 v{V_TW}, {vr(R+4,4)} offset:{64+16*q}")
            seq = []
            seq += interleave(setup + vchain[:20], reads(UF)) + vchain[20:] if c else setup + vchain
            if c == 0: seq += ["s_barrier"] + vcvt
            else: seq += interleave(mf(c == 1), vcvt)
            seq += interleave(uchain, reads(VF)) + ucvt
            if c == 1:
                pos = len(seq) - self.o.get("ypoll_back", 20)
                seq.insert(pos, self.poll_load(2, False, V_FY, "s86"))
            if c == 2:
                pos = self.o.get("ycheck", 40)
                seq = seq[:pos] + [self.poll_check("y0", 2, False, V_FY, "s86"), self.st("ypoll")] + interleave(seq[pos:], self.yloads())
            for x in seq: a(x)
            a(self.st(f"kg{c}"))
        for x in reads(UF) + mf(False): a(x)

    def ktail(self):
        ACC, T = 32, V_T
        I, O = 64, 10
        L = [f"v_add_f32 v{ACC}, v{ACC}, v29",
             f"ds_write_b128 v{T}, {vr(ACC,4)} offset:{KC_OFF}",
             f"ds_write_b64 v{T+1}, {vr(ACC+4,2)} offset:{KC_OFF}",
             f"ds_write_b64 v{T+2}, {vr(ACC+6,2)} offset:{KC_OFF}"]
        L += [f"ds_write_b32 v{T+3}, v{ACC+8+q} offset:{KC_OFF+2048+128*q}" for q in range(4)]
        L += [f"ds_read_b64 {vr(I,2)}, v{T+4} offset:{KC_OFF+512*4}", f"ds_read_b32 v{I+2}, v{T+4} offset:{KC_OFF+512*4+8}",
              f"ds_read_b64 {vr(I+4,2)}, v{T+4} offset:{KC_OFF+384*4}", f"ds_read_b32 v{I+6}, v{T+4} offset:{KC_OFF+384*4+8}",
              f"ds_read_b64 {vr(I+8,2)}, v{T+4} offset:{KC_OFF+256*4}", f"ds_read_b32 v{I+10}, v{T+4} offset:{KC_OFF+256*4+8}",
              f"ds_read_b128 {vr(I+12,4)}, v{T+5} offset:{KC_OFF}"]
        L += [f"v_mov_b32 v{26+k}, 0" for k in range(4)]
        L += [f"ds_write_b64 v{T+8}, v[26:27] offset:{R_OFF+4096}"]
        n1 = len(L)
        cv = lambda d, x, y: f"v_cvt_pk_bf16_f32 v{O+d}, v{I+x}, v{I+y}"
        L += [cv(0, 2, 2), cv(1, 2, 2), cv(2, 1, 1), cv(3, 1, 1), f"ds_write_b128 v{T+6}, {vr(O,4)} offset:{R_OFF}",
              cv(4, 1, 1), cv(5, 1, 0), cv(6, 0, 0), cv(7, 0, 0), f"ds_write_b128 v{T+6}, {vr(O+4,4)} offset:{R_OFF+16}",
              cv(8, 6, 6), cv(9, 5, 5), cv(10, 5, 4), cv(11, 4, 4), f"ds_write_b128 v{T+7}, {vr(O+8,4)} offset:{R_OFF+2048}",
              cv(12, 10, 9), cv(13, 8, 8), f"ds_write_b64 v{T+8}, {vr(O+12,2)} offset:{R_OFF+3072}",
              cv(14, 15, 14), cv(15, 13, 12), f"ds_write_b64 v{T+8}, {vr(O+14,2)} offset:{R_OFF+3584}"]
        return L[:n1], L[n1:]

    def w2f_items(self):
        L = []
        for i in range(60):
            kk = i % 12
            x = f"buffer_load_dwordx4 {ar(self.w2reg(i),4)}, v1, {SWS}, s85 offen offset:{1024*(kk%4)}{SC}"
            if kk % 4 == 3 and i < 59: x += f"\ns_add_u32 s85, s85, {4096 if kk < 11 else 4096+36*1024}"
            L.append(x)
        return L
    @staticmethod
    def w2reg(i): return 160 + 4 * i if i < 20 else 4 * (i - 20)

    def gelu_s(self, acc, out, t):
        return self.gelu_scalar(acc, out, t)

    def hstore(self, out, sreg, off):
        return [f"buffer_store_dwordx4 {vr(out+4*c,4)}, v{V_HF}, {SWS}, {sreg} offen offset:{off+512*c}{SC} @hst" for c in range(2)]

    def gemm1f(self, a):
        o = self.o
        ACC = (48, 64, 32)
        uses, kind = [], []
        for p in range(3):
            uses.append([]); kind.append((p, None))
            for ks in range(40):
                uses.append([40 * p + ks]); kind.append((p, ks))
        def reads(f, reg):
            p, ks = divmod(f, 40)
            if p < 2:
                base = V_P0 + p
                off = ks * 2048 - (65536 if ks >= 32 else 0)
                pre = [f"v_add_u32 v{base}, 0x10000, v{base}"] if ks == 32 else []
                return pre + [f"ds_read_b64_tr_b16 {vr(reg,2)}, v{base} offset:{off}", f"ds_read_b64_tr_b16 {vr(reg+2,2)}, v{base} offset:{off+512}"]
            return [f"ds_read_b64_tr_b16 {vr(reg,2)}, v{V_S} offset:{ks*1024}", f"ds_read_b64_tr_b16 {vr(reg+2,2)}, v{V_S} offset:{ks*1024+256}"]
        mb = o.get("mb", 66)
        reg, pro, slots, lead = pool_sched(uses, reads, list(range(80, 184, 4)),
                                           lambda m: o.get("rateA", 1.6) if m <= 41 else o.get("rateB", 0.76),
                                           gate=lambda f, m: f < 80 or m > mb, pre=4)
        lastpair = max(m for m in range(len(slots)) if any(f"v{V_P1} " in x for x in slots[m]))
        assert lastpair < mb, (lastpair, mb)
        print("g1: min lead", lead, "last pair read after", lastpair)
        t1, t2 = self.ktail()
        spread(slots, t1, 2, 14)
        spread(slots, t2, 18, 34)
        sd = [f"s_mul_i32 s80, {WAVE}, {160*3072}\ns_add_u32 s80, s80, {S_SNG}", f"s_mul_i32 s81, {WAVE}, 10240\ns_add_u32 m0, s81, {SNG}"]
        for i in range(10):
            sd.append(f"buffer_load_dwordx4 v{V_SD}, {SW1}, s80 offen lds @sng" + (f"\ns_add_u32 m0, m0, 1024\ns_add_u32 s80, s80, {16*3072}" if i < 9 else ""))
        spread(slots, sd, 1, 30)
        slots[31].append(f"s_mov_b32 s84, {FX}\n" + self.poll_load(184, True, V_FX, "s84"))
        slots[33].append(f"s_mov_b32 s74, {fbits(-1.5957691216057308*1.4426950408889634)}\ns_mov_b32 s75, {fbits(-1.5957691216057308*0.044715*1.4426950408889634)}")
        slots[35].append("v_mov_b32 v8, s74\nv_mov_b32 v9, s75")
        slots[36].append(f"s_mul_i32 s85, s13, {5*48}\ns_mul_i32 s7, {WAVE}, 12\ns_add_u32 s85, s85, s7")
        slots[37].append(f"s_lshl_b32 s85, s85, 10\ns_add_u32 s85, s85, {W2F}\ns_lshl_b32 s83, s10, 4\ns_add_u32 s83, s83, {XNT}")
        mx = o.get("mx", 46)
        slots[mx].append(self.poll_check("x", 184, True, V_FX, "s84"))
        if self.prof: slots[mx].append(self.st("xpoll"))
        spread(slots, [f"buffer_load_dwordx4 {ar(240+4*i,4)}, v{V_UG+i}, {SWS}, s83 offen{SC}" for i in range(3)], mx + 1, mx + 4)
        w2 = self.w2f_items()
        spread(slots, w2[:20], mx + 4, 118)
        slots[mb].append("WAITVM sng\ns_waitcnt lgkmcnt(0)\ns_barrier")
        ex_r, ex = [], []
        for ch in range(3):
            E = 184 + 6 * ch
            ex_r += [f"ds_read_b128 {vr(E,4)}, v{V_ES} offset:{ch*TABSZ}", f"ds_read_b64 {vr(E+4,2)}, v{V_ES} offset:{ch*TABSZ+16}"]
            d = ch * CBP
            ex.append(f"ds_write_b128 v{V_ED}, {vr(E,4)} offset:{d}")
            ex += [f"v_alignbit_b32 v{202+k}, v{E+k+1}, v{E+k}, 16" for k in range(4)]
            ex.append(f"ds_write_b128 v{V_ED}, v[202:205] offset:{d+CPITCH}")
            ex += [f"v_mov_b32 v{206+k}, v{E+k+1}" for k in range(4)]
            ex.append(f"ds_write_b128 v{V_ED}, v[206:209] offset:{d+2*CPITCH}")
            ex += [f"v_alignbit_b32 v{202+k}, v{E+k+2}, v{E+k+1}, 16" for k in range(4)]
            ex.append(f"ds_write_b128 v{V_ED}, v[202:205] offset:{d+3*CPITCH}")
        ex.append(f"ds_write_b128 v{V_Z}, v[26:29]")
        ex += [f"ds_write_b128 v{V_UL+i}, {ar(240+4*i,4)} offset:{U_OFF+512}" for i in range(3)]
        spread(slots, ex_r, mb + 1, mb + 4)
        spread(slots, ex, mb + 6, 119)
        spread_cost(slots, self.gelu_scalar(ACC[0], 10, 2) + self.hstore(10, S_HA, 0), 42, 82)
        spread_cost(slots, self.gelu_scalar(ACC[1], 18, 2) + self.hstore(18, S_HA, 1024), 83, 123)
        for x in pro: a(x)
        for m, (p, ks) in enumerate(kind):
            if ks is None:
                if p: a(self.st(f"g1.p{p}"))
                a(f"v_mfma_f32_32x32x16_bf16 {vr(ACC[p],16)}, {vr(V_B1+2*p,4)}, {vr(V_ONE,4)}, 0")
            else:
                a(f"v_mfma_f32_32x32x16_bf16 {vr(ACC[p],16)}, {vr(reg[40*p+ks],4)}, {ar(4*ks,4)}, {vr(ACC[p],16)}")
            for x in slots[m]: a(x)
        a(self.st("g1.p3"))
        a(f"""
        v_accvgpr_read_b32 v{V_TW}, a252
        v_accvgpr_read_b32 v{V_TR}, a253
        v_mov_b32 v30, 1.0
        v_mov_b32 v31, 1.0
        s_waitcnt lgkmcnt(0)
        s_barrier
        """)

    @staticmethod
    def breg(rho, kk):
        if rho in (0, 3): return 128 + 4 * kk
        if rho == 1: return 176 + 4 * kk if kk < 9 else 240 + 4 * (kk - 9)
        return 48 + 4 * kk

    def hloads(self, rho):
        L = [f"s_add_u32 s7, {WAVE}, {rho+1}\ns_and_b32 s7, s7, 3\ns_mul_i32 s7, s7, {48*1024}\ns_add_u32 s72, s82, s7"]
        for kk in range(12):
            x = f"buffer_load_dwordx4 {vr(self.breg(rho,kk),4)}, v1, {SWS}, s72 offen offset:{1024*(kk%4)}{SC}"
            if kk % 4 == 3 and kk < 11: x += "\ns_add_u32 s72, s72, 4096"
            L.append(x)
        return L

    VX, VFH, VFS, VSG, VSL, VCW, VCR, VPW, VPR, VXL, VXD, VSR = 214, 217, 218, 219, 220, 221, 222, 223, 224, 225, 227, 228

    def conv_side(self):
        t = 229
        L = []
        for i in range(3):
            L += [f"v_add_u32 v{t}, {64*i}, v0", f"v_mul_u32_u24 v{t+1}, 6554, v{t}", f"v_lshrrev_b32 v{t+1}, 16, v{t+1}",
                  f"v_mul_u32_u24 v{t+2}, 10, v{t+1}", f"v_sub_u32 v{t}, v{t}, v{t+2}", f"v_mul_u32_u24 v{t+1}, 1280, v{t+1}",
                  f"v_lshl_add_u32 v{self.VX+i}, v{t}, 4, v{t+1}"]
        L += [f"s_lshl_b32 s14, s12, 2", f"s_add_u32 s14, s14, {WAVE}", f"s_mul_i32 s14, s14, {16*1280}",
              f"s_mul_i32 s7, s13, 160\ns_add_u32 s14, s14, s7", f"s_mul_i32 s15, {WAVE}, 3072", f"s_add_u32 s15, s15, {G2X}"]
        for i in range(3):
            L.append(f"s_add_u32 m0, s15, {1024*i}\nbuffer_load_dwordx4 v{self.VX+i}, {SX}, s14 offen lds @xdma")
        L += [f"v_accvgpr_write_b32 a{241+2*k}, 0" for k in range(5)] + ["v_accvgpr_write_b32 a250, 0", "v_accvgpr_write_b32 a251, 0"]
        L += [f"v_and_b32 v{t}, 15, v0", f"s_mul_i32 s7, s13, 160\nv_lshl_add_u32 v{t+1}, v{t}, 1, s7"]
        L += [f"global_load_ushort a{240+2*jb}, v{t+1}, {sp('b2')} offset:{32*jb}" for jb in range(5)]
        L += [f"v_cmp_gt_u32 vcc, 16, v0", f"v_cndmask_b32 v{V_ONE}, 0, v{V_ONE}, vcc"]
        L += [f"v_lshrrev_b32 v{t+1}, 4, v0", f"v_lshlrev_b32 v{self.VCW}, 5, v{t}", f"v_lshl_add_u32 v{self.VCW}, v{t+1}, 3, v{self.VCW}",
              f"s_mul_i32 s7, {WAVE}, 15360\ns_add_u32 s7, s7, {G2P}\nv_add_u32 v{self.VCW}, s7, v{self.VCW}\nv_add_u32 v{self.VPW}, s7, v1",
              f"s_add_u32 s7, {WAVE}, 1\ns_and_b32 s7, s7, 3\ns_mul_i32 s7, s7, 15360\ns_add_u32 s7, s7, {G2P}\nv_add_u32 v{self.VPR}, s7, v1",
              f"v_mul_u32_u24 v{self.VXD}, 160, v{t}", f"v_lshl_add_u32 v{self.VXD}, v{t+1}, 3, v{self.VXD}", f"v_add_u32 v{self.VXD}, s15, v{self.VXD}",
              f"v_add_u32 v{self.VXL}, s15, v1"]
        L += [f"v_and_b32 v{t}, 3, v0", f"v_bfe_u32 v{t+1}, v0, 2, 1", f"v_lshlrev_b32 v{self.VFH}, 4, v{t}", f"v_lshl_add_u32 v{self.VFH}, v{t+1}, 2, v{self.VFH}",
              f"s_lshr_b32 s86, s12, 1\ns_lshl_b32 s86, s86, 2\ns_add_u32 s86, s86, {WAVE}\ns_lshl_b32 s86, s86, 8",
              f"s_and_b32 s7, s12, 1\ns_lshl_b32 s7, s7, 3\ns_add_u32 s86, s86, s7\ns_add_u32 s86, s86, {FH}",
              f"s_lshl_b32 s82, s12, 4\ns_add_u32 s82, s82, {WAVE}\ns_mul_i32 s82, s82, {12*1024}\ns_add_u32 s82, s82, {HF}"]
        return L

    def conv(self, a, role):
        o = self.o
        VA, VB = V_TW, V_TR
        seq = []
        if role == 0:
            blocks = [4, 5, 6, 7, 0]
            for r in range(8):
                for c in range(8):
                    if c == 4: seq.append((0, r, 0, 0))
                    for e in range(7, -1, -1):
                        if e + c in (4, 5, 6, 7): seq.append((0, r, e, c))
            acc = lambda ch, b: 2 + 4 * blocks.index(b)
        else:
            for r in range(8):
                for ch in range(3):
                    for c in range(4):
                        for e in range(3, -1, -1):
                            if e + c in (1, 2, 3): seq.append((ch, r, e, c))
            acc = lambda ch, b: 2 + 12 * ch + 4 * (b - 1)
        uses = [[("B", ch, r, c), ("A", ch, r, e)] for ch, r, e, c in seq]
        def reads(f, reg):
            k, ch, r, i = f
            if k == "B":
                return [f"ds_read_b128 {vr(reg,4)}, v{VB} offset:{ch*CBP+U_OFF+480+512*i-64*r}"]
            off = ch * CBP + 4032 - 512 * i - 64 * r
            return [f"ds_read_b64 {vr(reg,2)}, v{VA} offset:{off}", f"ds_read_b64 {vr(reg+2,2)}, v{VA} offset:{off+8}"]
        reg, pro, slots, lead = pool_sched(uses, reads, list(range(48, 128, 4)), lambda m: 0.7 if role == 0 else 0.95, pre=12)
        print("conv role", role, "min lead", lead)
        tail = [x.replace("v[10:11]", "v[30:31]") for x in self.gelu_packed(32, 10, 2)] + self.hstore(10, S_HC, 0)
        for x in interleave(tail, pro): a(x)
        a(self.st("g1.tail"))
        n = len(seq)
        mf, mp, mc = o.get("mf", 70), o.get("mp", 140), o.get("mc", 176)
        w2 = self.w2f_items()
        spread(slots, w2[20:], 2, mp)
        slots[mf - 2].append(f"s_lshl_b32 s81, s8, 2\ns_lshr_b32 s7, s9, 2\ns_add_u32 s81, s81, s7\ns_lshl_b32 s81, s81, 8")
        slots[mf - 1].append(f"s_and_b32 s7, s9, 3\ns_lshl_b32 s7, s7, 2\ns_add_u32 s7, s7, {WAVE}\ns_lshl_b32 s7, s7, 2\ns_add_u32 s81, s81, s7\ns_add_u32 s81, s81, {FH}")
        slots[mf].append("WAITVM hst\n" + self.flag_store("s81", 232))
        if self.prof: slots[mf].append(self.st("cv.fh"))
        spread_cost(slots, self.conv_side(), 2, mp)
        slots[mp].append(self.poll_load(232, False, self.VFH, "s86"))
        slots[mc].append(self.poll_check(f"h{role}", 232, False, self.VFH, "s86"))
        if self.prof: slots[mc].append(self.st("hpoll"))
        spread(slots, self.hloads(0) + self.hloads(1), mc + 1, n)
        seen = set()
        for m, (ch, r, e, c) in enumerate(seq):
            d = vr(acc(ch, e + c), 4)
            cin = d if (ch, e + c) in seen else "0"
            seen.add((ch, e + c))
            a(f"v_mfma_f32_16x16x32_bf16 {d}, {vr(reg[('A',ch,r,e)],4)}, {vr(reg[('B',ch,r,c)],4)}, {cin}")
            for x in slots[m]: a(x)
        a(self.st("cv.main"))
        nb = 5 if role == 0 else 9
        order = [4, 0, 1, 2, 3] if role == 0 else list(range(9))
        for q in order:
            a(f"v_cvt_pk_bf16_f32 v{96+2*q}, v{2+4*q}, v{3+4*q}\nv_cvt_pk_bf16_f32 v{97+2*q}, v{4+4*q}, v{5+4*q}")
            a(f"ds_write_b64 v{self.VCW}, {vr(96+2*q,2)} offset:{512*q}")
        if role == 0:
            a(f"s_lshl_b32 s7, {WAVE}, 12\ns_add_u32 s7, s7, {S_ROW}")
            for q in range(3): a(f"ds_read_b128 {vr(96+4*q,4)}, v{self.VPW} offset:{1024*q}")
            for q in range(2): a(f"buffer_store_dwordx4 {vr(96+4*q,4)}, v1, {SWS}, s7 offen offset:{2048+1024*q}{SC} @sst")
            a(f"s_waitcnt lgkmcnt(0)\ns_mov_b64 exec, 0xffffffff\nbuffer_store_dwordx4 v[104:107], v1, {SWS}, s7 offen{SC} @sst\ns_mov_b64 exec, -1")
        else:
            for ch in range(3):
                a(f"ds_read_b128 {vr(96+8*ch,4)}, v{self.VPW} offset:{1536*ch}\nds_read_b128 {vr(100+8*ch,4)}, v{self.VPW} offset:{1536*ch+1024}")
            a(f"s_add_u32 s7, {S_ROW}, 4096\ns_add_u32 s73, {S_ROW}, 8192")
            sr = [S_ROW, "s7", "s73"]
            for ch in range(3): a(f"buffer_store_dwordx4 {vr(96+8*ch,4)}, v1, {SWS}, {sr[ch]} offen offset:512{SC} @sst")
            a("s_waitcnt lgkmcnt(0)\ns_mov_b64 exec, 0xffffffff")
            for ch in range(3): a(f"buffer_store_dwordx4 {vr(100+8*ch,4)}, v1, {SWS}, {sr[ch]} offen offset:1536{SC} @sst")
            a("s_mov_b64 exec, -1")
        a(self.st("cv.out"))

    def gemm2f(self, a):
        o = self.o
        AC = (2, 22)
        main, idx = [], {}
        for rho in range(4):
            for jb in range(5):
                d = vr(AC[rho & 1] + 4 * jb, 4)
                idx[(rho, jb)] = len(main)
                if rho == 0: main.append(f"v_mfma_f32_16x16x32_bf16 {d}, {ar(240+2*jb,4)}, {vr(V_ONE,4)}, 0")
                for kk in range(12):
                    main.append(f"v_mfma_f32_16x16x32_bf16 {d}, {ar(self.w2reg(jb*12+kk),4)}, {vr(self.breg(rho,kk),4)}, {d}")
        idx[(4, 0)] = len(main)
        n = len(main)
        slots = [[] for _ in main]
        nxt = lambda rho, jb: idx[(rho, jb + 1)] if jb < 4 else idx[(rho + 1, 0)]
        for rho in range(3):
            for jb in range(5):
                slots[nxt(rho, jb) + 3].append(f"ds_write_b128 v{self.VPW}, {vr(AC[rho&1]+4*jb,4)} offset:{5120*rho+1024*jb} @pw")
            rd = lambda jb: f"ds_read_b128 {vr(AC[(rho+1)&1]+4*jb,4)}, v{self.VPR} offset:{5120*rho+1024*jb}"
            b1 = nxt(rho, 2) + 9
            slots[b1].append("WAITLG pw\ns_barrier")
            for k in range(3): slots[b1 + 1 + k].append(rd(k))
            b2 = nxt(rho, 4) + 9
            slots[b2].append("WAITLG pw\ns_barrier")
            for k in range(2): slots[b2 + 1 + k].append(rd(3 + k))
        spread(slots, self.hloads(2), 1, idx[(0, 4)])
        spread(slots, self.hloads(3), idx[(1, 0)], idx[(1, 4)])
        ms = o.get("ms", 62)
        slots[ms - 3].append(f"s_lshl_b32 s81, {XCD}, 3\ns_lshr_b32 s7, {JJ}, 2\ns_add_u32 s81, s81, s7\ns_lshl_b32 s81, s81, 8")
        slots[ms - 2].append(f"s_and_b32 s7, {JJ}, 3\ns_lshl_b32 s7, s7, 2\ns_add_u32 s7, s7, {WAVE}\ns_lshl_b32 s7, s7, 2\ns_add_u32 s81, s81, s7\ns_add_u32 s81, s81, {FS}")
        slots[ms].append("WAITVM sst\n" + self.flag_store("s81", 232))
        if self.prof: slots[ms].append(self.st("g2.fs"))
        t = 229
        side = [f"v_min_u32 v{t}, 26, v0", f"v_lshrrev_b32 v{t+1}, 2, v{t}", f"v_and_b32 v{t}, 3, v{t}", f"v_lshlrev_b32 v{self.VFS}, 8, v{t+1}",
                f"v_lshl_add_u32 v{self.VFS}, v{t}, 4, v{self.VFS}", f"s_lshl_b32 s86, s13, 11\ns_add_u32 s86, s86, {FS}",
                f"v_lshrrev_b32 v{t}, 3, v0", f"v_and_b32 v{t+1}, 7, v0", f"v_lshlrev_b32 v{self.VSG}, 12, v{t}", f"v_lshl_add_u32 v{self.VSG}, v{t+1}, 4, v{self.VSG}",
                f"v_lshrrev_b32 v{t+1}, 1, v{t+1}", f"v_mul_u32_u24 v{self.VSL}, 2560, v{t+1}", f"v_lshl_add_u32 v{self.VSL}, v{t}, 5, v{self.VSL}",
                f"v_and_b32 v{t+1}, 1, v0", f"v_lshl_add_u32 v{self.VSL}, v{t+1}, 4, v{self.VSL}",
                f"s_mul_i32 s7, {WAVE}, 640\ns_add_u32 s7, s7, {G2S}\nv_add_u32 v{self.VSL}, s7, v{self.VSL}",
                f"s_mul_i32 s7, {WAVE}, 2560\ns_add_u32 s7, s7, {G2S}\nv_lshl_add_u32 v{self.VSR}, v0, 3, s7",
                f"s_lshl_b32 s76, s13, 2\ns_add_u32 s76, s76, {WAVE}\ns_mul_i32 s76, s76, {20*4096}",
                f"s_lshl_b32 s7, s12, 7\ns_add_u32 s76, s76, s7\ns_add_u32 s76, s76, {ST}",
                f"s_add_u32 s77, s76, {8*4096}\ns_add_u32 s78, s76, {16*4096}\ns_mov_b32 s74, {fbits(-1.4426950408889634)}"]
        spread_cost(slots, side, idx[(1, 0)], idx[(2, 0)])
        XR, XF, SR, SD = 96, 176, 106, 116
        xs = ["WAITVM xdma"] + [f"ds_read_b64 {vr(XR+2*jb,2)}, v{self.VXD} offset:{32*jb}" for jb in range(5)]
        spread(slots, xs, idx[(2, 0)] + 12, idx[(2, 1)] + 6)
        xu = []
        for q in range(10): xu += [f"v_lshlrev_b32 v{XF+2*q}, 16, v{XR+q}", f"v_and_b32 v{XF+2*q+1}, 0xffff0000, v{XR+q}"]
        spread_cost(slots, xu, idx[(2, 2)], idx[(3, 0)])
        mp, mc = o.get("g2p", 140), o.get("g2c", 180)
        slots[mp].append(self.poll_load(196, True, self.VFS, "s86"))
        slots[mc].append(self.poll_check("s", 196, True, self.VFS, "s86"))
        if self.prof: slots[mc].append(self.st("spoll"))
        slots[mc + 1].append(f"buffer_load_dwordx4 {vr(SD,4)}, v{self.VSG}, {SWS}, s76 offen{SC}")
        slots[mc + 2].append(f"buffer_load_dwordx4 {vr(SD+4,4)}, v{self.VSG}, {SWS}, s77 offen{SC}")
        slots[mc + 3].append(f"s_mov_b64 exec, 0xffffffff\nbuffer_load_dwordx4 {vr(SD+8,4)}, v{self.VSG}, {SWS}, s78 offen{SC}\ns_mov_b64 exec, -1")
        Z = AC[1]
        def silu(jb):
            T = 200
            z = Z + 4 * jb
            L = [f"v_mul_f32 v{T+k}, s74, v{z+k}" for k in range(4)] + [f"v_exp_f32 v{T+k}, v{T+k}" for k in range(4)]
            L += [f"v_add_f32 v{T+k}, 1.0, v{T+k}" for k in range(4)] + [f"v_rcp_f32 v{T+k}, v{T+k}" for k in range(4)]
            L += [f"v_mul_f32 v{z+k}, v{z+k}, v{T+k}" for k in range(4)]
            return L
        for jb in range(4):
            s0 = nxt(3, jb)
            spread_cost(slots, silu(jb), s0 + 2, s0 + 12)
        for m, x in enumerate(main):
            a(x)
            for y in slots[m]: a(y)
        a(self.st("g2.mfma"))
        a(f"""
        ds_write_b128 v{self.VSL}, {vr(SD,4)}
        ds_write_b128 v{self.VSL}, {vr(SD+4,4)} offset:256
        s_waitcnt vmcnt(0)
        s_mov_b64 exec, 0xffffffff
        ds_write_b128 v{self.VSL}, {vr(SD+8,4)} offset:512
        s_mov_b64 exec, -1
        """)
        sl = silu(4)
        for x in sl[:12]: a(x)
        a("s_waitcnt lgkmcnt(0)\ns_barrier")
        for jb in range(5): a(f"ds_read_b64_tr_b16 {vr(SR+2*jb,2)}, v{self.VSR} offset:{512*jb}")
        for x in sl[12:]: a(x)
        T = 204
        for q in range(10):
            a(f"""
            v_lshlrev_b32 v{T}, 16, v{SR+q}
            v_and_b32 v{T+1}, 0xffff0000, v{SR+q}
            v_pk_fma_f32 {vr(T,2)}, {vr(T,2)}, {vr(Z+2*q,2)}, {vr(XF+2*q,2)}
            v_cvt_pk_bf16_f32 v{XR+q}, v{T}, v{T+1}
            """)
            if q & 1: a(f"ds_write_b64 v{self.VXD}, {vr(XR+q-1,2)} offset:{32*(q>>1)}")
        for i in range(3): a(f"ds_read_b128 {vr(SD+4*i,4)}, v{self.VXL} offset:{1024*i}")
        osc = o.get("osc", "")
        for i in range(2): a(f"buffer_store_dwordx4 {vr(SD+4*i,4)}, v{self.VX+i}, {SOUT}, s14 offen{osc}")
        a(f"s_waitcnt lgkmcnt(0)\ns_mov_b64 exec, 0xffffffff\nbuffer_store_dwordx4 {vr(SD+8,4)}, v{self.VX+2}, {SOUT}, s14 offen{osc}")
        a(self.st("g2.done"))


def build(prof=False, opt=None):
    g = F(prof, opt or {})
    a = Asm(auto=True)
    g.start(a)
    g.s_compute(a, g.st("s.pre") + "\ns_waitcnt vmcnt(63)")
    a(f"""
    v_readfirstlane_b32 s7, v109
    s_mul_i32 s7, s7, 1664525
    s_add_u32 {TAG}, s7, 1013904223
    s_mov_b32 s51, {TAG}
    """)
    a(g.st("s.done"))
    a(f"s_cmp_eq_u32 {WAVE}, 3\ns_cbranch_scc1 L_w3")
    st0 = a.state()
    a("s_waitcnt lgkmcnt(0)\ns_barrier")
    g.kgen2(a)
    a("s_branch L_g1\nL_w3:")
    st1 = a.state()
    a.set_state(st0)
    g.wave3(a)
    a("L_g1:")
    a.merge([st1, a.state()])
    a(g.st("g1.arrive"))
    a("s_barrier")
    g.gemm1f(a)
    a(f"s_cmp_eq_u32 {WAVE}, 3\ns_cbranch_scc1 L_cv3")
    st0 = a.state()
    g.conv(a, 0)
    a("s_branch L_g2\nL_cv3:")
    st1 = a.state()
    a.set_state(st0)
    g.conv(a, 1)
    a("L_g2:")
    a.merge([st1, a.state()])
    g.gemm2f(a)
    a(f"s_or_b32 s7, s2, {WAVE}\ns_cbranch_scc1 L_fin\ns_mov_b32 s7, {FLG}")
    a(g.flag_store("s7", 4))
    a("L_fin:")
    g.dump(a)
    a("L_end:\ns_endpgm")
    g.slow_paths(a)
    a("L_code_end:")
    body = a.finish()
    out = header()
    out += f"; @launch grid=(256,1,1) block=(256,1,1) lds={LDS_BYTES}\n"
    if prof: out += "; stamps2: " + " ".join(g.names) + "\n"
    out += '.amdgcn_target "amdgcn-amd-amdhsa--gfx950"\n.text\n'
    out += khead(NAME + "_kernel") + body
    out += '.section .rodata,"a"\n.p2align 6\n' + kdesc(NAME + "_kernel")
    print("instructions", sum(1 for i in a.ins if i.mn), "nops inserted", a.nops)
    return out

if __name__ == "__main__":
    path = sys.argv[1]
    prof = "prof" in sys.argv[2:]
    opt = {}
    for x in sys.argv[2:]:
        if "=" in x:
            k, v = x.split("=", 1)
            try: v = int(v)
            except ValueError:
                try: v = float(v)
                except ValueError: v = " " + v.replace("+", " ")
            opt[k] = v
    open(path, "w").write(build(prof, opt))
```

```python
import re

TRANS = ("v_exp_f32", "v_log_f32", "v_rcp_f32", "v_rsq_f32", "v_sqrt_f32", "v_sin_f32", "v_cos_f32")
REG_RE = re.compile(r"^(-|abs\(|\|)?([vas])(\d+|\[(\d+):(\d+)\])\)?\|?$")


def regs_of(tok):
    tok = tok.strip()
    if tok == "vcc":
        return {("s", "vcc")}
    if tok in ("vcc_lo", "vcc_hi"):
        return {("s", "vcc")}
    if tok == "exec":
        return {("s", "exec")}
    if tok == "m0":
        return {("s", "m0")}
    m = REG_RE.match(tok)
    if not m:
        return set()
    k = m.group(2)
    if m.group(4) is not None:
        return {(k, i) for i in range(int(m.group(4)), int(m.group(5)) + 1)}
    return {(k, int(m.group(3)))}


def split_ops(rest):
    ops, depth, cur = [], 0, ""
    for ch in rest:
        if ch in "[(":
            depth += 1
        if ch in "])":
            depth -= 1
        if ch == "," and depth == 0:
            ops.append(cur.strip())
            cur = ""
        else:
            cur += ch
    if cur.strip():
        ops.append(cur.strip())
    mods = ""
    if ops:
        parts = ops[-1].split(None, 1)
        ops[-1] = parts[0]
        if len(parts) > 1:
            mods = parts[1]
    return ops, mods


class Ins:
    def __init__(self, text):
        self.text = text
        t = text.split(";")[0].strip()
        self.label = t.endswith(":")
        self.directive = t.startswith(".")
        self.mn = ""
        self.w = set()
        self.r = set()
        self.srcc = set()
        self.srcab = set()
        self.sdata = set()
        self.ws = 1
        if self.label or self.directive or not t:
            self.ws = 0
            return
        p = t.split(None, 1)
        mn = self.mn = p[0]
        ops, mods = split_ops(p[1]) if len(p) > 1 else ([], "")
        self.ops, self.mods = ops, mods
        R = [regs_of(o) for o in ops]
        self.mfma = mn.startswith("v_mfma")
        self.valu = mn.startswith("v_") and not self.mfma
        self.trans = any(mn.startswith(x) for x in TRANS)
        self.ds = mn.startswith("ds_")
        self.vmem = mn.startswith("buffer_") or mn.startswith("global_")
        self.salu = mn.startswith("s_")
        self.dpp = "_dpp" in mn
        self.dot = mn.startswith("v_dot")
        self.ldsdma = self.vmem and (" lds" in (" " + mods) or "load_lds" in mn)
        if mn == "s_nop":
            self.ws = int(ops[0], 0) + 1
            return
        if self.mfma:
            self.passes = 8 if "32x32" in mn else 4
            self.w = R[0]
            self.srcab = R[1] | R[2]
            self.srcc = R[3]
            self.r = self.srcab | self.srcc
        elif self.valu:
            if mn.startswith("v_permlane"):
                self.w = R[0] | R[1]
                self.r = R[0] | R[1]
            elif mn.startswith("v_cmp"):
                self.w = R[0]
                self.r = set().union(*R[1:])
            elif "_co_" in mn:
                self.w = R[0] | R[1]
                self.r = set().union(*R[2:])
            else:
                self.w = R[0]
                self.r = set().union(*R[1:]) if len(R) > 1 else set()
                if mn.startswith(("v_fmac", "v_dot2c", "v_writelane")) or self.dpp:
                    self.r |= R[0]
        elif self.ds:
            if mn.startswith(("ds_read", "ds_bpermute", "ds_permute", "ds_swizzle")):
                self.w = R[0]
                self.r = set().union(*R[1:])
                if "d16" in mn:
                    self.r |= R[0]
            elif "_rtn" in mn:
                self.w = R[0]
                self.r = set().union(*R[1:])
            else:
                self.r = set().union(*R)
        elif self.vmem:
            if mn.startswith(("buffer_inv", "buffer_wb")):
                pass
            elif self.ldsdma:
                self.r = set().union(*R) | {("s", "m0")}
            elif "_load" in mn:
                self.w = R[0]
                self.r = set().union(*R[1:])
            else:
                self.r = set().union(*R)
                data = R[0] if mn.startswith("buffer_") else R[1]
                if mn.endswith(("x3", "x4")):
                    self.sdata = data
                if "atomic" in mn and "sc0" in mods and mn.startswith("buffer_"):
                    self.w = R[0]
        elif self.salu:
            if mn.startswith(("s_cmp", "s_cbranch", "s_branch", "s_waitcnt", "s_barrier", "s_endpgm", "s_sleep",
                              "s_setprio", "s_bitcmp")):
                self.r = set().union(*R) if R else set()
            else:
                self.w = R[0] if R else set()
                self.r = set().union(*R[1:]) if len(R) > 1 else set()
                if "saveexec" in mn:
                    self.w = self.w | {("s", "exec")}


def need(P, C):
    n = 0
    if not P.mn or not C.mn or P.mn == "s_nop" or C.mn == "s_nop":
        return 0
    Pvw = {r for r in P.w if r[0] in "va"}
    Psw = {r for r in P.w if r[0] == "s"}
    if P.valu:
        if C.mfma and Pvw & C.r:
            n = max(n, 2)
        if P.trans and C.valu and not C.trans and Pvw & C.r:
            n = max(n, 1)
        if C.valu and C.dpp and Pvw & C.r:
            n = max(n, 2)
        if C.mn.startswith(("v_readlane", "v_readfirstlane")) and Pvw & C.r:
            n = max(n, 1)
        if C.mn.startswith("v_permlane") and Pvw & C.r:
            n = max(n, 2)
        if Psw:
            if C.valu and Psw & C.r:
                n = max(n, 4 if C.mn.startswith(("v_readlane", "v_writelane")) else 2)
            if C.vmem and Psw & C.r:
                n = max(n, 5)
            if C.salu and Psw & C.r:
                n = max(n, 1)
        if P.dot and (C.valu or C.mfma or C.vmem or C.ds) and Pvw & (C.r | C.w):
            if not (C.mn == P.mn and not (Pvw & set().union(*[regs_of(o) for o in C.ops[1:3]]))):
                n = max(n, 3)
        if ("sdwa" in P.mn) and C.valu and Pvw & (C.r | C.w):
            n = max(n, 1)
    if P.mfma:
        big = P.passes == 8
        if C.mfma:
            if P.w & C.srcc:
                if not (P.w == C.srcc and P.passes == C.passes):
                    n = max(n, 10 if big else 6)
            if P.w & C.srcab:
                n = max(n, 12 if big else 8)
        elif C.valu or C.vmem or C.ds:
            if P.w & (C.r | C.w):
                n = max(n, 12 if big else 8)
            if C.valu and P.srcc & C.w:
                n = max(n, 7 if big else 3)
    if P.vmem and P.sdata and P.sdata & C.w:
        n = max(n, 2 if C.valu else 1)
    if P.salu and ("s", "m0") in P.w and (C.ldsdma or "addtid" in C.mn):
        n = max(n, 1)
    return n


WAIT_RE = re.compile(r"(vmcnt|lgkmcnt)\((\d+)\)")


class Asm:
    def __init__(self, auto=False):
        self.ins = []
        self.nops = 0
        self.auto = auto
        self.vmq = []
        self.lgq = []

    def _need(self, q, regs=None, tag=None):
        idx = -1
        for i, (r, t) in enumerate(q):
            if (regs and r & regs) or (tag and tag in t):
                idx = i
        return None if idx < 0 else len(q) - 1 - idx

    def _emit_wait(self, nv, nl):
        parts = []
        if nv is not None:
            nv = min(nv, 62)
            parts.append(f"vmcnt({nv})")
            self.vmq = self.vmq[len(self.vmq) - nv:] if nv else []
        if nl is not None:
            nl = min(nl, 14)
            parts.append(f"lgkmcnt({nl})")
            self.lgq = self.lgq[len(self.lgq) - nl:] if nl else []
        if parts:
            self.ins.append(Ins("s_waitcnt " + " ".join(parts)))

    def wait_vm(self, tag):
        self._emit_wait(self._need(self.vmq, tag=tag), None)

    def wait_lgkm(self, tag):
        self._emit_wait(None, self._need(self.lgq, tag=tag))

    def state(self):
        return ([(set(r), set(t)) for r, t in self.vmq], [(set(r), set(t)) for r, t in self.lgq])

    def set_state(self, st):
        self.vmq = [(set(r), set(t)) for r, t in st[0]]
        self.lgq = [(set(r), set(t)) for r, t in st[1]]

    def merge(self, states):
        res = []
        for k in (0, 1):
            n = max(len(st[k]) for st in states)
            q = [(set(), set()) for _ in range(n)]
            for st in states:
                m = len(st[k])
                for i, (r, t) in enumerate(st[k]):
                    q[n - m + i][0].update(r)
                    q[n - m + i][1].update(t)
            res.append(q)
        self.set_state(tuple(res))

    def __call__(self, text):
        for line in text.split("\n"):
            line = line.strip()
            if not line or line.startswith(";"):
                continue
            if line.startswith("WAITVM "):
                self.wait_vm(line.split()[1]); continue
            if line.startswith("WAITLG "):
                self.wait_lgkm(line.split()[1]); continue
            tags = set()
            if " @" in line:
                line, tg = line.rsplit(" @", 1)
                tags = {tg.strip()}
            I = Ins(line)
            if self.auto and I.mn:
                if I.mn == "s_waitcnt":
                    for k, n in WAIT_RE.findall(line):
                        n = int(n)
                        if k == "vmcnt":
                            self.vmq = self.vmq[max(0, len(self.vmq) - n):] if n else []
                        else:
                            self.lgq = self.lgq[max(0, len(self.lgq) - n):] if n else []
                elif I.mn != "s_nop":
                    regs = {r for r in (I.r | I.w) if r[0] in "va"}
                    rv = {r for r in I.r if r[0] in "va"} if I.vmem else regs
                    rl = {r for r in I.r if r[0] in "va"} if I.ds else regs
                    self._emit_wait(self._need(self.vmq, regs=rv), self._need(self.lgq, regs=rl))
                    if I.vmem and not I.mn.startswith(("buffer_inv", "buffer_wb")):
                        self.vmq.append(({r for r in I.w}, tags))
                    elif I.ds:
                        self.lgq.append(({r for r in I.w}, tags))
                    elif I.mn.startswith(("s_load", "s_memtime", "s_memrealtime")):
                        self.lgq.append((set(), {"SMEM"}))
            self.ins.append(I)

    def label(self, name):
        self.ins.append(Ins(name + ":"))

    def _pad(self, out, C):
        dist = 0
        req = 0
        for P in reversed(out):
            if dist >= 20:
                break
            if P.ws == 0:
                continue
            k = need(P, C) - dist
            if k > req:
                req = k
            dist += P.ws
        return req

    def finish(self):
        out = []
        for C in self.ins:
            if C.mn:
                req = self._pad(out, C)
                if req > 0:
                    out.append(Ins(f"s_nop {req-1}"))
                    self.nops += 1
            out.append(C)
        labels = {I.text.split(";")[0].strip()[:-1]: i for i, I in enumerate(out) if I.label}
        for i, I in enumerate(out):
            if I.mn.startswith(("s_cbranch", "s_branch")):
                tgt = labels[I.ops[0]]
                hist = out[max(0, i - 40): i + 1]
                dist = 0
                j = tgt
                hist = list(hist)
                while j < len(out) and dist < 20:
                    C = out[j]
                    if C.mn:
                        req = self._pad(hist, C)
                        if req > 0:
                            raise RuntimeError(f"hazard across branch '{I.text}' at '{C.text}' needs {req} more wait states")
                        dist += C.ws
                        if C.mn in ("s_branch", "s_endpgm"):
                            break
                    hist.append(C)
                    j += 1
        txt = []
        for I in out:
            txt.append(I.text if (I.label or I.directive) else "    " + I.text)
        return "\n".join(txt) + "\n"


def interleave(main, fill, ratio=None):
    out = []
    n, m = len(main), len(fill)
    k = 0
    for i, x in enumerate(main):
        out.append(x)
        tgt = (i + 1) * m // n if ratio is None else min(m, int((i + 1) * ratio))
        while k < tgt:
            out.append(fill[k])
            k += 1
    out.extend(fill[k:])
    return out


def spread(slots, items, lo, hi):
    n = len(items)
    span = hi - lo
    for i, x in enumerate(items):
        slots[lo + (i * span) // n].append(x)


def cost(x):
    c = 0
    for line in x.split("\n"):
        mn = line.strip().split(None, 1)[0] if line.strip() else ""
        if not mn:
            continue
        c += 2 if any(mn.startswith(t) for t in TRANS) or mn.startswith("v_permlane") else 1
    return c


def spread_cost(slots, items, lo, hi):
    have = [sum(cost(x) for x in slots[m]) for m in range(lo, hi)]
    total = sum(have) + sum(cost(x) for x in items)
    per = total / (hi - lo)
    k = 0
    acc = 0.0
    for m in range(lo, hi):
        acc += have[m - lo]
        while k < len(items) and (acc + cost(items[k]) / 2 <= per * (m - lo + 1) or m == hi - 1):
            slots[m].append(items[k])
            acc += cost(items[k])
            k += 1


def pool_sched(uses, reads, pool, maxper, gate=None, pre=0):
    order = []
    last = {}
    first = {}
    for m, fs in enumerate(uses):
        for f in fs:
            if f not in first:
                first[f] = m
                order.append(f)
            last[f] = m
    free = list(pool)
    reg = {}
    slots = [[] for _ in uses]
    pro = []
    k = 0
    while k < len(order) and k < pre:
        reg[order[k]] = free.pop(0)
        pro += reads(order[k], reg[order[k]])
        k += 1
    minlead = 10 ** 9
    credit = 0.0
    for m, fs in enumerate(uses):
        for f in fs:
            assert f in reg, f"fragment {f} not loaded before use at {m}"
            if last[f] == m:
                free.append(reg[f])
        credit = min(credit + maxper(m), max(1.0, maxper(m)) + 0.999)
        while k < len(order) and free and credit >= 1 and (gate is None or gate(order[k], m)):
            f = order[k]
            reg[f] = free.pop(0)
            slots[m] += reads(f, reg[f])
            minlead = min(minlead, first[f] - m)
            k += 1
            credit -= 1
    return reg, pro, slots, minlead


def kind_cost(line):
    t = line.strip()
    mn = t.split(None, 1)[0]
    if mn.endswith(":"):
        return 0, 0
    if mn in ("WAITVM", "WAITLG") or mn.startswith("s_"):
        return 0, 1
    if mn.startswith("ds_read"):
        return 1, 1
    if mn.startswith(("buffer_", "global_")):
        return 2, 2 if "load" in mn else 3
    if mn.startswith("ds_write"):
        if "addtid" in mn: return 3, 1
        if "b128" in mn: return 3, 6
        if "b64" in mn or "write2" in mn: return 3, 3
        return 3, 2
    if any(mn.startswith(x) for x in TRANS) or mn.startswith("v_permlane"):
        return 4, 2
    return 4, 1


class Item:
    def __init__(self, text, lo=None, hi=None):
        self.text = text
        self.lo, self.hi = lo, hi
        ls = [l for l in text.split("\n") if l.strip()] if isinstance(text, str) else None
        self.set(ls)

    def set(self, ls):
        self.lines = ls
        kc = [kind_cost(l) for l in ls]
        non = [k for k, c in kc if k]
        self.first = non[0] if non else 0
        self.last = non[-1] if non else 0
        self.cost = sum(c for k, c in kc)
        prev = None
        for k, c in kc:
            if prev == 4 and k in (1, 2, 3): self.cost += 2
            if k: prev = k
        self.lead_salu = bool(kc) and kc[0] == (0, 1)


class Stream:
    def __init__(self, items, lo, hi, ahead=2, name=""):
        self.items = [x if isinstance(x, Item) else Item(x) for x in items if (isinstance(x, Item) or x.strip())]
        self.lo, self.hi, self.ahead, self.name = lo, hi, ahead, name
        tot = sum(max(1, x.cost) for x in self.items) or 1
        acc = 0
        for x in self.items:
            x.ideal = lo + (hi - lo) * acc / tot
            acc += max(1, x.cost)
        self.k = 0

    def peek(self, m):
        return self.items[self.k] if self.k < len(self.items) else None

    def take(self, m):
        self.k += 1

    def after_main(self, m):
        pass


class FragStream:
    def __init__(self, uses, reads, pool, lead, gate=None, pre=0, ahead=None, name="frag", fixed=None):
        self.uses, self.reads, self.free = uses, reads, list(pool)
        self.order, self.first, self.last = [], {}, {}
        for m, fs in enumerate(uses):
            for f in fs:
                if f not in self.first:
                    self.first[f] = m
                    self.order.append(f)
                self.last[f] = m
        self.reg = {}
        self.lead, self.gate, self.name = lead, gate, name
        self.ahead = ahead if ahead is not None else 10 ** 6
        self.k = 0
        self.pend = []
        self.pro = []
        self.minlead = 10 ** 9
        while self.k < pre:
            f = self.order[self.k]
            self.reg[f] = self.free.pop(0)
            self.pro += reads(f, self.reg[f])
            self.k += 1

    def after_main(self, m):
        for f in self.uses[m]:
            assert f in self.reg and not any(p.f == f for p in self.pend), f"fragment {f} not loaded before {m}"
            if self.last[f] == m:
                self.free.append(self.reg[f])

    def peek(self, m):
        if not self.pend:
            if self.k >= len(self.order) or not self.free: return None
            f = self.order[self.k]
            if self.gate and not self.gate(f, m): return None
            if self.first[f] - self.lead - self.ahead > m: return None
            self.reg[f] = self.free.pop(0)
            self.k += 1
            for t in self.reads(f, self.reg[f]):
                it = Item(t)
                it.f = f
                it.ideal = self.first[f] - self.lead
                it.hi = max(0, self.first[f] - max(2, self.lead // 2))
                self.pend.append(it)
        return self.pend[0]

    def take(self, m):
        it = self.pend.pop(0)
        self.minlead = min(self.minlead, self.first[it.f] - m)


def gap_sched(a, main, streams, verbose=""):
    n = len(main)
    over = 0
    text = lambda m: main[m]() if callable(main[m]) else main[m]
    for m in range(n):
        t = text(m)
        a(t)
        mf = [l for l in t.split("\n") if "v_mfma" in l][-1]
        budget = 6 if "32x32" in mf else 2
        for s in streams: s.after_main(m)
        free_salu = True
        if m + 1 < n:
            try:
                nt = text(m + 1)
            except KeyError:
                nt = None
            if nt is not None:
                I = Ins([l for l in nt.split("\n") if "v_mfma" in l][-1].strip())
                regs = {r for r in (I.r | I.w)}
                k0 = len(a.ins)
                a._emit_wait(a._need(a.vmq, regs=regs), a._need(a.lgq, regs=regs))
                if len(a.ins) > k0: free_salu = False
        chosen = []
        lastrank = {}
        used = 0
        while True:
            best = None
            for s in streams:
                it = s.peek(m)
                if it is None: continue
                lo = it.lo if it.lo is not None else getattr(s, "lo", 0)
                if m < lo: continue
                hi = it.hi if it.hi is not None else getattr(s, "hi", n) - 1
                forced = m >= hi or m == n - 1
                if not forced:
                    if it.ideal - s.ahead > m: continue
                    if id(s) in lastrank and it.first and it.first < lastrank[id(s)]: continue
                    c = it.cost - (1 if (it.lead_salu and free_salu and id(s) not in lastrank) else 0)
                    if used + c > budget and not (used == 0 and c > budget and it.ideal <= m): continue
                key = (0 if forced else 1, it.ideal)
                if best is None or key < best[0]: best = (key, s, it)
            if best is None: break
            _, s, it = best
            c = it.cost
            front = False
            if it.lead_salu and free_salu and id(s) not in lastrank:
                c -= 1; free_salu = False; front = True
            used += c
            rank = max(lastrank.get(id(s), 0), it.first)
            chosen.append((-1 if front else rank, len(chosen), it))
            lastrank[id(s)] = max(rank, it.last)
            s.take(m)
        over += max(0, used - budget)
        chosen.sort(key=lambda x: (x[0] if x[0] >= 0 or x[2].last <= 1 else x[2].first, x[1]))
        for _, _, it in chosen:
            a("\n".join(it.lines))
    for s in streams:
        assert s.peek(n) is None, f"stream {s.name} not drained"
    if verbose:
        print(verbose, "overflow slots", over, [(s.name, s.minlead) for s in streams if hasattr(s, "minlead")])
```

```python
import sys, struct, math
from dsl import Asm, interleave, Item, Stream, FragStream, gap_sched
import gen, gen2
from gen import (NAME, fbits, Y2F, XNT, W2F, HF, ST, FLG, PROF, WS_BYTES, PY, PX,
                 CBP, CPITCH, U_OFF, LDS_BYTES, sp, SX, SW1, SW2, SOUT, SWS, WAVE, XCD, JJ, SID, vr, ar,
                 kdesc, khead, header)
from gen2 import FY, FX, FH, FS, TAG, SC, S_PAIR, S_SNG, S_HA, S_HC, S_Y, S_ROW

XNT, XP = 0x280000, 10368
W2F, HF = 0x520000, 0x700000
ST, SP = 0xD00000, 4224
FW = FLG + 0x3000
CNT = 29696
YT, W2S, XT = 0, 10496, 30208
TABSZ, TP = 8704, 272
RP, KC = 4352, 18176
CB0 = 18176
SNG, PAIR = 40960, 81920
RING = 81920
G2X, G2S = 122880, 135168
V_YTW, V_XTW, V_KR, V_XTR = 212, 213, 214, 215
V_T = 216
V_ES, V_Z1 = 224, 227
V_UG, V_Z2 = 228, 231
V_UL = 232
V_P0, V_P1, V_S, V_HF = 236, 237, 238, 239
V_FX, V_FY, V_YP, V_DUM, V_WP = 208, 209, 210, 248, 235
V_B1, V_ONE = 240, 252
VCA, VCB, VSL, VCW, VPW, VPR, VXL, VXD, VSR = 212, 213, 214, 215, 216, 217, 218, 219, 220
VX, VFH, VFS, VSG, VB2, VONE2 = 224, 227, 228, 229, 230, 231

def tables():
    W = lambda w, l: None
    def early_w(w, l):
        hh, j, q = l >> 5, l & 31, l & 31
        tok = 2 * w + hh
        rb = RP * w
        T = [192 * w + 64 * i + l for i in range(3)]
        cw = min(w, 2)
        k = l % 36
        z1 = CB0 + cw * CBP + (k // 9) * CPITCH + 4096 + 4 * (k % 9) - (4 if k // 9 >= 2 else 0)
        return [YT + tok * PY + 8 * q, XT + tok * PX + 8 * q, TABSZ * w + j * TP + hh * 16,
                XT + ((l >> 2) & 3) * PX + (l >> 4) * 32 + (l & 3) * 8 + 128 * w,
                rb + (8 * j + 4 * hh) * 4, rb + ((256 + 4 * j) * 4 if hh == 0 else (384 + 2 * j) * 4),
                rb + ((258 + 4 * j) * 4 if hh == 0 else (448 + 2 * j) * 4), rb + 8 * (63 - l),
                rb + 16 * (63 - l), rb + 32 * l, rb + 16 * l, rb + 8 * l,
                1024 * w + 4 * l, RP + 1024 * w + 4 * l, 2 * RP + 1024 * w + 4 * l, z1] + \
               [(t // 3) * XP + (t % 3) * 16 for t in T] + [CB0 + cw * CBP + U_OFF + 8 * l] + \
               [CB0 + (t % 3) * CBP + U_OFF + 512 + (t // 3) * 16 for t in T] + [(min(l, 59) // 12) * 49152 + (min(l, 59) % 12) * 128]
    def extra_w(w, l):
        w2r = W2S + (l >> 5) * 4096 + ((l >> 2) & 7) * 256 + (l & 3) * 8 + 32 * w
        xtr = XT + ((l >> 2) & 3) * PX + (l >> 4) * 32 + (l & 3) * 8
        if w == 3: return [YT + (l & 7) * PY + (l >> 3) * 16, (l >> 3) * 512 + (l & 7) * 16, 0, 0]
        if w < 2: return [w2r, w2r + 192, w2r + 192 + 2048, 0]
        return [w2r, xtr + 128 * 9, xtr + 128 * 9 + 4 * PX, 0]
    def early_i(l):
        hh, r, ch, cq = l >> 5, (l >> 2) & 3, (l >> 4) & 1, l & 3
        p0 = PAIR + (8 * hh + r) * 128 + (r >> 1) * 64 + ch * 32 + cq * 8
        return [p0, p0 ^ 64, SNG + (8 * hh + r) * 64 + ch * 32 + cq * 8, ch * 49152 + hh * 256 + (l & 15) * 16,
                0x3f80 if l < 32 else 0, 0, 0, 0,
                (l >> 2) * 256 + (l & 3) * 16, (l & 3) * 4, min(l, 39) * 128, 0,
                0, 0, 0, 0]
    def late_w(w, l):
        p, g = l & 15, l >> 4
        ip = 15 - p
        cb = CB0 + (w if w < 3 else 0) * CBP
        rb = RING + 10240 * w
        xb = G2X + 3072 * w
        return [cb + (ip & 3) * CPITCH + (ip & 12) * 2 + g * 16, cb + p * 32 + g * 16,
                G2S + ((l & 7) >> 1) * 2560 + (l >> 3) * 32 + (l & 1) * 16 + 640 * w, rb + p * 32 + g * 8,
                rb + 16 * l, RING + 10240 * ((w + 1) & 3) + 4 * l, xb + 16 * l, xb + 160 * p + 8 * g,
                G2S + 8 * l, 0, 0, 0]
    def late_i(l):
        j = min(l, 26)
        return [((64 * i + l) // 10) * 1280 + ((64 * i + l) % 10) * 16 for i in range(3)] + \
               [(l & 3) * 16 + ((l >> 2) & 1) * 4, (j >> 2) * 256 + (j & 3) * 16, (l >> 3) * SP + (l & 7) * 16,
                (l & 15) * 2, 0x3f80 if l < 16 else 0]
    words = []
    def emit(f, ng):
        rows = [f(l) for l in range(64)]
        assert all(len(r) == 4 * ng for r in rows), (len(rows[0]), ng)
        for g in range(ng):
            for l in range(64): words.extend(rows[l][4 * g:4 * g + 4])
    emit(early_i, 4); emit(late_i, 2)
    for w in range(4):
        emit(lambda l: early_w(w, l), 6); emit(lambda l: extra_w(w, l), 1); emit(lambda l: late_w(w, l), 3)
    return words
T_EI, T_LI, T_W, T_WSZ, T_LW = 0, 4096, 6144, 10240, 7168

class F3(gen2.F):
    def start(self, a):
        o = self.o
        a(f"""
        s_load_dwordx16 s[16:31], s[0:1], 0
        s_load_dwordx16 s[32:47], s[0:1], 64
        s_load_dwordx2 s[48:49], s[0:1], 128
        s_cmp_ge_u32 s2, 256
        s_cbranch_scc1 L_end
        s_getpc_b64 s[96:97]
        L_pc:
        v_lshrrev_b32 v1, 6, v0
        s_lshr_b32 {JJ}, s2, 3
        v_and_b32 v0, 63, v0
        s_lshl_b32 s7, {JJ}, 4
        v_lshl_add_u32 v8, v1, 2, v0
        v_readfirstlane_b32 {WAVE}, v1
        v_add_lshl_u32 v8, v8, s7, 7
        v_lshlrev_b32 v1, 4, v0
        v_min_u32 v8, L_code_end-L_pc-4, v8
        s_mov_b64 exec, 15
        global_load_dword v{V_DUM}, v8, s[96:97]
        s_mov_b64 exec, -1
        s_add_u32 s96, s96, L_tab-L_pc+4096
        s_addc_u32 s97, s97, 0
        s_mul_i32 s7, {WAVE}, {T_WSZ}
        s_add_u32 s7, s7, {T_W}
        v_add_u32 v9, s7, v1
        s_and_b32 {XCD}, s2, 7
        s_lshl_b32 {SID}, {XCD}, 5
        s_add_u32 {SID}, {SID}, {JJ}
        global_load_dwordx4 {vr(212,4)}, v9, s[96:97] offset:-4096
        global_load_dwordx4 {vr(208,4)}, v1, s[96:97] offset:{T_EI+2048-4096}
        global_load_dwordx4 {vr(204,4)}, v9, s[96:97] offset:2048
        global_load_dwordx4 {vr(216,4)}, v9, s[96:97] offset:-3072
        global_load_dwordx4 {vr(220,4)}, v9, s[96:97] offset:-2048
        global_load_dwordx4 {vr(224,4)}, v9, s[96:97] offset:-1024
        global_load_dwordx4 {vr(228,4)}, v9, s[96:97]
        global_load_dwordx4 {vr(232,4)}, v9, s[96:97] offset:1024
        global_load_dwordx4 {vr(236,4)}, v1, s[96:97] offset:{T_EI-4096}
        global_load_dwordx4 {vr(252,4)}, v1, s[96:97] offset:{T_EI+1024-4096}
        v_lshrrev_b32 v2, 5, v0
        v_and_b32 v3, 31, v0
        v_mul_u32_u24 v7, 1280, v2
        v_lshl_add_u32 v7, v3, 3, v7
        s_lshl_b32 s72, {SID}, 2
        s_add_u32 s72, s72, {WAVE}
        s_mul_i32 s72, s72, 2560
        s_mov_b32 s54, 2621440
        s_mov_b32 s55, 0x20000
        s_mov_b32 s70, {WS_BYTES}
        s_mov_b32 s71, 0x20000
        s_mov_b32 s7, {FLG}
        s_waitcnt lgkmcnt(0)
        s_mov_b64 s[52:53], {sp('x')}
        s_mov_b64 s[68:69], {sp('ws')}
        """)
        for i in range(5):
            a(f"buffer_load_dwordx2 {vr(110+2*i,2)}, v7, {SX}, s72 offen offset:{256*i}")
        a(f"buffer_load_dword v109, off, {SWS}, s7{SC}")
        if self.prof:
            a("s_memrealtime s[100:101]\ns_waitcnt lgkmcnt(0)\ns_mov_b32 s99, s100")
            a(self.st("start"))
        a(f"""
        s_mov_b32 s58, 1966080
        s_mov_b32 s59, 0x20000
        s_mov_b32 s62, 1966080
        s_mov_b32 s63, 0x20000
        s_mov_b64 s[56:57], {sp('w1')}
        s_mov_b64 s[60:61], {sp('w2')}
        s_mul_i32 s10, {XCD}, 80
        s_mul_i32 s7, {JJ}, 3
        s_add_u32 s10, s10, s7
        """)
        a(f"""
        s_lshr_b32 s8, {XCD}, 1
        s_lshl_b32 s8, s8, 2
        s_and_b32 s7, {JJ}, 3
        s_add_u32 s8, s8, s7
        s_lshr_b32 s9, {JJ}, 3
        s_lshl_b32 s9, s9, 1
        s_and_b32 s7, {XCD}, 1
        s_add_u32 s9, s9, s7
        s_lshl_b32 s9, s9, 1
        s_bfe_u32 s7, {JJ}, 0x10002
        s_add_u32 s9, s9, s7
        """)
        a(f"""
        s_and_b32 s7, s9, 1
        s_mul_i32 {S_PAIR}, s9, 192
        s_add_u32 {S_SNG}, {S_PAIR}, 128
        s_lshl_b32 s73, s7, 6
        s_add_u32 {S_PAIR}, {S_PAIR}, s73
        s_lshl_b32 s73, s7, 7
        s_sub_u32 {S_SNG}, {S_SNG}, s73
        s_min_u32 s7, s2, 239
        s_mul_i32 s76, s7, 52429
        s_lshr_b32 s76, s76, 18
        s_mul_i32 s77, s76, 5
        s_sub_u32 s77, s7, s77
        s_cmp_eq_u32 {WAVE}, 3
        s_cbranch_scc1 L_st3
        """)
        st0 = a.state()
        a(f"""
        s_add_u32 s11, s10, {WAVE}
        s_min_u32 s11, s11, 639
        s_mul_i32 s7, s11, 384
        v_lshl_add_u32 v8, v0, 1, s7
        s_lshl_b32 s7, s11, 1
        v_mov_b32 v6, s7
        """)
        for k in range(10, 30, 2): a(f"v_mov_b64 {vr(k,2)}, 0")
        a(f"""
        global_load_short_d16_hi v28, v6, {sp('ldt')}
        global_load_short_d16_hi v29, v6, {sp('dsk')}
        """)
        for c in range(3):
            for k, n in enumerate(("are", "aim", "bre", "bim", "cre", "cim")):
                a(f"global_load_short_d16_hi v{10+6*c+k}, v8, {sp(n)} offset:{128*c}")
        a(f"""
        s_branch L_stj
        L_st3:
        """)
        st1 = a.state()
        a.set_state(st0)
        a(f"""
        v_lshrrev_b32 v5, 4, v0
        v_mul_u32_u24 v12, 1280, v5
        v_and_b32 v13, 15, v0
        v_lshl_add_u32 v12, v13, 4, v12
        v_add_u32 v13, {5120-1024}, v12
        v_add_u32 v14, {5120-1024}, v13
        v_add_u32 v15, {5120-1024}, v14
        s_mul_i32 s78, s76, 40960
        s_lshl_b32 s79, s77, 8
        s_add_u32 s78, s78, s79
        s_mov_b32 m0, {W2S}
        """)
        for h in range(2):
            for k in range(4):
                a(f"buffer_load_dwordx4 v{12+k}, {SW2}, s78 offen offset:{1024*k} lds @w2dma")
            if h == 0: a(f"s_mov_b32 m0, {W2S+4096}\ns_add_u32 s78, s78, {4*5120}")
        a("L_stj:")
        self.n_role = (20, 8)
        a.merge([st1, a.state()])
        if self.prof:
            for r in self.STAMPS[1:]:
                if r not in (44, 45): a(f"s_mov_b32 s{r}, 0")
        a(f"""
        v_lshl_add_u32 v8, v3, 1, {S_PAIR}
        v_lshl_add_u32 v6, v3, 1, {S_SNG}
        """)
        for k in range(V_B1, V_B1 + 8, 2): a(f"v_mov_b64 {vr(k,2)}, 0")
        a(f"""
        s_mov_b32 s66, 2621440
        s_mov_b32 s67, 0x20000
        s_mov_b64 s[64:65], {sp('out')}
        global_load_ushort v{V_B1}, v8, {sp('b1')}
        global_load_ushort v{V_B1+2}, v8, {sp('b1')} offset:64
        global_load_ushort v{V_B1+4}, v6, {sp('b1')}
        """)
        if self.prof: a("s_mov_b64 s[44:45], 0")
        a(f"""
        s_lshl_b32 s7, {WAVE}, 6
        v_add_u32 v5, s7, v0
        v_min_u32 v5, 159, v5
        v_mul_u32_u24 v5, 3072, v5
        s_and_b32 s7, {JJ}, 3
        s_mul_i32 s84, s7, {160*3072}
        s_cmp_eq_u32 {WAVE}, 3
        s_cselect_b32 s7, 0x1000000, s84
        s_add_u32 s73, s7, {S_PAIR}
        s_add_u32 s74, s7, {S_SNG}
        {f"buffer_load_dword v{V_DUM}, v5, {SW1}, s73 offen" if o.get("w1pf", 0) else ""}
        {f"buffer_load_dword v{V_DUM}, v5, {SW1}, s74 offen" if o.get("w1pf", 0) else ""}
        v_lshrrev_b32 v5, 4, v0
        v_lshrrev_b32 v4, 3, v0
        v_mul_u32_u24 v40, 3072, v4
        v_lshrrev_b32 v4, 2, v0
        v_mul_u32_u24 v44, 3072, v4
        v_xor_b32 v4, v4, v5
        v_and_b32 v4, 1, v4
        v_lshl_add_u32 v40, v4, 6, v40
        v_and_b32 v4, 3, v0
        v_lshl_add_u32 v40, v4, 4, v40
        v_lshl_add_u32 v44, v4, 4, v44
        v_add_u32 v41, {24576-1024}, v40
        v_add_u32 v42, {24576-1024}, v41
        v_add_u32 v43, {24576-1024}, v42
        v_add_u32 v45, {49152-1024}, v44
        """)
        a(f"""
        s_lshr_b32 s12, {XCD}, 1
        s_lshl_b32 s12, s12, 3
        s_and_b32 s7, {JJ}, 7
        s_add_u32 s12, s12, s7
        s_and_b32 s13, {XCD}, 1
        s_lshl_b32 s13, s13, 2
        s_lshr_b32 s7, {JJ}, 3
        s_add_u32 s13, s13, s7
        s_add_u32 s11, s7, {WAVE}
        s_and_b32 s11, s11, 3
        """)
        a(f"""
        s_lshl_b32 {S_Y}, s8, 2
        s_add_u32 {S_Y}, {S_Y}, {WAVE}
        s_mul_i32 {S_HA}, {S_Y}, 96
        s_mul_i32 {S_Y}, {S_Y}, 40960
        s_mul_i32 s7, s9, 3
        s_add_u32 {S_HA}, {S_HA}, s7
        s_lshl_b32 {S_HA}, {S_HA}, 10
        s_add_u32 {S_HA}, {S_HA}, {HF}
        s_add_u32 {S_HC}, {S_HA}, 2048
        s_and_b32 s7, s9, 1
        s_lshl_b32 s7, s7, 10
        s_add_u32 {S_HA}, {S_HA}, s7
        s_lshl_b32 s7, s7, 1
        s_sub_u32 {S_HC}, {S_HC}, s7
        s_cmp_lt_u32 {JJ}, 27
        s_cselect_b32 s10, s10, 0x20000
        s_mul_i32 {S_ROW}, s10, {SP}
        s_add_u32 {S_ROW}, {S_ROW}, {ST}
        s_lshr_b32 s7, {JJ}, 2
        s_mul_i32 s83, s7, 5120
        s_add_u32 s83, s83, {S_Y}
        s_lshl_b32 s86, s8, 8
        s_lshl_b32 s7, {WAVE}, 4
        s_add_u32 s86, s86, s7
        s_add_u32 s86, s86, {FY}
        s_lshr_b32 s81, {SID}, 4
        s_lshl_b32 s81, s81, 8
        s_and_b32 s7, {SID}, 15
        s_lshl_b32 s7, s7, 2
        s_add_u32 s81, s81, s7
        s_add_u32 s81, s81, {FY}
        s_mul_i32 s79, {SID}, {XP}
        s_add_u32 s79, s79, {XNT}
        s_lshl_b32 s7, {WAVE}, 10
        s_add_u32 s79, s79, s7
        s_add_u32 s15, s79, {9216-2048}
        s_lshl_b32 s14, s77, 3
        s_add_u32 s14, s14, {WAVE}
        s_mul_i32 s14, s14, 48
        s_add_u32 s14, s14, s76
        s_lshl_b32 s14, s14, 10
        s_add_u32 s14, s14, {W2F}
        s_add_u32 s85, s14, {6*48*1024}
        s_cmp_eq_u32 {WAVE}, 2
        s_cselect_b32 s15, s15, s85
        s_mov_b32 s74, {fbits(1/640)}
        s_mov_b32 s75, {fbits(1e-5)}
        """)

    def step(self, a):
        a(f"s_lshl_b32 s7, s82, 1\ns_add_u32 m0, s7, {PAIR}\ns_add_u32 s7, s80, {S_PAIR}")
        for k in range(4): a(f"buffer_load_dwordx4 v{40+k}, {SW1}, s7 offen offset:{1024*k} lds")
        a(f"s_add_u32 m0, s82, {SNG}\ns_add_u32 s7, s80, {S_SNG}")
        for k in range(2): a(f"buffer_load_dwordx4 v{44+k}, {SW1}, s7 offen offset:{1024*k} lds")
        a(f"s_add_u32 s82, s82, 2048\ns_add_u32 s80, s80, {32*3072}")
        a(f"s_cmp_eq_u32 s82, 40960\ns_cselect_b32 s82, 0, s82\ns_cselect_b32 s80, 0, s80")

    def grp(self, a, vb, step, tag="w1"):
        for k in range(4):
            a(f"buffer_load_dwordx4 v{vb+k}, {SW1}, s80 offen offset:{1024*k} lds @{tag}")
        a(f"s_add_u32 m0, m0, 4096\ns_add_u32 s80, s80, {step}")

    def s_compute3(self, a):
        X = 120
        a.auto = False
        nc = 3 + (2 if self.o.get("w1pf", 0) else 0)
        n0 = self.o.get("n0", 2)
        a(f"""
        s_cmp_eq_u32 {WAVE}, 3
        s_cbranch_scc1 L_xw3
        s_waitcnt vmcnt({self.n_role[0]+nc})
        s_branch L_xwj
        L_xw3:
        s_and_b32 s7, {JJ}, 3
        s_mul_i32 s82, s7, 10240
        s_mov_b32 s80, s84
        """)
        for _ in range(n0): self.step(a)
        a(f"""
        s_waitcnt vmcnt({self.n_role[1]+nc+6*n0})
        L_xwj:
        """)
        a.auto = True
        done = {("v", r) for r in list(range(109, 120)) + list(range(204, 240)) + list(range(252, 256))}
        a.vmq = [(r - done, t) for r, t in a.vmq]
        a(self.st("s.x"))
        for k in range(10):
            a(f"v_lshlrev_b32 v{X+2*k}, 16, v{110+k}\nv_and_b32 v{X+2*k+1}, 0xffff0000, v{110+k}")
        a(f"v_pk_add_f32 v[140:141], {vr(X,2)}, {vr(X+2,2)}")
        for k in range(2, 10):
            a(f"v_pk_add_f32 v[140:141], v[140:141], {vr(X+2*k,2)}")
        a("v_add_f32 v140, v140, v141")
        self.reduce32(a, 140, 141)
        a("v_mul_f32 v142, s74, v140")
        for k in range(10):
            a(f"v_pk_add_f32 {vr(X+2*k,2)}, {vr(X+2*k,2)}, v[142:143] op_sel_hi:[1,0] neg_lo:[0,1] neg_hi:[0,1]")
        a(f"v_pk_mul_f32 v[140:141], {vr(X,2)}, {vr(X,2)}")
        for k in range(1, 10):
            a(f"v_pk_fma_f32 v[140:141], {vr(X+2*k,2)}, {vr(X+2*k,2)}, v[140:141]")
        a(f"""
        v_add_f32 v140, v140, v141
        v_cvt_pk_bf16_f32 v148, v142, v142
        v_readfirstlane_b32 s7, v109
        v_add_f32_dpp v140, v140, v140 quad_perm:[1,0,3,2] row_mask:0xf bank_mask:0xf
        v_lshlrev_b32 v148, 16, v148
        s_mul_i32 s7, s7, 1664525
        v_add_f32_dpp v140, v140, v140 quad_perm:[2,3,0,1] row_mask:0xf bank_mask:0xf
        v_sub_f32 v148, v142, v148
        s_add_u32 {TAG}, s7, 1013904223
        v_add_f32_dpp v140, v140, v140 row_half_mirror row_mask:0xf bank_mask:0xf
        s_mov_b32 s51, {TAG}
        v_add_f32_dpp v140, v140, v140 row_mirror row_mask:0xf bank_mask:0xf
        v_mov_b32 v141, v140
        v_permlane16_swap_b32 v140, v141
        v_add_f32 v140, v140, v141
        v_mul_f32 v140, s74, v140
        """)
        self.rbf(a, 141, 140)
        a("v_add_f32 v141, s75, v141")
        self.rbf(a, 141, 141)
        a("v_sqrt_f32 v141, v141")
        self.rbf(a, 141, 141)
        a("v_rcp_f32 v144, v141")
        a("v_mul_f32 v140, v140, v144\nv_mul_f32 v140, v140, v144")
        self.rbf(a, 141, 140)
        a("v_add_f32 v141, s75, v141")
        self.rbf(a, 141, 141)
        a("v_sqrt_f32 v141, v141\nv_mul_f32 v148, v148, v144")
        self.rbf(a, 141, 141)
        a("v_rcp_f32 v146, v141")
        for k in range(10):
            a(f"v_pk_fma_f32 v[150:151], {vr(X+2*k,2)}, v[144:145], v[148:149] op_sel_hi:[1,0,0]")
            if k == 0: a("v_mul_f32 v146, v146, v144")
            a(f"v_cvt_pk_bf16_f32 v{152+k}, v150, v151")
        for k in range(10):
            a(f"v_pk_mul_f32 v[150:151], {vr(X+2*k,2)}, v[146:147] op_sel_hi:[1,0]")
            a(f"v_cvt_pk_bf16_f32 v{110+k}, v150, v151")
        a(f"v_mov_b32 v4, 0\nv_mov_b32 v5, {CNT}\nds_write_b32 v5, v4")
        for i in range(5): a(f"ds_write_b64 v{V_YTW}, {vr(110+2*i,2)} offset:{256*i}")
        for i in range(5): a(f"ds_write_b64 v{V_XTW}, {vr(152+2*i,2)} offset:{256*i}")

    def wave3(self, a):
        o = self.o
        n0, n1 = o.get("n0", 2), o.get("n1", 4)
        nc = 3 + (2 if o.get("w1pf", 0) else 0)
        a.vmq = []
        a(f"""
        s_lshr_b32 s72, {SID}, 2
        s_mul_i32 s72, s72, 40960
        s_and_b32 s73, {SID}, 3
        s_lshl_b32 s73, s73, 7
        s_add_u32 s72, s72, s73
        s_mov_b32 s73, {n0+n1}
        s_waitcnt lgkmcnt(0)
        s_barrier
        """)
        for I in range(10):
            a(f"ds_read_b128 {vr(110+4*I,4)}, v204 offset:{128*I}")
        for I in range(10):
            a(f"buffer_store_dwordx4 {vr(110+4*I,4)}, v205, {SWS}, s72 offen{SC} @yst")
            if I < 9: a("s_add_u32 s72, s72, 4096")
        a(self.st("w3.yst"))
        a(f"s_waitcnt vmcnt({10+nc+6*n0})\ns_barrier")
        self.step(a)
        a("s_barrier")
        for _ in range(n1 - 1): self.step(a)
        a("WAITVM yst")
        a(self.flag_store("s81", 4))
        a(self.st("w3.fy"))
        a(f"L_dma:\ns_waitcnt vmcnt({o.get('dcap', 24)})")
        self.step(a)
        a(f"s_add_u32 s73, s73, 1\ns_cmp_lt_u32 s73, 20\ns_cbranch_scc1 L_dma")
        a(self.st("w3.dma"))
        a(self.poll_load(4, False, V_FY, "s86"))
        a(self.poll_check("y3", 4, False, V_FY, "s86"))
        a(self.st("ypoll"))
        a(self.ypf())
        for x in self.yloads()[:self.o.get("ny", 16)]: a(x)

    def arrive(self, name):
        return [f"v_mov_b32 v4, 1\nv_mov_b32 v5, {CNT}\ns_mov_b64 exec, 1\nds_add_rtn_u32 v3, v5, v4\ns_mov_b64 exec, -1",
                f"v_readfirstlane_b32 s7, v3\ns_add_u32 s81, s81, {FX-FY}\ns_cmp_eq_u32 s7, 2\ns_cselect_b32 s7, s81, {WS_BYTES}\n"
                + self.flag_store("s7", 4)]

    def ypf(self):
        return f"buffer_load_dword v{V_DUM}, v{V_YP}, {SWS}, s83 offen{SC}" if self.o.get("ypf", 1) else ""

    KACC, VF, UF = 32, 48, 80
    def kreads(self, Fr):
        return [f"ds_read_b128 {vr(Fr+4*k,4)}, v{V_KR} offset:{32*k}" for k in range(8)]
    def kmf(self, first):
        A = self.KACC
        return [f"v_mfma_f32_32x32x16_bf16 {vr(A,16)}, {vr(self.UF+4*k,4)}, {vr(self.VF+4*k,4)}, {'0' if first and k == 0 else vr(A,16)}" for k in range(8)]

    def kgen3(self, a):
        o = self.o
        VF, UF, CH = self.VF, self.UF, 112
        W1, W8, W256, T, C0, XD = 176, 178, 180, 182, 194, 196
        DT, DTL = 30, 31
        L2E = 1.4426950408889634
        f32 = lambda x: struct.unpack("<f", struct.pack("<f", x))[0]
        I2P = 1 / (2 * math.pi)
        nc = 3 + (2 if o.get("w1pf", 0) else 0)
        a.vmq = [({("v", r)}, set()) for r in [28, 29] + list(range(10, 28))] + [({("v", r) for r in range(V_B1, V_B1 + 6)}, set())] * nc
        a(f"""
        s_mov_b32 s72, {fbits(f32(L2E))}
        s_mov_b32 s73, {fbits(L2E-f32(L2E))}
        s_mov_b32 s76, {fbits(math.log(2))}
        s_waitcnt lgkmcnt(0)
        s_barrier
        v_mul_f32 v{T}, s72, v28
        v_fma_f32 v{T+1}, v28, s72, -v{T}
        v_fma_f32 v{T+1}, v28, s73, v{T+1}
        v_exp_f32 v{T}, v{T}
        v_mul_f32 v{T+1}, s76, v{T+1}
        v_cmp_eq_u32 vcc, 0, v0
        v_fma_f32 v{T}, v{T}, v{T+1}, v{T}
        v_cvt_pk_bf16_f32 v{DT}, v{T}, v{T}
        v_lshlrev_b32 v{DT}, 16, v{DT}
        v_cndmask_b32 v29, 0, v29, vcc
        v_mul_f32 v{DTL}, s72, v{DT}
        s_mov_b32 s74, {fbits(f32(I2P))}
        s_mov_b32 s75, {fbits(I2P-f32(I2P))}
        s_mov_b32 s77, {fbits(256.0)}
        s_mov_b32 s78, {fbits(8.0)}
        s_mul_i32 m0, {WAVE}, {TABSZ}
        """)
        yl = self.yloads()[:o.get("ny", 16)]
        for c in range(3):
            p = 10 + 6 * c
            setup = [f"v_mul_f32 v{T}, v{p}, v{DTL}", f"v_mul_f32 v{T+1}, v{p+1}, v{DT}",
                     f"v_mul_f32 v{T+2}, s74, v{T+1}", f"v_fma_f32 v{T+3}, v{T+1}, s74, -v{T+2}",
                     f"v_fma_f32 v{T+3}, v{T+1}, s75, v{T+3}",
                     f"v_mul_f32 v{T+4}, s78, v{T}", f"v_mul_f32 v{T+5}, s78, v{T+2}",
                     f"v_mul_f32 v{T+6}, s77, v{T}", f"v_mul_f32 v{T+7}, s77, v{T+2}",
                     f"v_exp_f32 v{T+4}, v{T+4}", f"v_fract_f32 v{T+5}, v{T+5}",
                     f"v_exp_f32 v{T+6}, v{T+6}", f"v_fract_f32 v{T+7}, v{T+7}",
                     f"v_exp_f32 v{T+8}, v{T}", f"v_fract_f32 v{T+9}, v{T+2}",
                     f"v_fma_f32 v{T+5}, v{T+3}, s78, v{T+5}", f"v_fma_f32 v{T+7}, v{T+3}, s77, v{T+7}",
                     f"v_add_f32 v{T+9}, v{T+3}, v{T+9}",
                     f"v_cos_f32 v{W8}, v{T+5}", f"v_sin_f32 v{W8+1}, v{T+5}",
                     f"v_cos_f32 v{W256}, v{T+7}", f"v_sin_f32 v{W256+1}, v{T+7}",
                     f"v_cos_f32 v{W1}, v{T+9}", f"v_sin_f32 v{W1+1}, v{T+9}"]
            setup += self.cmul(T + 10, p + 4, p + 2)
            setup += [f"v_pk_mul_f32 {vr(W8,2)}, {vr(W8,2)}, {vr(T+4,2)} op_sel_hi:[1,0]",
                      f"v_pk_mul_f32 {vr(W256,2)}, {vr(W256,2)}, {vr(T+6,2)} op_sel_hi:[1,0]",
                      f"v_pk_mul_f32 {vr(W1,2)}, {vr(W1,2)}, {vr(T+8,2)} op_sel_hi:[1,0]",
                      f"v_pk_mul_f32 {vr(C0,2)}, {vr(T+10,2)}, {vr(DT,2)} op_sel_hi:[1,0]"]
            Vv = lambda j: W8 if j == 1 else CH + 2 * j
            vchain = []
            for j in range(2, 32): vchain += self.cmul(Vv(j), Vv(j - 1), W8)
            vcvt = [f"v_mov_b32 v{CH}, 0x3f80"] + [f"v_cvt_pk_bf16_f32 v{CH+2*j}, v{Vv(j)}, v{Vv(j)+1}" for j in range(1, 32)]
            vwr = [f"ds_write_addtid_b32 v{CH+2*j} offset:{TP*j}" for j in range(32)]
            Ur = lambda i: C0 if i == 0 else CH + 2 * i
            uchain = []
            for i in range(1, 8): uchain += self.cmul(Ur(i), Ur(i - 1), W1)
            for i, s in ((8, 0), (9, 2), (10, 4), (11, 6), (12, 8), (13, 10), (14, 12), (15, 13), (16, 14), (17, 16), (18, 17), (19, 18), (20, 19)):
                uchain += self.cmul(Ur(i), Ur(s), W256)
            ucvt = [f"v_cvt_pk_bf16_f32 v{Ur(i)}, v{Ur(i)}, -v{Ur(i)+1}" for i in range(21)]
            uwr = [f"ds_write_addtid_b32 v{Ur(i)} offset:{TP*(i if i < 20 else 23)}" for i in range(21)]
            g = lambda k: yl[4 * k:4 * k + 4] if c == 2 else []
            seq = setup[:6]
            if c: seq += self.kreads(UF)
            if c == 2: seq += ["WAITVM xst", self.arrive("0")[0]]
            if c == 1:
                seq += [f"buffer_store_dwordx4 {ar(160+4*k,4)}, v1, {SWS}, s79 offen offset:{(3072*k)%4096}{SC} @xst" + ("\ns_add_u32 s79, s79, 4096" if k == 1 else "") for k in range(3)]
                seq += [f"buffer_store_dwordx4 {ar(172,4)}, v1, {SWS}, s14 offen{SC} @xst", f"s_add_u32 s14, s14, {3*48*1024}",
                        f"buffer_store_dwordx4 {ar(176,4)}, v1, {SWS}, s14 offen{SC} @xst", f"buffer_store_dwordx4 {ar(180,4)}, v1, {SWS}, s15 offen{SC} @xst"]
            if c == 2 and o.get("ypos", 0) == 0: seq.append(self.poll_load(2, False, V_FY, "s86"))
            if c == 0:
                pr = ["s_barrier"]
                for k in range(3):
                    pr += [f"ds_read_b64_tr_b16 {ar(160+4*k,2)}, v{V_XTR} offset:{384*k}", f"ds_read_b64_tr_b16 {ar(162+4*k,2)}, v{V_XTR} offset:{384*k+4*PX}"]
                for k in range(2):
                    pr += [f"ds_read_b64_tr_b16 {ar(172+4*k,2)}, v204 offset:{96*k}", f"ds_read_b64_tr_b16 {ar(174+4*k,2)}, v204 offset:{96*k+2048}"]
                pr += [f"ds_read_b64_tr_b16 a[180:181], v205", f"ds_read_b64_tr_b16 a[182:183], v206"]
                k1 = o.get("a1pos", 30)
                vchain = vchain[:k1] + pr + vchain[k1:]
            seq += setup[6:] + ([self.arrive("0")[1]] if c == 2 else []) + vchain
            chk = [self.poll_check("y0", 2, False, V_FY, "s86"), self.st("ypoll"), self.ypf()] if c == 2 else []
            if c == 0:
                seq += vcvt + ["s_waitcnt lgkmcnt(0)\ns_barrier"] + vwr
            else:
                seq += vcvt[:18] + chk + g(0)
                mf = self.kmf(c == 1)
                for k in range(8):
                    seq += [mf[k]] + vwr[4 * k:4 * k + 4] + vcvt[18 + 2 * k:20 + 2 * k]
            seq += uchain[:8] + self.kreads(VF) + g(1)
            seq += uchain[8:] + ucvt + g(2) + uwr + g(3)
            if c == 1 and o.get("ypos", 0) == 1: seq.append(self.poll_load(2, False, V_FY, "s86"))
            for x in seq: a(x)
            a(self.st(f"kg{c}"))
        for x in self.kreads(UF): a(x)
        a("s_waitcnt lgkmcnt(0)")

    def ktail3(self):
        A, T = self.KACC, V_T
        I, O = 80, 10
        L = [f"s_mul_i32 m0, {WAVE}, {RP}", f"v_add_f32 v{A}, v{A}, v29", "v_mov_b32 v26, 0", "v_mov_b32 v27, 0",
             f"ds_write_b128 v{T}, {vr(A,4)} offset:{KC}",
             f"ds_write_b64 v{T+1}, {vr(A+4,2)} offset:{KC}", f"ds_write_b64 v{T+2}, {vr(A+6,2)} offset:{KC}"]
        L += [f"ds_write_addtid_b32 v{A+8+q} offset:{KC+2048+128*q}" for q in range(4)]
        L += ["ds_write_addtid_b32 v26 offset:4096"]
        L += [f"ds_read_b64 {vr(I,2)}, v{T+3} offset:{KC+512*4}", f"ds_read_b32 v{I+2}, v{T+3} offset:{KC+512*4+8}",
              f"ds_read_b64 {vr(I+4,2)}, v{T+3} offset:{KC+384*4}", f"ds_read_b32 v{I+6}, v{T+3} offset:{KC+384*4+8}",
              f"ds_read_b64 {vr(I+8,2)}, v{T+3} offset:{KC+256*4}", f"ds_read_b32 v{I+10}, v{T+3} offset:{KC+256*4+8}",
              f"ds_read_b128 {vr(I+12,4)}, v{T+4} offset:{KC}"]
        cv = lambda d, x, y: f"v_cvt_pk_bf16_f32 v{O+d}, v{I+x}, v{I+y}"
        L2 = [cv(0, 2, 2), cv(1, 2, 2), cv(2, 1, 1), cv(3, 1, 1), cv(4, 1, 1), cv(5, 1, 0), cv(6, 0, 0), cv(7, 0, 0),
              cv(8, 6, 6), cv(9, 5, 5), cv(10, 5, 4), cv(11, 4, 4), cv(12, 10, 9), cv(13, 8, 8), cv(14, 15, 14), cv(15, 13, 12)]
        for k in range(4): L2.append(f"ds_write_b64 v{T+5}, {vr(O+2*k,2)} offset:{8*k}")
        for k in range(2): L2.append(f"ds_write_b64 v{T+6}, {vr(O+8+2*k,2)} offset:{2048+8*k}")
        L2 += [f"ds_write_b64 v{T+7}, {vr(O+12,2)} offset:3072", f"ds_write_b64 v{T+7}, {vr(O+14,2)} offset:3584"]
        return L, L2

    def hstore(self, out, sreg, off):
        return [f"buffer_store_dwordx4 {vr(out+4*c,4)}, v{V_HF}, {SWS}, {sreg} offen offset:{off+512*c}{SC} @hst" for c in range(2)]

    @staticmethod
    def creg(ks):
        if ks < 20: return ar(160 + 4 * ks, 4), lambda h: ar(160 + 4 * ks + 2 * h, 2)
        b = 144 + 4 * (ks - 20) if ks < 36 else 96 + 4 * (ks - 36)
        return vr(b, 4), lambda h: vr(b + 2 * h, 2)

    def gelu4(self, acc, out, pairs):
        L = []
        for k in pairs:
            t = 2 + 2 * (k & 1)
            x0, x1 = acc + 2 * k, acc + 2 * k + 1
            L += [f"v_mul_f32 v{t}, v{x0}, v{x0}", f"v_mul_f32 v{t+1}, v{x1}, v{x1}",
                  f"v_fma_f32 v{t}, v{t}, s75, v8", f"v_fma_f32 v{t+1}, v{t+1}, s75, v8",
                  f"v_mul_f32 v{t}, v{t}, v{x0}", f"v_mul_f32 v{t+1}, v{t+1}, v{x1}",
                  f"v_exp_f32 v{t}, v{t}", f"v_exp_f32 v{t+1}, v{t+1}",
                  f"v_add_f32 v{t}, 1.0, v{t}", f"v_add_f32 v{t+1}, 1.0, v{t+1}",
                  f"v_rcp_f32 v{t}, v{t}", f"v_rcp_f32 v{t+1}, v{t+1}",
                  f"v_mul_f32 v{t}, v{t}, v{x0}", f"v_mul_f32 v{t+1}, v{t+1}, v{x1}",
                  f"v_cvt_pk_bf16_f32 v{out+k}, v{t}, v{t+1}"]
        return L

    def gemm1f(self, a):
        o = self.o
        ACC = (48, 64, 32)
        uses = [[] for _ in range(10)]
        for ks in range(40): uses += [[(0, ks)], [(1, ks)]]
        uses += [[] for _ in range(41)]
        def reads(f, reg):
            p, ks = f
            base = V_P0 + p
            off = ks * 2048 - (65536 if ks >= 32 else 0)
            pre = [f"v_add_u32 v{base}, 0x10000, v{base}"] if ks == 32 else []
            return pre + [f"ds_read_b64_tr_b16 {vr(reg,2)}, v{base} offset:{off}", f"ds_read_b64_tr_b16 {vr(reg+2,2)}, v{base} offset:{off+512}"]
        fr = FragStream(uses, reads, list(range(112, 144, 4)), lead=6, name="pair")
        main = self.kmf(False)
        main += [f"v_mfma_f32_32x32x16_bf16 {vr(ACC[p],16)}, {vr(V_B1+2*p,4)}, {vr(V_ONE,4)}, 0" for p in range(2)]
        for ks in range(40):
            for p in range(2):
                main.append(lambda p=p, ks=ks: f"v_mfma_f32_32x32x16_bf16 {vr(ACC[p],16)}, {vr(fr.reg[(p,ks)],4)}, {ar(4*ks,4)}, {vr(ACC[p],16)}")
        main.append(self.st("g1.ab") + f"\nv_mfma_f32_32x32x16_bf16 {vr(ACC[2],16)}, {vr(V_B1+4,4)}, {vr(V_ONE,4)}, 0")
        for ks in range(40):
            main.append(f"v_mfma_f32_32x32x16_bf16 {vr(ACC[2],16)}, {self.creg(ks)[0]}, {ar(4*ks,4)}, {vr(ACC[2],16)}")
        mb = o.get("mb", 58)
        S = [fr]
        cpre = []
        for ks in range(40):
            cpre += [f"ds_read_b64_tr_b16 {self.creg(ks)[1](h)}, v{V_S} offset:{ks*1024+256*h}" for h in range(2)]
        S.append(Stream(cpre, 0, mb - 3, ahead=8, name="cpre"))
        ny = o.get("ny", 16)
        yl = [Item(x, hi=max(0, 10 + 2 * (ny + i) - o.get("ylead", 16))) for i, x in enumerate(self.yloads()[ny:])]
        S.append(Stream(yl, 0, o.get("yend", 56), ahead=3, name="y"))
        t1, t2 = self.ktail3()
        S.append(Stream(t1, 10, 26, name="t1"))
        S.append(Stream(t2, 30, mb - 4, name="t2"))
        misc = [f"s_mov_b32 s74, {fbits(-1.5957691216057308*1.4426950408889634)}",
                f"s_mov_b32 s75, {fbits(-1.5957691216057308*0.044715*1.4426950408889634)}",
                "v_mov_b32 v8, s74", "v_mov_b32 v9, s75", "v_mov_b32 v30, 1.0", "v_mov_b32 v31, 1.0",
                f"s_mul_i32 s85, s13, 20", f"s_add_u32 s85, s85, {WAVE}", f"s_mul_i32 s85, s85, {12*1024}", f"s_add_u32 s85, s85, {W2F}",
                f"s_lshl_b32 s83, s10, 4", f"s_cmp_lt_u32 {JJ}, 27\ns_cselect_b32 s83, s83, 0x1000000", f"s_add_u32 s83, s83, {XNT}",
                f"s_and_b32 s80, {JJ}, 7", f"s_mul_i32 s80, s80, 1536", f"s_add_u32 s80, s80, s85",
                f"s_mul_i32 s82, {WAVE}, {T_WSZ}", f"s_add_u32 s82, s82, {T_W+T_LW}", f"v_add_u32 v7, s82, v1"]
        S.append(Stream(misc, 2, 40, name="misc"))
        mxp, mx = o.get("mxp", 30), o.get("mx", 56)
        XPR = 22 if mx < mb else 80
        S.append(Stream([f"s_mov_b32 s84, {FX}\n" + self.poll_load(2, True, V_FX, "s84")], mxp, mxp + 1))
        S.append(Stream([self.poll_check("x", 2, True, V_FX, "s84") + "\n" + self.st("xpoll")] +
                        ([f"buffer_load_dword v{V_DUM}, v{V_WP}, {SWS}, s80 offen{SC}"] if o.get("wpf", 1) else []), mx, mx + 2, ahead=0))
        mu = o.get("mu", 70)
        assert mu > mx + 2
        S.append(Stream([f"buffer_load_dwordx4 {ar(240+4*i,4)}, v{V_UG+i}, {SWS}, s83 offen{SC}" for i in range(3)], mu, mu + 9, ahead=0))
        nw = o.get("nw", 16)
        S.append(Stream([Item(x, lo=92 + i) for i, x in enumerate(self.w2f_items()[:nw])], 93, 131, name="w2f"))
        S.append(Stream([f"s_lshl_b32 s7, {WAVE}, 10\ns_add_u32 m0, s7, {CB0}\ns_waitcnt lgkmcnt(0)\ns_barrier"], mb, mb + 1))
        exr, exw = [], []
        e0, e1 = mb + 1, o.get("exend", 90)
        for q in range(12):
            ch, row = divmod(q, 4)
            E, O = 10 + 2 * (q % 6), 22 + (q % 4)
            d = ch * CBP + row * 256
            g0 = e0 + 4 + (e1 - e0 - 4) * q // 12
            g1 = e0 + 4 + (e1 - e0 - 4) * (q + 1) // 12
            prev = e0 + 4 + (e1 - e0 - 4) * (q - 5) // 12 if q >= 6 else e0
            exr.append(Item(f"ds_read2_b32 {vr(E,2)}, v{V_ES+ch} offset0:{64*row} offset1:{64*row+1}", lo=prev + 1, hi=max(prev + 1, g0 - 3)))
            exw += [Item(f"ds_write_addtid_b32 v{E} offset:{d}", lo=g0, hi=g1), Item(f"ds_write_addtid_b32 v{E} offset:{d+2*CPITCH-4}", hi=g1),
                    Item(f"v_alignbit_b32 v{O}, v{E+1}, v{E}, 16", hi=g1),
                    Item(f"ds_write_addtid_b32 v{O} offset:{d+CPITCH}"), Item(f"ds_write_addtid_b32 v{O} offset:{d+3*CPITCH-4}")]
        exw += [f"ds_write_b32 v{V_Z1}, v26", f"ds_write_b64 v{V_Z2}, v[26:27]"]
        S.append(Stream(exr, e0, e1 - 6, ahead=100, name="exr"))
        S.append(Stream(exw, e0 + 4, e1 + 2, ahead=3, name="exw"))
        nB = o.get("nB", 2)
        S.append(Stream(self.gelu4(ACC[0], 10, range(8)) + self.hstore(10, S_HA, 0) + self.gelu4(ACC[1], 18, range(nB)), e1 + 3, 131, ahead=4, name="gelu"))
        late = [f"global_load_dwordx4 {vr(212+4*g,4)}, v7, s[96:97] offset:{1024*g-4096}" for g in range(3)]
        late += [f"global_load_dwordx4 {vr(224+4*g,4)}, v1, s[96:97] offset:{T_LI+1024*g-4096}" for g in range(2)]
        S.append(Stream(late, max(e1 + 3, mu + 10), max(e1 + 3, mu + 10) + 16, name="late"))
        S.append(Stream([f"ds_write_b128 v{V_UL+i}, {ar(240+4*i,4)}" for i in range(3)], 118, 127, ahead=0, name="uw"))
        gap_sched(a, main, S, "g1")
        a(self.st("g1.c"))
        a("s_waitcnt lgkmcnt(0)\ns_barrier")

    def conv(self, a, role):
        o = self.o
        seq = []
        if role == 0:
            blocks = [4, 5, 6, 7, 0]
            for r in range(8):
                for c in range(8):
                    if c == 4: seq.append((0, r, 0, 0))
                    for e in range(7, -1, -1):
                        if e + c in (4, 5, 6, 7): seq.append((0, r, e, c))
            acc = lambda ch, b: 2 + 4 * blocks.index(b)
        else:
            for r in range(8):
                for ch in range(3):
                    for c in range(4):
                        for e in range(3, -1, -1):
                            if e + c in (1, 2, 3): seq.append((ch, r, e, c))
            acc = lambda ch, b: 2 + 12 * ch + 4 * (b - 1)
        uses = [[("B", ch, r, c), ("A", ch, r, e)] for ch, r, e, c in seq]
        def reads(f, reg):
            k, ch, r, i = f
            if k == "B":
                return [f"ds_read_b128 {vr(reg,4)}, v{VCB} offset:{ch*CBP+U_OFF+480+512*i-64*r}"]
            off = ch * CBP + 4032 - 512 * i - 64 * r
            return [f"ds_read_b64 {vr(reg,2)}, v{VCA} offset:{off}", f"ds_read_b64 {vr(reg+2,2)}, v{VCA} offset:{off+8}"]
        pool = list(range(88, 128, 4)) + list(range(48, 88, 4))
        fr = FragStream(uses, reads, pool, lead=12, pre=14, name="cv")
        nB = o.get("nB", 2)
        gp = lambda acc_, out: [x.replace("v[10:11]", "v[30:31]") for x in self.gelu_packed(acc_, out, 2)]
        tb = gp(64, 18)[nB // 2 * 20:]
        w2l = self.w2f_items()[o.get("nw", 16):]
        nt = o.get("nt", 8)
        gc = gp(32, 80)
        for x in (fr.pro + w2l[:nt // 4] + tb + self.hstore(18, S_HA, 1024) + w2l[nt // 4:nt // 2] + gc[:40] + self.hstore(80, S_HC, 0)[:1]
                  + w2l[nt // 2:3 * nt // 4] + gc[40:] + self.hstore(80, S_HC, 0)[1:] + w2l[3 * nt // 4:nt]): a(x)
        a(self.st("g1.tail"))
        n = len(seq)
        seen = set()
        main = []
        for ch, r, e, c in seq:
            d = vr(acc(ch, e + c), 4)
            cin = d if (ch, e + c) in seen else "0"
            seen.add((ch, e + c))
            main.append(lambda d=d, cin=cin, A=("A", ch, r, e), B=("B", ch, r, c): f"v_mfma_f32_16x16x32_bf16 {d}, {vr(fr.reg[A],4)}, {vr(fr.reg[B],4)}, {cin}")
        mf, mp, mc = o.get("mf", 66), o.get("mp", 136), o.get("mc", 176)
        S = [fr]
        S.append(Stream(w2l[nt:], 0, o.get("wend", 150), name="w2f"))
        sal = [f"s_lshl_b32 s81, s8, 2", f"s_lshr_b32 s73, s9, 2", f"s_add_u32 s81, s81, s73", f"s_lshl_b32 s81, s81, 8",
               f"s_and_b32 s73, s9, 3", f"s_lshl_b32 s73, s73, 2", f"s_add_u32 s73, s73, {WAVE}", f"s_lshl_b32 s73, s73, 2",
               f"s_add_u32 s81, s81, s73", f"s_add_u32 s81, s81, {FH}",
               f"s_lshl_b32 s14, s12, 2", f"s_add_u32 s14, s14, s11", f"s_mul_i32 s14, s14, {16*1280}",
               f"s_mul_i32 s73, s13, 160", f"s_add_u32 s14, s14, s73", f"v_add_u32 v{VB2}, s73, v{VB2}",
               f"s_mul_i32 s15, {WAVE}, 3072", f"s_add_u32 m0, s15, {G2X}",
               f"s_lshr_b32 s86, s12, 1", f"s_lshl_b32 s86, s86, 2", f"s_add_u32 s86, s86, {WAVE}", f"s_lshl_b32 s86, s86, 8",
               f"s_and_b32 s73, s12, 1", f"s_lshl_b32 s73, s73, 3", f"s_add_u32 s86, s86, s73", f"s_add_u32 s86, s86, {FH}",
               f"s_lshl_b32 s82, s12, 4", f"s_add_u32 s82, s82, {WAVE}", f"s_mul_i32 s82, s82, {12*1024}", f"s_add_u32 s82, s82, {HF}",
               f"v_mov_b32 v{V_ONE}, v{VONE2}", f"v_mov_b32 v232, {TAG}"]
        sal += [f"v_accvgpr_write_b32 a{k}, 0" for k in (241, 243, 245, 247, 249, 250, 251)]
        S.append(Stream(sal, 1, mf - 2, name="sal"))
        S.append(Stream([f"WAITVM hst\ns_mov_b64 exec, 1\nbuffer_store_dword v232, off, {SWS}, s81{SC}\ns_mov_b64 exec, -1\n" + self.st("cv.fh")], mf, mf + 1))
        side = [f"buffer_load_dwordx4 v{VX+i}, {SX}, s14 offen lds @xdma" + ("\ns_add_u32 m0, m0, 1024" if i < 2 else "") for i in range(3)]
        side += [f"global_load_ushort a{240+2*jb}, v{VB2}, {sp('b2')} offset:{32*jb}" for jb in range(5)]
        S.append(Stream(side, mf + 2, mp - 2, name="side"))
        S.append(Stream([self.poll_load(233, False, VFH, "s86")], mp, mp + 1))
        nh = o.get("nh", 14)
        hl = self.hloads(0) + self.hloads(1)
        S.append(Stream([self.poll_check(f"h{role}", 233, False, VFH, "s86") + "\n" + self.st("hpoll")] + hl[:nh], mc, n, ahead=0, name="h"))
        gap_sched(a, main, S, f"conv{role}")
        a(self.st("cv.main"))
        order = [4, 0, 1, 2, 3] if role == 0 else list(range(9))
        for q in order:
            a(f"v_cvt_pk_bf16_f32 v{96+2*q}, v{2+4*q}, v{3+4*q}\nv_cvt_pk_bf16_f32 v{97+2*q}, v{4+4*q}, v{5+4*q}")
        for q in order:
            a(f"ds_write_b64 v{VCW}, {vr(96+2*q,2)} offset:{512*q}")
        for x in hl[nh:nh + 4]: a(x)
        if role == 0:
            a(f"s_mul_i32 s7, {WAVE}, {SP}\ns_add_u32 s7, s7, {S_ROW}")
            for q in range(3): a(f"ds_read_b128 {vr(96+4*q,4)}, v{VPW} offset:{1024*q}")
            for x in hl[nh + 4:nh + 8]: a(x)
            for q in range(2): a(f"buffer_store_dwordx4 {vr(96+4*q,4)}, v1, {SWS}, s7 offen offset:{2048+1024*q}{SC} @sst")
            a(f"s_waitcnt lgkmcnt(0)\ns_mov_b64 exec, 0xffffffff\nbuffer_store_dwordx4 v[104:107], v1, {SWS}, s7 offen{SC} @sst\ns_mov_b64 exec, -1")
        else:
            for ch in range(3):
                a(f"ds_read_b128 {vr(96+8*ch,4)}, v{VPW} offset:{1536*ch}\nds_read_b128 {vr(100+8*ch,4)}, v{VPW} offset:{1536*ch+1024}")
            for x in hl[nh + 4:nh + 8]: a(x)
            a(f"s_add_u32 s7, {S_ROW}, {SP}\ns_add_u32 s73, {S_ROW}, {2*SP}")
            sr = [S_ROW, "s7", "s73"]
            for ch in range(3): a(f"buffer_store_dwordx4 {vr(96+8*ch,4)}, v1, {SWS}, {sr[ch]} offen offset:512{SC} @sst")
            a("s_waitcnt lgkmcnt(0)\ns_mov_b64 exec, 0xffffffff")
            for ch in range(3): a(f"buffer_store_dwordx4 {vr(100+8*ch,4)}, v1, {SWS}, {sr[ch]} offen offset:1536{SC} @sst")
            a("s_mov_b64 exec, -1")
        self.hrest = hl[nh + 8:]
        a(self.st("cv.out"))

    def hloads(self, rho):
        L = [f"s_add_u32 s72, s11, {rho+1}\ns_and_b32 s72, s72, 3\ns_mul_i32 s72, s72, {48*1024}\ns_add_u32 s72, s82, s72"]
        for kk in range(12):
            x = f"buffer_load_dwordx4 {vr(self.breg(rho,kk),4)}, v1, {SWS}, s72 offen offset:{1024*(kk%4)}{SC}"
            if kk in (4, 8): x = "s_add_u32 s72, s72, 4096\n" + x
            L.append(x)
        return L

    def w2f_items(self):
        L = []
        for i in range(60):
            kk = i % 12
            x = f"buffer_load_dwordx4 {ar(self.w2reg(i),4)}, v1, {SWS}, s85 offen offset:{1024*(kk%4)}{SC}"
            if kk % 4 == 0 and i: x = f"s_add_u32 s85, s85, {4096 if kk else 4096+36*1024}\n" + x
            L.append(x)
        return L

    def yloads(self):
        L = []
        for ks in range(40):
            x = f"buffer_load_dwordx4 {ar(4*ks,4)}, v1, {SWS}, {S_Y} offen offset:{1024*(ks%4)}{SC}"
            if ks % 4 == 0 and ks: x = f"s_add_u32 {S_Y}, {S_Y}, 4096\n" + x
            L.append(x)
        return L

    def gemm2f(self, a):
        o = self.o
        AC = (2, 22)
        main, idx = [], {}
        for rho in range(4):
            for jb in range(5):
                d = vr(AC[rho & 1] + 4 * jb, 4)
                idx[(rho, jb)] = len(main)
                if rho == 0: main.append(f"v_mfma_f32_16x16x32_bf16 {d}, {ar(240+2*jb,4)}, {vr(V_ONE,4)}, 0")
                for kk in range(12):
                    main.append(f"v_mfma_f32_16x16x32_bf16 {d}, {ar(self.w2reg(jb*12+kk),4)}, {vr(self.breg(rho,kk),4)}, {d}")
        idx[(4, 0)] = n = len(main)
        nxt = lambda rho, jb: idx[(rho, jb + 1)] if jb < 4 else idx[(rho + 1, 0)]
        a(f"s_mul_i32 s7, {WAVE}, 10240\ns_add_u32 m0, s7, 32768")
        ring = []
        for rho in range(3):
            par = rho & 1
            def wr(jb):
                g = nxt(rho, jb) + 3
                return [Item(f"ds_write_addtid_b32 v{AC[par]+4*jb+k} offset:{RING-32768+5120*par+1024*jb+256*k} @pw", lo=g, hi=g + 3) for k in range(4)]
            def rd(jb, g):
                return [Item(f"ds_read2st64_b32 {vr(AC[par^1]+4*jb+2*k,2)}, v{VPR} offset0:{20*par+4*jb+2*k} offset1:{20*par+4*jb+2*k+1}", lo=g, hi=g + 6) for k in range(2)]
            b1, b2 = nxt(rho, 2) + 10, nxt(rho, 4) + 10
            ring += wr(0) + wr(1) + wr(2) + [Item("WAITLG pw\ns_barrier", lo=b1, hi=b1)] + rd(0, b1 + 1) + rd(1, b1 + 1) + rd(2, b1 + 1)
            ring += wr(3) + wr(4) + [Item("WAITLG pw\ns_barrier", lo=b2, hi=b2)] + rd(3, b2 + 1) + rd(4, b2 + 1)
        rs = Stream(ring, 0, n, ahead=0, name="ring")
        for it in rs.items: it.ideal = it.lo - 5
        S = [rs]
        S.append(Stream(self.hrest + self.hloads(2) + [Item(x, lo=idx[(1, 0)]) for x in self.hloads(3)], 0, o.get("hend", 130), name="h"))
        ms = o.get("ms", 62)
        sal = [f"s_lshl_b32 s81, {XCD}, 3", f"s_lshr_b32 s73, {JJ}, 2", f"s_add_u32 s81, s81, s73", f"s_lshl_b32 s81, s81, 8",
               f"s_and_b32 s73, {JJ}, 3", f"s_lshl_b32 s73, s73, 2", f"s_add_u32 s73, s73, {WAVE}", f"s_lshl_b32 s73, s73, 2",
               f"s_add_u32 s81, s81, s73", f"s_add_u32 s81, s81, {FS}",
               f"s_lshl_b32 s86, s13, 11", f"s_add_u32 s86, s86, {FS}",
               f"s_lshl_b32 s76, s13, 2", f"s_add_u32 s76, s76, {WAVE}", f"s_mul_i32 s76, s76, {20*SP}",
               f"s_lshl_b32 s73, s12, 7", f"s_add_u32 s76, s76, s73", f"s_add_u32 s76, s76, {ST}",
               f"s_add_u32 s77, s76, {8*SP}", f"s_add_u32 s78, s76, {16*SP}", f"s_mov_b32 s74, {fbits(-1.4426950408889634)}",
               f"s_mul_i32 s73, s11, 2560", f"v_add_u32 v{VSR}, s73, v{VSR}"]
        S.append(Stream(sal, 0, ms - 2, name="sal"))
        S.append(Stream([f"WAITVM sst\ns_mov_b64 exec, 1\nbuffer_store_dword v232, off, {SWS}, s81{SC}\ns_mov_b64 exec, -1\n" + self.st("g2.fs")], ms, ms + 1))
        XR, XF, SR, SD = 96, 176, 106, 116
        S.append(Stream(["WAITVM xdma"] + [f"ds_read_b64 {vr(XR+2*jb,2)}, v{VXD} offset:{32*jb}" for jb in range(5)], idx[(1, 3)], idx[(2, 0)], name="xr"))
        xu = []
        for q in range(10): xu += [f"v_lshlrev_b32 v{XF+2*q}, 16, v{XR+q}", f"v_and_b32 v{XF+2*q+1}, 0xffff0000, v{XR+q}"]
        S.append(Stream(xu, idx[(2, 1)], idx[(3, 0)], ahead=0, name="xu"))
        mp, mc = o.get("g2p", 140), o.get("g2c", 180)
        S.append(Stream([self.poll_load(196, True, VFS, "s86")], mp, mp + 1))
        S.append(Stream([self.poll_check("s", 196, True, VFS, "s86") + "\n" + self.st("spoll"),
                         f"buffer_load_dwordx4 {vr(SD,4)}, v{VSG}, {SWS}, s76 offen{SC}",
                         f"buffer_load_dwordx4 {vr(SD+4,4)}, v{VSG}, {SWS}, s77 offen{SC}",
                         f"s_mov_b64 exec, 0xffffffff\nbuffer_load_dwordx4 {vr(SD+8,4)}, v{VSG}, {SWS}, s78 offen{SC}\ns_mov_b64 exec, -1"], mc, mc + 5, ahead=0))
        Z = AC[1]
        def silu(jb):
            T = 200
            z = Z + 4 * jb
            L = [f"v_mul_f32 v{T+k}, s74, v{z+k}" for k in range(4)] + [f"v_exp_f32 v{T+k}, v{T+k}" for k in range(4)]
            L += [f"v_add_f32 v{T+k}, 1.0, v{T+k}" for k in range(4)] + [f"v_rcp_f32 v{T+k}, v{T+k}" for k in range(4)]
            L += [f"v_mul_f32 v{z+k}, v{z+k}, v{T+k}" for k in range(4)]
            return L
        sl = []
        for jb in range(3):
            L = [Item(x) for x in silu(jb)]
            L[0].lo = nxt(3, jb) + 2
            sl += L
        S.append(Stream(sl, nxt(3, 0) + 2, n, ahead=6, name="silu"))
        gap_sched(a, main, S, "g2")
        a(self.st("g2.mfma"))
        a(f"""
        ds_write_b128 v{VSL}, {vr(SD,4)}
        ds_write_b128 v{VSL}, {vr(SD+4,4)} offset:256
        s_waitcnt vmcnt(0)
        s_mov_b64 exec, 0xffffffff
        ds_write_b128 v{VSL}, {vr(SD+8,4)} offset:512
        s_mov_b64 exec, -1
        """)
        for x in silu(3): a(x)
        a("s_waitcnt lgkmcnt(0)\ns_barrier")
        for jb in range(5): a(f"ds_read_b64_tr_b16 {vr(SR+2*jb,2)}, v{VSR} offset:{512*jb}")
        for x in silu(4): a(x)
        T = 204
        for q in range(10):
            a(f"""
            v_lshlrev_b32 v{T}, 16, v{SR+q}
            v_and_b32 v{T+1}, 0xffff0000, v{SR+q}
            v_pk_fma_f32 {vr(T,2)}, {vr(T,2)}, {vr(Z+2*q,2)}, {vr(XF+2*q,2)}
            v_cvt_pk_bf16_f32 v{XR+q}, v{T}, v{T+1}
            """)
        for jb in range(5): a(f"ds_write_b64 v{VXD}, {vr(XR+2*jb,2)} offset:{32*jb}")
        a("s_nop 3")
        for i in range(3): a(f"ds_read_b128 {vr(SD+4*i,4)}, v{VXL} offset:{1024*i}")
        osc = o.get("osc", SC)
        for i in range(2): a(f"buffer_store_dwordx4 {vr(SD+4*i,4)}, v{VX+i}, {SOUT}, s14 offen{osc}")
        a(f"s_waitcnt lgkmcnt(0)\ns_mov_b64 exec, 0xffffffff\nbuffer_store_dwordx4 {vr(SD+8,4)}, v{VX+2}, {SOUT}, s14 offen{osc}")
        a(self.st("g2.done"))

F3.STAMPS = [34, 35, 46, 47, 98, 16, 17, 36, 37, 40, 41, 44, 45, 48, 49, 18, 19, 20, 21, 22, 23, 24, 25, 26, 27, 28, 29, 30, 31, 32]

def build(prof=False, opt=None):
    g = F3(prof, opt or {})
    if prof == "min":
        full = g.st
        g.st = lambda n: full(n) if n in ("start", "end") else ""
    enc = (opt or {}).get("enc")
    if enc:
        g.st = lambda n: "s_memrealtime s[98:99]\ns_waitcnt lgkmcnt(0)" if n == enc.strip() else ""
    a = Asm(auto=True)
    if enc: a("s_memrealtime s[98:99]")
    g.start(a)
    a(g.st("s.pre"))
    g.s_compute3(a)
    a(g.st("s.done"))
    a(f"s_cmp_eq_u32 {WAVE}, 3\ns_cbranch_scc1 L_w3")
    st0 = a.state()
    g.kgen3(a)
    a("s_branch L_g1\nL_w3:")
    st1 = a.state()
    a.set_state(st0)
    g.wave3(a)
    a("L_g1:")
    a.merge([st1, a.state()])
    a(g.st("g1.arrive"))
    a("s_barrier")
    g.gemm1f(a)
    a(f"s_cmp_eq_u32 {WAVE}, 3\ns_cbranch_scc1 L_cv3")
    st0 = a.state()
    g.conv(a, 0)
    a("s_branch L_g2\nL_cv3:")
    st1 = a.state()
    a.set_state(st0)
    g.conv(a, 1)
    a("L_g2:")
    a.merge([st1, a.state()])
    g.gemm2f(a)
    a(f"s_or_b32 s7, s2, {WAVE}\ns_cbranch_scc1 L_fin\ns_mov_b32 s7, {FLG}")
    a(g.flag_store("s7", 4))
    a("L_fin:")
    if enc:
        a("s_add_u32 s98, s98, 4000\nL_spin:\ns_memrealtime s[100:101]\ns_waitcnt lgkmcnt(0)\ns_sub_u32 s7, s98, s100\ns_cmp_gt_u32 s7, 4000\ns_cbranch_scc0 L_spin")
    g.dump(a)
    a("L_end:\ns_endpgm")
    g.slow_paths(a)
    a("L_code_end:")
    body = a.finish()
    tw = tables()
    body += ".p2align 8\n.type L_tab,@object\nL_tab:\n"
    for i in range(0, len(tw), 16):
        body += ".long " + ",".join(str(x) for x in tw[i:i + 16]) + "\n"
    body += f".size L_tab, {4*len(tw)}\n"
    out = header()
    out += f"; @launch grid=(256,1,1) block=(256,1,1) lds={LDS_BYTES}\n"
    if prof: out += "; stamps2: " + " ".join(g.names) + "\n"
    out += '.amdgcn_target "amdgcn-amd-amdhsa--gfx950"\n.text\n'
    out += khead(NAME + "_kernel") + body
    out += '.section .rodata,"a"\n.p2align 6\n' + kdesc(NAME + "_kernel")
    print("instructions", sum(1 for i in a.ins if i.mn), "nops inserted", a.nops)
    return out

def parse(args):
    opt = {}
    for x in args:
        if "=" in x:
            k, v = x.split("=", 1)
            try: v = int(v)
            except ValueError:
                try: v = float(v)
                except ValueError: v = " " + v.replace("+", " ")
            opt[k] = v
    return opt

if __name__ == "__main__":
    open(sys.argv[1], "w").write(build("min" if "min" in sys.argv[2:] else "prof" in sys.argv[2:], parse(sys.argv[2:])))
```

```python
import sys, struct, math
from dsl import Asm, interleave, Item, Stream, FragStream, gap_sched
import gen3
from gen import (NAME, fbits, FLG, PROF, WS_BYTES, PY, PX, CBP, CPITCH, U_OFF, LDS_BYTES, sp, SX, SW1, SW2, SOUT, SWS,
                 WAVE, XCD, JJ, SID, vr, ar, kdesc, khead, header)
from gen2 import FY, FX, FH, FS, TAG, SC, S_PAIR, S_SNG, S_HA, S_HC, S_Y, S_ROW
from gen3 import XNT, XP, W2F, HF, ST, SP, TABSZ, TP, RP, KC, CB0, SNG, PAIR, RING, G2X, G2S, parse

YT, XT, W2S, CNT = 0, 10496, 26112, 34304
S_YB, S_YE = "s96", "s97"
V_FX, V_FY, V_KR, V_CNT = 208, 209, 210, 211
VCA, VCB = 212, 213
V_T = 214
V_UG, V_UL, V_ES, V_Z1, V_Z2 = 222, 223, 224, 227, 228
V_P0, V_P1, V_S, V_HF = 236, 237, 238, 239
V_B1, V_DUM, V_ONE = 240, 248, 252
VSL, VCW, VPW, VPR, VXL, VXD, VSR = 214, 215, 216, 217, 218, 219, 220
VX, VFH, VFS, VSG, VB2 = 224, 227, 228, 229, 230
for k in ("V_FX V_FY V_KR VCA VCB V_T V_P0 V_P1 V_S V_HF V_B1 V_DUM V_ONE VSL VCW VPW VPR VXL VXD VSR VX VFH VFS VSG VB2").split():
    setattr(gen3, k, globals()[k])

class F4(gen3.F3):
    def start(self, a):
        o = self.o
        a(f"""
        s_load_dwordx16 s[16:31], s[0:1], 0
        s_load_dwordx16 s[32:47], s[0:1], 64
        s_load_dwordx2 s[48:49], s[0:1], 128
        s_cmp_ge_u32 s2, 256
        s_cbranch_scc1 L_end
        s_getpc_b64 s[72:73]
        L_pc:
        v_lshrrev_b32 v1, 6, v0
        s_lshr_b32 {JJ}, s2, 3
        v_and_b32 v0, 63, v0
        s_lshl_b32 s7, {JJ}, 4
        v_lshl_add_u32 v8, v1, 2, v0
        v_readfirstlane_b32 {WAVE}, v1
        v_add_lshl_u32 v8, v8, s7, 7
        v_mov_b32 v{V_CNT}, {CNT}
        v_min_u32 v8, L_code_end-L_pc-4, v8
        v_mov_b64 v[4:5], 0
        v_mov_b64 v[6:7], 0
        s_mov_b64 exec, 15
        global_load_dword v{V_DUM}, v8, s[72:73]
        ds_write_b128 v{V_CNT}, v[4:7]
        ds_write_b64 v{V_CNT}, v[4:5] offset:16
        s_mov_b64 exec, -1
        s_and_b32 {XCD}, s2, 7
        s_lshl_b32 {SID}, {XCD}, 5
        s_add_u32 {SID}, {SID}, {JJ}
        v_lshrrev_b32 v2, 4, v0
        v_and_b32 v3, 15, v0
        s_lshr_b32 s9, {JJ}, 2
        s_and_b32 s7, {XCD}, 1
        s_lshl_b32 s7, s7, 3
        s_mul_i32 s83, s9, 10
        s_add_u32 s9, s9, s7
        s_lshr_b32 s83, s83, 3
        s_mul_i32 s83, s83, {1 if o.get("yrot", 1) else 0}
        s_and_b32 s7, s9, 1
        s_mul_i32 {S_PAIR}, s9, 192
        s_add_u32 {S_SNG}, {S_PAIR}, 128
        s_lshl_b32 s74, s7, 6
        s_add_u32 {S_PAIR}, {S_PAIR}, s74
        s_lshl_b32 s74, s7, 7
        s_sub_u32 {S_SNG}, {S_SNG}, s74
        s_mov_b32 s54, 2621440
        s_mov_b32 s55, 0x20000
        s_mov_b32 s58, 1966080
        s_mov_b32 s59, 0x20000
        s_mov_b32 s70, {WS_BYTES}
        s_mov_b32 s71, 0x20000
        s_cmp_eq_u32 {WAVE}, 3
        s_cbranch_scc1 L_w3
        v_mul_u32_u24 v7, 1280, v2
        v_lshl_add_u32 v7, v3, 4, v7
        s_lshl_b32 s72, {SID}, 1
        s_add_u32 s72, s72, {WAVE}
        s_mul_i32 s72, s72, 5120
        s_cmp_eq_u32 {WAVE}, 2
        s_cselect_b32 s72, 0x1000000, s72
        s_cselect_b32 s73, {FLG}, s70
        s_mul_i32 s10, {XCD}, 80
        s_mul_i32 s7, {JJ}, 3
        s_add_u32 s10, s10, s7
        s_add_u32 s11, s10, {WAVE}
        s_min_u32 s11, s11, 639
        s_mul_i32 s7, s11, 384
        v_lshl_add_u32 v8, v0, 1, s7
        s_lshl_b32 s7, s11, 1
        v_mov_b32 v6, s7
        """)
        for k in list(range(10, 30, 2)) + [40, 42, 44]: a(f"v_mov_b64 {vr(k,2)}, 0")
        a(f"""
        s_waitcnt lgkmcnt(0)
        s_mov_b64 s[52:53], {sp('x')}
        s_mov_b64 s[68:69], {sp('ws')}
        """)
        for i in range(5):
            a(f"buffer_load_dwordx4 {vr(48+4*i,4)}, v7, {SX}, s72 offen offset:{256*i}")
        a(f"buffer_load_dword v9, off, {SWS}, s73{SC}")
        self.pstart(a)
        a(f"global_load_short_d16_hi v28, v6, {sp('ldt')}\nglobal_load_short_d16_hi v29, v6, {sp('dsk')}")
        for c in range(3):
            for k, n in enumerate(("are", "aim", "bre", "bim", "cre", "cim")):
                a(f"global_load_short_d16_hi v{10+6*c+k}, v8, {sp(n)} offset:{128*c}")
        a("s_barrier")

    def pstart(self, a):
        if self.prof:
            a("s_memrealtime s[100:101]\ns_waitcnt lgkmcnt(0)\ns_mov_b32 s99, s100")
            a(self.st("start"))

    def consts(self, a):
        T = V_T
        a(f"""
        v_and_b32 v5, 31, v0
        v_lshl_add_u32 v8, v5, 1, {S_PAIR}
        v_lshl_add_u32 v6, v5, 1, {S_SNG}
        """)
        for k in range(V_B1, V_B1 + 8, 2): a(f"v_mov_b64 {vr(k,2)}, 0")
        a(f"""
        s_mov_b32 s62, 1966080
        s_mov_b32 s63, 0x20000
        s_mov_b32 s66, 2621440
        s_mov_b32 s67, 0x20000
        s_mov_b64 s[56:57], {sp('w1')}
        s_mov_b64 s[60:61], {sp('w2')}
        s_mov_b64 s[64:65], {sp('out')}
        global_load_ushort v{V_B1}, v8, {sp('b1')}
        global_load_ushort v{V_B1+2}, v8, {sp('b1')} offset:64
        global_load_ushort v{V_B1+4}, v6, {sp('b1')}
        """)
        if self.prof:
            for r in self.STAMPS[1:]: a(f"s_mov_b32 s{r}, 0")
        a(f"""
        v_lshlrev_b32 v1, 4, v0
        v_lshrrev_b32 v4, 5, v0
        s_mul_i32 s7, {WAVE}, {TABSZ}
        v_mul_u32_u24 v{V_KR}, {TP}, v5
        v_lshl_add_u32 v6, v4, 4, s7
        v_add_u32 v{V_KR}, v{V_KR}, v6
        s_mul_i32 s7, {WAVE}, {RP}
        v_lshl_add_u32 v6, v4, 4, s7
        v_lshl_add_u32 v{T}, v5, 5, v6
        v_cmp_gt_u32 vcc, 32, v0
        v_lshl_add_u32 v6, v5, 4, s7
        v_lshl_add_u32 v7, v5, 3, s7
        v_add_u32 v8, 1024, v6
        v_add_u32 v30, 1536, v7
        v_cndmask_b32 v{T+1}, v30, v8, vcc
        v_add_u32 v8, 1032, v6
        v_add_u32 v30, 1792, v7
        v_cndmask_b32 v{T+2}, v30, v8, vcc
        v_mov_b32 v8, 0x3f80
        v_cndmask_b32 v{V_ONE}, 0, v8, vcc
        v_mov_b32 v{V_ONE+1}, 0
        v_mov_b64 {vr(V_ONE+2,2)}, 0
        v_sub_u32 v6, 63, v0
        v_lshl_add_u32 v{T+3}, v6, 3, s7
        v_lshl_add_u32 v{T+4}, v6, 4, s7
        v_lshl_add_u32 v{T+5}, v0, 5, s7
        v_lshl_add_u32 v{T+6}, v0, 4, s7
        v_lshl_add_u32 v{T+7}, v0, 3, s7
        s_lshl_b32 s7, {WAVE}, 10
        v_lshl_add_u32 v{V_ES}, v0, 2, s7
        v_add_u32 v{V_ES+1}, {RP}, v{V_ES}
        v_add_u32 v{V_ES+2}, {2*RP}, v{V_ES}
        s_add_u32 s74, s7, {CB0+U_OFF+512}
        v_and_b32 v6, 3, v0
        v_lshrrev_b32 v7, 2, v0
        v_min_u32 v8, 2, v6
        v_mul_u32_u24 v{V_UG}, {XP}, v7
        v_lshl_add_u32 v{V_UG}, v8, 4, v{V_UG}
        v_mul_u32_u24 v{V_UL}, {CBP}, v8
        v_lshl_add_u32 v30, v7, 4, s74
        v_add_u32 v{V_UL}, v{V_UL}, v30
        v_lshlrev_b32 v{V_FX}, 8, v7
        v_lshl_add_u32 v{V_FX}, v6, 4, v{V_FX}
        v_lshlrev_b32 v{V_FY}, 2, v6
        s_min_u32 s7, {WAVE}, 2
        s_mul_i32 s7, s7, {CBP}
        s_add_u32 s74, s7, {CB0+4096}
        s_add_u32 s7, s7, {CB0+U_OFF}
        v_lshl_add_u32 v{V_Z2}, v0, 3, s7
        v_sub_u32 v8, v3, v4
        v_lshl_add_u32 v8, v8, 2, s74
        v_mul_u32_u24 v{V_Z1}, {CPITCH}, v2
        v_add_u32 v{V_Z1}, v{V_Z1}, v8
        v_and_b32 v8, 1, v2
        v_lshlrev_b32 v6, 3, v6
        v_lshl_add_u32 v6, v8, 5, v6
        v_and_b32 v7, 3, v7
        v_lshl_add_u32 v7, v4, 3, v7
        v_lshl_add_u32 v{V_S}, v7, 6, v6
        v_add_u32 v{V_S}, {SNG}, v{V_S}
        v_lshl_add_u32 v{V_P0}, v7, 7, v6
        v_and_b32 v7, 8, v0
        v_lshl_add_u32 v{V_P0}, v7, 3, v{V_P0}
        v_add_u32 v{V_P0}, {PAIR}, v{V_P0}
        v_xor_b32 v{V_P1}, 64, v{V_P0}
        v_mul_u32_u24 v{V_HF}, 49152, v8
        v_lshl_add_u32 v{V_HF}, v4, 8, v{V_HF}
        v_lshl_add_u32 v{V_HF}, v3, 4, v{V_HF}
        s_cmp_eq_u32 {WAVE}, 3
        s_cselect_b32 s7, 0, {WAVE}
        s_mul_i32 s7, s7, {CBP}
        s_add_u32 s7, s7, {CB0}
        v_lshl_add_u32 v6, v2, 4, s7
        v_lshl_add_u32 v{VCB}, v3, 5, v6
        v_sub_u32 v7, 15, v3
        v_and_b32 v8, 3, v7
        v_and_b32 v7, 12, v7
        v_lshl_add_u32 v6, v7, 1, v6
        v_mul_u32_u24 v{VCA}, {CPITCH}, v8
        v_add_u32 v{VCA}, v{VCA}, v6
        s_lshr_b32 s8, {XCD}, 1
        s_lshl_b32 s12, s8, 3
        s_lshl_b32 s8, s8, 2
        s_and_b32 s7, {JJ}, 3
        s_add_u32 s8, s8, s7
        s_and_b32 s7, {JJ}, 7
        s_add_u32 s12, s12, s7
        s_and_b32 s13, {XCD}, 1
        s_lshl_b32 s13, s13, 2
        s_lshr_b32 s7, {JJ}, 3
        s_add_u32 s13, s13, s7
        s_add_u32 s11, {"s7" if self.o.get("hrot", 0) else "0"}, {WAVE}
        s_and_b32 s11, s11, 3
        s_lshl_b32 {S_YB}, s8, 2
        s_add_u32 {S_YB}, {S_YB}, {WAVE}
        s_mul_i32 {S_HA}, {S_YB}, 96
        s_mul_i32 {S_YB}, {S_YB}, 40960
        s_add_u32 {S_YE}, {S_YB}, 40960
        s_lshl_b32 s7, s83, 12
        s_add_u32 {S_Y}, {S_YB}, s7
        s_lshl_b32 s86, s8, 8
        s_lshl_b32 s7, {WAVE}, 4
        s_add_u32 s86, s86, s7
        s_add_u32 s86, s86, {FY}
        """)

    def late_scalars(self):
        return [f"s_mul_i32 s73, s9, 3", f"s_add_u32 {S_HA}, {S_HA}, s73", f"s_lshl_b32 {S_HA}, {S_HA}, 10", f"s_add_u32 {S_HA}, {S_HA}, {HF}",
                f"s_add_u32 {S_HC}, {S_HA}, 2048", f"s_and_b32 s73, s9, 1", f"s_lshl_b32 s73, s73, 10", f"s_add_u32 {S_HA}, {S_HA}, s73",
                f"s_lshl_b32 s73, s73, 1", f"s_sub_u32 {S_HC}, {S_HC}, s73",
                f"s_mul_i32 s10, {XCD}, 80", f"s_mul_i32 s73, {JJ}, 3", f"s_add_u32 s10, s10, s73",
                f"s_cmp_lt_u32 {JJ}, 27\ns_cselect_b32 s10, s10, 0x20000", f"s_mul_i32 {S_ROW}, s10, {SP}", f"s_add_u32 {S_ROW}, {S_ROW}, {ST}",
                f"s_lshl_b32 s83, s10, 4", f"s_mul_i32 s73, {WAVE}, {64*XP}", f"s_add_u32 s83, s83, s73",
                f"s_cmp_lt_u32 {JJ}, 27\ns_cselect_b32 s83, s83, 0x1000000", f"s_add_u32 s83, s83, {XNT}",
                f"s_mul_i32 s85, s13, 20", f"s_add_u32 s85, s85, {WAVE}", f"s_mul_i32 s85, s85, {12*1024}", f"s_add_u32 s85, s85, {W2F}"]

    def step(self, a):
        a(f"s_lshl_b32 s7, s82, 1\ns_add_u32 m0, s7, {PAIR}\ns_add_u32 s7, s80, {S_PAIR}")
        for k in range(4): a(f"buffer_load_dwordx4 v{40+k}, {SW1}, s7 offen offset:{1024*k} lds")
        a(f"s_add_u32 m0, s82, {SNG}\ns_add_u32 s7, s80, {S_SNG}")
        for k in range(2): a(f"buffer_load_dwordx4 v{44+k}, {SW1}, s7 offen offset:{1024*k} lds")
        a(f"""
        s_add_u32 s82, s82, 2048
        s_add_u32 s80, s80, {32*3072}
        s_cmp_eq_u32 s82, 40960
        s_cselect_b32 s82, 0, s82
        s_cmp_eq_u32 s80, {640*3072}
        s_cselect_b32 s80, 0, s80
        """)

    def wave3a(self, a):
        o = self.o
        a(f"""
        v_lshrrev_b32 v4, 3, v0
        v_mul_u32_u24 v40, 3072, v4
        v_lshrrev_b32 v4, 2, v0
        v_mul_u32_u24 v44, 3072, v4
        v_xor_b32 v4, v4, v2
        v_and_b32 v4, 1, v4
        v_lshl_add_u32 v40, v4, 6, v40
        v_and_b32 v4, 3, v0
        v_lshl_add_u32 v40, v4, 4, v40
        v_lshl_add_u32 v44, v4, 4, v44
        v_add_u32 v41, {24576-1024}, v40
        v_add_u32 v42, {24576-1024}, v41
        v_add_u32 v43, {24576-1024}, v42
        v_add_u32 v45, {49152-1024}, v44
        s_and_b32 s7, {JJ}, 3
        s_mul_i32 s82, s7, 10240
        s_mul_i32 s80, s7, 5
        s_lshl_b32 s7, s83, 1
        s_add_u32 s80, s80, s7
        s_sub_u32 s7, s80, 20
        s_cselect_b32 s80, s80, s7
        s_mul_i32 s80, s80, {32*3072}
        s_mov_b32 s73, {o.get("n0", 4)}
        v_min_u32 v4, 59, v0
        v_mul_u32_u24 v5, 5462, v4
        v_lshrrev_b32 v5, 16, v5
        v_mul_u32_u24 v5, {3072-12*128}, v5
        v_lshl_add_u32 v46, v4, 7, v5
        v_add_u32 v47, {5*3072}, v46
        s_mul_i32 s74, {JJ}, {20*3072}
        s_and_b32 s7, {XCD}, 1
        s_mul_i32 s7, s7, 1536
        s_add_u32 s74, s74, s7
        s_add_u32 s75, s74, {10*3072}
        s_waitcnt lgkmcnt(0)
        s_mov_b64 s[52:53], {sp('x')}
        s_mov_b64 s[68:69], {sp('ws')}
        s_mov_b64 s[56:57], {sp('w1')}
        """)
        self.pstart(a)
        a("s_barrier")
        if o.get("w1pf", 0):
            for i in range(4): a(f"buffer_load_dword v{V_DUM}, v{46+(i&1)}, {SW1}, s{74+(i>>1)} offen")
        for _ in range(o.get("n0", 4)): self.step(a)

    def spin(self, name, off, both):
        t = (f"L_sp{name}:\nds_read_b64 v[4:5], v{V_CNT} offset:{off}\ns_waitcnt lgkmcnt(0)\n")
        if both: t += "v_and_b32 v4, v4, v5\n"
        t += f"v_readfirstlane_b32 s7, v4\ns_cmp_eq_u32 s7, 0\ns_cbranch_scc1 L_sp{name}"
        if not both: t += f"\nv_readfirstlane_b32 {TAG}, v5\nv_readfirstlane_b32 s51, v5"
        return t

    def wave3b(self, a):
        a(f"L_dma:\ns_waitcnt vmcnt({self.o.get('dcap', 24)})")
        self.step(a)
        a(f"s_add_u32 s73, s73, 1\ns_cmp_lt_u32 s73, 20\ns_cbranch_scc1 L_dma")
        a(self.st("w3.dma"))
        a(self.spin("3", 16, False))
        a(self.poll_load(4, False, V_FY, "s86"))
        a(self.poll_check("y3", 4, False, V_FY, "s86"))
        a(self.st("ypoll"))
        for x in self.yloads()[:self.o.get("ny", 8)]: a(x)

    def red16(self, v, fill):
        L = []
        for i, m in enumerate(("quad_perm:[1,0,3,2]", "quad_perm:[2,3,0,1]", "row_half_mirror", "row_mirror")):
            L += fill[2 * i:2 * i + 2] + [f"v_add_f32_dpp v{v}, v{v}, v{v} {m} row_mask:0xf bank_mask:0xf"]
        return L + fill[8:]

    def s4(self, a):
        R, X = 48, 112
        for k in range(20):
            a(f"v_lshlrev_b32 v{X+2*k}, 16, v{R+k}\nv_and_b32 v{X+2*k+1}, 0xffff0000, v{R+k}")
            if k == 0: a(self.st("s.x"))
        a(f"v_pk_add_f32 v[160:161], {vr(X,2)}, {vr(X+2,2)}")
        for k in range(2, 20): a(f"v_pk_add_f32 v[160:161], v[160:161], {vr(X+2*k,2)}")
        a("v_add_f32 v160, v160, v161")
        fill = [f"s_lshl_b32 s7, {WAVE}, 2", "v_add_u32 v6, s7, v2", f"v_add_u32 v8, s7, v{V_CNT}", f"v_mul_u32_u24 v4, {PY}, v6",
                f"v_mul_u32_u24 v5, {PX}, v6", "v_lshl_add_u32 v4, v3, 4, v4", "v_lshl_add_u32 v5, v3, 4, v5", f"s_mov_b32 s74, {fbits(1/640)}"]
        for x in self.red16(160, fill): a(x)
        a("v_mul_f32 v162, s74, v160")
        for k in range(20):
            a(f"v_pk_add_f32 {vr(X+2*k,2)}, {vr(X+2*k,2)}, v[162:163] op_sel_hi:[1,0] neg_lo:[0,1] neg_hi:[0,1]")
        a(f"v_pk_mul_f32 v[160:161], {vr(X,2)}, {vr(X,2)}")
        for k in range(1, 20): a(f"v_pk_fma_f32 v[160:161], {vr(X+2*k,2)}, {vr(X+2*k,2)}, v[160:161]")
        a("v_add_f32 v160, v160, v161")
        fill = ["v_cvt_pk_bf16_f32 v168, v162, v162", f"s_mov_b32 s75, {fbits(1e-5)}", "v_lshlrev_b32 v168, 16, v168", "v_mov_b32 v7, 1",
                "v_sub_f32 v168, v162, v168", "v_mov_b64 v[196:197], 0", "v_mov_b64 v[200:201], 0", "v_mov_b64 v[202:203], 0"]
        for x in self.red16(160, fill): a(x)
        a("v_mul_f32 v160, s74, v160")
        self.rbf(a, 161, 160)
        a("v_add_f32 v161, s75, v161")
        self.rbf(a, 161, 161)
        a("v_sqrt_f32 v161, v161")
        self.rbf(a, 161, 161)
        a("v_rcp_f32 v164, v161")
        a("v_mul_f32 v160, v160, v164\nv_mul_f32 v160, v160, v164")
        self.rbf(a, 161, 160)
        a("v_add_f32 v161, s75, v161")
        self.rbf(a, 161, 161)
        a("v_sqrt_f32 v161, v161\nv_mul_f32 v168, v168, v164")
        self.rbf(a, 161, 161)
        a("v_rcp_f32 v166, v161\nv_mul_f32 v166, v166, v164")
        for k in range(20):
            a(f"v_pk_mul_f32 v[170:171], {vr(X+2*k,2)}, v[166:167] op_sel_hi:[1,0]\nv_cvt_pk_bf16_f32 v{R+k}, v170, v171")
        for i in range(5): a(f"ds_write_b128 v4, {vr(R+4*i,4)} offset:{YT+256*i}")
        a("s_mov_b64 exec, 1\nds_write_b32 v8, v7\ns_mov_b64 exec, -1")
        pass
        for k in range(20):
            a(f"v_pk_fma_f32 v[170:171], {vr(X+2*k,2)}, v[164:165], v[168:169] op_sel_hi:[1,0,0]\nv_cvt_pk_bf16_f32 v{R+20+k}, v170, v171")
        for i in range(5): a(f"ds_write_b128 v5, {vr(R+20+4*i,4)} offset:{XT+256*i}")
        a("s_mov_b64 exec, 1\nds_write_b32 v8, v7 offset:8\ns_mov_b64 exec, -1")
        a(self.st("s.done"))

    def w2_pre(self, a):
        a(f"""
        v_and_b32 v4, 7, v0
        v_lshrrev_b32 v5, 3, v0
        v_mul_u32_u24 v196, {PY}, v4
        v_lshl_add_u32 v196, v5, 4, v196
        v_lshlrev_b32 v197, 9, v5
        v_lshl_add_u32 v197, v4, 4, v197
        v_bfe_u32 v4, v0, 2, 2
        v_and_b32 v5, 3, v0
        v_mul_u32_u24 v198, {PX}, v4
        v_lshl_add_u32 v198, v2, 5, v198
        v_lshl_add_u32 v198, v5, 3, v198
        v_lshrrev_b32 v4, 5, v0
        v_lshlrev_b32 v199, 12, v4
        v_bfe_u32 v4, v0, 2, 3
        v_lshl_add_u32 v199, v4, 8, v199
        v_lshl_add_u32 v199, v5, 3, v199
        v_mul_u32_u24 v200, 1280, v2
        v_lshl_add_u32 v200, v3, 4, v200
        v_add_u32 v201, {5120-1024}, v200
        v_add_u32 v202, {5120-1024}, v201
        v_add_u32 v203, {5120-1024}, v202
        s_min_u32 s7, s2, 239
        s_mul_i32 s14, s7, 52429
        s_lshr_b32 s14, s14, 18
        s_mul_i32 s15, s14, 5
        s_sub_u32 s15, s7, s15
        s_mul_i32 s84, s14, 40960
        s_lshl_b32 s7, s15, 8
        s_add_u32 s84, s84, s7
        s_mul_i32 s15, s15, {8*48}
        s_add_u32 s14, s14, s15
        s_lshl_b32 s14, s14, 10
        s_add_u32 s14, s14, {W2F}
        s_lshr_b32 s15, {SID}, 2
        s_mul_i32 s15, s15, 40960
        s_and_b32 s7, {SID}, 3
        s_lshl_b32 s7, s7, 7
        s_add_u32 s15, s15, s7
        s_lshr_b32 s81, {SID}, 4
        s_lshl_b32 s81, s81, 8
        s_and_b32 s7, {SID}, 15
        s_lshl_b32 s7, s7, 2
        s_add_u32 s81, s81, s7
        s_add_u32 s81, s81, {FY}
        s_mul_i32 s79, {SID}, {XP}
        s_add_u32 s79, s79, {XNT}
        v_readfirstlane_b32 s7, v9
        s_mul_i32 s7, s7, 1664525
        s_add_u32 {TAG}, s7, 1013904223
        s_mov_b32 s51, {TAG}
        v_mov_b32 v204, 1
        v_mov_b32 v205, {TAG}
        """)

    def only2(self, a, name, body, other=None):
        a(f"s_cmp_eq_u32 {WAVE}, 2\ns_cbranch_scc0 L_o{name}")
        st0 = a.state()
        for x in body: a(x)
        if other:
            a(f"s_branch L_j{name}\nL_o{name}:")
            st1 = a.state(); a.set_state(st0)
            for x in other: a(x)
            a(f"L_j{name}:")
            a.merge([st1, a.state()])
        else:
            a(f"L_o{name}:")
            st1 = a.state()
            a.merge([st0, st1])
        a.vmq = [(set(r), set(t)) for r, t in st1[0]]

    def kgen4(self, a):
        o = self.o
        VF, UF, CH = self.VF, self.UF, 112
        W1, W8, W256, T, C0 = 176, 178, 180, 182, 194
        DT, DTL = 30, 31
        L2E = 1.4426950408889634
        f32 = lambda x: struct.unpack("<f", struct.pack("<f", x))[0]
        I2P = 1 / (2 * math.pi)
        a(f"""
        s_mov_b32 s72, {fbits(f32(L2E))}
        s_mov_b32 s73, {fbits(L2E-f32(L2E))}
        s_mov_b32 s76, {fbits(math.log(2))}
        v_mul_f32 v{T}, s72, v28
        v_fma_f32 v{T+1}, v28, s72, -v{T}
        v_fma_f32 v{T+1}, v28, s73, v{T+1}
        v_exp_f32 v{T}, v{T}
        v_mul_f32 v{T+1}, s76, v{T+1}
        v_cmp_eq_u32 vcc, 0, v0
        v_fma_f32 v{T}, v{T}, v{T+1}, v{T}
        v_cvt_pk_bf16_f32 v{DT}, v{T}, v{T}
        v_lshlrev_b32 v{DT}, 16, v{DT}
        v_cndmask_b32 v29, 0, v29, vcc
        v_mul_f32 v{DTL}, s72, v{DT}
        s_mov_b32 s74, {fbits(f32(I2P))}
        s_mov_b32 s75, {fbits(I2P-f32(I2P))}
        s_mov_b32 s77, {fbits(256.0)}
        s_mov_b32 s78, {fbits(8.0)}
        """)
        pass
        yl = self.yloads()[:o.get("ny", 8)]
        m0tab = f"s_mul_i32 m0, {WAVE}, {TABSZ}"
        P1 = [self.spin("y", 0, True)] + [f"ds_read_b128 {ar(4*I,4)}, v196 offset:{YT+128*I}" for I in range(10)]
        for I in range(10):
            P1.append(f"buffer_store_dwordx4 {ar(4*I,4)}, v197, {SWS}, s15 offen{SC} @yst" + ("\ns_add_u32 s15, s15, 4096" if I < 9 else ""))
        P1 += [self.st("p.yst"), self.spin("x", 8, True)]
        for I in range(10):
            P1 += [f"ds_read_b64_tr_b16 {ar(40+4*I,2)}, v198 offset:{XT+128*I}", f"ds_read_b64_tr_b16 {ar(42+4*I,2)}, v198 offset:{XT+128*I+4*PX}"]
        P1.append(f"s_mov_b64 exec, 1\nds_write_b64 v{V_CNT}, v[204:205] offset:16\ns_mov_b64 exec, -1")
        w2d = [f"s_mov_b32 m0, {W2S}"]
        for h in range(2):
            w2d += [f"buffer_load_dwordx4 v{200+k}, {SW2}, s84 offen offset:{1024*k} lds @w2dma" for k in range(4)]
            if h == 0: w2d.append(f"s_mov_b32 m0, {W2S+4096}\ns_add_u32 s84, s84, {4*5120}")
        xst = []
        for I in range(10):
            xst.append(("s_add_u32 s79, s79, 4096\n" if I in (4, 8) else "") + f"buffer_store_dwordx4 {ar(40+4*I,4)}, v1, {SWS}, s79 offen offset:{1024*(I%4)}{SC}")
        w2r = ["WAITVM w2dma"]
        for db in range(8):
            w2r += [f"ds_read_b64_tr_b16 {ar(80+4*db,2)}, v199 offset:{W2S+32*db}", f"ds_read_b64_tr_b16 {ar(82+4*db,2)}, v199 offset:{W2S+32*db+2048}"]
        w2s = [f"buffer_store_dwordx4 {ar(80+4*db,4)}, v1, {SWS}, s14 offen{SC}" + (f"\ns_add_u32 s14, s14, {48*1024}" if db < 7 else "") for db in range(8)]
        fy = ["WAITVM yst", f"s_mov_b64 exec, 1\nbuffer_store_dword v205, off, {SWS}, s81{SC}\ns_mov_b64 exec, -1", self.st("p.fy")]
        fx = [f"s_add_u32 s81, s81, {FX-FY}\ns_mov_b64 exec, 1\nbuffer_store_dword v205, off, {SWS}, s81{SC}\ns_mov_b64 exec, -1", ""]
        fypos = o.get("fypos", 1)
        for c in range(3):
            p = 10 + 6 * c
            setup = [f"v_mul_f32 v{T}, v{p}, v{DTL}", f"v_mul_f32 v{T+1}, v{p+1}, v{DT}",
                     f"v_mul_f32 v{T+2}, s74, v{T+1}", f"v_fma_f32 v{T+3}, v{T+1}, s74, -v{T+2}",
                     f"v_fma_f32 v{T+3}, v{T+1}, s75, v{T+3}",
                     f"v_mul_f32 v{T+4}, s78, v{T}", f"v_mul_f32 v{T+5}, s78, v{T+2}",
                     f"v_mul_f32 v{T+6}, s77, v{T}", f"v_mul_f32 v{T+7}, s77, v{T+2}",
                     f"v_exp_f32 v{T+4}, v{T+4}", f"v_fract_f32 v{T+5}, v{T+5}",
                     f"v_exp_f32 v{T+6}, v{T+6}", f"v_fract_f32 v{T+7}, v{T+7}",
                     f"v_exp_f32 v{T+8}, v{T}", f"v_fract_f32 v{T+9}, v{T+2}",
                     f"v_fma_f32 v{T+5}, v{T+3}, s78, v{T+5}", f"v_fma_f32 v{T+7}, v{T+3}, s77, v{T+7}",
                     f"v_add_f32 v{T+9}, v{T+3}, v{T+9}",
                     f"v_cos_f32 v{W8}, v{T+5}", f"v_sin_f32 v{W8+1}, v{T+5}",
                     f"v_cos_f32 v{W256}, v{T+7}", f"v_sin_f32 v{W256+1}, v{T+7}",
                     f"v_cos_f32 v{W1}, v{T+9}", f"v_sin_f32 v{W1+1}, v{T+9}"]
            setup += self.cmul(T + 10, p + 4, p + 2)
            setup += [f"v_pk_mul_f32 {vr(W8,2)}, {vr(W8,2)}, {vr(T+4,2)} op_sel_hi:[1,0]",
                      f"v_pk_mul_f32 {vr(W256,2)}, {vr(W256,2)}, {vr(T+6,2)} op_sel_hi:[1,0]",
                      f"v_pk_mul_f32 {vr(W1,2)}, {vr(W1,2)}, {vr(T+8,2)} op_sel_hi:[1,0]",
                      f"v_pk_mul_f32 {vr(C0,2)}, {vr(T+10,2)}, {vr(DT,2)} op_sel_hi:[1,0]"]
            Vv = lambda j: W8 if j == 1 else CH + 2 * j
            vchain = []
            for j in range(2, 32): vchain += self.cmul(Vv(j), Vv(j - 1), W8)
            vcvt = [f"v_mov_b32 v{CH}, 0x3f80"] + [f"v_cvt_pk_bf16_f32 v{CH+2*j}, v{Vv(j)}, v{Vv(j)+1}" for j in range(1, 32)]
            vwr = [f"ds_write_addtid_b32 v{CH+2*j} offset:{TP*j}" for j in range(32)]
            Ur = lambda i: C0 if i == 0 else CH + 2 * i
            uchain = []
            for i in range(1, 8): uchain += self.cmul(Ur(i), Ur(i - 1), W1)
            for i, s in ((8, 0), (9, 2), (10, 4), (11, 6), (12, 8), (13, 10), (14, 12), (15, 13), (16, 14), (17, 16), (18, 17), (19, 18), (20, 19)):
                uchain += self.cmul(Ur(i), Ur(s), W256)
            ucvt = [f"v_cvt_pk_bf16_f32 v{Ur(i)}, v{Ur(i)}, -v{Ur(i)+1}" for i in range(21)]
            uwr = [f"ds_write_addtid_b32 v{Ur(i)} offset:{TP*(i if i < 20 else 23)}" for i in range(21)]
            E = lambda L: [a(x) for x in L]
            ypos = o.get("ypos", 2)
            chk = lambda: (E([self.poll_check("y0", 2, False, V_FY, "s86"), self.st("ypoll")]), self.only2(a, "fx", fx))
            ng = {0: 5, 1: 4, 2: 2}[ypos]
            grp = [yl[len(yl) * k // ng:len(yl) * (k + 1) // ng] for k in range(ng)] if c == 2 else [[]] * 5
            grp = [[]] * (5 - ng) + grp
            E(setup[:6])
            if c: E(self.kreads(UF))
            if c == 1 and fypos == 1: self.only2(a, "fy", fy + xst[:5])
            if c == 2 and ypos == 1: E([self.poll_load(2, False, V_FY, "s86")])
            E(setup[6:])
            if c == 2 and ypos == 0: chk()
            E(grp[0] + vchain)
            if c == 0:
                E(vcvt + ["s_waitcnt vmcnt(0)"])
                self.only2(a, "p1", P1 + w2d, [self.spin("f", 16, False)])
                E([m0tab] + vwr)
            else:
                E(vcvt[:18])
                if c == 1: self.only2(a, "x2", (fy + xst if fypos == 2 else xst[5:]) + w2r)
                if c == 2 and ypos == 2: E([self.poll_load(2, False, V_FY, "s86")])
                if c == 2 and ypos == 1: chk()
                E(grp[1])
                mf = self.kmf(c == 1)
                for k in range(8): E([mf[k]] + vwr[4 * k:4 * k + 4] + vcvt[18 + 2 * k:20 + 2 * k])
            E(uchain[:8] + self.kreads(VF) + grp[2])
            if c == 1: self.only2(a, "w2", w2s)
            E(uchain[8:] + ucvt)
            if c == 1 and ypos == 0: E([self.poll_load(2, False, V_FY, "s86")])
            if c == 2 and ypos == 2: chk()
            E(grp[3] + uwr + grp[4])
            if c == 0 and fypos == 0: self.only2(a, "fy", fy + xst[:5])
            a(self.st(f"kg{c}"))
        for x in self.kreads(UF): a(x)
        a("s_waitcnt lgkmcnt(0)")

    def yloads(self):
        L = []
        for ks in range(40):
            x = f"buffer_load_dwordx4 {ar(4*ks,4)}, v1, {SWS}, {S_Y} offen offset:{1024*(ks%4)}{SC}"
            if ks % 4 == 0 and ks:
                x = f"s_add_u32 {S_Y}, {S_Y}, 4096\ns_cmp_eq_u32 {S_Y}, {S_YE}\ns_cselect_b32 {S_Y}, {S_YB}, {S_Y}\n" + x
            L.append(x)
        return L

    def gemm1f(self, a):
        o = self.o
        ACC = (48, 64, 32)
        uses = [[] for _ in range(10)]
        for ks in range(40): uses += [[(0, ks)], [(1, ks)]]
        uses += [[] for _ in range(41)]
        def reads(f, reg):
            p, ks = f
            base = V_P0 + p
            off = ks * 2048 - (65536 if ks >= 32 else 0)
            pre = [f"v_add_u32 v{base}, 0x10000, v{base}"] if ks == 32 else []
            return pre + [f"ds_read_b64_tr_b16 {vr(reg,2)}, v{base} offset:{off}", f"ds_read_b64_tr_b16 {vr(reg+2,2)}, v{base} offset:{off+512}"]
        fr = FragStream(uses, reads, list(range(112, 144, 4)), lead=6, name="pair")
        main = self.kmf(False)
        main += [f"v_mfma_f32_32x32x16_bf16 {vr(ACC[p],16)}, {vr(V_B1+2*p,4)}, {vr(V_ONE,4)}, 0" for p in range(2)]
        for ks in range(40):
            for p in range(2):
                main.append(lambda p=p, ks=ks: f"v_mfma_f32_32x32x16_bf16 {vr(ACC[p],16)}, {vr(fr.reg[(p,ks)],4)}, {ar(4*ks,4)}, {vr(ACC[p],16)}")
        main.append(self.st("g1.ab") + f"\nv_mfma_f32_32x32x16_bf16 {vr(ACC[2],16)}, {vr(V_B1+4,4)}, {vr(V_ONE,4)}, 0")
        for ks in range(40):
            main.append(f"v_mfma_f32_32x32x16_bf16 {vr(ACC[2],16)}, {self.creg(ks)[0]}, {ar(4*ks,4)}, {vr(ACC[2],16)}")
        mb = o.get("mb", 58)
        S = [fr]
        cpre = []
        for ks in range(40):
            cpre += [f"ds_read_b64_tr_b16 {self.creg(ks)[1](h)}, v{V_S} offset:{ks*1024+256*h}" for h in range(2)]
        S.append(Stream(cpre, 0, mb - 3, ahead=8, name="cpre"))
        ny = o.get("ny", 8)
        yl = [Item(x, hi=max(0, 10 + 2 * (ny + i) - o.get("ylead", 20))) for i, x in enumerate(self.yloads()[ny:])]
        S.append(Stream(yl, 0, o.get("yend", 60), ahead=3, name="y"))
        t1, t2 = self.ktail3()
        S.append(Stream(t1, 10, 26, name="t1"))
        S.append(Stream(t2, 30, mb - 4, name="t2"))
        misc = self.late_scalars() + [f"s_mov_b32 s74, {fbits(-1.5957691216057308*1.4426950408889634)}",
                f"s_mov_b32 s75, {fbits(-1.5957691216057308*0.044715*1.4426950408889634)}",
                "v_mov_b32 v8, s74", "v_mov_b32 v9, s75", "v_mov_b32 v30, 1.0", "v_mov_b32 v31, 1.0"]
        mxp, mx = o.get("mxp", 56), o.get("mx", 78)
        S.append(Stream(misc, 0, mx - 2, name="misc"))
        S.append(Stream([f"s_mov_b32 s84, {FX}\n" + self.poll_load(2, True, V_FX, "s84")], mxp, mxp + 1))
        S.append(Stream([self.poll_check("x", 2, True, V_FX, "s84") + "\n" + self.st("xpoll")] +
                        [("" if i == 0 else f"s_add_u32 s83, s83, {16*XP}\n") + f"buffer_load_dwordx4 {ar(240+4*i,4)}, v{V_UG}, {SWS}, s83 offen{SC}" for i in range(4)],
                        mx, mx + 12, ahead=0))
        nw = o.get("nw", 14)
        S.append(Stream([Item(x, lo=92 + i) for i, x in enumerate(self.w2f_items()[:nw])], max(93, mx + 12), 131, name="w2f"))
        S.append(Stream([f"s_lshl_b32 s7, {WAVE}, 10\ns_add_u32 m0, s7, {CB0}\ns_waitcnt lgkmcnt(0)\ns_barrier"], mb, mb + 1))
        exr, exw = [], []
        e0, e1 = mb + 1, o.get("exend", 89)
        for q in range(12):
            ch, row = divmod(q, 4)
            E, O = 10 + 2 * (q % 6), 22 + (q % 4)
            d = ch * CBP + row * 256
            g0 = e0 + 4 + (e1 - e0 - 4) * q // 12
            g1 = e0 + 4 + (e1 - e0 - 4) * (q + 1) // 12
            prev = e0 + 4 + (e1 - e0 - 4) * (q - 5) // 12 if q >= 6 else e0
            exr.append(Item(f"ds_read2_b32 {vr(E,2)}, v{V_ES+ch} offset0:{64*row} offset1:{64*row+1}", lo=prev + 1, hi=max(prev + 1, g0 - 3)))
            exw += [Item(f"ds_write_addtid_b32 v{E} offset:{d}", lo=g0, hi=g1), Item(f"ds_write_addtid_b32 v{E} offset:{d+2*CPITCH-4}", hi=g1),
                    Item(f"v_alignbit_b32 v{O}, v{E+1}, v{E}, 16", hi=g1),
                    Item(f"ds_write_addtid_b32 v{O} offset:{d+CPITCH}"), Item(f"ds_write_addtid_b32 v{O} offset:{d+3*CPITCH-4}")]
        exw += [f"ds_write_b32 v{V_Z1}, v26", f"ds_write_b64 v{V_Z2}, v[26:27]"]
        S.append(Stream(exr, e0, e1 - 6, ahead=100, name="exr"))
        S.append(Stream(exw, e0 + 4, e1 + 2, ahead=3, name="exw"))
        nB = o.get("nB", 2)
        S.append(Stream(self.gelu4(ACC[0], 10, range(8)) + self.hstore(10, S_HA, 0) + self.gelu4(ACC[1], 18, range(nB)), e1 + 3, 131, ahead=4, name="gelu"))
        gap_sched(a, main, S, "g1")
        a(self.st("g1.c"))
        gp = lambda acc_, out: [x.replace("v[10:11]", "v[30:31]") for x in self.gelu_packed(acc_, out, 2)]
        w2l = self.w2f_items()[nw:]
        nt = o.get("nt", 8)
        for x in gp(64, 18)[nB // 2 * 20:] + self.hstore(18, S_HA, 1024) + w2l[:nt // 2]: a(x)
        for i in range(4): a(f"ds_write_b128 v{V_UL}, {ar(240+4*i,4)} offset:{256*i}")
        gc = gp(32, 80)
        for x in gc[:20]: a(x)
        a("s_waitcnt lgkmcnt(0)\ns_barrier")
        self.tail = gc[20:40] + self.hstore(80, S_HC, 0)[:1] + w2l[nt // 2:nt] + gc[40:] + self.hstore(80, S_HC, 0)[1:]
        self.w2rest = w2l[nt:]

    def late_consts(self):
        t = 233
        L = []
        for i in range(3):
            L += [f"v_add_u32 v{t}, {64*i}, v0", f"v_mul_u32_u24 v{t+1}, 6554, v{t}", f"v_lshrrev_b32 v{t+1}, 16, v{t+1}",
                  f"v_mul_u32_u24 v{t+1}, 1120, v{t+1}", f"v_lshl_add_u32 v{VX+i}, v{t}, 4, v{t+1}"]
        L += [f"v_and_b32 v{t}, 15, v0", f"v_lshrrev_b32 v{t+1}, 4, v0", f"s_mul_i32 s73, s13, 160", f"v_lshl_add_u32 v{VB2}, v{t}, 1, s73",
              f"s_lshl_b32 s14, s12, 2", f"s_add_u32 s14, s14, s11", f"s_mul_i32 s14, s14, {16*1280}", f"s_add_u32 s14, s14, s73",
              f"v_cmp_gt_u32 vcc, 16, v0", f"s_mul_i32 s15, {WAVE}, 3072", f"s_add_u32 s15, s15, {G2X}", f"v_cndmask_b32 v{V_ONE}, 0, v{V_ONE}, vcc",
              f"s_mov_b32 m0, s15", f"v_add_u32 v{VXL}, s15, v1",
              f"v_mul_u32_u24 v{VXD}, 160, v{t}", f"v_lshl_add_u32 v{t+2}, v{t+1}, 3, s15", f"v_add_u32 v{VXD}, v{VXD}, v{t+2}",
              f"s_mul_i32 s73, {WAVE}, 10240", f"s_add_u32 s73, s73, {RING}", f"v_add_u32 v{VPW}, s73, v1",
              f"v_lshl_add_u32 v{t+2}, v{t+1}, 3, s73", f"v_lshl_add_u32 v{VCW}, v{t}, 5, v{t+2}",
              f"v_and_b32 v{t}, 3, v0", f"v_and_b32 v{t+1}, 4, v0", f"v_lshl_add_u32 v{VFH}, v{t}, 4, v{t+1}"]
        return L

    def late_consts2(self):
        t = 233
        return [f"s_add_u32 s73, {WAVE}, 1", f"s_and_b32 s73, s73, 3", f"s_mul_i32 s73, s73, 10240", f"s_add_u32 s73, s73, {RING}",
                f"v_lshl_add_u32 v{VPR}, v0, 2, s73",
                f"v_min_u32 v{t}, 26, v0", f"v_lshrrev_b32 v{t+1}, 2, v{t}", f"v_and_b32 v{t}, 3, v{t}", f"v_lshlrev_b32 v{VFS}, 8, v{t+1}",
                f"v_lshl_add_u32 v{VFS}, v{t}, 4, v{VFS}",
                f"v_lshrrev_b32 v{t}, 3, v0", f"v_and_b32 v{t+1}, 7, v0", f"v_mul_u32_u24 v{VSG}, {SP}, v{t}", f"v_lshl_add_u32 v{VSG}, v{t+1}, 4, v{VSG}",
                f"v_lshrrev_b32 v{t+1}, 1, v{t+1}", f"v_mul_u32_u24 v{VSL}, 2560, v{t+1}", f"v_lshl_add_u32 v{VSL}, v{t}, 5, v{VSL}",
                f"s_mul_i32 s73, {WAVE}, 640", f"s_add_u32 s73, s73, {G2S}",
                f"v_and_b32 v{t+1}, 1, v0", f"v_lshl_add_u32 v{t+1}, v{t+1}, 4, s73", f"v_add_u32 v{VSL}, v{VSL}, v{t+1}",
                f"s_mul_i32 s73, s11, 2560", f"s_add_u32 s73, s73, {G2S}", f"v_lshl_add_u32 v{VSR}, v0, 3, s73"]

    def conv(self, a, role):
        o = self.o
        seq = []
        if role == 0:
            blocks = [4, 5, 6, 7, 0]
            for r in range(8):
                for c in range(8):
                    if c == 4: seq.append((0, r, 0, 0))
                    for e in range(7, -1, -1):
                        if e + c in (4, 5, 6, 7): seq.append((0, r, e, c))
            acc = lambda ch, b: 2 + 4 * blocks.index(b)
        else:
            for r in range(8):
                for ch in range(3):
                    for c in range(4):
                        for e in range(3, -1, -1):
                            if e + c in (1, 2, 3): seq.append((ch, r, e, c))
            acc = lambda ch, b: 2 + 12 * ch + 4 * (b - 1)
        uses = [[("B", ch, r, c), ("A", ch, r, e)] for ch, r, e, c in seq]
        def reads(f, reg):
            k, ch, r, i = f
            if k == "B":
                return [f"ds_read_b128 {vr(reg,4)}, v{VCB} offset:{ch*CBP+U_OFF+480+512*i-64*r}"]
            off = ch * CBP + 4032 - 512 * i - 64 * r
            return [f"ds_read_b64 {vr(reg,2)}, v{VCA} offset:{off}", f"ds_read_b64 {vr(reg+2,2)}, v{VCA} offset:{off+8}"]
        pool = list(range(88, 128, 4)) + list(range(48, 88, 4))
        fr = FragStream(uses, reads, pool, lead=12, pre=o.get("cvpre", 9), name="cv")
        for x in fr.pro + self.tail: a(x)
        a(self.st("g1.tail"))
        n = len(seq)
        seen = set()
        main = []
        for ch, r, e, c in seq:
            d = vr(acc(ch, e + c), 4)
            cin = d if (ch, e + c) in seen else "0"
            seen.add((ch, e + c))
            main.append(lambda d=d, cin=cin, A=("A", ch, r, e), B=("B", ch, r, c): f"v_mfma_f32_16x16x32_bf16 {d}, {vr(fr.reg[A],4)}, {vr(fr.reg[B],4)}, {cin}")
        mf, mp, mc = o.get("mf", 66), o.get("mp", 150), o.get("mc", 190)
        S = [fr]
        S.append(Stream(self.w2rest, 4, o.get("wend", 190), name="w2f"))
        sal = [f"s_lshl_b32 s81, s8, 2", f"s_lshr_b32 s80, s9, 2", f"s_add_u32 s81, s81, s80", f"s_lshl_b32 s81, s81, 8",
               f"s_and_b32 s80, s9, 3", f"s_lshl_b32 s80, s80, 2", f"s_add_u32 s80, s80, {WAVE}", f"s_lshl_b32 s80, s80, 2",
               f"s_add_u32 s81, s81, s80", f"s_add_u32 s81, s81, {FH}", f"v_mov_b32 v232, {TAG}",
               f"s_lshr_b32 s86, s12, 1", f"s_lshl_b32 s86, s86, 2", f"s_add_u32 s86, s86, {WAVE}", f"s_lshl_b32 s86, s86, 8",
               f"s_and_b32 s80, s12, 1", f"s_lshl_b32 s80, s80, 3", f"s_add_u32 s86, s86, s80", f"s_add_u32 s86, s86, {FH}",
               f"s_lshl_b32 s82, s12, 4", f"s_add_u32 s82, s82, {WAVE}", f"s_mul_i32 s82, s82, {12*1024}", f"s_add_u32 s82, s82, {HF}"]
        S.append(Stream(sal, 1, mf - 2, name="sal"))
        S.append(Stream([f"WAITVM hst\ns_mov_b64 exec, 1\nbuffer_store_dword v232, off, {SWS}, s81{SC}\ns_mov_b64 exec, -1\n" + self.st("cv.fh")], mf, mf + 1))
        side = self.late_consts() + [f"v_accvgpr_write_b32 a{k}, 0" for k in (241, 243, 245, 247, 249, 250, 251)]
        side += [f"global_load_ushort a{240+2*jb}, v{VB2}, {sp('b2')} offset:{32*jb}" for jb in range(5)]
        S.append(Stream(side, 4, mp - 2, name="side"))
        S.append(Stream([self.poll_load(231, False, VFH, "s86")], mp, mp + 1))
        nh = o.get("nh", 7)
        hl = self.hloads(0) + self.hloads(1)
        S.append(Stream([self.poll_check(f"h{role}", 231, False, VFH, "s86") + "\n" + self.st("hpoll")] + hl[:nh], mc, n, ahead=0, name="h"))
        gap_sched(a, main, S, f"conv{role}")
        a(self.st("cv.main"))
        order = [4, 0, 1, 2, 3] if role == 0 else list(range(9))
        for q in order:
            a(f"v_cvt_pk_bf16_f32 v{96+2*q}, v{2+4*q}, v{3+4*q}\nv_cvt_pk_bf16_f32 v{97+2*q}, v{4+4*q}, v{5+4*q}")
        for q in order:
            a(f"ds_write_b64 v{VCW}, {vr(96+2*q,2)} offset:{512*q}")
        k1 = nh + 3
        for x in hl[nh:k1]: a(x)
        k2 = max(k1, 13)
        if role == 0:
            a(f"s_mul_i32 s7, {WAVE}, {SP}\ns_add_u32 s7, s7, {S_ROW}")
            for q in range(3): a(f"ds_read_b128 {vr(96+4*q,4)}, v{VPW} offset:{1024*q}")
            for x in hl[k1:k2]: a(x)
            for q in range(2): a(f"buffer_store_dwordx4 {vr(96+4*q,4)}, v1, {SWS}, s7 offen offset:{2048+1024*q}{SC} @sst")
            a(f"s_waitcnt lgkmcnt(0)\ns_mov_b64 exec, 0xffffffff\nbuffer_store_dwordx4 v[104:107], v1, {SWS}, s7 offen{SC} @sst\ns_mov_b64 exec, -1")
        else:
            for ch in range(3):
                a(f"ds_read_b128 {vr(96+8*ch,4)}, v{VPW} offset:{1536*ch}\nds_read_b128 {vr(100+8*ch,4)}, v{VPW} offset:{1536*ch+1024}")
            for x in hl[k1:k2]: a(x)
            a(f"s_add_u32 s7, {S_ROW}, {SP}\ns_add_u32 s73, {S_ROW}, {2*SP}")
            sr = [S_ROW, "s7", "s73"]
            for ch in range(3): a(f"buffer_store_dwordx4 {vr(96+8*ch,4)}, v1, {SWS}, {sr[ch]} offen offset:512{SC} @sst")
            a("s_waitcnt lgkmcnt(0)\ns_mov_b64 exec, 0xffffffff")
            for ch in range(3): a(f"buffer_store_dwordx4 {vr(100+8*ch,4)}, v1, {SWS}, {sr[ch]} offen offset:1536{SC} @sst")
            a("s_mov_b64 exec, -1")
        self.hrest = hl[k2:]
        a(self.st("cv.out"))

    def gemm2f(self, a):
        o = self.o
        AC = (2, 22)
        main, idx = [], {}
        for rho in range(4):
            for jb in range(5):
                d = vr(AC[rho & 1] + 4 * jb, 4)
                idx[(rho, jb)] = len(main)
                if rho == 0: main.append(f"v_mfma_f32_16x16x32_bf16 {d}, {ar(240+2*jb,4)}, {vr(V_ONE,4)}, 0")
                for kk in range(12):
                    main.append(f"v_mfma_f32_16x16x32_bf16 {d}, {ar(self.w2reg(jb*12+kk),4)}, {vr(self.breg(rho,kk),4)}, {d}")
        for rho in (1, 2, 3): main[idx[(rho, 0)]] = self.st(f"g2.r{rho}") + "\n" + main[idx[(rho, 0)]]
        main[13] = self.st("g2.c1") + "\n" + main[13]
        idx[(4, 0)] = n = len(main)
        nxt = lambda rho, jb: idx[(rho, jb + 1)] if jb < 4 else idx[(rho + 1, 0)]
        for i in range(2): a(f"buffer_load_dwordx4 v{VX+i}, {SX}, s14 offen lds @xdma\ns_add_u32 m0, m0, 1024")
        a(f"s_mov_b64 exec, 0xffffffff\nbuffer_load_dwordx4 v{VX+2}, {SX}, s14 offen lds @xdma\ns_mov_b64 exec, -1")
        a(f"s_mul_i32 s7, {WAVE}, 10240\ns_add_u32 m0, s7, 32768")
        ring = []
        for rho in range(3):
            par = rho & 1
            def wr(jb):
                g = nxt(rho, jb) + 3
                return [Item(f"ds_write_addtid_b32 v{AC[par]+4*jb+k} offset:{RING-32768+5120*par+1024*jb+256*k} @pw", lo=g, hi=g + 3) for k in range(4)]
            def rd(jb, g):
                return [Item(f"ds_read2st64_b32 {vr(AC[par^1]+4*jb+2*k,2)}, v{VPR} offset0:{20*par+4*jb+2*k} offset1:{20*par+4*jb+2*k+1}", lo=g, hi=g + 6) for k in range(2)]
            b1, b2 = nxt(rho, 2) + 10, nxt(rho, 4) + 10
            ring += wr(0) + wr(1) + wr(2) + [Item("WAITLG pw\ns_barrier", lo=b1, hi=b1)] + rd(0, b1 + 1) + rd(1, b1 + 1) + rd(2, b1 + 1)
            ring += wr(3) + wr(4) + [Item("WAITLG pw\ns_barrier", lo=b2, hi=b2)] + rd(3, b2 + 1) + rd(4, b2 + 1)
        rs = Stream(ring, 0, n, ahead=0, name="ring")
        for it in rs.items: it.ideal = it.lo - 5
        S = [rs]
        S.append(Stream(self.hrest + self.hloads(2) + [Item(x, lo=idx[(1, 0)]) for x in self.hloads(3)], 0, o.get("hend", 130), name="h"))
        ms = o.get("ms", 62)
        S.append(Stream(self.late_consts2(), 0, 44, name="lc2"))
        sal = [f"s_lshl_b32 s81, {XCD}, 3", f"s_lshr_b32 s80, {JJ}, 2", f"s_add_u32 s81, s81, s80", f"s_lshl_b32 s81, s81, 8",
               f"s_and_b32 s80, {JJ}, 3", f"s_lshl_b32 s80, s80, 2", f"s_add_u32 s80, s80, {WAVE}", f"s_lshl_b32 s80, s80, 2",
               f"s_add_u32 s81, s81, s80", f"s_add_u32 s81, s81, {FS}",
               f"s_lshl_b32 s86, s13, 11", f"s_add_u32 s86, s86, {FS}",
               f"s_lshl_b32 s76, s13, 2", f"s_add_u32 s76, s76, {WAVE}", f"s_mul_i32 s76, s76, {20*SP}",
               f"s_lshl_b32 s80, s12, 7", f"s_add_u32 s76, s76, s80", f"s_add_u32 s76, s76, {ST}",
               f"s_add_u32 s77, s76, {8*SP}", f"s_add_u32 s78, s76, {16*SP}", f"s_mov_b32 s74, {fbits(-1.4426950408889634)}"]
        S.append(Stream(sal, 0, ms - 2, name="sal"))
        S.append(Stream([f"WAITVM sst\ns_mov_b64 exec, 1\nbuffer_store_dword v232, off, {SWS}, s81{SC}\ns_mov_b64 exec, -1\n" + self.st("g2.fs")], ms, ms + 1))
        XR, XF, SR, SD = 96, 176, 106, 116
        S.append(Stream(["WAITVM xdma"] + [f"ds_read_b64 {vr(XR+2*jb,2)}, v{VXD} offset:{32*jb}" for jb in range(5)], idx[(1, 3)], idx[(2, 0)], name="xr"))
        xu = []
        for q in range(10): xu += [f"v_lshlrev_b32 v{XF+2*q}, 16, v{XR+q}", f"v_and_b32 v{XF+2*q+1}, 0xffff0000, v{XR+q}"]
        S.append(Stream(xu, idx[(2, 1)], idx[(3, 0)], ahead=0, name="xu"))
        mp, mc = o.get("g2p", 140), o.get("g2c", 180)
        S.append(Stream([self.poll_load(196, True, VFS, "s86")], mp, mp + 1))
        S.append(Stream([self.poll_check("s", 196, True, VFS, "s86") + "\n" + self.st("spoll"),
                         f"buffer_load_dwordx4 {vr(SD,4)}, v{VSG}, {SWS}, s76 offen{SC}",
                         f"buffer_load_dwordx4 {vr(SD+4,4)}, v{VSG}, {SWS}, s77 offen{SC}",
                         f"s_mov_b64 exec, 0xffffffff\nbuffer_load_dwordx4 {vr(SD+8,4)}, v{VSG}, {SWS}, s78 offen{SC}\ns_mov_b64 exec, -1"], mc, mc + 5, ahead=0))
        Z = AC[1]
        def silu(jb):
            T = 200
            z = Z + 4 * jb
            L = [f"v_mul_f32 v{T+k}, s74, v{z+k}" for k in range(4)] + [f"v_exp_f32 v{T+k}, v{T+k}" for k in range(4)]
            L += [f"v_add_f32 v{T+k}, 1.0, v{T+k}" for k in range(4)] + [f"v_rcp_f32 v{T+k}, v{T+k}" for k in range(4)]
            L += [f"v_mul_f32 v{z+k}, v{z+k}, v{T+k}" for k in range(4)]
            return L
        sl = []
        for jb in range(3):
            L = [Item(x) for x in silu(jb)]
            L[0].lo = nxt(3, jb) + 2
            sl += L
        S.append(Stream(sl, nxt(3, 0) + 2, n, ahead=6, name="silu"))
        gap_sched(a, main, S, "g2")
        a(self.st("g2.mfma"))
        a(f"""
        ds_write_b128 v{VSL}, {vr(SD,4)}
        ds_write_b128 v{VSL}, {vr(SD+4,4)} offset:256
        s_waitcnt vmcnt(0)
        s_mov_b64 exec, 0xffffffff
        ds_write_b128 v{VSL}, {vr(SD+8,4)} offset:512
        s_mov_b64 exec, -1
        """)
        for x in silu(3): a(x)
        a("s_waitcnt lgkmcnt(0)\ns_barrier")
        a(self.st("g2.bar"))
        for jb in range(5): a(f"ds_read_b64_tr_b16 {vr(SR+2*jb,2)}, v{VSR} offset:{512*jb}")
        for x in silu(4): a(x)
        T = 204
        for q in range(10):
            a(f"""
            v_lshlrev_b32 v{T}, 16, v{SR+q}
            v_and_b32 v{T+1}, 0xffff0000, v{SR+q}
            v_pk_fma_f32 {vr(T,2)}, {vr(T,2)}, {vr(Z+2*q,2)}, {vr(XF+2*q,2)}
            v_cvt_pk_bf16_f32 v{XR+q}, v{T}, v{T+1}
            """)
        for jb in range(5): a(f"ds_write_b64 v{VXD}, {vr(XR+2*jb,2)} offset:{32*jb}")
        a("s_waitcnt lgkmcnt(0)")
        for i in range(3): a(f"ds_read_b128 {vr(SD+4*i,4)}, v{VXL} offset:{1024*i}")
        osc = o.get("osc", SC)
        for i in range(2): a(f"buffer_store_dwordx4 {vr(SD+4*i,4)}, v{VX+i}, {SOUT}, s14 offen{osc}")
        a(f"s_waitcnt lgkmcnt(0)\ns_mov_b64 exec, 0xffffffff\nbuffer_store_dwordx4 {vr(SD+8,4)}, v{VX+2}, {SOUT}, s14 offen{osc}")
        a(self.st("g2.done"))

def build(prof=False, opt=None, cls=F4):
    g = cls(prof, opt or {})
    if prof == "min":
        full = g.st
        g.st = lambda n: full(n) if n in ("start", "end") else ""
    elif prof:
        g.st("start"); g.st("w3.dma")
    enc = (opt or {}).get("enc")
    if enc:
        g.st = lambda n: "s_memrealtime s[98:99]\ns_waitcnt lgkmcnt(0)" if n == enc.strip() else ""
    a = Asm(auto=True)
    if enc: a("s_memrealtime s[98:99]")
    g.start(a)
    a("L_consts:")
    g.consts(a)
    pass
    a(f"s_cmp_eq_u32 {WAVE}, 3\ns_cbranch_scc1 L_w3b\ns_cmp_eq_u32 {WAVE}, 2\ns_cbranch_scc1 L_w2")
    st0 = a.state()
    g.s4(a)
    a("s_branch L_kg\nL_w2:")
    st1 = a.state(); a.set_state(st0)
    g.w2_pre(a)
    a("L_kg:")
    a.merge([st1, a.state()])
    g.kgen4(a)
    a("s_branch L_g1\nL_w3:")
    st1 = a.state()
    a.set_state(([], []))
    g.wave3a(a)
    a("s_branch L_consts\nL_w3b:")
    g.wave3b(a)
    a("L_g1:")
    a.merge([st1, a.state()])
    a(g.st("g1.arrive"))
    a("s_barrier")
    g.gemm1f(a)
    a(f"s_cmp_eq_u32 {WAVE}, 3\ns_cbranch_scc1 L_cv3")
    st0 = a.state()
    g.conv(a, 0)
    a("s_branch L_g2\nL_cv3:")
    st1 = a.state()
    a.set_state(st0)
    g.conv(a, 1)
    a("L_g2:")
    a.merge([st1, a.state()])
    g.gemm2f(a)
    a(f"s_or_b32 s7, s2, {WAVE}\ns_cbranch_scc1 L_fin\ns_mov_b32 s7, {FLG}")
    a(g.flag_store("s7", 4))
    a("L_fin:")
    if enc:
        a("s_add_u32 s98, s98, 4000\nL_spin:\ns_memrealtime s[100:101]\ns_waitcnt lgkmcnt(0)\ns_sub_u32 s7, s98, s100\ns_cmp_gt_u32 s7, 4000\ns_cbranch_scc0 L_spin")
    g.dump(a)
    a("L_end:\ns_endpgm")
    g.slow_paths(a)
    a("L_code_end:")
    body = a.finish()
    out = header()
    out += f"; @launch grid=(256,1,1) block=(256,1,1) lds={LDS_BYTES}\n"
    if prof: out += "; stamps2: " + " ".join(g.names) + "\n"
    out += "; layout v3\n"
    out += '.amdgcn_target "amdgcn-amd-amdhsa--gfx950"\n.text\n'
    out += khead(NAME + "_kernel") + body
    out += '.section .rodata,"a"\n.p2align 6\n' + kdesc(NAME + "_kernel")
    print("instructions", sum(1 for i in a.ins if i.mn), "nops inserted", a.nops)
    return out

if __name__ == "__main__":
    open(sys.argv[1], "w").write(build("min" if "min" in sys.argv[2:] else "prof" in sys.argv[2:], parse(sys.argv[2:])))
```

```python
import sys, struct, math
from dsl import Asm, interleave, Item, Stream, FragStream, gap_sched
import gen3
from gen import (NAME, fbits, FLG, PROF, WS_BYTES, PY, PX, CBP, CPITCH, U_OFF, LDS_BYTES, sp, SX, SW1, SW2, SOUT, SWS,
                 WAVE, XCD, JJ, SID, vr, ar, kdesc, khead, header)
from gen2 import FY, FX, FH, FS, TAG, SC, S_PAIR, S_SNG, S_HA, S_HC, S_Y, S_ROW
from gen3 import XNT, XP, W2F, HF, ST, SP, TABSZ, TP, RP, KC, CB0, SNG, PAIR, RING, G2X, G2S, parse

YT, XT, W2S, CNT = 0, 10496, 26112, 34304
S_YB, S_YE = "s96", "s97"
V_FX, V_FY, V_KR, V_CNT = 208, 209, 210, 211
VCA, VCB = 212, 213
V_T = 214
V_UG, V_UL, V_ES, V_Z1, V_Z2 = 222, 223, 224, 227, 228
V_P0, V_P1, V_S, V_HF = 236, 237, 238, 239
V_B1, V_DUM, V_ONE = 240, 248, 252
VSL, VCW, VPW, VPR, VXL, VXD, VSR = 214, 215, 216, 217, 218, 219, 220
VX, VFH, VFS, VSG, VB2 = 224, 227, 228, 229, 230
for k in ("V_FX V_FY V_KR VCA VCB V_T V_P0 V_P1 V_S V_HF V_B1 V_DUM V_ONE VSL VCW VPW VPR VXL VXD VSR VX VFH VFS VSG VB2").split():
    setattr(gen3, k, globals()[k])

class F4(gen3.F3):
    def start(self, a):
        o = self.o
        a(f"""
        s_load_dwordx16 s[16:31], s[0:1], 0
        s_load_dwordx16 s[32:47], s[0:1], 64
        s_load_dwordx2 s[48:49], s[0:1], 128
        s_cmp_ge_u32 s2, 256
        s_cbranch_scc1 L_end
        s_getpc_b64 s[72:73]
        L_pc:
        v_lshrrev_b32 v1, 6, v0
        s_lshr_b32 {JJ}, s2, 3
        v_and_b32 v0, 63, v0
        s_lshl_b32 s7, {JJ}, 4
        v_lshl_add_u32 v8, v1, 2, v0
        v_readfirstlane_b32 {WAVE}, v1
        v_add_lshl_u32 v8, v8, s7, 7
        v_mov_b32 v{V_CNT}, {CNT}
        v_min_u32 v8, L_code_end-L_pc-4, v8
        v_mov_b64 v[4:5], 0
        v_mov_b64 v[6:7], 0
        s_mov_b64 exec, 15
        global_load_dword v{V_DUM}, v8, s[72:73]
        ds_write_b128 v{V_CNT}, v[4:7]
        ds_write_b64 v{V_CNT}, v[4:5] offset:16
        s_mov_b64 exec, -1
        s_and_b32 {XCD}, s2, 7
        s_lshl_b32 {SID}, {XCD}, 5
        s_add_u32 {SID}, {SID}, {JJ}
        v_lshrrev_b32 v2, 4, v0
        v_and_b32 v3, 15, v0
        s_lshr_b32 s9, {JJ}, 2
        s_and_b32 s7, {XCD}, 1
        s_lshl_b32 s7, s7, 3
        s_mul_i32 s83, s9, 10
        s_add_u32 s9, s9, s7
        s_lshr_b32 s83, s83, 3
        s_mul_i32 s83, s83, {1 if o.get("yrot", 1) else 0}
        s_and_b32 s7, s9, 1
        s_mul_i32 {S_PAIR}, s9, 192
        s_add_u32 {S_SNG}, {S_PAIR}, 128
        s_lshl_b32 s74, s7, 6
        s_add_u32 {S_PAIR}, {S_PAIR}, s74
        s_lshl_b32 s74, s7, 7
        s_sub_u32 {S_SNG}, {S_SNG}, s74
        s_mov_b32 s54, 2621440
        s_mov_b32 s55, 0x20000
        s_mov_b32 s58, 1966080
        s_mov_b32 s59, 0x20000
        s_mov_b32 s70, {WS_BYTES}
        s_mov_b32 s71, 0x20000
        s_cmp_eq_u32 {WAVE}, 3
        s_cbranch_scc1 L_w3
        v_mul_u32_u24 v7, 1280, v2
        v_lshl_add_u32 v7, v3, 4, v7
        s_lshl_b32 s72, {SID}, 1
        s_add_u32 s72, s72, {WAVE}
        s_mul_i32 s72, s72, 5120
        s_cmp_eq_u32 {WAVE}, 2
        s_cselect_b32 s72, 0x1000000, s72
        s_cselect_b32 s73, {FLG}, s70
        s_mul_i32 s10, {XCD}, 80
        s_mul_i32 s7, {JJ}, 3
        s_add_u32 s10, s10, s7
        s_add_u32 s11, s10, {WAVE}
        s_min_u32 s11, s11, 639
        s_mul_i32 s7, s11, 384
        v_lshl_add_u32 v8, v0, 1, s7
        s_lshl_b32 s7, s11, 1
        v_mov_b32 v6, s7
        """)
        for k in list(range(10, 30, 2)) + [40, 42, 44]: a(f"v_mov_b64 {vr(k,2)}, 0")
        a(f"""
        s_waitcnt lgkmcnt(0)
        s_mov_b64 s[52:53], {sp('x')}
        s_mov_b64 s[68:69], {sp('ws')}
        """)
        for i in range(5):
            a(f"buffer_load_dwordx4 {vr(48+4*i,4)}, v7, {SX}, s72 offen offset:{256*i}")
        a(f"buffer_load_dword v9, off, {SWS}, s73{SC}")
        self.pstart(a)
        a(f"global_load_short_d16_hi v28, v6, {sp('ldt')}\nglobal_load_short_d16_hi v29, v6, {sp('dsk')}")
        for c in range(3):
            for k, n in enumerate(("are", "aim", "bre", "bim", "cre", "cim")):
                a(f"global_load_short_d16_hi v{10+6*c+k}, v8, {sp(n)} offset:{128*c}")
        a("s_barrier")

    def pstart(self, a):
        if self.prof:
            a("s_memrealtime s[100:101]\ns_waitcnt lgkmcnt(0)\ns_mov_b32 s99, s100")
            a(self.st("start"))

    def consts(self, a):
        T = V_T
        a(f"""
        v_and_b32 v5, 31, v0
        v_lshl_add_u32 v8, v5, 1, {S_PAIR}
        v_lshl_add_u32 v6, v5, 1, {S_SNG}
        """)
        for k in range(V_B1, V_B1 + 8, 2): a(f"v_mov_b64 {vr(k,2)}, 0")
        a(f"""
        s_mov_b32 s62, 1966080
        s_mov_b32 s63, 0x20000
        s_mov_b32 s66, 2621440
        s_mov_b32 s67, 0x20000
        s_mov_b64 s[56:57], {sp('w1')}
        s_mov_b64 s[60:61], {sp('w2')}
        s_mov_b64 s[64:65], {sp('out')}
        global_load_ushort v{V_B1}, v8, {sp('b1')}
        global_load_ushort v{V_B1+2}, v8, {sp('b1')} offset:64
        global_load_ushort v{V_B1+4}, v6, {sp('b1')}
        """)
        if self.prof:
            for r in self.STAMPS[1:]: a(f"s_mov_b32 s{r}, 0")
        a(f"""
        v_lshlrev_b32 v1, 4, v0
        v_lshrrev_b32 v4, 5, v0
        s_mul_i32 s7, {WAVE}, {TABSZ}
        v_mul_u32_u24 v{V_KR}, {TP}, v5
        v_lshl_add_u32 v6, v4, 4, s7
        v_add_u32 v{V_KR}, v{V_KR}, v6
        s_mul_i32 s7, {WAVE}, {RP}
        v_lshl_add_u32 v6, v4, 4, s7
        v_lshl_add_u32 v{T}, v5, 5, v6
        v_cmp_gt_u32 vcc, 32, v0
        v_lshl_add_u32 v6, v5, 4, s7
        v_lshl_add_u32 v7, v5, 3, s7
        v_add_u32 v8, 1024, v6
        v_add_u32 v30, 1536, v7
        v_cndmask_b32 v{T+1}, v30, v8, vcc
        v_add_u32 v8, 1032, v6
        v_add_u32 v30, 1792, v7
        v_cndmask_b32 v{T+2}, v30, v8, vcc
        v_mov_b32 v8, 0x3f80
        v_cndmask_b32 v{V_ONE}, 0, v8, vcc
        v_mov_b32 v{V_ONE+1}, 0
        v_mov_b64 {vr(V_ONE+2,2)}, 0
        v_sub_u32 v6, 63, v0
        v_lshl_add_u32 v{T+3}, v6, 3, s7
        v_lshl_add_u32 v{T+4}, v6, 4, s7
        v_lshl_add_u32 v{T+5}, v0, 5, s7
        v_lshl_add_u32 v{T+6}, v0, 4, s7
        v_lshl_add_u32 v{T+7}, v0, 3, s7
        s_lshl_b32 s7, {WAVE}, 10
        v_lshl_add_u32 v{V_ES}, v0, 2, s7
        v_add_u32 v{V_ES+1}, {RP}, v{V_ES}
        v_add_u32 v{V_ES+2}, {2*RP}, v{V_ES}
        s_add_u32 s74, s7, {CB0+U_OFF+512}
        v_and_b32 v6, 3, v0
        v_lshrrev_b32 v7, 2, v0
        v_min_u32 v8, 2, v6
        v_mul_u32_u24 v{V_UG}, {XP}, v7
        v_lshl_add_u32 v{V_UG}, v8, 4, v{V_UG}
        v_mul_u32_u24 v{V_UL}, {CBP}, v8
        v_lshl_add_u32 v30, v7, 4, s74
        v_add_u32 v{V_UL}, v{V_UL}, v30
        v_lshlrev_b32 v{V_FX}, 8, v7
        v_lshl_add_u32 v{V_FX}, v6, 4, v{V_FX}
        v_lshlrev_b32 v{V_FY}, 2, v6
        s_min_u32 s7, {WAVE}, 2
        s_mul_i32 s7, s7, {CBP}
        s_add_u32 s74, s7, {CB0+4096}
        s_add_u32 s7, s7, {CB0+U_OFF}
        v_lshl_add_u32 v{V_Z2}, v0, 3, s7
        v_sub_u32 v8, v3, v4
        v_lshl_add_u32 v8, v8, 2, s74
        v_mul_u32_u24 v{V_Z1}, {CPITCH}, v2
        v_add_u32 v{V_Z1}, v{V_Z1}, v8
        v_and_b32 v8, 1, v2
        v_lshlrev_b32 v6, 3, v6
        v_lshl_add_u32 v6, v8, 5, v6
        v_and_b32 v7, 3, v7
        v_lshl_add_u32 v7, v4, 3, v7
        v_lshl_add_u32 v{V_S}, v7, 6, v6
        v_add_u32 v{V_S}, {SNG}, v{V_S}
        v_lshl_add_u32 v{V_P0}, v7, 7, v6
        v_and_b32 v7, 8, v0
        v_lshl_add_u32 v{V_P0}, v7, 3, v{V_P0}
        v_add_u32 v{V_P0}, {PAIR}, v{V_P0}
        v_xor_b32 v{V_P1}, 64, v{V_P0}
        v_mul_u32_u24 v{V_HF}, 49152, v8
        v_lshl_add_u32 v{V_HF}, v4, 8, v{V_HF}
        v_lshl_add_u32 v{V_HF}, v3, 4, v{V_HF}
        s_cmp_eq_u32 {WAVE}, 3
        s_cselect_b32 s7, 0, {WAVE}
        s_mul_i32 s7, s7, {CBP}
        s_add_u32 s7, s7, {CB0}
        v_lshl_add_u32 v6, v2, 4, s7
        v_lshl_add_u32 v{VCB}, v3, 5, v6
        v_sub_u32 v7, 15, v3
        v_and_b32 v8, 3, v7
        v_and_b32 v7, 12, v7
        v_lshl_add_u32 v6, v7, 1, v6
        v_mul_u32_u24 v{VCA}, {CPITCH}, v8
        v_add_u32 v{VCA}, v{VCA}, v6
        s_lshr_b32 s8, {XCD}, 1
        s_lshl_b32 s12, s8, 3
        s_lshl_b32 s8, s8, 2
        s_and_b32 s7, {JJ}, 3
        s_add_u32 s8, s8, s7
        s_and_b32 s7, {JJ}, 7
        s_add_u32 s12, s12, s7
        s_and_b32 s13, {XCD}, 1
        s_lshl_b32 s13, s13, 2
        s_lshr_b32 s7, {JJ}, 3
        s_add_u32 s13, s13, s7
        s_add_u32 s11, {"s7" if self.o.get("hrot", 0) else "0"}, {WAVE}
        s_and_b32 s11, s11, 3
        s_lshl_b32 {S_YB}, s8, 2
        s_add_u32 {S_YB}, {S_YB}, {WAVE}
        s_mul_i32 {S_HA}, {S_YB}, 96
        s_mul_i32 {S_YB}, {S_YB}, 40960
        s_add_u32 {S_YE}, {S_YB}, 40960
        s_lshl_b32 s7, s83, 12
        s_add_u32 {S_Y}, {S_YB}, s7
        s_lshl_b32 s86, s8, 8
        s_lshl_b32 s7, {WAVE}, 4
        s_add_u32 s86, s86, s7
        s_add_u32 s86, s86, {FY}
        """)

    def late_scalars(self):
        return [f"s_mul_i32 s73, s9, 3", f"s_add_u32 {S_HA}, {S_HA}, s73", f"s_lshl_b32 {S_HA}, {S_HA}, 10", f"s_add_u32 {S_HA}, {S_HA}, {HF}",
                f"s_add_u32 {S_HC}, {S_HA}, 2048", f"s_and_b32 s73, s9, 1", f"s_lshl_b32 s73, s73, 10", f"s_add_u32 {S_HA}, {S_HA}, s73",
                f"s_lshl_b32 s73, s73, 1", f"s_sub_u32 {S_HC}, {S_HC}, s73",
                f"s_mul_i32 s10, {XCD}, 80", f"s_mul_i32 s73, {JJ}, 3", f"s_add_u32 s10, s10, s73",
                f"s_cmp_lt_u32 {JJ}, 27\ns_cselect_b32 s10, s10, 0x20000", f"s_mul_i32 {S_ROW}, s10, {SP}", f"s_add_u32 {S_ROW}, {S_ROW}, {ST}",
                f"s_lshl_b32 s83, s10, 4", f"s_mul_i32 s73, {WAVE}, {64*XP}", f"s_add_u32 s83, s83, s73",
                f"s_cmp_lt_u32 {JJ}, 27\ns_cselect_b32 s83, s83, 0x1000000", f"s_add_u32 s83, s83, {XNT}",
                f"s_mul_i32 s85, s13, 20", f"s_add_u32 s85, s85, {WAVE}", f"s_mul_i32 s85, s85, {12*1024}", f"s_add_u32 s85, s85, {W2F}"]

    def step(self, a):
        a(f"s_lshl_b32 s7, s82, 1\ns_add_u32 m0, s7, {PAIR}\ns_add_u32 s7, s80, {S_PAIR}")
        for k in range(4): a(f"buffer_load_dwordx4 v{40+k}, {SW1}, s7 offen offset:{1024*k} lds")
        a(f"s_add_u32 m0, s82, {SNG}\ns_add_u32 s7, s80, {S_SNG}")
        for k in range(2): a(f"buffer_load_dwordx4 v{44+k}, {SW1}, s7 offen offset:{1024*k} lds")
        a(f"""
        s_add_u32 s82, s82, 2048
        s_add_u32 s80, s80, {32*3072}
        s_cmp_eq_u32 s82, 40960
        s_cselect_b32 s82, 0, s82
        s_cmp_eq_u32 s80, {640*3072}
        s_cselect_b32 s80, 0, s80
        """)

    def wave3a(self, a):
        o = self.o
        a(f"""
        v_lshrrev_b32 v4, 3, v0
        v_mul_u32_u24 v40, 3072, v4
        v_lshrrev_b32 v4, 2, v0
        v_mul_u32_u24 v44, 3072, v4
        v_xor_b32 v4, v4, v2
        v_and_b32 v4, 1, v4
        v_lshl_add_u32 v40, v4, 6, v40
        v_and_b32 v4, 3, v0
        v_lshl_add_u32 v40, v4, 4, v40
        v_lshl_add_u32 v44, v4, 4, v44
        v_add_u32 v41, {24576-1024}, v40
        v_add_u32 v42, {24576-1024}, v41
        v_add_u32 v43, {24576-1024}, v42
        v_add_u32 v45, {49152-1024}, v44
        s_and_b32 s7, {JJ}, 3
        s_mul_i32 s82, s7, 10240
        s_mul_i32 s80, s7, 5
        s_lshl_b32 s7, s83, 1
        s_add_u32 s80, s80, s7
        s_sub_u32 s7, s80, 20
        s_cselect_b32 s80, s80, s7
        s_mul_i32 s80, s80, {32*3072}
        s_mov_b32 s73, {o.get("n0", 4)}
        v_min_u32 v4, 59, v0
        v_mul_u32_u24 v5, 5462, v4
        v_lshrrev_b32 v5, 16, v5
        v_mul_u32_u24 v5, {3072-12*128}, v5
        v_lshl_add_u32 v46, v4, 7, v5
        v_add_u32 v47, {5*3072}, v46
        s_mul_i32 s74, {JJ}, {20*3072}
        s_and_b32 s7, {XCD}, 1
        s_mul_i32 s7, s7, 1536
        s_add_u32 s74, s74, s7
        s_add_u32 s75, s74, {10*3072}
        s_waitcnt lgkmcnt(0)
        s_mov_b64 s[52:53], {sp('x')}
        s_mov_b64 s[68:69], {sp('ws')}
        s_mov_b64 s[56:57], {sp('w1')}
        """)
        self.pstart(a)
        a("s_barrier")
        if o.get("w1pf", 0):
            for i in range(4): a(f"buffer_load_dword v{V_DUM}, v{46+(i&1)}, {SW1}, s{74+(i>>1)} offen")
        for _ in range(o.get("n0", 4)): self.step(a)

    def spin(self, name, off, both):
        t = (f"L_sp{name}:\nds_read_b64 v[4:5], v{V_CNT} offset:{off}\ns_waitcnt lgkmcnt(0)\n")
        if both: t += "v_and_b32 v4, v4, v5\n"
        t += f"v_readfirstlane_b32 s7, v4\ns_cmp_eq_u32 s7, 0\ns_cbranch_scc1 L_sp{name}"
        if not both: t += f"\nv_readfirstlane_b32 {TAG}, v5\nv_readfirstlane_b32 s51, v5"
        return t

    def wave3b(self, a):
        a(f"L_dma:\ns_waitcnt vmcnt({self.o.get('dcap', 24)})")
        self.step(a)
        a(f"s_add_u32 s73, s73, 1\ns_cmp_lt_u32 s73, 20\ns_cbranch_scc1 L_dma")
        a(self.st("w3.dma"))
        a(self.spin("3", 16, False))
        a(self.poll_load(4, False, V_FY, "s86"))
        a(self.poll_check("y3", 4, False, V_FY, "s86"))
        a(self.st("ypoll"))
        for x in self.yloads()[:self.o.get("ny", 8)]: a(x)

    def red16(self, v, fill):
        L = []
        for i, m in enumerate(("quad_perm:[1,0,3,2]", "quad_perm:[2,3,0,1]", "row_half_mirror", "row_mirror")):
            L += fill[2 * i:2 * i + 2] + [f"v_add_f32_dpp v{v}, v{v}, v{v} {m} row_mask:0xf bank_mask:0xf"]
        return L + fill[8:]

    def s4(self, a):
        R, X = 48, 112
        for k in range(20):
            a(f"v_lshlrev_b32 v{X+2*k}, 16, v{R+k}\nv_and_b32 v{X+2*k+1}, 0xffff0000, v{R+k}")
            if k == 0: a(self.st("s.x"))
        a(f"v_pk_add_f32 v[160:161], {vr(X,2)}, {vr(X+2,2)}")
        for k in range(2, 20): a(f"v_pk_add_f32 v[160:161], v[160:161], {vr(X+2*k,2)}")
        a("v_add_f32 v160, v160, v161")
        fill = [f"s_lshl_b32 s7, {WAVE}, 2", "v_add_u32 v6, s7, v2", f"v_add_u32 v8, s7, v{V_CNT}", f"v_mul_u32_u24 v4, {PY}, v6",
                f"v_mul_u32_u24 v5, {PX}, v6", "v_lshl_add_u32 v4, v3, 4, v4", "v_lshl_add_u32 v5, v3, 4, v5", f"s_mov_b32 s74, {fbits(1/640)}"]
        for x in self.red16(160, fill): a(x)
        a("v_mul_f32 v162, s74, v160")
        for k in range(20):
            a(f"v_pk_add_f32 {vr(X+2*k,2)}, {vr(X+2*k,2)}, v[162:163] op_sel_hi:[1,0] neg_lo:[0,1] neg_hi:[0,1]")
        a(f"v_pk_mul_f32 v[160:161], {vr(X,2)}, {vr(X,2)}")
        for k in range(1, 20): a(f"v_pk_fma_f32 v[160:161], {vr(X+2*k,2)}, {vr(X+2*k,2)}, v[160:161]")
        a("v_add_f32 v160, v160, v161")
        fill = ["v_cvt_pk_bf16_f32 v168, v162, v162", f"s_mov_b32 s75, {fbits(1e-5)}", "v_lshlrev_b32 v168, 16, v168", "v_mov_b32 v7, 1",
                "v_sub_f32 v168, v162, v168", "v_mov_b64 v[196:197], 0", "v_mov_b64 v[200:201], 0", "v_mov_b64 v[202:203], 0"]
        for x in self.red16(160, fill): a(x)
        a("v_mul_f32 v160, s74, v160")
        self.rbf(a, 161, 160)
        a("v_add_f32 v161, s75, v161")
        self.rbf(a, 161, 161)
        a("v_sqrt_f32 v161, v161")
        self.rbf(a, 161, 161)
        a("v_rcp_f32 v164, v161")
        a("v_mul_f32 v160, v160, v164\nv_mul_f32 v160, v160, v164")
        self.rbf(a, 161, 160)
        a("v_add_f32 v161, s75, v161")
        self.rbf(a, 161, 161)
        a("v_sqrt_f32 v161, v161\nv_mul_f32 v168, v168, v164")
        self.rbf(a, 161, 161)
        a("v_rcp_f32 v166, v161\nv_mul_f32 v166, v166, v164")
        for k in range(20):
            a(f"v_pk_mul_f32 v[170:171], {vr(X+2*k,2)}, v[166:167] op_sel_hi:[1,0]\nv_cvt_pk_bf16_f32 v{R+k}, v170, v171")
        for i in range(5): a(f"ds_write_b128 v4, {vr(R+4*i,4)} offset:{YT+256*i}")
        a("s_mov_b64 exec, 1\nds_write_b32 v8, v7\ns_mov_b64 exec, -1")
        pass
        for k in range(20):
            a(f"v_pk_fma_f32 v[170:171], {vr(X+2*k,2)}, v[164:165], v[168:169] op_sel_hi:[1,0,0]\nv_cvt_pk_bf16_f32 v{R+20+k}, v170, v171")
        for i in range(5): a(f"ds_write_b128 v5, {vr(R+20+4*i,4)} offset:{XT+256*i}")
        a("s_mov_b64 exec, 1\nds_write_b32 v8, v7 offset:8\ns_mov_b64 exec, -1")
        a(self.st("s.done"))

    def w2_pre(self, a):
        a(f"""
        v_and_b32 v4, 7, v0
        v_lshrrev_b32 v5, 3, v0
        v_mul_u32_u24 v196, {PY}, v4
        v_lshl_add_u32 v196, v5, 4, v196
        v_lshlrev_b32 v197, 9, v5
        v_lshl_add_u32 v197, v4, 4, v197
        v_bfe_u32 v4, v0, 2, 2
        v_and_b32 v5, 3, v0
        v_mul_u32_u24 v198, {PX}, v4
        v_lshl_add_u32 v198, v2, 5, v198
        v_lshl_add_u32 v198, v5, 3, v198
        v_lshrrev_b32 v4, 5, v0
        v_lshlrev_b32 v199, 12, v4
        v_bfe_u32 v4, v0, 2, 3
        v_lshl_add_u32 v199, v4, 8, v199
        v_lshl_add_u32 v199, v5, 3, v199
        v_mul_u32_u24 v200, 1280, v2
        v_lshl_add_u32 v200, v3, 4, v200
        v_add_u32 v201, {5120-1024}, v200
        v_add_u32 v202, {5120-1024}, v201
        v_add_u32 v203, {5120-1024}, v202
        s_min_u32 s7, s2, 239
        s_mul_i32 s14, s7, 52429
        s_lshr_b32 s14, s14, 18
        s_mul_i32 s15, s14, 5
        s_sub_u32 s15, s7, s15
        s_mul_i32 s84, s14, 40960
        s_lshl_b32 s7, s15, 8
        s_add_u32 s84, s84, s7
        s_mul_i32 s15, s15, {8*48}
        s_add_u32 s14, s14, s15
        s_lshl_b32 s14, s14, 10
        s_add_u32 s14, s14, {W2F}
        s_lshr_b32 s15, {SID}, 2
        s_mul_i32 s15, s15, 40960
        s_and_b32 s7, {SID}, 3
        s_lshl_b32 s7, s7, 7
        s_add_u32 s15, s15, s7
        s_lshr_b32 s81, {SID}, 4
        s_lshl_b32 s81, s81, 8
        s_and_b32 s7, {SID}, 15
        s_lshl_b32 s7, s7, 2
        s_add_u32 s81, s81, s7
        s_add_u32 s81, s81, {FY}
        s_mul_i32 s79, {SID}, {XP}
        s_add_u32 s79, s79, {XNT}
        v_readfirstlane_b32 s7, v9
        s_mul_i32 s7, s7, 1664525
        s_add_u32 {TAG}, s7, 1013904223
        s_mov_b32 s51, {TAG}
        v_mov_b32 v204, 1
        v_mov_b32 v205, {TAG}
        """)

    def only2(self, a, name, body, other=None):
        a(f"s_cmp_eq_u32 {WAVE}, 2\ns_cbranch_scc0 L_o{name}")
        st0 = a.state()
        for x in body: a(x)
        if other:
            a(f"s_branch L_j{name}\nL_o{name}:")
            st1 = a.state(); a.set_state(st0)
            for x in other: a(x)
            a(f"L_j{name}:")
            a.merge([st1, a.state()])
        else:
            a(f"L_o{name}:")
            st1 = a.state()
            a.merge([st0, st1])
        a.vmq = [(set(r), set(t)) for r, t in st1[0]]

    def kgen4(self, a):
        o = self.o
        VF, UF, CH = self.VF, self.UF, 112
        W1, W8, W256, T, C0 = 176, 178, 180, 182, 194
        DT, DTL = 30, 31
        L2E = 1.4426950408889634
        f32 = lambda x: struct.unpack("<f", struct.pack("<f", x))[0]
        I2P = 1 / (2 * math.pi)
        a(f"""
        s_mov_b32 s72, {fbits(f32(L2E))}
        s_mov_b32 s73, {fbits(L2E-f32(L2E))}
        s_mov_b32 s76, {fbits(math.log(2))}
        v_mul_f32 v{T}, s72, v28
        v_fma_f32 v{T+1}, v28, s72, -v{T}
        v_fma_f32 v{T+1}, v28, s73, v{T+1}
        v_exp_f32 v{T}, v{T}
        v_mul_f32 v{T+1}, s76, v{T+1}
        v_cmp_eq_u32 vcc, 0, v0
        v_fma_f32 v{T}, v{T}, v{T+1}, v{T}
        v_cvt_pk_bf16_f32 v{DT}, v{T}, v{T}
        v_lshlrev_b32 v{DT}, 16, v{DT}
        v_cndmask_b32 v29, 0, v29, vcc
        v_mul_f32 v{DTL}, s72, v{DT}
        s_mov_b32 s74, {fbits(f32(I2P))}
        s_mov_b32 s75, {fbits(I2P-f32(I2P))}
        s_mov_b32 s77, {fbits(256.0)}
        s_mov_b32 s78, {fbits(8.0)}
        """)
        pass
        yl = self.yloads()[:o.get("ny", 8)]
        m0tab = f"s_mul_i32 m0, {WAVE}, {TABSZ}"
        P1 = [self.spin("y", 0, True)] + [f"ds_read_b128 {ar(4*I,4)}, v196 offset:{YT+128*I}" for I in range(10)]
        for I in range(10):
            P1.append(f"buffer_store_dwordx4 {ar(4*I,4)}, v197, {SWS}, s15 offen{SC} @yst" + ("\ns_add_u32 s15, s15, 4096" if I < 9 else ""))
        P1 += [self.st("p.yst"), self.spin("x", 8, True)]
        for I in range(10):
            P1 += [f"ds_read_b64_tr_b16 {ar(40+4*I,2)}, v198 offset:{XT+128*I}", f"ds_read_b64_tr_b16 {ar(42+4*I,2)}, v198 offset:{XT+128*I+4*PX}"]
        P1.append(f"s_mov_b64 exec, 1\nds_write_b64 v{V_CNT}, v[204:205] offset:16\ns_mov_b64 exec, -1")
        w2d = [f"s_mov_b32 m0, {W2S}"]
        for h in range(2):
            w2d += [f"buffer_load_dwordx4 v{200+k}, {SW2}, s84 offen offset:{1024*k} lds @w2dma" for k in range(4)]
            if h == 0: w2d.append(f"s_mov_b32 m0, {W2S+4096}\ns_add_u32 s84, s84, {4*5120}")
        xst = []
        for I in range(10):
            xst.append(("s_add_u32 s79, s79, 4096\n" if I in (4, 8) else "") + f"buffer_store_dwordx4 {ar(40+4*I,4)}, v1, {SWS}, s79 offen offset:{1024*(I%4)}{SC}")
        w2r = ["WAITVM w2dma"]
        for db in range(8):
            w2r += [f"ds_read_b64_tr_b16 {ar(80+4*db,2)}, v199 offset:{W2S+32*db}", f"ds_read_b64_tr_b16 {ar(82+4*db,2)}, v199 offset:{W2S+32*db+2048}"]
        w2s = [f"buffer_store_dwordx4 {ar(80+4*db,4)}, v1, {SWS}, s14 offen{SC}" + (f"\ns_add_u32 s14, s14, {48*1024}" if db < 7 else "") for db in range(8)]
        fy = ["WAITVM yst", f"s_mov_b64 exec, 1\nbuffer_store_dword v205, off, {SWS}, s81{SC}\ns_mov_b64 exec, -1", self.st("p.fy")]
        fx = [f"s_add_u32 s81, s81, {FX-FY}\ns_mov_b64 exec, 1\nbuffer_store_dword v205, off, {SWS}, s81{SC}\ns_mov_b64 exec, -1", ""]
        fypos = o.get("fypos", 1)
        for c in range(3):
            p = 10 + 6 * c
            setup = [f"v_mul_f32 v{T}, v{p}, v{DTL}", f"v_mul_f32 v{T+1}, v{p+1}, v{DT}",
                     f"v_mul_f32 v{T+2}, s74, v{T+1}", f"v_fma_f32 v{T+3}, v{T+1}, s74, -v{T+2}",
                     f"v_fma_f32 v{T+3}, v{T+1}, s75, v{T+3}",
                     f"v_mul_f32 v{T+4}, s78, v{T}", f"v_mul_f32 v{T+5}, s78, v{T+2}",
                     f"v_mul_f32 v{T+6}, s77, v{T}", f"v_mul_f32 v{T+7}, s77, v{T+2}",
                     f"v_exp_f32 v{T+4}, v{T+4}", f"v_fract_f32 v{T+5}, v{T+5}",
                     f"v_exp_f32 v{T+6}, v{T+6}", f"v_fract_f32 v{T+7}, v{T+7}",
                     f"v_exp_f32 v{T+8}, v{T}", f"v_fract_f32 v{T+9}, v{T+2}",
                     f"v_fma_f32 v{T+5}, v{T+3}, s78, v{T+5}", f"v_fma_f32 v{T+7}, v{T+3}, s77, v{T+7}",
                     f"v_add_f32 v{T+9}, v{T+3}, v{T+9}",
                     f"v_cos_f32 v{W8}, v{T+5}", f"v_sin_f32 v{W8+1}, v{T+5}",
                     f"v_cos_f32 v{W256}, v{T+7}", f"v_sin_f32 v{W256+1}, v{T+7}",
                     f"v_cos_f32 v{W1}, v{T+9}", f"v_sin_f32 v{W1+1}, v{T+9}"]
            setup += self.cmul(T + 10, p + 4, p + 2)
            setup += [f"v_pk_mul_f32 {vr(W8,2)}, {vr(W8,2)}, {vr(T+4,2)} op_sel_hi:[1,0]",
                      f"v_pk_mul_f32 {vr(W256,2)}, {vr(W256,2)}, {vr(T+6,2)} op_sel_hi:[1,0]",
                      f"v_pk_mul_f32 {vr(W1,2)}, {vr(W1,2)}, {vr(T+8,2)} op_sel_hi:[1,0]",
                      f"v_pk_mul_f32 {vr(C0,2)}, {vr(T+10,2)}, {vr(DT,2)} op_sel_hi:[1,0]"]
            Vv = lambda j: W8 if j == 1 else CH + 2 * j
            vchain = []
            for j in range(2, 32): vchain += self.cmul(Vv(j), Vv(j - 1), W8)
            vcvt = [f"v_mov_b32 v{CH}, 0x3f80"] + [f"v_cvt_pk_bf16_f32 v{CH+2*j}, v{Vv(j)}, v{Vv(j)+1}" for j in range(1, 32)]
            vwr = [f"ds_write_addtid_b32 v{CH+2*j} offset:{TP*j}" for j in range(32)]
            Ur = lambda i: C0 if i == 0 else CH + 2 * i
            uchain = []
            for i in range(1, 8): uchain += self.cmul(Ur(i), Ur(i - 1), W1)
            for i, s in ((8, 0), (9, 2), (10, 4), (11, 6), (12, 8), (13, 10), (14, 12), (15, 13), (16, 14), (17, 16), (18, 17), (19, 18), (20, 19)):
                uchain += self.cmul(Ur(i), Ur(s), W256)
            ucvt = [f"v_cvt_pk_bf16_f32 v{Ur(i)}, v{Ur(i)}, -v{Ur(i)+1}" for i in range(21)]
            uwr = [f"ds_write_addtid_b32 v{Ur(i)} offset:{TP*(i if i < 20 else 23)}" for i in range(21)]
            E = lambda L: [a(x) for x in L]
            ypos = o.get("ypos", 2)
            chk = lambda: (E([self.poll_check("y0", 2, False, V_FY, "s86"), self.st("ypoll")]), self.only2(a, "fx", fx))
            ng = {0: 5, 1: 4, 2: 2}[ypos]
            grp = [yl[len(yl) * k // ng:len(yl) * (k + 1) // ng] for k in range(ng)] if c == 2 else [[]] * 5
            grp = [[]] * (5 - ng) + grp
            E(setup[:6])
            if c: E(self.kreads(UF))
            if c == 1 and fypos == 1: self.only2(a, "fy", fy + xst[:5])
            if c == 2 and ypos == 1: E([self.poll_load(2, False, V_FY, "s86")])
            E(setup[6:])
            if c == 2 and ypos == 0: chk()
            E(grp[0] + vchain)
            if c == 0:
                E(vcvt + ["s_waitcnt vmcnt(0)"])
                self.only2(a, "p1", P1 + w2d, [self.spin("f", 16, False)])
                E([m0tab] + vwr)
            else:
                E(vcvt[:18])
                if c == 1: self.only2(a, "x2", (fy + xst if fypos == 2 else xst[5:]) + w2r)
                if c == 2 and ypos == 2: E([self.poll_load(2, False, V_FY, "s86")])
                if c == 2 and ypos == 1: chk()
                E(grp[1])
                mf = self.kmf(c == 1)
                for k in range(8): E([mf[k]] + vwr[4 * k:4 * k + 4] + vcvt[18 + 2 * k:20 + 2 * k])
            E(uchain[:8] + self.kreads(VF) + grp[2])
            if c == 1: self.only2(a, "w2", w2s)
            E(uchain[8:] + ucvt)
            if c == 1 and ypos == 0: E([self.poll_load(2, False, V_FY, "s86")])
            if c == 2 and ypos == 2: chk()
            E(grp[3] + uwr + grp[4])
            if c == 0 and fypos == 0: self.only2(a, "fy", fy + xst[:5])
            a(self.st(f"kg{c}"))
        for x in self.kreads(UF): a(x)
        a("s_waitcnt lgkmcnt(0)")

    def yloads(self):
        L = []
        for ks in range(40):
            x = f"buffer_load_dwordx4 {ar(4*ks,4)}, v1, {SWS}, {S_Y} offen offset:{1024*(ks%4)}{SC}"
            if ks % 4 == 0 and ks:
                x = f"s_add_u32 {S_Y}, {S_Y}, 4096\ns_cmp_eq_u32 {S_Y}, {S_YE}\ns_cselect_b32 {S_Y}, {S_YB}, {S_Y}\n" + x
            L.append(x)
        return L

    def gemm1f(self, a):
        o = self.o
        ACC = (48, 64, 32)
        uses = [[] for _ in range(10)]
        for ks in range(40): uses += [[(0, ks)], [(1, ks)]]
        uses += [[] for _ in range(41)]
        def reads(f, reg):
            p, ks = f
            base = V_P0 + p
            off = ks * 2048 - (65536 if ks >= 32 else 0)
            pre = [f"v_add_u32 v{base}, 0x10000, v{base}"] if ks == 32 else []
            return pre + [f"ds_read_b64_tr_b16 {vr(reg,2)}, v{base} offset:{off}", f"ds_read_b64_tr_b16 {vr(reg+2,2)}, v{base} offset:{off+512}"]
        fr = FragStream(uses, reads, list(range(112, 144, 4)), lead=6, name="pair")
        main = self.kmf(False)
        main += [f"v_mfma_f32_32x32x16_bf16 {vr(ACC[p],16)}, {vr(V_B1+2*p,4)}, {vr(V_ONE,4)}, 0" for p in range(2)]
        for ks in range(40):
            for p in range(2):
                main.append(lambda p=p, ks=ks: f"v_mfma_f32_32x32x16_bf16 {vr(ACC[p],16)}, {vr(fr.reg[(p,ks)],4)}, {ar(4*ks,4)}, {vr(ACC[p],16)}")
        main.append(self.st("g1.ab") + f"\nv_mfma_f32_32x32x16_bf16 {vr(ACC[2],16)}, {vr(V_B1+4,4)}, {vr(V_ONE,4)}, 0")
        for ks in range(40):
            main.append(f"v_mfma_f32_32x32x16_bf16 {vr(ACC[2],16)}, {self.creg(ks)[0]}, {ar(4*ks,4)}, {vr(ACC[2],16)}")
        mb = o.get("mb", 58)
        S = [fr]
        cpre = []
        for ks in range(40):
            cpre += [f"ds_read_b64_tr_b16 {self.creg(ks)[1](h)}, v{V_S} offset:{ks*1024+256*h}" for h in range(2)]
        S.append(Stream(cpre, 0, mb - 3, ahead=8, name="cpre"))
        ny = o.get("ny", 8)
        yl = [Item(x, hi=max(0, 10 + 2 * (ny + i) - o.get("ylead", 20))) for i, x in enumerate(self.yloads()[ny:])]
        S.append(Stream(yl, 0, o.get("yend", 60), ahead=3, name="y"))
        t1, t2 = self.ktail3()
        S.append(Stream(t1, 10, 26, name="t1"))
        S.append(Stream(t2, 30, mb - 4, name="t2"))
        misc = self.late_scalars() + [f"s_mov_b32 s74, {fbits(-1.5957691216057308*1.4426950408889634)}",
                f"s_mov_b32 s75, {fbits(-1.5957691216057308*0.044715*1.4426950408889634)}",
                "v_mov_b32 v8, s74", "v_mov_b32 v9, s75", "v_mov_b32 v30, 1.0", "v_mov_b32 v31, 1.0"]
        mxp, mx = o.get("mxp", 56), o.get("mx", 78)
        S.append(Stream(misc, 0, mx - 2, name="misc"))
        S.append(Stream([f"s_mov_b32 s84, {FX}\n" + self.poll_load(2, True, V_FX, "s84")], mxp, mxp + 1))
        S.append(Stream([self.poll_check("x", 2, True, V_FX, "s84") + "\n" + self.st("xpoll")] +
                        [("" if i == 0 else f"s_add_u32 s83, s83, {16*XP}\n") + f"buffer_load_dwordx4 {ar(240+4*i,4)}, v{V_UG}, {SWS}, s83 offen{SC}" for i in range(4)],
                        mx, mx + 12, ahead=0))
        nw = o.get("nw", 14)
        S.append(Stream([Item(x, lo=92 + i) for i, x in enumerate(self.w2f_items()[:nw])], max(93, mx + 12), 131, name="w2f"))
        S.append(Stream([f"s_lshl_b32 s7, {WAVE}, 10\ns_add_u32 m0, s7, {CB0}\ns_waitcnt lgkmcnt(0)\ns_barrier"], mb, mb + 1))
        exr, exw = [], []
        e0, e1 = mb + 1, o.get("exend", 89)
        for q in range(12):
            ch, row = divmod(q, 4)
            E, O = 10 + 2 * (q % 6), 22 + (q % 4)
            d = ch * CBP + row * 256
            g0 = e0 + 4 + (e1 - e0 - 4) * q // 12
            g1 = e0 + 4 + (e1 - e0 - 4) * (q + 1) // 12
            prev = e0 + 4 + (e1 - e0 - 4) * (q - 5) // 12 if q >= 6 else e0
            exr.append(Item(f"ds_read2_b32 {vr(E,2)}, v{V_ES+ch} offset0:{64*row} offset1:{64*row+1}", lo=prev + 1, hi=max(prev + 1, g0 - 3)))
            exw += [Item(f"ds_write_addtid_b32 v{E} offset:{d}", lo=g0, hi=g1), Item(f"ds_write_addtid_b32 v{E} offset:{d+2*CPITCH-4}", hi=g1),
                    Item(f"v_alignbit_b32 v{O}, v{E+1}, v{E}, 16", hi=g1),
                    Item(f"ds_write_addtid_b32 v{O} offset:{d+CPITCH}"), Item(f"ds_write_addtid_b32 v{O} offset:{d+3*CPITCH-4}")]
        exw += [f"ds_write_b32 v{V_Z1}, v26", f"ds_write_b64 v{V_Z2}, v[26:27]"]
        S.append(Stream(exr, e0, e1 - 6, ahead=100, name="exr"))
        S.append(Stream(exw, e0 + 4, e1 + 2, ahead=3, name="exw"))
        nB = o.get("nB", 2)
        S.append(Stream(self.gelu4(ACC[0], 10, range(8)) + self.hstore(10, S_HA, 0) + self.gelu4(ACC[1], 18, range(nB)), e1 + 3, 131, ahead=4, name="gelu"))
        gap_sched(a, main, S, "g1")
        a(self.st("g1.c"))
        gp = lambda acc_, out: [x.replace("v[10:11]", "v[30:31]") for x in self.gelu_packed(acc_, out, 2)]
        w2l = self.w2f_items()[nw:]
        nt = o.get("nt", 8)
        for x in gp(64, 18)[nB // 2 * 20:] + self.hstore(18, S_HA, 1024) + w2l[:nt // 2]: a(x)
        for i in range(4): a(f"ds_write_b128 v{V_UL}, {ar(240+4*i,4)} offset:{256*i}")
        gc = gp(32, 80)
        for x in gc[:20]: a(x)
        a("s_waitcnt lgkmcnt(0)\ns_barrier")
        self.tail = gc[20:40] + self.hstore(80, S_HC, 0)[:1] + w2l[nt // 2:nt] + gc[40:] + self.hstore(80, S_HC, 0)[1:]
        self.w2rest = w2l[nt:]

    def late_consts(self):
        t = 233
        L = []
        for i in range(3):
            L += [f"v_add_u32 v{t}, {64*i}, v0", f"v_mul_u32_u24 v{t+1}, 6554, v{t}", f"v_lshrrev_b32 v{t+1}, 16, v{t+1}",
                  f"v_mul_u32_u24 v{t+1}, 1120, v{t+1}", f"v_lshl_add_u32 v{VX+i}, v{t}, 4, v{t+1}"]
        L += [f"v_and_b32 v{t}, 15, v0", f"v_lshrrev_b32 v{t+1}, 4, v0", f"s_mul_i32 s73, s13, 160", f"v_lshl_add_u32 v{VB2}, v{t}, 1, s73",
              f"s_lshl_b32 s14, s12, 2", f"s_add_u32 s14, s14, s11", f"s_mul_i32 s14, s14, {16*1280}", f"s_add_u32 s14, s14, s73",
              f"v_cmp_gt_u32 vcc, 16, v0", f"s_mul_i32 s15, {WAVE}, 3072", f"s_add_u32 s15, s15, {G2X}", f"v_cndmask_b32 v{V_ONE}, 0, v{V_ONE}, vcc",
              f"s_mov_b32 m0, s15", f"v_add_u32 v{VXL}, s15, v1",
              f"v_mul_u32_u24 v{VXD}, 160, v{t}", f"v_lshl_add_u32 v{t+2}, v{t+1}, 3, s15", f"v_add_u32 v{VXD}, v{VXD}, v{t+2}",
              f"s_mul_i32 s73, {WAVE}, 10240", f"s_add_u32 s73, s73, {RING}", f"v_add_u32 v{VPW}, s73, v1",
              f"v_lshl_add_u32 v{t+2}, v{t+1}, 3, s73", f"v_lshl_add_u32 v{VCW}, v{t}, 5, v{t+2}",
              f"v_and_b32 v{t}, 3, v0", f"v_and_b32 v{t+1}, 4, v0", f"v_lshl_add_u32 v{VFH}, v{t}, 4, v{t+1}"]
        return L

    def late_consts2(self):
        t = 233
        return [f"s_add_u32 s73, {WAVE}, 1", f"s_and_b32 s73, s73, 3", f"s_mul_i32 s73, s73, 10240", f"s_add_u32 s73, s73, {RING}",
                f"v_lshl_add_u32 v{VPR}, v0, 2, s73",
                f"v_min_u32 v{t}, 26, v0", f"v_lshrrev_b32 v{t+1}, 2, v{t}", f"v_and_b32 v{t}, 3, v{t}", f"v_lshlrev_b32 v{VFS}, 8, v{t+1}",
                f"v_lshl_add_u32 v{VFS}, v{t}, 4, v{VFS}",
                f"v_lshrrev_b32 v{t}, 3, v0", f"v_and_b32 v{t+1}, 7, v0", f"v_mul_u32_u24 v{VSG}, {SP}, v{t}", f"v_lshl_add_u32 v{VSG}, v{t+1}, 4, v{VSG}",
                f"v_lshrrev_b32 v{t+1}, 1, v{t+1}", f"v_mul_u32_u24 v{VSL}, 2560, v{t+1}", f"v_lshl_add_u32 v{VSL}, v{t}, 5, v{VSL}",
                f"s_mul_i32 s73, {WAVE}, 640", f"s_add_u32 s73, s73, {G2S}",
                f"v_and_b32 v{t+1}, 1, v0", f"v_lshl_add_u32 v{t+1}, v{t+1}, 4, s73", f"v_add_u32 v{VSL}, v{VSL}, v{t+1}",
                f"s_mul_i32 s73, s11, 2560", f"s_add_u32 s73, s73, {G2S}", f"v_lshl_add_u32 v{VSR}, v0, 3, s73"]

    def conv(self, a, role):
        o = self.o
        seq = []
        if role == 0:
            blocks = [4, 5, 6, 7, 0]
            for r in range(8):
                for c in range(8):
                    if c == 4: seq.append((0, r, 0, 0))
                    for e in range(7, -1, -1):
                        if e + c in (4, 5, 6, 7): seq.append((0, r, e, c))
            acc = lambda ch, b: 2 + 4 * blocks.index(b)
        else:
            for r in range(8):
                for ch in range(3):
                    for c in range(4):
                        for e in range(3, -1, -1):
                            if e + c in (1, 2, 3): seq.append((ch, r, e, c))
            acc = lambda ch, b: 2 + 12 * ch + 4 * (b - 1)
        uses = [[("B", ch, r, c), ("A", ch, r, e)] for ch, r, e, c in seq]
        def reads(f, reg):
            k, ch, r, i = f
            if k == "B":
                return [f"ds_read_b128 {vr(reg,4)}, v{VCB} offset:{ch*CBP+U_OFF+480+512*i-64*r}"]
            off = ch * CBP + 4032 - 512 * i - 64 * r
            return [f"ds_read_b64 {vr(reg,2)}, v{VCA} offset:{off}", f"ds_read_b64 {vr(reg+2,2)}, v{VCA} offset:{off+8}"]
        pool = list(range(88, 128, 4)) + list(range(48, 88, 4))
        fr = FragStream(uses, reads, pool, lead=12, pre=o.get("cvpre", 9), name="cv")
        for x in fr.pro + self.tail: a(x)
        a(self.st("g1.tail"))
        n = len(seq)
        seen = set()
        main = []
        for ch, r, e, c in seq:
            d = vr(acc(ch, e + c), 4)
            cin = d if (ch, e + c) in seen else "0"
            seen.add((ch, e + c))
            main.append(lambda d=d, cin=cin, A=("A", ch, r, e), B=("B", ch, r, c): f"v_mfma_f32_16x16x32_bf16 {d}, {vr(fr.reg[A],4)}, {vr(fr.reg[B],4)}, {cin}")
        mf, mp, mc = o.get("mf", 66), o.get("mp", 150), o.get("mc", 190)
        S = [fr]
        S.append(Stream(self.w2rest, 4, o.get("wend", 190), name="w2f"))
        sal = [f"s_lshl_b32 s81, s8, 2", f"s_lshr_b32 s80, s9, 2", f"s_add_u32 s81, s81, s80", f"s_lshl_b32 s81, s81, 8",
               f"s_and_b32 s80, s9, 3", f"s_lshl_b32 s80, s80, 2", f"s_add_u32 s80, s80, {WAVE}", f"s_lshl_b32 s80, s80, 2",
               f"s_add_u32 s81, s81, s80", f"s_add_u32 s81, s81, {FH}", f"v_mov_b32 v232, {TAG}",
               f"s_lshr_b32 s86, s12, 1", f"s_lshl_b32 s86, s86, 2", f"s_add_u32 s86, s86, {WAVE}", f"s_lshl_b32 s86, s86, 8",
               f"s_and_b32 s80, s12, 1", f"s_lshl_b32 s80, s80, 3", f"s_add_u32 s86, s86, s80", f"s_add_u32 s86, s86, {FH}",
               f"s_lshl_b32 s82, s12, 4", f"s_add_u32 s82, s82, {WAVE}", f"s_mul_i32 s82, s82, {12*1024}", f"s_add_u32 s82, s82, {HF}"]
        S.append(Stream(sal, 1, mf - 2, name="sal"))
        S.append(Stream([f"WAITVM hst\ns_mov_b64 exec, 1\nbuffer_store_dword v232, off, {SWS}, s81{SC}\ns_mov_b64 exec, -1\n" + self.st("cv.fh")], mf, mf + 1))
        side = self.late_consts() + [f"v_accvgpr_write_b32 a{k}, 0" for k in (241, 243, 245, 247, 249, 250, 251)]
        side += [f"global_load_ushort a{240+2*jb}, v{VB2}, {sp('b2')} offset:{32*jb}" for jb in range(5)]
        S.append(Stream(side, 4, mp - 2, name="side"))
        S.append(Stream([self.poll_load(231, False, VFH, "s86")], mp, mp + 1))
        nh = o.get("nh", 7)
        hl = self.hloads(0) + self.hloads(1)
        S.append(Stream([self.poll_check(f"h{role}", 231, False, VFH, "s86") + "\n" + self.st("hpoll")] + hl[:nh], mc, n, ahead=0, name="h"))
        gap_sched(a, main, S, f"conv{role}")
        a(self.st("cv.main"))
        order = [4, 0, 1, 2, 3] if role == 0 else list(range(9))
        for q in order:
            a(f"v_cvt_pk_bf16_f32 v{96+2*q}, v{2+4*q}, v{3+4*q}\nv_cvt_pk_bf16_f32 v{97+2*q}, v{4+4*q}, v{5+4*q}")
        for q in order:
            a(f"ds_write_b64 v{VCW}, {vr(96+2*q,2)} offset:{512*q}")
        k1 = nh + 3
        for x in hl[nh:k1]: a(x)
        k2 = max(k1, 13)
        if role == 0:
            a(f"s_mul_i32 s7, {WAVE}, {SP}\ns_add_u32 s7, s7, {S_ROW}")
            for q in range(3): a(f"ds_read_b128 {vr(96+4*q,4)}, v{VPW} offset:{1024*q}")
            for x in hl[k1:k2]: a(x)
            for q in range(2): a(f"buffer_store_dwordx4 {vr(96+4*q,4)}, v1, {SWS}, s7 offen offset:{2048+1024*q}{SC} @sst")
            a(f"s_waitcnt lgkmcnt(0)\ns_mov_b64 exec, 0xffffffff\nbuffer_store_dwordx4 v[104:107], v1, {SWS}, s7 offen{SC} @sst\ns_mov_b64 exec, -1")
        else:
            for ch in range(3):
                a(f"ds_read_b128 {vr(96+8*ch,4)}, v{VPW} offset:{1536*ch}\nds_read_b128 {vr(100+8*ch,4)}, v{VPW} offset:{1536*ch+1024}")
            for x in hl[k1:k2]: a(x)
            a(f"s_add_u32 s7, {S_ROW}, {SP}\ns_add_u32 s73, {S_ROW}, {2*SP}")
            sr = [S_ROW, "s7", "s73"]
            for ch in range(3): a(f"buffer_store_dwordx4 {vr(96+8*ch,4)}, v1, {SWS}, {sr[ch]} offen offset:512{SC} @sst")
            a("s_waitcnt lgkmcnt(0)\ns_mov_b64 exec, 0xffffffff")
            for ch in range(3): a(f"buffer_store_dwordx4 {vr(100+8*ch,4)}, v1, {SWS}, {sr[ch]} offen offset:1536{SC} @sst")
            a("s_mov_b64 exec, -1")
        self.hrest = hl[k2:]
        a(self.st("cv.out"))

    def gemm2f(self, a):
        o = self.o
        AC = (2, 22)
        main, idx = [], {}
        for rho in range(4):
            for jb in range(5):
                d = vr(AC[rho & 1] + 4 * jb, 4)
                idx[(rho, jb)] = len(main)
                if rho == 0: main.append(f"v_mfma_f32_16x16x32_bf16 {d}, {ar(240+2*jb,4)}, {vr(V_ONE,4)}, 0")
                for kk in range(12):
                    main.append(f"v_mfma_f32_16x16x32_bf16 {d}, {ar(self.w2reg(jb*12+kk),4)}, {vr(self.breg(rho,kk),4)}, {d}")
        for rho in (1, 2, 3): main[idx[(rho, 0)]] = self.st(f"g2.r{rho}") + "\n" + main[idx[(rho, 0)]]
        main[13] = self.st("g2.c1") + "\n" + main[13]
        idx[(4, 0)] = n = len(main)
        nxt = lambda rho, jb: idx[(rho, jb + 1)] if jb < 4 else idx[(rho + 1, 0)]
        for i in range(2): a(f"buffer_load_dwordx4 v{VX+i}, {SX}, s14 offen lds @xdma\ns_add_u32 m0, m0, 1024")
        a(f"s_mov_b64 exec, 0xffffffff\nbuffer_load_dwordx4 v{VX+2}, {SX}, s14 offen lds @xdma\ns_mov_b64 exec, -1")
        a(f"s_mul_i32 s7, {WAVE}, 10240\ns_add_u32 m0, s7, 32768")
        ring = []
        for rho in range(3):
            par = rho & 1
            def wr(jb):
                g = nxt(rho, jb) + 3
                return [Item(f"ds_write_addtid_b32 v{AC[par]+4*jb+k} offset:{RING-32768+5120*par+1024*jb+256*k} @pw", lo=g, hi=g + 3) for k in range(4)]
            def rd(jb, g):
                return [Item(f"ds_read2st64_b32 {vr(AC[par^1]+4*jb+2*k,2)}, v{VPR} offset0:{20*par+4*jb+2*k} offset1:{20*par+4*jb+2*k+1}", lo=g, hi=g + 6) for k in range(2)]
            b1, b2 = nxt(rho, 2) + 10, nxt(rho, 4) + 10
            ring += wr(0) + wr(1) + wr(2) + [Item("WAITLG pw\ns_barrier", lo=b1, hi=b1)] + rd(0, b1 + 1) + rd(1, b1 + 1) + rd(2, b1 + 1)
            ring += wr(3) + wr(4) + [Item("WAITLG pw\ns_barrier", lo=b2, hi=b2)] + rd(3, b2 + 1) + rd(4, b2 + 1)
        rs = Stream(ring, 0, n, ahead=0, name="ring")
        for it in rs.items: it.ideal = it.lo - 5
        S = [rs]
        S.append(Stream(self.hrest + self.hloads(2) + [Item(x, lo=idx[(1, 0)]) for x in self.hloads(3)], 0, o.get("hend", 130), name="h"))
        ms = o.get("ms", 62)
        S.append(Stream(self.late_consts2(), 0, 44, name="lc2"))
        sal = [f"s_lshl_b32 s81, {XCD}, 3", f"s_lshr_b32 s80, {JJ}, 2", f"s_add_u32 s81, s81, s80", f"s_lshl_b32 s81, s81, 8",
               f"s_and_b32 s80, {JJ}, 3", f"s_lshl_b32 s80, s80, 2", f"s_add_u32 s80, s80, {WAVE}", f"s_lshl_b32 s80, s80, 2",
               f"s_add_u32 s81, s81, s80", f"s_add_u32 s81, s81, {FS}",
               f"s_lshl_b32 s86, s13, 11", f"s_add_u32 s86, s86, {FS}",
               f"s_lshl_b32 s76, s13, 2", f"s_add_u32 s76, s76, {WAVE}", f"s_mul_i32 s76, s76, {20*SP}",
               f"s_lshl_b32 s80, s12, 7", f"s_add_u32 s76, s76, s80", f"s_add_u32 s76, s76, {ST}",
               f"s_add_u32 s77, s76, {8*SP}", f"s_add_u32 s78, s76, {16*SP}", f"s_mov_b32 s74, {fbits(-1.4426950408889634)}"]
        S.append(Stream(sal, 0, ms - 2, name="sal"))
        S.append(Stream([f"WAITVM sst\ns_mov_b64 exec, 1\nbuffer_store_dword v232, off, {SWS}, s81{SC}\ns_mov_b64 exec, -1\n" + self.st("g2.fs")], ms, ms + 1))
        XR, XF, SR, SD = 96, 176, 106, 116
        S.append(Stream(["WAITVM xdma"] + [f"ds_read_b64 {vr(XR+2*jb,2)}, v{VXD} offset:{32*jb}" for jb in range(5)], idx[(1, 3)], idx[(2, 0)], name="xr"))
        xu = []
        for q in range(10): xu += [f"v_lshlrev_b32 v{XF+2*q}, 16, v{XR+q}", f"v_and_b32 v{XF+2*q+1}, 0xffff0000, v{XR+q}"]
        S.append(Stream(xu, idx[(2, 1)], idx[(3, 0)], ahead=0, name="xu"))
        mp, mc = o.get("g2p", 140), o.get("g2c", 180)
        S.append(Stream([self.poll_load(196, True, VFS, "s86")], mp, mp + 1))
        S.append(Stream([self.poll_check("s", 196, True, VFS, "s86") + "\n" + self.st("spoll"),
                         f"buffer_load_dwordx4 {vr(SD,4)}, v{VSG}, {SWS}, s76 offen{SC}",
                         f"buffer_load_dwordx4 {vr(SD+4,4)}, v{VSG}, {SWS}, s77 offen{SC}",
                         f"s_mov_b64 exec, 0xffffffff\nbuffer_load_dwordx4 {vr(SD+8,4)}, v{VSG}, {SWS}, s78 offen{SC}\ns_mov_b64 exec, -1"], mc, mc + 5, ahead=0))
        Z = AC[1]
        def silu(jb):
            T = 200
            z = Z + 4 * jb
            L = [f"v_mul_f32 v{T+k}, s74, v{z+k}" for k in range(4)] + [f"v_exp_f32 v{T+k}, v{T+k}" for k in range(4)]
            L += [f"v_add_f32 v{T+k}, 1.0, v{T+k}" for k in range(4)] + [f"v_rcp_f32 v{T+k}, v{T+k}" for k in range(4)]
            L += [f"v_mul_f32 v{z+k}, v{z+k}, v{T+k}" for k in range(4)]
            return L
        sl = []
        for jb in range(3):
            L = [Item(x) for x in silu(jb)]
            L[0].lo = nxt(3, jb) + 2
            sl += L
        S.append(Stream(sl, nxt(3, 0) + 2, n, ahead=6, name="silu"))
        gap_sched(a, main, S, "g2")
        a(self.st("g2.mfma"))
        a(f"""
        ds_write_b128 v{VSL}, {vr(SD,4)}
        ds_write_b128 v{VSL}, {vr(SD+4,4)} offset:256
        s_waitcnt vmcnt(0)
        s_mov_b64 exec, 0xffffffff
        ds_write_b128 v{VSL}, {vr(SD+8,4)} offset:512
        s_mov_b64 exec, -1
        """)
        for x in silu(3): a(x)
        a("s_waitcnt lgkmcnt(0)\ns_barrier")
        a(self.st("g2.bar"))
        for jb in range(5): a(f"ds_read_b64_tr_b16 {vr(SR+2*jb,2)}, v{VSR} offset:{512*jb}")
        for x in silu(4): a(x)
        T = 204
        for q in range(10):
            a(f"""
            v_lshlrev_b32 v{T}, 16, v{SR+q}
            v_and_b32 v{T+1}, 0xffff0000, v{SR+q}
            v_pk_fma_f32 {vr(T,2)}, {vr(T,2)}, {vr(Z+2*q,2)}, {vr(XF+2*q,2)}
            v_cvt_pk_bf16_f32 v{XR+q}, v{T}, v{T+1}
            """)
        for jb in range(5): a(f"ds_write_b64 v{VXD}, {vr(XR+2*jb,2)} offset:{32*jb}")
        a("s_waitcnt lgkmcnt(0)")
        for i in range(3): a(f"ds_read_b128 {vr(SD+4*i,4)}, v{VXL} offset:{1024*i}")
        osc = o.get("osc", SC)
        for i in range(2): a(f"buffer_store_dwordx4 {vr(SD+4*i,4)}, v{VX+i}, {SOUT}, s14 offen{osc}")
        a(f"s_waitcnt lgkmcnt(0)\ns_mov_b64 exec, 0xffffffff\nbuffer_store_dwordx4 {vr(SD+8,4)}, v{VX+2}, {SOUT}, s14 offen{osc}")
        a(self.st("g2.done"))

def build(prof=False, opt=None, cls=F4):
    g = cls(prof, opt or {})
    if prof == "min":
        full = g.st
        g.st = lambda n: full(n) if n in ("start", "end") else ""
    elif prof:
        g.st("start"); g.st("w3.dma")
    enc = (opt or {}).get("enc")
    if enc:
        g.st = lambda n: "s_memrealtime s[98:99]\ns_waitcnt lgkmcnt(0)" if n == enc.strip() else ""
    dbg = (opt or {}).get("dbg")
    if dbg:
        op, wsel, lst = dbg.strip().split(":")
        lst = ["start"] + lst.split(",") + ["end"]
        g.prof = True
        g.STAMPS = [r for r in g.STAMPS if r not in (46, 47)]
        g.names = list(lst)
        full2 = g.st
        g.st = lambda n: full2(n) if n in lst else ""
        def dump(a):
            a("s_mov_b64 exec, -1\ns_waitcnt vmcnt(0)")
            a(g.st("end"))
            a("s_memrealtime s[100:101]\ns_waitcnt lgkmcnt(0)\ns_sub_u32 s100, s100, s99\nv_mov_b32 v2, s100")
            for i in range(1, len(lst)):
                a(f"s_sub_u32 s7, s{g.STAMPS[i]}, s{g.STAMPS[0]}\ns_cmp_eq_u32 s{g.STAMPS[i]}, 0\ns_cselect_b32 s7, 0, s7\nv_writelane_b32 v2, s7, {i}")
            a(f"v_lshlrev_b32 v3, 2, v0\ns_cmp_eq_u32 {WAVE}, {wsel}\ns_cbranch_scc0 L_end\ns_mov_b64 exec, {(1 << len(lst)) - 1}\nglobal_atomic_{op} v3, v2, s[46:47]")
        g.dump = dump
    a = Asm(auto=True)
    if enc: a("s_memrealtime s[98:99]")
    g.start(a)
    a("L_consts:")
    g.consts(a)
    pass
    a(f"s_cmp_eq_u32 {WAVE}, 3\ns_cbranch_scc1 L_w3b\ns_cmp_eq_u32 {WAVE}, 2\ns_cbranch_scc1 L_w2")
    st0 = a.state()
    g.s4(a)
    a("s_branch L_kg\nL_w2:")
    st1 = a.state(); a.set_state(st0)
    g.w2_pre(a)
    a("L_kg:")
    a.merge([st1, a.state()])
    g.kgen4(a)
    a("s_branch L_g1\nL_w3:")
    st1 = a.state()
    a.set_state(([], []))
    g.wave3a(a)
    a("s_branch L_consts\nL_w3b:")
    g.wave3b(a)
    a("L_g1:")
    a.merge([st1, a.state()])
    a(g.st("g1.arrive"))
    a("s_barrier")
    g.gemm1f(a)
    a(f"s_cmp_eq_u32 {WAVE}, 3\ns_cbranch_scc1 L_cv3")
    st0 = a.state()
    g.conv(a, 0)
    a("s_branch L_g2\nL_cv3:")
    st1 = a.state()
    a.set_state(st0)
    g.conv(a, 1)
    a("L_g2:")
    a.merge([st1, a.state()])
    g.gemm2f(a)
    a(f"s_or_b32 s7, s2, {WAVE}\ns_cbranch_scc1 L_fin\ns_mov_b32 s7, {FLG}")
    a(g.flag_store("s7", 4))
    a("L_fin:")
    if enc:
        a("s_add_u32 s98, s98, 4000\nL_spin:\ns_memrealtime s[100:101]\ns_waitcnt lgkmcnt(0)\ns_sub_u32 s7, s98, s100\ns_cmp_gt_u32 s7, 4000\ns_cbranch_scc0 L_spin")
    g.dump(a)
    a("L_end:\ns_endpgm")
    g.slow_paths(a)
    a("L_code_end:")
    body = a.finish()
    out = header()
    out += f"; @launch grid=(256,1,1) block=(256,1,1) lds={LDS_BYTES}\n"
    if prof: out += "; stamps2: " + " ".join(g.names) + "\n"
    out += "; layout v3\n"
    out += '.amdgcn_target "amdgcn-amd-amdhsa--gfx950"\n.text\n'
    out += khead(NAME + "_kernel") + body
    out += '.section .rodata,"a"\n.p2align 6\n' + kdesc(NAME + "_kernel")
    print("instructions", sum(1 for i in a.ins if i.mn), "nops inserted", a.nops)
    return out

if __name__ == "__main__":
    open(sys.argv[1], "w").write(build("min" if "min" in sys.argv[2:] else "prof" in sys.argv[2:], parse(sys.argv[2:])))
```

```python
import sys, struct, math
from dsl import Asm, interleave, Item, Stream, FragStream, gap_sched
import gen3
from gen import (NAME, fbits, FLG, PROF, WS_BYTES, PY, PX, CBP, CPITCH, U_OFF, LDS_BYTES, sp, SX, SW1, SW2, SOUT, SWS,
                 WAVE, XCD, JJ, SID, vr, ar, kdesc, khead, header)
from gen2 import FY, FX, FH, FS, TAG, SC, S_PAIR, S_SNG, S_HA, S_HC, S_Y, S_ROW
from gen3 import XNT, XP, W2F, HF, ST, SP, TABSZ, TP, RP, KC, CB0, SNG, PAIR, RING, G2X, G2S, parse

YT, XT, W2S, CNT = 0, 10496, 26112, 34304
S_YB, S_YE = "s96", "s97"
V_FX, V_FY, V_KR, V_CNT = 208, 209, 210, 211
VCA, VCB = 212, 213
V_T = 214
V_UG, V_UL, V_ES, V_Z1, V_Z2 = 222, 223, 224, 227, 228
V_P0, V_P1, V_S, V_HF = 236, 237, 238, 239
V_B1, V_DUM, V_ONE = 240, 248, 252
VSL, VCW, VPW, VPR, VXL, VXD, VSR = 214, 215, 216, 217, 218, 219, 220
VX, VFH, VFS, VSG, VB2 = 224, 227, 228, 229, 230
for k in ("V_FX V_FY V_KR VCA VCB V_T V_P0 V_P1 V_S V_HF V_B1 V_DUM V_ONE VSL VCW VPW VPR VXL VXD VSR VX VFH VFS VSG VB2").split():
    setattr(gen3, k, globals()[k])

class F4(gen3.F3):
    def start(self, a):
        o = self.o
        a(f"""
        s_load_dwordx16 s[16:31], s[0:1], 0
        s_load_dwordx16 s[32:47], s[0:1], 64
        s_load_dwordx2 s[48:49], s[0:1], 128
        s_cmp_ge_u32 s2, 256
        s_cbranch_scc1 L_end
        s_getpc_b64 s[72:73]
        L_pc:
        v_lshrrev_b32 v1, 6, v0
        s_lshr_b32 {JJ}, s2, 3
        v_and_b32 v0, 63, v0
        s_lshl_b32 s7, {JJ}, 4
        v_lshl_add_u32 v8, v1, 2, v0
        v_readfirstlane_b32 {WAVE}, v1
        v_add_lshl_u32 v8, v8, s7, 7
        v_mov_b32 v{V_CNT}, {CNT}
        v_min_u32 v8, L_code_end-L_pc-4, v8
        v_mov_b64 v[4:5], 0
        v_mov_b64 v[6:7], 0
        s_mov_b64 exec, 15
        global_load_dword v{V_DUM}, v8, s[72:73]
        ds_write_b128 v{V_CNT}, v[4:7]
        ds_write_b64 v{V_CNT}, v[4:5] offset:16
        s_mov_b64 exec, -1
        s_and_b32 {XCD}, s2, 7
        s_lshl_b32 {SID}, {XCD}, 5
        s_add_u32 {SID}, {SID}, {JJ}
        v_lshrrev_b32 v2, 4, v0
        v_and_b32 v3, 15, v0
        s_lshr_b32 s9, {JJ}, 2
        s_and_b32 s7, {XCD}, 1
        s_lshl_b32 s7, s7, 3
        s_mul_i32 s83, s9, 10
        s_add_u32 s9, s9, s7
        s_lshr_b32 s83, s83, 3
        s_mul_i32 s83, s83, {1 if o.get("yrot", 1) else 0}
        s_and_b32 s7, s9, 1
        s_mul_i32 {S_PAIR}, s9, 192
        s_add_u32 {S_SNG}, {S_PAIR}, 128
        s_lshl_b32 s74, s7, 6
        s_add_u32 {S_PAIR}, {S_PAIR}, s74
        s_lshl_b32 s74, s7, 7
        s_sub_u32 {S_SNG}, {S_SNG}, s74
        s_mov_b32 s54, 2621440
        s_mov_b32 s55, 0x20000
        s_mov_b32 s58, 1966080
        s_mov_b32 s59, 0x20000
        s_mov_b32 s70, {WS_BYTES}
        s_mov_b32 s71, 0x20000
        s_cmp_eq_u32 {WAVE}, 3
        s_cbranch_scc1 L_w3
        v_mul_u32_u24 v7, 1280, v2
        v_lshl_add_u32 v7, v3, 4, v7
        s_lshl_b32 s72, {SID}, 1
        s_add_u32 s72, s72, {WAVE}
        s_mul_i32 s72, s72, 5120
        s_cmp_eq_u32 {WAVE}, 2
        s_cselect_b32 s72, 0x1000000, s72
        s_cselect_b32 s73, {FLG}, s70
        s_mul_i32 s10, {XCD}, 80
        s_mul_i32 s7, {JJ}, 3
        s_add_u32 s10, s10, s7
        s_add_u32 s11, s10, {WAVE}
        s_min_u32 s11, s11, 639
        s_mul_i32 s7, s11, 384
        v_lshl_add_u32 v8, v0, 1, s7
        s_lshl_b32 s7, s11, 1
        v_mov_b32 v6, s7
        """)
        for k in list(range(10, 30, 2)) + [40, 42, 44]: a(f"v_mov_b64 {vr(k,2)}, 0")
        a(f"""
        s_waitcnt lgkmcnt(0)
        s_mov_b64 s[52:53], {sp('x')}
        s_add_u32 s68, s48, {self.o.get("wsoff", 0)}
        s_addc_u32 s69, s49, 0
        """)
        for i in range(5):
            a(f"buffer_load_dwordx4 {vr(48+4*i,4)}, v7, {SX}, s72 offen offset:{256*i}{o.get('xnt', '')}")
        a(f"buffer_load_dword v9, off, {SWS}, s73{SC}")
        self.pstart(a)
        a(f"global_load_short_d16_hi v28, v6, {sp('ldt')}\nglobal_load_short_d16_hi v29, v6, {sp('dsk')}")
        for c in range(3):
            for k, n in enumerate(("are", "aim", "bre", "bim", "cre", "cim")):
                a(f"global_load_short_d16_hi v{10+6*c+k}, v8, {sp(n)} offset:{128*c}{o.get('pnt', '')}")
        a("s_barrier")

    def pstart(self, a):
        if self.prof:
            a("s_memrealtime s[100:101]\ns_waitcnt lgkmcnt(0)\ns_mov_b32 s99, s100")
            a(self.st("start"))

    def consts(self, a):
        T = V_T
        a(f"""
        v_and_b32 v5, 31, v0
        v_lshl_add_u32 v8, v5, 1, {S_PAIR}
        v_lshl_add_u32 v6, v5, 1, {S_SNG}
        """)
        for k in range(V_B1, V_B1 + 8, 2): a(f"v_mov_b64 {vr(k,2)}, 0")
        a(f"""
        s_mov_b32 s62, 1966080
        s_mov_b32 s63, 0x20000
        s_mov_b32 s66, 2621440
        s_mov_b32 s67, 0x20000
        s_mov_b64 s[56:57], {sp('w1')}
        s_mov_b64 s[60:61], {sp('w2')}
        s_mov_b64 s[64:65], {sp('out')}
        global_load_ushort v{V_B1}, v8, {sp('b1')}
        global_load_ushort v{V_B1+2}, v8, {sp('b1')} offset:64
        global_load_ushort v{V_B1+4}, v6, {sp('b1')}
        """)
        if self.prof:
            for r in self.STAMPS[1:]: a(f"s_mov_b32 s{r}, 0")
        a(f"""
        v_lshlrev_b32 v1, 4, v0
        v_lshrrev_b32 v4, 5, v0
        s_mul_i32 s7, {WAVE}, {TABSZ}
        v_mul_u32_u24 v{V_KR}, {TP}, v5
        v_lshl_add_u32 v6, v4, 4, s7
        v_add_u32 v{V_KR}, v{V_KR}, v6
        s_mul_i32 s7, {WAVE}, {RP}
        v_lshl_add_u32 v6, v4, 4, s7
        v_lshl_add_u32 v{T}, v5, 5, v6
        v_cmp_gt_u32 vcc, 32, v0
        v_lshl_add_u32 v6, v5, 4, s7
        v_lshl_add_u32 v7, v5, 3, s7
        v_add_u32 v8, 1024, v6
        v_add_u32 v30, 1536, v7
        v_cndmask_b32 v{T+1}, v30, v8, vcc
        v_add_u32 v8, 1032, v6
        v_add_u32 v30, 1792, v7
        v_cndmask_b32 v{T+2}, v30, v8, vcc
        v_mov_b32 v8, 0x3f80
        v_cndmask_b32 v{V_ONE}, 0, v8, vcc
        v_mov_b32 v{V_ONE+1}, 0
        v_mov_b64 {vr(V_ONE+2,2)}, 0
        v_sub_u32 v6, 63, v0
        v_lshl_add_u32 v{T+3}, v6, 3, s7
        v_lshl_add_u32 v{T+4}, v6, 4, s7
        v_lshl_add_u32 v{T+5}, v0, 5, s7
        v_lshl_add_u32 v{T+6}, v0, 4, s7
        v_lshl_add_u32 v{T+7}, v0, 3, s7
        s_lshl_b32 s7, {WAVE}, 10
        v_lshl_add_u32 v{V_ES}, v0, 2, s7
        v_add_u32 v{V_ES+1}, {RP}, v{V_ES}
        v_add_u32 v{V_ES+2}, {2*RP}, v{V_ES}
        s_add_u32 s74, s7, {CB0+U_OFF+512}
        v_and_b32 v6, 3, v0
        v_lshrrev_b32 v7, 2, v0
        v_min_u32 v8, 2, v6
        v_mul_u32_u24 v{V_UG}, {XP}, v7
        v_lshl_add_u32 v{V_UG}, v8, 4, v{V_UG}
        v_mul_u32_u24 v{V_UL}, {CBP}, v8
        v_lshl_add_u32 v30, v7, 4, s74
        v_add_u32 v{V_UL}, v{V_UL}, v30
        v_lshlrev_b32 v{V_FX}, 8, v7
        v_lshl_add_u32 v{V_FX}, v6, 4, v{V_FX}
        v_lshlrev_b32 v{V_FY}, 2, v6
        s_min_u32 s7, {WAVE}, 2
        s_mul_i32 s7, s7, {CBP}
        s_add_u32 s74, s7, {CB0+4096}
        s_add_u32 s7, s7, {CB0+U_OFF}
        v_lshl_add_u32 v{V_Z2}, v0, 3, s7
        v_sub_u32 v8, v3, v4
        v_lshl_add_u32 v8, v8, 2, s74
        v_mul_u32_u24 v{V_Z1}, {CPITCH}, v2
        v_add_u32 v{V_Z1}, v{V_Z1}, v8
        v_and_b32 v8, 1, v2
        v_lshlrev_b32 v6, 3, v6
        v_lshl_add_u32 v6, v8, 5, v6
        v_and_b32 v7, 3, v7
        v_lshl_add_u32 v7, v4, 3, v7
        v_lshl_add_u32 v{V_S}, v7, 6, v6
        v_add_u32 v{V_S}, {SNG}, v{V_S}
        v_lshl_add_u32 v{V_P0}, v7, 7, v6
        v_and_b32 v7, 8, v0
        v_lshl_add_u32 v{V_P0}, v7, 3, v{V_P0}
        v_add_u32 v{V_P0}, {PAIR}, v{V_P0}
        v_xor_b32 v{V_P1}, 64, v{V_P0}
        v_mul_u32_u24 v{V_HF}, 49152, v8
        v_lshl_add_u32 v{V_HF}, v4, 8, v{V_HF}
        v_lshl_add_u32 v{V_HF}, v3, 4, v{V_HF}
        s_cmp_eq_u32 {WAVE}, 3
        s_cselect_b32 s7, 0, {WAVE}
        s_mul_i32 s7, s7, {CBP}
        s_add_u32 s7, s7, {CB0}
        v_lshl_add_u32 v6, v2, 4, s7
        v_lshl_add_u32 v{VCB}, v3, 5, v6
        v_sub_u32 v7, 15, v3
        v_and_b32 v8, 3, v7
        v_and_b32 v7, 12, v7
        v_lshl_add_u32 v6, v7, 1, v6
        v_mul_u32_u24 v{VCA}, {CPITCH}, v8
        v_add_u32 v{VCA}, v{VCA}, v6
        s_lshr_b32 s8, {XCD}, 1
        s_lshl_b32 s12, s8, 3
        s_lshl_b32 s8, s8, 2
        s_and_b32 s7, {JJ}, 3
        s_add_u32 s8, s8, s7
        s_and_b32 s7, {JJ}, 7
        s_add_u32 s12, s12, s7
        s_and_b32 s13, {XCD}, 1
        s_lshl_b32 s13, s13, 2
        s_lshr_b32 s7, {JJ}, 3
        s_add_u32 s13, s13, s7
        s_add_u32 s11, {"s7" if self.o.get("hrot", 0) else "0"}, {WAVE}
        s_and_b32 s11, s11, 3
        s_lshl_b32 {S_YB}, s8, 2
        s_add_u32 {S_YB}, {S_YB}, {WAVE}
        s_mul_i32 {S_HA}, {S_YB}, 96
        s_mul_i32 {S_YB}, {S_YB}, 40960
        s_add_u32 {S_YE}, {S_YB}, 40960
        s_lshl_b32 s7, s83, 12
        s_add_u32 {S_Y}, {S_YB}, s7
        s_lshl_b32 s86, s8, 8
        s_lshl_b32 s7, {WAVE}, 4
        s_add_u32 s86, s86, s7
        s_add_u32 s86, s86, {FY}
        """)

    def late_scalars(self):
        return [f"s_mul_i32 s73, s9, 3", f"s_add_u32 {S_HA}, {S_HA}, s73", f"s_lshl_b32 {S_HA}, {S_HA}, 10", f"s_add_u32 {S_HA}, {S_HA}, {HF}",
                f"s_add_u32 {S_HC}, {S_HA}, 2048", f"s_and_b32 s73, s9, 1", f"s_lshl_b32 s73, s73, 10", f"s_add_u32 {S_HA}, {S_HA}, s73",
                f"s_lshl_b32 s73, s73, 1", f"s_sub_u32 {S_HC}, {S_HC}, s73",
                f"s_mul_i32 s10, {XCD}, 80", f"s_mul_i32 s73, {JJ}, 3", f"s_add_u32 s10, s10, s73",
                f"s_cmp_lt_u32 {JJ}, 27\ns_cselect_b32 s10, s10, 0x20000", f"s_mul_i32 {S_ROW}, s10, {SP}", f"s_add_u32 {S_ROW}, {S_ROW}, {ST}",
                f"s_lshl_b32 s83, s10, 4", f"s_mul_i32 s73, {WAVE}, {64*XP}", f"s_add_u32 s83, s83, s73",
                f"s_cmp_lt_u32 {JJ}, 27\ns_cselect_b32 s83, s83, 0x1000000", f"s_add_u32 s83, s83, {XNT}",
                f"s_mul_i32 s85, s13, 20", f"s_add_u32 s85, s85, {WAVE}", f"s_mul_i32 s85, s85, {12*1024}", f"s_add_u32 s85, s85, {W2F}"]

    def step(self, a):
        a(f"s_lshl_b32 s7, s82, 1\ns_add_u32 m0, s7, {PAIR}\ns_add_u32 s7, s80, {S_PAIR}")
        for k in range(4): a(f"buffer_load_dwordx4 v{40+k}, {SW1}, s7 offen offset:{1024*k} lds")
        a(f"s_add_u32 m0, s82, {SNG}\ns_add_u32 s7, s80, {S_SNG}")
        for k in range(2): a(f"buffer_load_dwordx4 v{44+k}, {SW1}, s7 offen offset:{1024*k} lds")
        a(f"""
        s_add_u32 s82, s82, 2048
        s_add_u32 s80, s80, {32*3072}
        s_cmp_eq_u32 s82, 40960
        s_cselect_b32 s82, 0, s82
        s_cmp_eq_u32 s80, {640*3072}
        s_cselect_b32 s80, 0, s80
        """)

    def wave3a(self, a):
        o = self.o
        a(f"""
        v_lshrrev_b32 v4, 3, v0
        v_mul_u32_u24 v40, 3072, v4
        v_lshrrev_b32 v4, 2, v0
        v_mul_u32_u24 v44, 3072, v4
        v_xor_b32 v4, v4, v2
        v_and_b32 v4, 1, v4
        v_lshl_add_u32 v40, v4, 6, v40
        v_and_b32 v4, 3, v0
        v_lshl_add_u32 v40, v4, 4, v40
        v_lshl_add_u32 v44, v4, 4, v44
        v_add_u32 v41, {24576-1024}, v40
        v_add_u32 v42, {24576-1024}, v41
        v_add_u32 v43, {24576-1024}, v42
        v_add_u32 v45, {49152-1024}, v44
        s_and_b32 s7, {JJ}, 3
        s_mul_i32 s82, s7, 10240
        s_mul_i32 s80, s7, 5
        s_lshl_b32 s7, s83, 1
        s_add_u32 s80, s80, s7
        s_sub_u32 s7, s80, 20
        s_cselect_b32 s80, s80, s7
        s_mul_i32 s80, s80, {32*3072}
        s_mov_b32 s73, {o.get("n0", 4)}
        v_min_u32 v4, 59, v0
        v_mul_u32_u24 v5, 5462, v4
        v_lshrrev_b32 v5, 16, v5
        v_mul_u32_u24 v5, {3072-12*128}, v5
        v_lshl_add_u32 v46, v4, 7, v5
        v_add_u32 v47, {5*3072}, v46
        s_mul_i32 s74, {JJ}, {20*3072}
        s_and_b32 s7, {XCD}, 1
        s_mul_i32 s7, s7, 1536
        s_add_u32 s74, s74, s7
        s_add_u32 s75, s74, {10*3072}
        s_waitcnt lgkmcnt(0)
        s_mov_b64 s[52:53], {sp('x')}
        s_add_u32 s68, s48, {self.o.get("wsoff", 0)}
        s_addc_u32 s69, s49, 0
        s_mov_b64 s[56:57], {sp('w1')}
        """)
        self.pstart(a)
        a("s_barrier")
        if o.get("w1pf", 0):
            for i in range(4): a(f"buffer_load_dword v{V_DUM}, v{46+(i&1)}, {SW1}, s{74+(i>>1)} offen{o.get('w1nt', '')}")
        for _ in range(o.get("n0", 4)): self.step(a)

    def spin(self, name, off, both):
        t = (f"L_sp{name}:\nds_read_b64 v[4:5], v{V_CNT} offset:{off}\ns_waitcnt lgkmcnt(0)\n")
        if both: t += "v_and_b32 v4, v4, v5\n"
        t += f"v_readfirstlane_b32 s7, v4\ns_cmp_eq_u32 s7, 0\ns_cbranch_scc1 L_sp{name}"
        if not both: t += f"\nv_readfirstlane_b32 {TAG}, v5\nv_readfirstlane_b32 s51, v5"
        return t

    def wave3b(self, a):
        a(f"L_dma:\ns_waitcnt vmcnt({self.o.get('dcap', 24)})")
        self.step(a)
        a(f"s_add_u32 s73, s73, 1\ns_cmp_lt_u32 s73, 20\ns_cbranch_scc1 L_dma")
        a(self.st("w3.dma"))
        a(self.spin("3", 16, False))
        a(self.poll_load(4, False, V_FY, "s86"))
        a(self.poll_check("y3", 4, False, V_FY, "s86"))
        a(self.st("ypoll"))
        for x in self.yloads()[:self.o.get("ny", 8)]: a(x)

    def red16(self, v, fill):
        L = []
        for i, m in enumerate(("quad_perm:[1,0,3,2]", "quad_perm:[2,3,0,1]", "row_half_mirror", "row_mirror")):
            L += fill[2 * i:2 * i + 2] + [f"v_add_f32_dpp v{v}, v{v}, v{v} {m} row_mask:0xf bank_mask:0xf"]
        return L + fill[8:]

    def s4(self, a):
        R, X = 48, 112
        for k in range(20):
            a(f"v_lshlrev_b32 v{X+2*k}, 16, v{R+k}\nv_and_b32 v{X+2*k+1}, 0xffff0000, v{R+k}")
            if k == 0: a(self.st("s.x"))
        a(f"v_pk_add_f32 v[160:161], {vr(X,2)}, {vr(X+2,2)}")
        for k in range(2, 20): a(f"v_pk_add_f32 v[160:161], v[160:161], {vr(X+2*k,2)}")
        a("v_add_f32 v160, v160, v161")
        fill = [f"s_lshl_b32 s7, {WAVE}, 2", "v_add_u32 v6, s7, v2", f"v_add_u32 v8, s7, v{V_CNT}", f"v_mul_u32_u24 v4, {PY}, v6",
                f"v_mul_u32_u24 v5, {PX}, v6", "v_lshl_add_u32 v4, v3, 4, v4", "v_lshl_add_u32 v5, v3, 4, v5", f"s_mov_b32 s74, {fbits(1/640)}"]
        for x in self.red16(160, fill): a(x)
        a("v_mul_f32 v162, s74, v160")
        for k in range(20):
            a(f"v_pk_add_f32 {vr(X+2*k,2)}, {vr(X+2*k,2)}, v[162:163] op_sel_hi:[1,0] neg_lo:[0,1] neg_hi:[0,1]")
        a(f"v_pk_mul_f32 v[160:161], {vr(X,2)}, {vr(X,2)}")
        for k in range(1, 20): a(f"v_pk_fma_f32 v[160:161], {vr(X+2*k,2)}, {vr(X+2*k,2)}, v[160:161]")
        a("v_add_f32 v160, v160, v161")
        fill = ["v_cvt_pk_bf16_f32 v168, v162, v162", f"s_mov_b32 s75, {fbits(1e-5)}", "v_lshlrev_b32 v168, 16, v168", "v_mov_b32 v7, 1",
                "v_sub_f32 v168, v162, v168", "v_mov_b64 v[196:197], 0", "v_mov_b64 v[200:201], 0", "v_mov_b64 v[202:203], 0"]
        for x in self.red16(160, fill): a(x)
        a("v_mul_f32 v160, s74, v160")
        self.rbf(a, 161, 160)
        a("v_add_f32 v161, s75, v161")
        self.rbf(a, 161, 161)
        a("v_sqrt_f32 v161, v161")
        self.rbf(a, 161, 161)
        a("v_rcp_f32 v164, v161")
        a("v_mul_f32 v160, v160, v164\nv_mul_f32 v160, v160, v164")
        self.rbf(a, 161, 160)
        a("v_add_f32 v161, s75, v161")
        self.rbf(a, 161, 161)
        a("v_sqrt_f32 v161, v161\nv_mul_f32 v168, v168, v164")
        self.rbf(a, 161, 161)
        a("v_rcp_f32 v166, v161\nv_mul_f32 v166, v166, v164")
        for k in range(20):
            a(f"v_pk_mul_f32 v[170:171], {vr(X+2*k,2)}, v[166:167] op_sel_hi:[1,0]\nv_cvt_pk_bf16_f32 v{R+k}, v170, v171")
        for i in range(5): a(f"ds_write_b128 v4, {vr(R+4*i,4)} offset:{YT+256*i}")
        a("s_mov_b64 exec, 1\nds_write_b32 v8, v7\ns_mov_b64 exec, -1")
        pass
        for k in range(20):
            a(f"v_pk_fma_f32 v[170:171], {vr(X+2*k,2)}, v[164:165], v[168:169] op_sel_hi:[1,0,0]\nv_cvt_pk_bf16_f32 v{R+20+k}, v170, v171")
        for i in range(5): a(f"ds_write_b128 v5, {vr(R+20+4*i,4)} offset:{XT+256*i}")
        a("s_mov_b64 exec, 1\nds_write_b32 v8, v7 offset:8\ns_mov_b64 exec, -1")
        a(self.st("s.done"))

    def w2_pre(self, a):
        a(f"""
        v_and_b32 v4, 7, v0
        v_lshrrev_b32 v5, 3, v0
        v_mul_u32_u24 v196, {PY}, v4
        v_lshl_add_u32 v196, v5, 4, v196
        v_lshlrev_b32 v197, 9, v5
        v_lshl_add_u32 v197, v4, 4, v197
        v_bfe_u32 v4, v0, 2, 2
        v_and_b32 v5, 3, v0
        v_mul_u32_u24 v198, {PX}, v4
        v_lshl_add_u32 v198, v2, 5, v198
        v_lshl_add_u32 v198, v5, 3, v198
        v_lshrrev_b32 v4, 5, v0
        v_lshlrev_b32 v199, 12, v4
        v_bfe_u32 v4, v0, 2, 3
        v_lshl_add_u32 v199, v4, 8, v199
        v_lshl_add_u32 v199, v5, 3, v199
        v_mul_u32_u24 v200, 1280, v2
        v_lshl_add_u32 v200, v3, 4, v200
        v_add_u32 v201, {5120-1024}, v200
        v_add_u32 v202, {5120-1024}, v201
        v_add_u32 v203, {5120-1024}, v202
        s_min_u32 s7, s2, 239
        s_mul_i32 s14, s7, 52429
        s_lshr_b32 s14, s14, 18
        s_mul_i32 s15, s14, 5
        s_sub_u32 s15, s7, s15
        s_mul_i32 s84, s14, 40960
        s_lshl_b32 s7, s15, 8
        s_add_u32 s84, s84, s7
        s_mul_i32 s15, s15, {8*48}
        s_add_u32 s14, s14, s15
        s_lshl_b32 s14, s14, 10
        s_add_u32 s14, s14, {W2F}
        s_lshr_b32 s15, {SID}, 2
        s_mul_i32 s15, s15, 40960
        s_and_b32 s7, {SID}, 3
        s_lshl_b32 s7, s7, 7
        s_add_u32 s15, s15, s7
        s_lshr_b32 s81, {SID}, 4
        s_lshl_b32 s81, s81, 8
        s_and_b32 s7, {SID}, 15
        s_lshl_b32 s7, s7, 2
        s_add_u32 s81, s81, s7
        s_add_u32 s81, s81, {FY}
        s_mul_i32 s79, {SID}, {XP}
        s_add_u32 s79, s79, {XNT}
        v_readfirstlane_b32 s7, v9
        s_mul_i32 s7, s7, 1664525
        s_add_u32 {TAG}, s7, 1013904223
        s_mov_b32 s51, {TAG}
        v_mov_b32 v204, 1
        v_mov_b32 v205, {TAG}
        """)

    def only2(self, a, name, body, other=None):
        a(f"s_cmp_eq_u32 {WAVE}, 2\ns_cbranch_scc0 L_o{name}")
        st0 = a.state()
        for x in body: a(x)
        if other:
            a(f"s_branch L_j{name}\nL_o{name}:")
            st1 = a.state(); a.set_state(st0)
            for x in other: a(x)
            a(f"L_j{name}:")
            a.merge([st1, a.state()])
        else:
            a(f"L_o{name}:")
            st1 = a.state()
            a.merge([st0, st1])
        a.vmq = [(set(r), set(t)) for r, t in st1[0]]

    def kgen4(self, a):
        o = self.o
        VF, UF, CH = self.VF, self.UF, 112
        W1, W8, W256, T, C0 = 176, 178, 180, 182, 194
        DT, DTL = 30, 31
        L2E = 1.4426950408889634
        f32 = lambda x: struct.unpack("<f", struct.pack("<f", x))[0]
        I2P = 1 / (2 * math.pi)
        head = (f"""
        s_mov_b32 s72, {fbits(f32(L2E))}
        s_mov_b32 s73, {fbits(L2E-f32(L2E))}
        s_mov_b32 s76, {fbits(math.log(2))}
        v_mul_f32 v{T}, s72, v28
        v_fma_f32 v{T+1}, v28, s72, -v{T}
        v_fma_f32 v{T+1}, v28, s73, v{T+1}
        v_exp_f32 v{T}, v{T}
        v_mul_f32 v{T+1}, s76, v{T+1}
        v_cmp_eq_u32 vcc, 0, v0
        v_fma_f32 v{T}, v{T}, v{T+1}, v{T}
        v_cvt_pk_bf16_f32 v{DT}, v{T}, v{T}
        v_lshlrev_b32 v{DT}, 16, v{DT}
        v_cndmask_b32 v29, 0, v29, vcc
        v_mul_f32 v{DTL}, s72, v{DT}
        s_mov_b32 s74, {fbits(f32(I2P))}
        s_mov_b32 s75, {fbits(I2P-f32(I2P))}
        s_mov_b32 s77, {fbits(256.0)}
        s_mov_b32 s78, {fbits(8.0)}
        """)
        pass
        yl = self.yloads()[:o.get("ny", 8)]
        m0tab = f"s_mul_i32 m0, {WAVE}, {TABSZ}"
        P1 = [self.spin("y", 0, True)] + [f"ds_read_b128 {ar(4*I,4)}, v196 offset:{YT+128*I}" for I in range(10)]
        for I in range(10):
            P1.append(f"buffer_store_dwordx4 {ar(4*I,4)}, v197, {SWS}, s15 offen{SC} @yst" + ("\ns_add_u32 s15, s15, 4096" if I < 9 else ""))
        P1 += [self.st("p.yst"), self.spin("x", 8, True)]
        for I in range(10):
            P1 += [f"ds_read_b64_tr_b16 {ar(40+4*I,2)}, v198 offset:{XT+128*I}", f"ds_read_b64_tr_b16 {ar(42+4*I,2)}, v198 offset:{XT+128*I+4*PX}"]
        P1.append(f"s_mov_b64 exec, 1\nds_write_b64 v{V_CNT}, v[204:205] offset:16\ns_mov_b64 exec, -1")
        w2d = [f"s_mov_b32 m0, {W2S}"]
        for h in range(2):
            w2d += [f"buffer_load_dwordx4 v{200+k}, {SW2}, s84 offen offset:{1024*k}{o.get('wnt', '')} lds @w2dma" for k in range(4)]
            if h == 0: w2d.append(f"s_mov_b32 m0, {W2S+4096}\ns_add_u32 s84, s84, {4*5120}")
        xst = []
        for I in range(10):
            xst.append(("s_add_u32 s79, s79, 4096\n" if I in (4, 8) else "") + f"buffer_store_dwordx4 {ar(40+4*I,4)}, v1, {SWS}, s79 offen offset:{1024*(I%4)}{SC}")
        w2r = ["WAITVM w2dma"]
        for db in range(8):
            w2r += [f"ds_read_b64_tr_b16 {ar(80+4*db,2)}, v199 offset:{W2S+32*db}", f"ds_read_b64_tr_b16 {ar(82+4*db,2)}, v199 offset:{W2S+32*db+2048}"]
        w2s = [f"buffer_store_dwordx4 {ar(80+4*db,4)}, v1, {SWS}, s14 offen{SC}" + (f"\ns_add_u32 s14, s14, {48*1024}" if db < 7 else "") for db in range(8)]
        fy = ["WAITVM yst", f"s_mov_b64 exec, 1\nbuffer_store_dword v205, off, {SWS}, s81{SC}\ns_mov_b64 exec, -1", self.st("p.fy")]
        fx = [f"s_add_u32 s81, s81, {FX-FY}\ns_mov_b64 exec, 1\nbuffer_store_dword v205, off, {SWS}, s81{SC}\ns_mov_b64 exec, -1", ""]
        fypos = o.get("fypos", 1)
        p1pos = o.get("p1pos", 1)
        if p1pos == 0:
            self.only2(a, "p0", P1 + ["s_waitcnt vmcnt(10)"], ["s_waitcnt vmcnt(0)"])
            P1 = []
        a(head)
        for c in range(3):
            p = 10 + 6 * c
            setup = [f"v_mul_f32 v{T}, v{p}, v{DTL}", f"v_mul_f32 v{T+1}, v{p+1}, v{DT}",
                     f"v_mul_f32 v{T+2}, s74, v{T+1}", f"v_fma_f32 v{T+3}, v{T+1}, s74, -v{T+2}",
                     f"v_fma_f32 v{T+3}, v{T+1}, s75, v{T+3}",
                     f"v_mul_f32 v{T+4}, s78, v{T}", f"v_mul_f32 v{T+5}, s78, v{T+2}",
                     f"v_mul_f32 v{T+6}, s77, v{T}", f"v_mul_f32 v{T+7}, s77, v{T+2}",
                     f"v_exp_f32 v{T+4}, v{T+4}", f"v_fract_f32 v{T+5}, v{T+5}",
                     f"v_exp_f32 v{T+6}, v{T+6}", f"v_fract_f32 v{T+7}, v{T+7}",
                     f"v_exp_f32 v{T+8}, v{T}", f"v_fract_f32 v{T+9}, v{T+2}",
                     f"v_fma_f32 v{T+5}, v{T+3}, s78, v{T+5}", f"v_fma_f32 v{T+7}, v{T+3}, s77, v{T+7}",
                     f"v_add_f32 v{T+9}, v{T+3}, v{T+9}",
                     f"v_cos_f32 v{W8}, v{T+5}", f"v_sin_f32 v{W8+1}, v{T+5}",
                     f"v_cos_f32 v{W256}, v{T+7}", f"v_sin_f32 v{W256+1}, v{T+7}",
                     f"v_cos_f32 v{W1}, v{T+9}", f"v_sin_f32 v{W1+1}, v{T+9}"]
            setup += self.cmul(T + 10, p + 4, p + 2)
            setup += [f"v_pk_mul_f32 {vr(W8,2)}, {vr(W8,2)}, {vr(T+4,2)} op_sel_hi:[1,0]",
                      f"v_pk_mul_f32 {vr(W256,2)}, {vr(W256,2)}, {vr(T+6,2)} op_sel_hi:[1,0]",
                      f"v_pk_mul_f32 {vr(W1,2)}, {vr(W1,2)}, {vr(T+8,2)} op_sel_hi:[1,0]",
                      f"v_pk_mul_f32 {vr(C0,2)}, {vr(T+10,2)}, {vr(DT,2)} op_sel_hi:[1,0]"]
            Vv = lambda j: W8 if j == 1 else CH + 2 * j
            vchain = []
            for j in range(2, 32): vchain += self.cmul(Vv(j), Vv(j - 1), W8)
            vcvt = [f"v_mov_b32 v{CH}, 0x3f80"] + [f"v_cvt_pk_bf16_f32 v{CH+2*j}, v{Vv(j)}, v{Vv(j)+1}" for j in range(1, 32)]
            vwr = [f"ds_write_addtid_b32 v{CH+2*j} offset:{TP*j}" for j in range(32)]
            Ur = lambda i: C0 if i == 0 else CH + 2 * i
            uchain = []
            for i in range(1, 8): uchain += self.cmul(Ur(i), Ur(i - 1), W1)
            for i, s in ((8, 0), (9, 2), (10, 4), (11, 6), (12, 8), (13, 10), (14, 12), (15, 13), (16, 14), (17, 16), (18, 17), (19, 18), (20, 19)):
                uchain += self.cmul(Ur(i), Ur(s), W256)
            ucvt = [f"v_cvt_pk_bf16_f32 v{Ur(i)}, v{Ur(i)}, -v{Ur(i)+1}" for i in range(21)]
            uwr = [f"ds_write_addtid_b32 v{Ur(i)} offset:{TP*(i if i < 20 else 23)}" for i in range(21)]
            E = lambda L: [a(x) for x in L]
            ypos = o.get("ypos", 2)
            chk = lambda: (E([self.poll_check("y0", 2, False, V_FY, "s86"), self.st("ypoll")]), self.only2(a, "fx", fx))
            ng = {0: 5, 1: 4, 2: 2}[ypos]
            grp = [yl[len(yl) * k // ng:len(yl) * (k + 1) // ng] for k in range(ng)] if c == 2 else [[]] * 5
            grp = [[]] * (5 - ng) + grp
            E(setup[:6])
            if c: E(self.kreads(UF))
            if c == 1 and fypos == 1: self.only2(a, "fy", fy + xst[:5])
            if c == 2 and ypos == 1: E([self.poll_load(2, False, V_FY, "s86")])
            E(setup[6:])
            if c == 2 and ypos == 0: chk()
            E(grp[0] + vchain)
            if c == 0:
                E(vcvt + (["s_waitcnt vmcnt(0)"] if p1pos else []))
                self.only2(a, "p1", P1 + (fy + xst[:5] if fypos == 3 else []) + w2d, [self.spin("f", 16, False)])
                E([m0tab] + vwr)
            else:
                E(vcvt[:18])
                if c == 1: self.only2(a, "x2", (fy + xst if fypos == 2 else xst[5:]) + w2r)
                if c == 2 and ypos == 2: E([self.poll_load(2, False, V_FY, "s86")])
                if c == 2 and ypos == 1: chk()
                E(grp[1])
                mf = self.kmf(c == 1)
                for k in range(8): E([mf[k]] + vwr[4 * k:4 * k + 4] + vcvt[18 + 2 * k:20 + 2 * k])
            E(uchain[:8] + self.kreads(VF) + grp[2])
            if c == 1: self.only2(a, "w2", w2s)
            E(uchain[8:] + ucvt)
            if c == 1 and ypos == 0: E([self.poll_load(2, False, V_FY, "s86")])
            if c == 2 and ypos == 2: chk()
            E(grp[3] + uwr + grp[4])
            if c == 0 and fypos == 0: self.only2(a, "fy", fy + xst[:5])
            a(self.st(f"kg{c}"))
        for x in self.kreads(UF): a(x)
        a("s_waitcnt lgkmcnt(0)")

    def yloads(self):
        L = []
        for ks in range(40):
            x = f"buffer_load_dwordx4 {ar(4*ks,4)}, v1, {SWS}, {S_Y} offen offset:{1024*(ks%4)}{SC}"
            if ks % 4 == 0 and ks:
                x = f"s_add_u32 {S_Y}, {S_Y}, 4096\ns_cmp_eq_u32 {S_Y}, {S_YE}\ns_cselect_b32 {S_Y}, {S_YB}, {S_Y}\n" + x
            L.append(x)
        return L

    def gemm1f(self, a):
        o = self.o
        ACC = (48, 64, 32)
        uses = [[] for _ in range(10)]
        for ks in range(40): uses += [[(0, ks)], [(1, ks)]]
        uses += [[] for _ in range(41)]
        def reads(f, reg):
            p, ks = f
            base = V_P0 + p
            off = ks * 2048 - (65536 if ks >= 32 else 0)
            pre = [f"v_add_u32 v{base}, 0x10000, v{base}"] if ks == 32 else []
            return pre + [f"ds_read_b64_tr_b16 {vr(reg,2)}, v{base} offset:{off}", f"ds_read_b64_tr_b16 {vr(reg+2,2)}, v{base} offset:{off+512}"]
        fr = FragStream(uses, reads, list(range(112, 144, 4)), lead=6, name="pair")
        main = self.kmf(False)
        main += [f"v_mfma_f32_32x32x16_bf16 {vr(ACC[p],16)}, {vr(V_B1+2*p,4)}, {vr(V_ONE,4)}, 0" for p in range(2)]
        for ks in range(40):
            for p in range(2):
                main.append(lambda p=p, ks=ks: f"v_mfma_f32_32x32x16_bf16 {vr(ACC[p],16)}, {vr(fr.reg[(p,ks)],4)}, {ar(4*ks,4)}, {vr(ACC[p],16)}")
        main.append(self.st("g1.ab") + f"\nv_mfma_f32_32x32x16_bf16 {vr(ACC[2],16)}, {vr(V_B1+4,4)}, {vr(V_ONE,4)}, 0")
        for ks in range(40):
            main.append(f"v_mfma_f32_32x32x16_bf16 {vr(ACC[2],16)}, {self.creg(ks)[0]}, {ar(4*ks,4)}, {vr(ACC[2],16)}")
        mb = o.get("mb", 58)
        S = [fr]
        cpre = []
        for ks in range(40):
            cpre += [f"ds_read_b64_tr_b16 {self.creg(ks)[1](h)}, v{V_S} offset:{ks*1024+256*h}" for h in range(2)]
        S.append(Stream(cpre, 0, mb - 3, ahead=8, name="cpre"))
        ny = o.get("ny", 8)
        yl = [Item(x, hi=max(0, 10 + 2 * (ny + i) - o.get("ylead", 20))) for i, x in enumerate(self.yloads()[ny:])]
        S.append(Stream(yl, 0, o.get("yend", 60), ahead=3, name="y"))
        t1, t2 = self.ktail3()
        S.append(Stream(t1, 10, 26, name="t1"))
        S.append(Stream(t2, 30, mb - 4, name="t2"))
        misc = self.late_scalars() + [f"s_mov_b32 s74, {fbits(-1.5957691216057308*1.4426950408889634)}",
                f"s_mov_b32 s75, {fbits(-1.5957691216057308*0.044715*1.4426950408889634)}",
                "v_mov_b32 v8, s74", "v_mov_b32 v9, s75", "v_mov_b32 v30, 1.0", "v_mov_b32 v31, 1.0"]
        mxp, mx = o.get("mxp", 56), o.get("mx", 78)
        S.append(Stream(misc, 0, mx - 2, name="misc"))
        S.append(Stream([f"s_mov_b32 s84, {FX}\n" + self.poll_load(2, True, V_FX, "s84")], mxp, mxp + 1))
        S.append(Stream([self.poll_check("x", 2, True, V_FX, "s84") + "\n" + self.st("xpoll")] +
                        [("" if i == 0 else f"s_add_u32 s83, s83, {16*XP}\n") + f"buffer_load_dwordx4 {ar(240+4*i,4)}, v{V_UG}, {SWS}, s83 offen{SC}" for i in range(4)],
                        mx, mx + 12, ahead=0))
        nw = o.get("nw", 14)
        S.append(Stream([Item(x, lo=92 + i) for i, x in enumerate(self.w2f_items()[:nw])], max(93, mx + 12), 131, name="w2f"))
        S.append(Stream([f"s_lshl_b32 s7, {WAVE}, 10\ns_add_u32 m0, s7, {CB0}\ns_waitcnt lgkmcnt(0)\ns_barrier"], mb, mb + 1))
        exr, exw = [], []
        e0, e1 = mb + 1, o.get("exend", 89)
        for q in range(12):
            ch, row = divmod(q, 4)
            E, O = 10 + 2 * (q % 6), 22 + (q % 4)
            d = ch * CBP + row * 256
            g0 = e0 + 4 + (e1 - e0 - 4) * q // 12
            g1 = e0 + 4 + (e1 - e0 - 4) * (q + 1) // 12
            prev = e0 + 4 + (e1 - e0 - 4) * (q - 5) // 12 if q >= 6 else e0
            exr.append(Item(f"ds_read2_b32 {vr(E,2)}, v{V_ES+ch} offset0:{64*row} offset1:{64*row+1}", lo=prev + 1, hi=max(prev + 1, g0 - 3)))
            exw += [Item(f"ds_write_addtid_b32 v{E} offset:{d}", lo=g0, hi=g1), Item(f"ds_write_addtid_b32 v{E} offset:{d+2*CPITCH-4}", hi=g1),
                    Item(f"v_alignbit_b32 v{O}, v{E+1}, v{E}, 16", hi=g1),
                    Item(f"ds_write_addtid_b32 v{O} offset:{d+CPITCH}"), Item(f"ds_write_addtid_b32 v{O} offset:{d+3*CPITCH-4}")]
        exw += [f"ds_write_b32 v{V_Z1}, v26", f"ds_write_b64 v{V_Z2}, v[26:27]"]
        S.append(Stream(exr, e0, e1 - 6, ahead=100, name="exr"))
        S.append(Stream(exw, e0 + 4, e1 + 2, ahead=3, name="exw"))
        nB = o.get("nB", 2)
        S.append(Stream(self.gelu4(ACC[0], 10, range(8)) + self.hstore(10, S_HA, 0) + self.gelu4(ACC[1], 18, range(nB)), e1 + 3, 131, ahead=4, name="gelu"))
        gap_sched(a, main, S, "g1")
        a(self.st("g1.c"))
        gp = lambda acc_, out: [x.replace("v[10:11]", "v[30:31]") for x in self.gelu_packed(acc_, out, 2)]
        w2l = self.w2f_items()[nw:]
        nt = o.get("nt", 8)
        for x in gp(64, 18)[nB // 2 * 20:] + self.hstore(18, S_HA, 1024) + w2l[:nt // 2]: a(x)
        for i in range(4): a(f"ds_write_b128 v{V_UL}, {ar(240+4*i,4)} offset:{256*i}")
        gc = gp(32, 80)
        for x in gc[:20]: a(x)
        a("s_waitcnt lgkmcnt(0)\ns_barrier")
        self.tail = gc[20:40] + self.hstore(80, S_HC, 0)[:1] + w2l[nt // 2:nt] + gc[40:] + self.hstore(80, S_HC, 0)[1:]
        self.w2rest = w2l[nt:]

    def late_consts(self):
        t = 233
        L = []
        for i in range(3):
            L += [f"v_add_u32 v{t}, {64*i}, v0", f"v_mul_u32_u24 v{t+1}, 6554, v{t}", f"v_lshrrev_b32 v{t+1}, 16, v{t+1}",
                  f"v_mul_u32_u24 v{t+1}, 1120, v{t+1}", f"v_lshl_add_u32 v{VX+i}, v{t}, 4, v{t+1}"]
        L += [f"v_and_b32 v{t}, 15, v0", f"v_lshrrev_b32 v{t+1}, 4, v0", f"s_mul_i32 s73, s13, 160", f"v_lshl_add_u32 v{VB2}, v{t}, 1, s73",
              f"s_lshl_b32 s14, s12, 2", f"s_add_u32 s14, s14, s11", f"s_mul_i32 s14, s14, {16*1280}", f"s_add_u32 s14, s14, s73",
              f"v_cmp_gt_u32 vcc, 16, v0", f"s_mul_i32 s15, {WAVE}, 3072", f"s_add_u32 s15, s15, {G2X}", f"v_cndmask_b32 v{V_ONE}, 0, v{V_ONE}, vcc",
              f"s_mov_b32 m0, s15", f"v_add_u32 v{VXL}, s15, v1",
              f"v_mul_u32_u24 v{VXD}, 160, v{t}", f"v_lshl_add_u32 v{t+2}, v{t+1}, 3, s15", f"v_add_u32 v{VXD}, v{VXD}, v{t+2}",
              f"s_mul_i32 s73, {WAVE}, 10240", f"s_add_u32 s73, s73, {RING}", f"v_add_u32 v{VPW}, s73, v1",
              f"v_lshl_add_u32 v{t+2}, v{t+1}, 3, s73", f"v_lshl_add_u32 v{VCW}, v{t}, 5, v{t+2}",
              f"v_and_b32 v{t}, 3, v0", f"v_and_b32 v{t+1}, 4, v0", f"v_lshl_add_u32 v{VFH}, v{t}, 4, v{t+1}"]
        return L

    def late_consts2(self):
        t = 233
        return [f"s_add_u32 s73, {WAVE}, 1", f"s_and_b32 s73, s73, 3", f"s_mul_i32 s73, s73, 10240", f"s_add_u32 s73, s73, {RING}",
                f"v_lshl_add_u32 v{VPR}, v0, 2, s73",
                f"v_min_u32 v{t}, 26, v0", f"v_lshrrev_b32 v{t+1}, 2, v{t}", f"v_and_b32 v{t}, 3, v{t}", f"v_lshlrev_b32 v{VFS}, 8, v{t+1}",
                f"v_lshl_add_u32 v{VFS}, v{t}, 4, v{VFS}",
                f"v_lshrrev_b32 v{t}, 3, v0", f"v_and_b32 v{t+1}, 7, v0", f"v_mul_u32_u24 v{VSG}, {SP}, v{t}", f"v_lshl_add_u32 v{VSG}, v{t+1}, 4, v{VSG}",
                f"v_lshrrev_b32 v{t+1}, 1, v{t+1}", f"v_mul_u32_u24 v{VSL}, 2560, v{t+1}", f"v_lshl_add_u32 v{VSL}, v{t}, 5, v{VSL}",
                f"s_mul_i32 s73, {WAVE}, 640", f"s_add_u32 s73, s73, {G2S}",
                f"v_and_b32 v{t+1}, 1, v0", f"v_lshl_add_u32 v{t+1}, v{t+1}, 4, s73", f"v_add_u32 v{VSL}, v{VSL}, v{t+1}",
                f"s_mul_i32 s73, s11, 2560", f"s_add_u32 s73, s73, {G2S}", f"v_lshl_add_u32 v{VSR}, v0, 3, s73"]

    def conv(self, a, role):
        o = self.o
        seq = []
        if role == 0:
            blocks = [4, 5, 6, 7, 0]
            for r in range(8):
                for c in range(8):
                    if c == 4: seq.append((0, r, 0, 0))
                    for e in range(7, -1, -1):
                        if e + c in (4, 5, 6, 7): seq.append((0, r, e, c))
            acc = lambda ch, b: 2 + 4 * blocks.index(b)
        else:
            for r in range(8):
                for ch in range(3):
                    for c in range(4):
                        for e in range(3, -1, -1):
                            if e + c in (1, 2, 3): seq.append((ch, r, e, c))
            acc = lambda ch, b: 2 + 12 * ch + 4 * (b - 1)
        uses = [[("B", ch, r, c), ("A", ch, r, e)] for ch, r, e, c in seq]
        def reads(f, reg):
            k, ch, r, i = f
            if k == "B":
                return [f"ds_read_b128 {vr(reg,4)}, v{VCB} offset:{ch*CBP+U_OFF+480+512*i-64*r}"]
            off = ch * CBP + 4032 - 512 * i - 64 * r
            return [f"ds_read_b64 {vr(reg,2)}, v{VCA} offset:{off}", f"ds_read_b64 {vr(reg+2,2)}, v{VCA} offset:{off+8}"]
        pool = list(range(88, 128, 4)) + list(range(48, 88, 4))
        fr = FragStream(uses, reads, pool, lead=12, pre=o.get("cvpre", 9), name="cv")
        for x in fr.pro + self.tail: a(x)
        a(self.st("g1.tail"))
        n = len(seq)
        seen = set()
        main = []
        for ch, r, e, c in seq:
            d = vr(acc(ch, e + c), 4)
            cin = d if (ch, e + c) in seen else "0"
            seen.add((ch, e + c))
            main.append(lambda d=d, cin=cin, A=("A", ch, r, e), B=("B", ch, r, c): f"v_mfma_f32_16x16x32_bf16 {d}, {vr(fr.reg[A],4)}, {vr(fr.reg[B],4)}, {cin}")
        mf, mp, mc = o.get("mf", 66), o.get("mp", 150), o.get("mc", 190)
        S = [fr]
        S.append(Stream(self.w2rest, 4, o.get("wend", 190), name="w2f"))
        sal = [f"s_lshl_b32 s81, s8, 2", f"s_lshr_b32 s80, s9, 2", f"s_add_u32 s81, s81, s80", f"s_lshl_b32 s81, s81, 8",
               f"s_and_b32 s80, s9, 3", f"s_lshl_b32 s80, s80, 2", f"s_add_u32 s80, s80, {WAVE}", f"s_lshl_b32 s80, s80, 2",
               f"s_add_u32 s81, s81, s80", f"s_add_u32 s81, s81, {FH}", f"v_mov_b32 v232, {TAG}",
               f"s_lshr_b32 s86, s12, 1", f"s_lshl_b32 s86, s86, 2", f"s_add_u32 s86, s86, {WAVE}", f"s_lshl_b32 s86, s86, 8",
               f"s_and_b32 s80, s12, 1", f"s_lshl_b32 s80, s80, 3", f"s_add_u32 s86, s86, s80", f"s_add_u32 s86, s86, {FH}",
               f"s_lshl_b32 s82, s12, 4", f"s_add_u32 s82, s82, {WAVE}", f"s_mul_i32 s82, s82, {12*1024}", f"s_add_u32 s82, s82, {HF}"]
        S.append(Stream(sal, 1, mf - 2, name="sal"))
        S.append(Stream([f"WAITVM hst\ns_mov_b64 exec, 1\nbuffer_store_dword v232, off, {SWS}, s81{SC}\ns_mov_b64 exec, -1\n" + self.st("cv.fh")], mf, mf + 1))
        side = self.late_consts() + [f"v_accvgpr_write_b32 a{k}, 0" for k in (241, 243, 245, 247, 249, 250, 251)]
        side += [f"global_load_ushort a{240+2*jb}, v{VB2}, {sp('b2')} offset:{32*jb}" for jb in range(5)]
        S.append(Stream(side, 4, mp - 2, name="side"))
        S.append(Stream([self.poll_load(231, False, VFH, "s86")], mp, mp + 1))
        nh = o.get("nh", 7)
        hl = self.hloads(0) + self.hloads(1)
        S.append(Stream([self.poll_check(f"h{role}", 231, False, VFH, "s86") + "\n" + self.st("hpoll")] + hl[:nh], mc, n, ahead=0, name="h"))
        gap_sched(a, main, S, f"conv{role}")
        a(self.st("cv.main"))
        order = [4, 0, 1, 2, 3] if role == 0 else list(range(9))
        for q in order:
            a(f"v_cvt_pk_bf16_f32 v{96+2*q}, v{2+4*q}, v{3+4*q}\nv_cvt_pk_bf16_f32 v{97+2*q}, v{4+4*q}, v{5+4*q}")
        for q in order:
            a(f"ds_write_b64 v{VCW}, {vr(96+2*q,2)} offset:{512*q}")
        k1 = nh + 3
        for x in hl[nh:k1]: a(x)
        k2 = max(k1, 13)
        if role == 0:
            a(f"s_mul_i32 s7, {WAVE}, {SP}\ns_add_u32 s7, s7, {S_ROW}")
            for q in range(3): a(f"ds_read_b128 {vr(96+4*q,4)}, v{VPW} offset:{1024*q}")
            for x in hl[k1:k2]: a(x)
            for q in range(2): a(f"buffer_store_dwordx4 {vr(96+4*q,4)}, v1, {SWS}, s7 offen offset:{2048+1024*q}{SC} @sst")
            a(f"s_waitcnt lgkmcnt(0)\ns_mov_b64 exec, 0xffffffff\nbuffer_store_dwordx4 v[104:107], v1, {SWS}, s7 offen{SC} @sst\ns_mov_b64 exec, -1")
        else:
            for ch in range(3):
                a(f"ds_read_b128 {vr(96+8*ch,4)}, v{VPW} offset:{1536*ch}\nds_read_b128 {vr(100+8*ch,4)}, v{VPW} offset:{1536*ch+1024}")
            for x in hl[k1:k2]: a(x)
            a(f"s_add_u32 s7, {S_ROW}, {SP}\ns_add_u32 s73, {S_ROW}, {2*SP}")
            sr = [S_ROW, "s7", "s73"]
            for ch in range(3): a(f"buffer_store_dwordx4 {vr(96+8*ch,4)}, v1, {SWS}, {sr[ch]} offen offset:512{SC} @sst")
            a("s_waitcnt lgkmcnt(0)\ns_mov_b64 exec, 0xffffffff")
            for ch in range(3): a(f"buffer_store_dwordx4 {vr(100+8*ch,4)}, v1, {SWS}, {sr[ch]} offen offset:1536{SC} @sst")
            a("s_mov_b64 exec, -1")
        self.hrest = hl[k2:]
        a(self.st("cv.out"))

    def gemm2f(self, a):
        o = self.o
        AC = (2, 22)
        main, idx = [], {}
        for rho in range(4):
            for jb in range(5):
                d = vr(AC[rho & 1] + 4 * jb, 4)
                idx[(rho, jb)] = len(main)
                if rho == 0: main.append(f"v_mfma_f32_16x16x32_bf16 {d}, {ar(240+2*jb,4)}, {vr(V_ONE,4)}, 0")
                for kk in range(12):
                    main.append(f"v_mfma_f32_16x16x32_bf16 {d}, {ar(self.w2reg(jb*12+kk),4)}, {vr(self.breg(rho,kk),4)}, {d}")
        for rho in (1, 2, 3): main[idx[(rho, 0)]] = self.st(f"g2.r{rho}") + "\n" + main[idx[(rho, 0)]]
        main[13] = self.st("g2.c1") + "\n" + main[13]
        idx[(4, 0)] = n = len(main)
        nxt = lambda rho, jb: idx[(rho, jb + 1)] if jb < 4 else idx[(rho + 1, 0)]
        for i in range(2): a(f"buffer_load_dwordx4 v{VX+i}, {SX}, s14 offen lds @xdma\ns_add_u32 m0, m0, 1024")
        a(f"s_mov_b64 exec, 0xffffffff\nbuffer_load_dwordx4 v{VX+2}, {SX}, s14 offen lds @xdma\ns_mov_b64 exec, -1")
        a(f"s_mul_i32 s7, {WAVE}, 10240\ns_add_u32 m0, s7, 32768")
        ring = []
        for rho in range(3):
            par = rho & 1
            def wr(jb):
                g = nxt(rho, jb) + 3
                return [Item(f"ds_write_addtid_b32 v{AC[par]+4*jb+k} offset:{RING-32768+5120*par+1024*jb+256*k} @pw", lo=g, hi=g + 3) for k in range(4)]
            def rd(jb, g):
                return [Item(f"ds_read2st64_b32 {vr(AC[par^1]+4*jb+2*k,2)}, v{VPR} offset0:{20*par+4*jb+2*k} offset1:{20*par+4*jb+2*k+1}", lo=g, hi=g + 6) for k in range(2)]
            b1, b2 = nxt(rho, 2) + 10, nxt(rho, 4) + 10
            ring += wr(0) + wr(1) + wr(2) + [Item("WAITLG pw\ns_barrier", lo=b1, hi=b1)] + rd(0, b1 + 1) + rd(1, b1 + 1) + rd(2, b1 + 1)
            ring += wr(3) + wr(4) + [Item("WAITLG pw\ns_barrier", lo=b2, hi=b2)] + rd(3, b2 + 1) + rd(4, b2 + 1)
        rs = Stream(ring, 0, n, ahead=0, name="ring")
        for it in rs.items: it.ideal = it.lo - 5
        S = [rs]
        S.append(Stream(self.hrest + self.hloads(2) + [Item(x, lo=idx[(1, 0)]) for x in self.hloads(3)], 0, o.get("hend", 130), name="h"))
        ms = o.get("ms", 62)
        S.append(Stream(self.late_consts2(), 0, 44, name="lc2"))
        sal = [f"s_lshl_b32 s81, {XCD}, 3", f"s_lshr_b32 s80, {JJ}, 2", f"s_add_u32 s81, s81, s80", f"s_lshl_b32 s81, s81, 8",
               f"s_and_b32 s80, {JJ}, 3", f"s_lshl_b32 s80, s80, 2", f"s_add_u32 s80, s80, {WAVE}", f"s_lshl_b32 s80, s80, 2",
               f"s_add_u32 s81, s81, s80", f"s_add_u32 s81, s81, {FS}",
               f"s_lshl_b32 s86, s13, 11", f"s_add_u32 s86, s86, {FS}",
               f"s_lshl_b32 s76, s13, 2", f"s_add_u32 s76, s76, {WAVE}", f"s_mul_i32 s76, s76, {20*SP}",
               f"s_lshl_b32 s80, s12, 7", f"s_add_u32 s76, s76, s80", f"s_add_u32 s76, s76, {ST}",
               f"s_add_u32 s77, s76, {8*SP}", f"s_add_u32 s78, s76, {16*SP}", f"s_mov_b32 s74, {fbits(-1.4426950408889634)}"]
        S.append(Stream(sal, 0, ms - 2, name="sal"))
        S.append(Stream([f"WAITVM sst\ns_mov_b64 exec, 1\nbuffer_store_dword v232, off, {SWS}, s81{SC}\ns_mov_b64 exec, -1\n" + self.st("g2.fs")], ms, ms + 1))
        XR, XF, SR, SD = 96, 176, 106, 116
        S.append(Stream(["WAITVM xdma"] + [f"ds_read_b64 {vr(XR+2*jb,2)}, v{VXD} offset:{32*jb}" for jb in range(5)], idx[(1, 3)], idx[(2, 0)], name="xr"))
        xu = []
        for q in range(10): xu += [f"v_lshlrev_b32 v{XF+2*q}, 16, v{XR+q}", f"v_and_b32 v{XF+2*q+1}, 0xffff0000, v{XR+q}"]
        S.append(Stream(xu, idx[(2, 1)], idx[(3, 0)], ahead=0, name="xu"))
        mp, mc = o.get("g2p", 140), o.get("g2c", 180)
        S.append(Stream([self.poll_load(196, True, VFS, "s86")], mp, mp + 1))
        S.append(Stream([self.poll_check("s", 196, True, VFS, "s86") + "\n" + self.st("spoll"),
                         f"buffer_load_dwordx4 {vr(SD,4)}, v{VSG}, {SWS}, s76 offen{SC}",
                         f"buffer_load_dwordx4 {vr(SD+4,4)}, v{VSG}, {SWS}, s77 offen{SC}",
                         f"s_mov_b64 exec, 0xffffffff\nbuffer_load_dwordx4 {vr(SD+8,4)}, v{VSG}, {SWS}, s78 offen{SC}\ns_mov_b64 exec, -1"], mc, mc + 5, ahead=0))
        Z = AC[1]
        def silu(jb):
            T = 200
            z = Z + 4 * jb
            L = [f"v_mul_f32 v{T+k}, s74, v{z+k}" for k in range(4)] + [f"v_exp_f32 v{T+k}, v{T+k}" for k in range(4)]
            L += [f"v_add_f32 v{T+k}, 1.0, v{T+k}" for k in range(4)] + [f"v_rcp_f32 v{T+k}, v{T+k}" for k in range(4)]
            L += [f"v_mul_f32 v{z+k}, v{z+k}, v{T+k}" for k in range(4)]
            return L
        sl = []
        for jb in range(3):
            L = [Item(x) for x in silu(jb)]
            L[0].lo = nxt(3, jb) + 2
            sl += L
        S.append(Stream(sl, nxt(3, 0) + 2, n, ahead=6, name="silu"))
        gap_sched(a, main, S, "g2")
        a(self.st("g2.mfma"))
        a(f"""
        ds_write_b128 v{VSL}, {vr(SD,4)}
        ds_write_b128 v{VSL}, {vr(SD+4,4)} offset:256
        s_waitcnt vmcnt(0)
        s_mov_b64 exec, 0xffffffff
        ds_write_b128 v{VSL}, {vr(SD+8,4)} offset:512
        s_mov_b64 exec, -1
        """)
        for x in silu(3): a(x)
        a("s_waitcnt lgkmcnt(0)\ns_barrier")
        a(self.st("g2.bar"))
        for jb in range(5): a(f"ds_read_b64_tr_b16 {vr(SR+2*jb,2)}, v{VSR} offset:{512*jb}")
        for x in silu(4): a(x)
        T = 204
        for q in range(10):
            a(f"""
            v_lshlrev_b32 v{T}, 16, v{SR+q}
            v_and_b32 v{T+1}, 0xffff0000, v{SR+q}
            v_pk_fma_f32 {vr(T,2)}, {vr(T,2)}, {vr(Z+2*q,2)}, {vr(XF+2*q,2)}
            v_cvt_pk_bf16_f32 v{XR+q}, v{T}, v{T+1}
            """)
        for jb in range(5): a(f"ds_write_b64 v{VXD}, {vr(XR+2*jb,2)} offset:{32*jb}")
        a("s_waitcnt lgkmcnt(0)")
        for i in range(3): a(f"ds_read_b128 {vr(SD+4*i,4)}, v{VXL} offset:{1024*i}")
        osc = o.get("osc", SC)
        for i in range(2): a(f"buffer_store_dwordx4 {vr(SD+4*i,4)}, v{VX+i}, {SOUT}, s14 offen{osc}")
        a(f"s_waitcnt lgkmcnt(0)\ns_mov_b64 exec, 0xffffffff\nbuffer_store_dwordx4 {vr(SD+8,4)}, v{VX+2}, {SOUT}, s14 offen{osc}")
        a(self.st("g2.done"))

def build(prof=False, opt=None, cls=F4):
    g = cls(prof, opt or {})
    if prof == "min":
        full = g.st
        g.st = lambda n: full(n) if n in ("start", "end") else ""
    elif prof:
        g.st("start"); g.st("w3.dma")
    enc = (opt or {}).get("enc")
    if enc:
        g.st = lambda n: "s_memrealtime s[98:99]\ns_waitcnt lgkmcnt(0)" if n == enc.strip() else ""
    dbg = (opt or {}).get("dbg")
    if dbg:
        op, wsel, lst = dbg.strip().split(":")
        lst = ["start"] + lst.split(",") + ["end"]
        g.prof = True
        g.STAMPS = [r for r in g.STAMPS if r not in (46, 47)]
        g.names = list(lst)
        full2 = g.st
        g.st = lambda n: full2(n) if n in lst else ""
        def dump(a):
            a("s_mov_b64 exec, -1\ns_waitcnt vmcnt(0)")
            a(g.st("end"))
            a("s_memrealtime s[100:101]\ns_waitcnt lgkmcnt(0)\ns_sub_u32 s100, s100, s99\nv_mov_b32 v2, s100")
            for i in range(1, len(lst)):
                a(f"s_sub_u32 s7, s{g.STAMPS[i]}, s{g.STAMPS[0]}\ns_cmp_eq_u32 s{g.STAMPS[i]}, 0\ns_cselect_b32 s7, 0, s7\nv_writelane_b32 v2, s7, {i}")
            a(f"v_lshlrev_b32 v3, 2, v0\ns_cmp_eq_u32 {WAVE}, {wsel}\ns_cbranch_scc0 L_end\ns_mov_b64 exec, {(1 << len(lst)) - 1}\nglobal_atomic_{op} v3, v2, s[46:47]")
        g.dump = dump
    a = Asm(auto=True)
    if enc: a("s_memrealtime s[98:99]")
    g.start(a)
    a("L_consts:")
    g.consts(a)
    pass
    a(f"s_cmp_eq_u32 {WAVE}, 3\ns_cbranch_scc1 L_w3b\ns_cmp_eq_u32 {WAVE}, 2\ns_cbranch_scc1 L_w2")
    st0 = a.state()
    g.s4(a)
    a("s_branch L_kg\nL_w2:")
    st1 = a.state(); a.set_state(st0)
    g.w2_pre(a)
    a("L_kg:")
    a.merge([st1, a.state()])
    g.kgen4(a)
    a("s_branch L_g1\nL_w3:")
    st1 = a.state()
    a.set_state(([], []))
    g.wave3a(a)
    a("s_branch L_consts\nL_w3b:")
    g.wave3b(a)
    a("L_g1:")
    a.merge([st1, a.state()])
    a(g.st("g1.arrive"))
    a("s_barrier")
    g.gemm1f(a)
    a(f"s_cmp_eq_u32 {WAVE}, 3\ns_cbranch_scc1 L_cv3")
    st0 = a.state()
    g.conv(a, 0)
    a("s_branch L_g2\nL_cv3:")
    st1 = a.state()
    a.set_state(st0)
    g.conv(a, 1)
    a("L_g2:")
    a.merge([st1, a.state()])
    g.gemm2f(a)
    a(f"s_or_b32 s7, s2, {WAVE}\ns_cbranch_scc1 L_fin\ns_mov_b32 s7, {FLG}")
    a(g.flag_store("s7", 4))
    a("L_fin:")
    if enc:
        a("s_add_u32 s98, s98, 4000\nL_spin:\ns_memrealtime s[100:101]\ns_waitcnt lgkmcnt(0)\ns_sub_u32 s7, s98, s100\ns_cmp_gt_u32 s7, 4000\ns_cbranch_scc0 L_spin")
    g.dump(a)
    a("L_end:\ns_endpgm")
    g.slow_paths(a)
    a("L_code_end:")
    body = a.finish()
    out = header()
    out += f"; @launch grid=(256,1,1) block=(256,1,1) lds={LDS_BYTES}\n"
    if prof: out += "; stamps2: " + " ".join(g.names) + "\n"
    out += "; layout v3\n"
    out += '.amdgcn_target "amdgcn-amd-amdhsa--gfx950"\n.text\n'
    out += khead(NAME + "_kernel") + body
    out += '.section .rodata,"a"\n.p2align 6\n' + kdesc(NAME + "_kernel")
    print("instructions", sum(1 for i in a.ins if i.mn), "nops inserted", a.nops)
    return out

if __name__ == "__main__":
    open(sys.argv[1], "w").write(build("min" if "min" in sys.argv[2:] else "prof" in sys.argv[2:], parse(sys.argv[2:])))
```

```python
import re

TRANS = ("v_exp_f32", "v_log_f32", "v_rcp_f32", "v_rsq_f32", "v_sqrt_f32", "v_sin_f32", "v_cos_f32")
REG_RE = re.compile(r"^(-|abs\(|\|)?([vas])(\d+|\[(\d+):(\d+)\])\)?\|?$")


def regs_of(tok):
    tok = tok.strip()
    if tok == "vcc":
        return {("s", "vcc")}
    if tok in ("vcc_lo", "vcc_hi"):
        return {("s", "vcc")}
    if tok == "exec":
        return {("s", "exec")}
    if tok == "m0":
        return {("s", "m0")}
    m = REG_RE.match(tok)
    if not m:
        return set()
    k = m.group(2)
    if m.group(4) is not None:
        return {(k, i) for i in range(int(m.group(4)), int(m.group(5)) + 1)}
    return {(k, int(m.group(3)))}


def split_ops(rest):
    ops, depth, cur = [], 0, ""
    for ch in rest:
        if ch in "[(":
            depth += 1
        if ch in "])":
            depth -= 1
        if ch == "," and depth == 0:
            ops.append(cur.strip())
            cur = ""
        else:
            cur += ch
    if cur.strip():
        ops.append(cur.strip())
    mods = ""
    if ops:
        parts = ops[-1].split(None, 1)
        ops[-1] = parts[0]
        if len(parts) > 1:
            mods = parts[1]
    return ops, mods


class Ins:
    def __init__(self, text):
        self.text = text
        t = text.split(";")[0].strip()
        self.label = t.endswith(":")
        self.directive = t.startswith(".")
        self.mn = ""
        self.w = set()
        self.r = set()
        self.srcc = set()
        self.srcab = set()
        self.sdata = set()
        self.ws = 1
        if self.label or self.directive or not t:
            self.ws = 0
            return
        p = t.split(None, 1)
        mn = self.mn = p[0]
        ops, mods = split_ops(p[1]) if len(p) > 1 else ([], "")
        self.ops, self.mods = ops, mods
        R = [regs_of(o) for o in ops]
        self.mfma = mn.startswith("v_mfma")
        self.valu = mn.startswith("v_") and not self.mfma
        self.trans = any(mn.startswith(x) for x in TRANS)
        self.ds = mn.startswith("ds_")
        self.vmem = mn.startswith("buffer_") or mn.startswith("global_")
        self.salu = mn.startswith("s_")
        self.dpp = "_dpp" in mn
        self.dot = mn.startswith("v_dot")
        self.ldsdma = self.vmem and (" lds" in (" " + mods) or "load_lds" in mn)
        if mn == "s_nop":
            self.ws = int(ops[0], 0) + 1
            return
        if self.mfma:
            self.passes = 8 if "32x32" in mn else 4
            self.w = R[0]
            self.srcab = R[1] | R[2]
            self.srcc = R[3]
            self.r = self.srcab | self.srcc
        elif self.valu:
            if mn.startswith("v_permlane"):
                self.w = R[0] | R[1]
                self.r = R[0] | R[1]
            elif mn.startswith("v_cmp"):
                self.w = R[0]
                self.r = set().union(*R[1:])
            elif "_co_" in mn:
                self.w = R[0] | R[1]
                self.r = set().union(*R[2:])
            else:
                self.w = R[0]
                self.r = set().union(*R[1:]) if len(R) > 1 else set()
                if mn.startswith(("v_fmac", "v_dot2c", "v_writelane")) or self.dpp:
                    self.r |= R[0]
        elif self.ds:
            if mn.startswith(("ds_read", "ds_bpermute", "ds_permute", "ds_swizzle")):
                self.w = R[0]
                self.r = set().union(*R[1:])
                if "d16" in mn:
                    self.r |= R[0]
            elif "_rtn" in mn:
                self.w = R[0]
                self.r = set().union(*R[1:])
            else:
                self.r = set().union(*R)
        elif self.vmem:
            if mn.startswith(("buffer_inv", "buffer_wb")):
                pass
            elif self.ldsdma:
                self.r = set().union(*R) | {("s", "m0")}
            elif "_load" in mn:
                self.w = R[0]
                self.r = set().union(*R[1:])
            else:
                self.r = set().union(*R)
                data = R[0] if mn.startswith("buffer_") else R[1]
                if mn.endswith(("x3", "x4")):
                    self.sdata = data
                if "atomic" in mn and "sc0" in mods and mn.startswith("buffer_"):
                    self.w = R[0]
        elif self.salu:
            if mn.startswith(("s_cmp", "s_cbranch", "s_branch", "s_waitcnt", "s_barrier", "s_endpgm", "s_sleep",
                              "s_setprio", "s_bitcmp")):
                self.r = set().union(*R) if R else set()
            else:
                self.w = R[0] if R else set()
                self.r = set().union(*R[1:]) if len(R) > 1 else set()
                if "saveexec" in mn:
                    self.w = self.w | {("s", "exec")}


def need(P, C):
    n = 0
    if not P.mn or not C.mn or P.mn == "s_nop" or C.mn == "s_nop":
        return 0
    Pvw = {r for r in P.w if r[0] in "va"}
    Psw = {r for r in P.w if r[0] == "s"}
    if P.valu:
        if C.mfma and Pvw & C.r:
            n = max(n, 2)
        if P.trans and C.valu and not C.trans and Pvw & C.r:
            n = max(n, 1)
        if C.valu and C.dpp and Pvw & C.r:
            n = max(n, 2)
        if C.mn.startswith(("v_readlane", "v_readfirstlane")) and Pvw & C.r:
            n = max(n, 1)
        if C.mn.startswith("v_permlane") and Pvw & C.r:
            n = max(n, 2)
        if Psw:
            if C.valu and Psw & C.r:
                n = max(n, 4 if C.mn.startswith(("v_readlane", "v_writelane")) else 2)
            if C.vmem and Psw & C.r:
                n = max(n, 5)
            if C.salu and Psw & C.r:
                n = max(n, 1)
        if P.dot and (C.valu or C.mfma or C.vmem or C.ds) and Pvw & (C.r | C.w):
            if not (C.mn == P.mn and not (Pvw & set().union(*[regs_of(o) for o in C.ops[1:3]]))):
                n = max(n, 3)
        if ("sdwa" in P.mn) and C.valu and Pvw & (C.r | C.w):
            n = max(n, 1)
    if P.mfma:
        big = P.passes == 8
        if C.mfma:
            if P.w & C.srcc:
                if not (P.w == C.srcc and P.passes == C.passes):
                    n = max(n, 10 if big else 6)
            if P.w & C.srcab:
                n = max(n, 12 if big else 8)
        elif C.valu or C.vmem or C.ds:
            if P.w & (C.r | C.w):
                n = max(n, 12 if big else 8)
            if C.valu and P.srcc & C.w:
                n = max(n, 7 if big else 3)
    if P.vmem and P.sdata and P.sdata & C.w:
        n = max(n, 2 if C.valu else 1)
    if P.salu and ("s", "m0") in P.w and (C.ldsdma or "addtid" in C.mn):
        n = max(n, 1)
    return n


WAIT_RE = re.compile(r"(vmcnt|lgkmcnt)\((\d+)\)")


class Asm:
    def __init__(self, auto=False):
        self.ins = []
        self.nops = 0
        self.auto = auto
        self.vmq = []
        self.lgq = []

    def _need(self, q, regs=None, tag=None):
        idx = -1
        for i, (r, t) in enumerate(q):
            if (regs and r & regs) or (tag and tag in t):
                idx = i
        return None if idx < 0 else len(q) - 1 - idx

    def _emit_wait(self, nv, nl):
        parts = []
        if nv is not None:
            nv = min(nv, 62)
            parts.append(f"vmcnt({nv})")
            self.vmq = self.vmq[len(self.vmq) - nv:] if nv else []
        if nl is not None:
            nl = min(nl, 14)
            parts.append(f"lgkmcnt({nl})")
            self.lgq = self.lgq[len(self.lgq) - nl:] if nl else []
        if parts:
            self.ins.append(Ins("s_waitcnt " + " ".join(parts)))

    def wait_vm(self, tag):
        self._emit_wait(self._need(self.vmq, tag=tag), None)

    def wait_lgkm(self, tag):
        self._emit_wait(None, self._need(self.lgq, tag=tag))

    def state(self):
        return ([(set(r), set(t)) for r, t in self.vmq], [(set(r), set(t)) for r, t in self.lgq])

    def set_state(self, st):
        self.vmq = [(set(r), set(t)) for r, t in st[0]]
        self.lgq = [(set(r), set(t)) for r, t in st[1]]

    def merge(self, states):
        res = []
        for k in (0, 1):
            n = max(len(st[k]) for st in states)
            q = [(set(), set()) for _ in range(n)]
            for st in states:
                m = len(st[k])
                for i, (r, t) in enumerate(st[k]):
                    q[n - m + i][0].update(r)
                    q[n - m + i][1].update(t)
            res.append(q)
        self.set_state(tuple(res))

    def __call__(self, text):
        for line in text.split("\n"):
            line = line.strip()
            if not line or line.startswith(";"):
                continue
            if line.startswith("WAITVM "):
                self.wait_vm(line.split()[1]); continue
            if line.startswith("WAITLG "):
                self.wait_lgkm(line.split()[1]); continue
            tags = set()
            if " @" in line:
                line, tg = line.rsplit(" @", 1)
                tags = {tg.strip()}
            I = Ins(line)
            if self.auto and I.mn:
                if I.mn == "s_waitcnt":
                    for k, n in WAIT_RE.findall(line):
                        n = int(n)
                        if k == "vmcnt":
                            self.vmq = self.vmq[max(0, len(self.vmq) - n):] if n else []
                        else:
                            self.lgq = self.lgq[max(0, len(self.lgq) - n):] if n else []
                elif I.mn != "s_nop":
                    regs = {r for r in (I.r | I.w) if r[0] in "va"}
                    rv = {r for r in I.r if r[0] in "va"} if I.vmem else regs
                    rl = {r for r in I.r if r[0] in "va"} if I.ds else regs
                    self._emit_wait(self._need(self.vmq, regs=rv), self._need(self.lgq, regs=rl))
                    if I.vmem and not I.mn.startswith(("buffer_inv", "buffer_wb")):
                        self.vmq.append(({r for r in I.w}, tags))
                    elif I.ds:
                        self.lgq.append(({r for r in I.w}, tags))
                    elif I.mn.startswith(("s_load", "s_memtime", "s_memrealtime")):
                        self.lgq.append((set(), {"SMEM"}))
            self.ins.append(I)

    def label(self, name):
        self.ins.append(Ins(name + ":"))

    def _pad(self, out, C):
        dist = 0
        req = 0
        for P in reversed(out):
            if dist >= 20:
                break
            if P.ws == 0:
                continue
            k = need(P, C) - dist
            if k > req:
                req = k
            dist += P.ws
        return req

    def finish(self):
        out = []
        for C in self.ins:
            if C.mn:
                req = self._pad(out, C)
                if req > 0:
                    out.append(Ins(f"s_nop {req-1}"))
                    self.nops += 1
            out.append(C)
        labels = {I.text.split(";")[0].strip()[:-1]: i for i, I in enumerate(out) if I.label}
        for i, I in enumerate(out):
            if I.mn.startswith(("s_cbranch", "s_branch")):
                tgt = labels[I.ops[0]]
                hist = out[max(0, i - 40): i + 1]
                dist = 0
                j = tgt
                hist = list(hist)
                while j < len(out) and dist < 20:
                    C = out[j]
                    if C.mn:
                        req = self._pad(hist, C)
                        if req > 0:
                            raise RuntimeError(f"hazard across branch '{I.text}' at '{C.text}' needs {req} more wait states")
                        dist += C.ws
                        if C.mn in ("s_branch", "s_endpgm"):
                            break
                    hist.append(C)
                    j += 1
        txt = []
        for I in out:
            txt.append(I.text if (I.label or I.directive) else "    " + I.text)
        return "\n".join(txt) + "\n"


def interleave(main, fill, ratio=None):
    out = []
    n, m = len(main), len(fill)
    k = 0
    for i, x in enumerate(main):
        out.append(x)
        tgt = (i + 1) * m // n if ratio is None else min(m, int((i + 1) * ratio))
        while k < tgt:
            out.append(fill[k])
            k += 1
    out.extend(fill[k:])
    return out


def spread(slots, items, lo, hi):
    n = len(items)
    span = hi - lo
    for i, x in enumerate(items):
        slots[lo + (i * span) // n].append(x)


def cost(x):
    c = 0
    for line in x.split("\n"):
        mn = line.strip().split(None, 1)[0] if line.strip() else ""
        if not mn:
            continue
        c += 2 if any(mn.startswith(t) for t in TRANS) or mn.startswith("v_permlane") else 1
    return c


def spread_cost(slots, items, lo, hi):
    have = [sum(cost(x) for x in slots[m]) for m in range(lo, hi)]
    total = sum(have) + sum(cost(x) for x in items)
    per = total / (hi - lo)
    k = 0
    acc = 0.0
    for m in range(lo, hi):
        acc += have[m - lo]
        while k < len(items) and (acc + cost(items[k]) / 2 <= per * (m - lo + 1) or m == hi - 1):
            slots[m].append(items[k])
            acc += cost(items[k])
            k += 1


def pool_sched(uses, reads, pool, maxper, gate=None, pre=0):
    order = []
    last = {}
    first = {}
    for m, fs in enumerate(uses):
        for f in fs:
            if f not in first:
                first[f] = m
                order.append(f)
            last[f] = m
    free = list(pool)
    reg = {}
    slots = [[] for _ in uses]
    pro = []
    k = 0
    while k < len(order) and k < pre:
        reg[order[k]] = free.pop(0)
        pro += reads(order[k], reg[order[k]])
        k += 1
    minlead = 10 ** 9
    credit = 0.0
    for m, fs in enumerate(uses):
        for f in fs:
            assert f in reg, f"fragment {f} not loaded before use at {m}"
            if last[f] == m:
                free.append(reg[f])
        credit = min(credit + maxper(m), max(1.0, maxper(m)) + 0.999)
        while k < len(order) and free and credit >= 1 and (gate is None or gate(order[k], m)):
            f = order[k]
            reg[f] = free.pop(0)
            slots[m] += reads(f, reg[f])
            minlead = min(minlead, first[f] - m)
            k += 1
            credit -= 1
    return reg, pro, slots, minlead


def kind_cost(line):
    t = line.strip()
    mn = t.split(None, 1)[0]
    if mn.endswith(":"):
        return 0, 0
    if mn in ("WAITVM", "WAITLG", "S_MEMTIME") or mn.startswith("s_"):
        return 0, 1
    if mn.startswith("ds_read"):
        return 1, 1
    if mn.startswith(("buffer_", "global_")):
        return 2, 2 if "load" in mn else 3
    if mn.startswith("ds_write"):
        if "addtid" in mn: return 3, 1
        if "b128" in mn: return 3, 6
        if "b64" in mn or "write2" in mn: return 3, 3
        return 3, 2
    if any(mn.startswith(x) for x in TRANS) or mn.startswith("v_permlane"):
        return 4, 2
    return 4, 1


def ds_units(l):
    mn = l.strip().split(None, 1)[0]
    if mn.startswith("ds_read"):
        return 2 if ("b128" in mn or "read2" in mn) else 1
    if "addtid" in mn: return 1
    return 6 if "b128" in mn else 3 if ("b64" in mn or "write2" in mn) else 2


def weave(valu, mem, start=0, end=None):
    end = len(valu) if end is None else end
    out = []
    n = len(mem)
    pos = [start + (end - start) * i // max(1, n) for i in range(n)]
    k = 0
    for i in range(len(valu) + 1):
        while k < n and pos[k] <= i:
            out += mem[k] if isinstance(mem[k], list) else [mem[k]]
            k += 1
        if i < len(valu): out.append(valu[i])
    return out


class Item:
    def __init__(self, text, lo=None, hi=None):
        self.text = text
        self.lo, self.hi = lo, hi
        ls = [l for l in text.split("\n") if l.strip()] if isinstance(text, str) else None
        self.set(ls)

    def set(self, ls):
        self.lines = ls
        kc = [kind_cost(l) for l in ls]
        non = [k for k, c in kc if k]
        self.first = non[0] if non else 0
        self.last = non[-1] if non else 0
        self.cost = sum(c for k, c in kc)
        prev = None
        for k, c in kc:
            if prev == 4 and k in (1, 2, 3): self.cost += 2
            if k: prev = k
        self.lead_salu = bool(kc) and kc[0] == (0, 1)
        self.vm = sum((1.5 if "store" in l else 1.0) if "x4" in l else 0.25 for l, (k, c) in zip(ls, kc) if k == 2)
        self.ds = sum(ds_units(l) for l, (k, c) in zip(ls, kc) if k in (1, 3))


class Stream:
    def __init__(self, items, lo, hi, ahead=2, name=""):
        self.items = [x if isinstance(x, Item) else Item(x) for x in items if (isinstance(x, Item) or x.strip())]
        self.lo, self.hi, self.ahead, self.name = lo, hi, ahead, name
        tot = sum(max(1, x.cost) for x in self.items) or 1
        acc = 0
        for x in self.items:
            x.ideal = lo + (hi - lo) * acc / tot
            acc += max(1, x.cost)
        self.k = 0

    def peek(self, m):
        return self.items[self.k] if self.k < len(self.items) else None

    def take(self, m):
        self.k += 1

    def after_main(self, m):
        pass


class FragStream:
    def __init__(self, uses, reads, pool, lead, gate=None, pre=0, ahead=None, name="frag", fixed=None):
        self.uses, self.reads, self.free = uses, reads, list(pool)
        self.order, self.first, self.last = [], {}, {}
        for m, fs in enumerate(uses):
            for f in fs:
                if f not in self.first:
                    self.first[f] = m
                    self.order.append(f)
                self.last[f] = m
        self.reg = {}
        self.lead, self.gate, self.name = lead, gate, name
        self.ahead = ahead if ahead is not None else 10 ** 6
        self.k = 0
        self.pend = []
        self.pro = []
        self.minlead = 10 ** 9
        while self.k < pre:
            f = self.order[self.k]
            self.reg[f] = self.free.pop(0)
            self.pro += reads(f, self.reg[f])
            self.k += 1

    def after_main(self, m):
        for f in self.uses[m]:
            assert f in self.reg and not any(p.f == f for p in self.pend), f"fragment {f} not loaded before {m}"
            if self.last[f] == m:
                self.free.append(self.reg[f])

    def peek(self, m):
        if not self.pend:
            if self.k >= len(self.order) or not self.free: return None
            f = self.order[self.k]
            if self.gate and not self.gate(f, m): return None
            if self.first[f] - self.lead - self.ahead > m: return None
            self.reg[f] = self.free.pop(0)
            self.k += 1
            for t in self.reads(f, self.reg[f]):
                it = Item(t)
                it.f = f
                it.ideal = self.first[f] - self.lead
                it.hi = max(0, self.first[f] - max(2, self.lead // 2))
                self.pend.append(it)
        return self.pend[0]

    def take(self, m):
        it = self.pend.pop(0)
        self.minlead = min(self.minlead, self.first[it.f] - m)


def gap_sched(a, main, streams, verbose="", budget=None, vspace=64, dscap=None):
    n = len(main)
    over = 0
    bfun, carry = budget, 0.0
    now, vfree = 0, -10 ** 9
    text = lambda m: main[m]() if callable(main[m]) else main[m]
    for m in range(n):
        t = text(m)
        a(t)
        mf = [l for l in t.split("\n") if "v_mfma" in l][-1]
        nominal = 6 if "32x32" in mf else 2
        budget = nominal
        if bfun is not None:
            carry += bfun(m)
            budget = int(carry + 1e-9)
            carry -= budget
        for s in streams: s.after_main(m)
        free_salu = True
        if m + 1 < n:
            try:
                nt = text(m + 1)
            except KeyError:
                nt = None
            if nt is not None:
                I = Ins([l for l in nt.split("\n") if "v_mfma" in l][-1].strip())
                regs = {r for r in (I.r | I.w)}
                k0 = len(a.ins)
                a._emit_wait(a._need(a.vmq, regs=regs), a._need(a.lgq, regs=regs))
                if len(a.ins) > k0: free_salu = False
        chosen = []
        lastrank = {}
        used = 0
        dsu = 0
        cap = dscap(m) if dscap else 99
        while True:
            best = None
            for s in streams:
                it = s.peek(m)
                if it is None: continue
                lo = it.lo if it.lo is not None else getattr(s, "lo", 0)
                if m < lo: continue
                hi = it.hi if it.hi is not None else getattr(s, "hi", n) - 1
                forced = m >= hi or m == n - 1
                if not forced:
                    if it.ideal - s.ahead > m: continue
                    if it.vm and now < vfree: continue
                    if it.ds and dsu and dsu + it.ds > cap: continue
                    if id(s) in lastrank and it.first and it.first < lastrank[id(s)]: continue
                    c = it.cost - (1 if (it.lead_salu and free_salu and id(s) not in lastrank) else 0)
                    if used + c > budget and not (used == 0 and c > budget and it.ideal <= m): continue
                key = (0 if forced else 1, it.ideal)
                if best is None or key < best[0]: best = (key, s, it)
            if best is None: break
            _, s, it = best
            c = it.cost
            front = False
            if it.lead_salu and free_salu and id(s) not in lastrank:
                c -= 1; free_salu = False; front = True
            used += c
            dsu += it.ds
            if it.vm: vfree = max(now, vfree) + vspace * it.vm
            rank = max(lastrank.get(id(s), 0), it.first)
            chosen.append((-1 if front else rank, len(chosen), it))
            lastrank[id(s)] = max(rank, it.last)
            s.take(m)
        now += 4 * (max(used, nominal) + 2)
        over += max(0, used - nominal)
        worst = max(locals().get('worst', 0), used)
        chosen.sort(key=lambda x: (x[0] if x[0] >= 0 or x[2].last <= 1 else x[2].first, x[1]))
        for _, _, it in chosen:
            a("\n".join(it.lines))
    for s in streams:
        assert s.peek(n) is None, f"stream {s.name} not drained"
    if verbose:
        print(verbose, "overflow slots", over, "worst gap", worst, [(s.name, s.minlead) for s in streams if hasattr(s, "minlead")])


import subprocess, tempfile, os

def _sizes(lines):
    src = '.amdgcn_target "amdgcn-amd-amdhsa--gfx950"\n.text\n' + "\n".join(lines) + "\n"
    d = tempfile.mkdtemp()
    open(d + "/a.s", "w").write(src)
    r = subprocess.run(["clang", "-x", "assembler", "-target", "amdgcn-amd-amdhsa", "-mcpu=gfx950", "-c", d + "/a.s", "-o", d + "/a.o"],
                       capture_output=True, text=True)
    assert r.returncode == 0, r.stderr[:2000]
    out = subprocess.run(["llvm-objdump", "-d", "--mcpu=gfx950", d + "/a.o"], capture_output=True, text=True).stdout
    res = []
    for l in out.splitlines():
        if "//" in l and l.startswith("\t"):
            enc = l.split("//")[1].split(":")[1].split("<")[0].split()
            res.append((4 * len(enc), l.split()[0]))
    return res

NO_WIDEN = ("v_readfirstlane", "v_permlane", "v_accvgpr", "v_nop", "v_fmac", "v_cmp", "v_cndmask")

def align8(text, nop_cost=4.0):
    lines = text.split("\n")
    idx = [i for i, l in enumerate(lines) if l.strip() and not l.strip().endswith(":") and not l.strip().startswith((".", ";"))]
    sz = _sizes(lines)
    assert len(sz) == len(idx), (len(sz), len(idx))
    n = len(idx)
    INF = 1e18
    best = {(0, 0): (0.0, None)}
    hist = []
    for k in range(n):
        s, mn = sz[k]
        can = s == 4 and mn.endswith("_e32") and not mn.startswith(NO_WIDEN)
        nxt = {}
        for (par, p8), (c, _) in best.items():
            opts = [(0, s, 0.0, par, p8)]
            if can: opts.append((1, 8, 0.03, par, p8))
            if s == 8 and par == 1: opts.append((2, s, nop_cost, 0, 0))
            for act, size, extra, par2, q8 in opts:
                pen = 1.1 if (size == 8 and par2 == 1 and q8) else 0.0
                st = ((par2 + size // 4) & 1, 1 if size == 8 else 0)
                cc = c + extra + pen
                if st not in nxt or cc < nxt[st][0]:
                    nxt[st] = (cc, ((par, p8), act))
        hist.append(nxt)
        best = nxt
    st = min(best, key=lambda t: best[t][0])
    total = best[st][0]
    acts = [0] * n
    for k in range(n - 1, -1, -1):
        prev, act = hist[k][st][1]
        acts[k] = act
        st = prev
    out = list(lines)
    for k, act in enumerate(acts):
        l = out[idx[k]]
        if act == 1:
            t = l.strip().split(None, 1)
            out[idx[k]] = "    " + t[0] + "_e64 " + t[1]
        elif act == 2:
            out[idx[k]] = "    s_nop 0\n" + l
    print("align8: widened", acts.count(1), "nops", acts.count(2), "residual cost %.0f" % total)
    return "\n".join(out)
```

```python
import sys, struct, math
from dsl import align8, Asm, interleave, Item, Stream, FragStream, gap_sched
import gen3
from gen import (NAME, fbits, FLG, PROF, WS_BYTES, PY, PX, CBP, CPITCH, U_OFF, LDS_BYTES, sp, SX, SW1, SW2, SOUT, SWS,
                 WAVE, XCD, JJ, SID, vr, ar, kdesc, khead, header)
from gen2 import FY, FX, FH, FS, TAG, SC, S_PAIR, S_SNG, S_HA, S_HC, S_Y, S_ROW
from gen3 import XNT, XP, W2F, HF, ST, SP, TABSZ, TP, RP, KC, CB0, SNG, PAIR, RING, G2X, G2S, parse

YT, XT, W2S, CNT = 0, 10496, 26112, 34304
S_YB, S_YE = "s96", "s97"
V_FX, V_FY, V_KR, V_CNT = 208, 209, 210, 211
VCA, VCB = 212, 213
V_T = 214
V_UG, V_UL, V_ES, V_Z1, V_Z2 = 222, 223, 224, 227, 228
V_P0, V_P1, V_S, V_HF = 236, 237, 238, 239
V_B1, V_DUM, V_ONE = 240, 248, 252
VSL, VCW, VPW, VPR, VXL, VXD, VSR = 214, 215, 216, 217, 218, 219, 220
VX, VFH, VFS, VSG, VB2 = 224, 227, 228, 229, 230
for k in ("V_FX V_FY V_KR VCA VCB V_T V_P0 V_P1 V_S V_HF V_B1 V_DUM V_ONE VSL VCW VPW VPR VXL VXD VSR VX VFH VFS VSG VB2").split():
    setattr(gen3, k, globals()[k])

class F4(gen3.F3):
    def start(self, a):
        o = self.o
        a(f"""
        s_load_dwordx16 s[16:31], s[0:1], 0
        s_load_dwordx16 s[32:47], s[0:1], 64
        s_load_dwordx2 s[48:49], s[0:1], 128
        s_cmp_ge_u32 s2, 256
        s_cbranch_scc1 L_end
        s_getpc_b64 s[72:73]
        L_pc:
        v_lshrrev_b32 v1, 6, v0
        s_lshr_b32 {JJ}, s2, 3
        v_and_b32 v0, 63, v0
        s_lshl_b32 s7, {JJ}, 4
        v_lshl_add_u32 v8, v1, 2, v0
        v_readfirstlane_b32 {WAVE}, v1
        v_add_lshl_u32 v8, v8, s7, 7
        v_mov_b32 v{V_CNT}, {CNT}
        v_min_u32 v8, L_code_end-L_pc-4, v8
        v_mov_b64 v[4:5], 0
        v_mov_b64 v[6:7], 0
        s_mov_b64 exec, 15
        global_load_dword v{V_DUM}, v8, s[72:73]
        ds_write_b128 v{V_CNT}, v[4:7]
        ds_write_b64 v{V_CNT}, v[4:5] offset:16
        s_mov_b64 exec, -1
        s_and_b32 {XCD}, s2, 7
        s_lshl_b32 {SID}, {XCD}, 5
        s_add_u32 {SID}, {SID}, {JJ}
        v_lshrrev_b32 v2, 4, v0
        v_and_b32 v3, 15, v0
        s_lshr_b32 s9, {JJ}, 2
        s_and_b32 s7, {XCD}, 1
        s_lshl_b32 s7, s7, 3
        s_mul_i32 s83, s9, 10
        s_add_u32 s9, s9, s7
        s_lshr_b32 s83, s83, 3
        s_mul_i32 s83, s83, {1 if o.get("yrot", 1) else 0}
        s_and_b32 s7, s9, 1
        s_mul_i32 {S_PAIR}, s9, 192
        s_add_u32 {S_SNG}, {S_PAIR}, 128
        s_lshl_b32 s74, s7, 6
        s_add_u32 {S_PAIR}, {S_PAIR}, s74
        s_lshl_b32 s74, s7, 7
        s_sub_u32 {S_SNG}, {S_SNG}, s74
        s_mov_b32 s54, 2621440
        s_mov_b32 s55, 0x20000
        s_mov_b32 s58, 1966080
        s_mov_b32 s59, 0x20000
        s_mov_b32 s70, {WS_BYTES}
        s_mov_b32 s71, 0x20000
        s_cmp_eq_u32 {WAVE}, 3
        s_cbranch_scc1 L_w3
        v_mul_u32_u24 v7, 1280, v2
        v_lshl_add_u32 v7, v3, 4, v7
        s_lshl_b32 s72, {SID}, 1
        s_add_u32 s72, s72, {WAVE}
        s_mul_i32 s72, s72, 5120
        s_cmp_eq_u32 {WAVE}, 2
        s_cselect_b32 s72, 0x1000000, s72
        s_cselect_b32 s73, {FLG}, s70
        s_mul_i32 s10, {XCD}, 80
        s_mul_i32 s7, {JJ}, 3
        s_add_u32 s10, s10, s7
        s_add_u32 s11, s10, {WAVE}
        s_min_u32 s11, s11, 639
        s_mul_i32 s7, s11, 384
        v_lshl_add_u32 v8, v0, 1, s7
        s_lshl_b32 s7, s11, 1
        v_mov_b32 v6, s7
        """)
        for k in list(range(10, 30, 2)) + [40, 42, 44]: a(f"v_mov_b64 {vr(k,2)}, 0")
        a(f"""
        s_waitcnt lgkmcnt(0)
        s_mov_b64 s[52:53], {sp('x')}
        s_add_u32 s68, s48, {self.o.get("wsoff", 0)}
        s_addc_u32 s69, s49, 0
        """)
        for i in range(5):
            a(f"buffer_load_dwordx4 {vr(48+4*i,4)}, v7, {SX}, s72 offen offset:{256*i}{o.get('xnt', '')}")
        a(f"buffer_load_dword v9, off, {SWS}, s73{SC}")
        self.pstart(a)
        a(f"global_load_short_d16_hi v28, v6, {sp('ldt')}\nglobal_load_short_d16_hi v29, v6, {sp('dsk')}")
        for c in range(3):
            for k, n in enumerate(("are", "aim", "bre", "bim", "cre", "cim")):
                a(f"global_load_short_d16_hi v{10+6*c+k}, v8, {sp(n)} offset:{128*c}{o.get('pnt', '')}")
        a("s_barrier")

    def pstart(self, a):
        if self.prof:
            a("s_memrealtime s[100:101]\ns_waitcnt lgkmcnt(0)\ns_mov_b32 s99, s100")
            a(self.st("start"))

    def consts(self, a):
        T = V_T
        a(f"""
        v_and_b32 v5, 31, v0
        v_lshl_add_u32 v8, v5, 1, {S_PAIR}
        v_lshl_add_u32 v6, v5, 1, {S_SNG}
        """)
        for k in range(V_B1, V_B1 + 8, 2): a(f"v_mov_b64 {vr(k,2)}, 0")
        a(f"""
        s_mov_b32 s62, 1966080
        s_mov_b32 s63, 0x20000
        s_mov_b32 s66, 2621440
        s_mov_b32 s67, 0x20000
        s_mov_b64 s[56:57], {sp('w1')}
        s_mov_b64 s[60:61], {sp('w2')}
        s_mov_b64 s[64:65], {sp('out')}
        global_load_ushort v{V_B1}, v8, {sp('b1')}
        global_load_ushort v{V_B1+2}, v8, {sp('b1')} offset:64
        global_load_ushort v{V_B1+4}, v6, {sp('b1')}
        """)
        if self.prof:
            for r in self.STAMPS[1:]: a(f"s_mov_b32 s{r}, 0")
        a(f"""
        v_lshlrev_b32 v1, 4, v0
        v_lshrrev_b32 v4, 5, v0
        s_mul_i32 s7, {WAVE}, {TABSZ}
        v_mul_u32_u24 v{V_KR}, {TP}, v5
        v_lshl_add_u32 v6, v4, 4, s7
        v_add_u32 v{V_KR}, v{V_KR}, v6
        s_mul_i32 s7, {WAVE}, {RP}
        v_lshl_add_u32 v6, v4, 4, s7
        v_lshl_add_u32 v{T}, v5, 5, v6
        v_cmp_gt_u32 vcc, 32, v0
        v_lshl_add_u32 v6, v5, 4, s7
        v_lshl_add_u32 v7, v5, 3, s7
        v_add_u32 v8, 1024, v6
        v_add_u32 v30, 1536, v7
        v_cndmask_b32 v{T+1}, v30, v8, vcc
        v_add_u32 v8, 1032, v6
        v_add_u32 v30, 1792, v7
        v_cndmask_b32 v{T+2}, v30, v8, vcc
        v_mov_b32 v8, 0x3f80
        v_cndmask_b32 v{V_ONE}, 0, v8, vcc
        v_mov_b32 v{V_ONE+1}, 0
        v_mov_b64 {vr(V_ONE+2,2)}, 0
        v_sub_u32 v6, 63, v0
        v_lshl_add_u32 v{T+3}, v6, 3, s7
        v_lshl_add_u32 v{T+4}, v6, 4, s7
        v_lshl_add_u32 v{T+5}, v0, 5, s7
        v_lshl_add_u32 v{T+6}, v0, 4, s7
        v_lshl_add_u32 v{T+7}, v0, 3, s7
        s_lshl_b32 s7, {WAVE}, 10
        v_lshl_add_u32 v{V_ES}, v0, 2, s7
        v_add_u32 v{V_ES+1}, {RP}, v{V_ES}
        v_add_u32 v{V_ES+2}, {2*RP}, v{V_ES}
        s_add_u32 s74, s7, {CB0+U_OFF+512}
        v_and_b32 v6, 3, v0
        v_lshrrev_b32 v7, 2, v0
        v_min_u32 v8, 2, v6
        v_mul_u32_u24 v{V_UG}, {XP}, v7
        v_lshl_add_u32 v{V_UG}, v8, 4, v{V_UG}
        v_mul_u32_u24 v{V_UL}, {CBP}, v8
        v_lshl_add_u32 v30, v7, 4, s74
        v_add_u32 v{V_UL}, v{V_UL}, v30
        v_lshlrev_b32 v{V_FX}, 8, v7
        v_lshl_add_u32 v{V_FX}, v6, 4, v{V_FX}
        v_lshlrev_b32 v{V_FY}, 2, v6
        s_min_u32 s7, {WAVE}, 2
        s_mul_i32 s7, s7, {CBP}
        s_add_u32 s74, s7, {CB0+4096}
        s_add_u32 s7, s7, {CB0+U_OFF}
        v_lshl_add_u32 v{V_Z2}, v0, 3, s7
        v_sub_u32 v8, v3, v4
        v_lshl_add_u32 v8, v8, 2, s74
        v_mul_u32_u24 v{V_Z1}, {CPITCH}, v2
        v_add_u32 v{V_Z1}, v{V_Z1}, v8
        v_and_b32 v8, 1, v2
        v_lshlrev_b32 v6, 3, v6
        v_lshl_add_u32 v6, v8, 5, v6
        v_and_b32 v7, 3, v7
        v_lshl_add_u32 v7, v4, 3, v7
        v_lshl_add_u32 v{V_S}, v7, 6, v6
        v_add_u32 v{V_S}, {SNG}, v{V_S}
        v_lshl_add_u32 v{V_P0}, v7, 7, v6
        v_and_b32 v7, 8, v0
        v_lshl_add_u32 v{V_P0}, v7, 3, v{V_P0}
        v_add_u32 v{V_P0}, {PAIR}, v{V_P0}
        v_xor_b32 v{V_P1}, 64, v{V_P0}
        v_mul_u32_u24 v{V_HF}, 49152, v8
        v_lshl_add_u32 v{V_HF}, v4, 8, v{V_HF}
        v_lshl_add_u32 v{V_HF}, v3, 4, v{V_HF}
        s_cmp_eq_u32 {WAVE}, 3
        s_cselect_b32 s7, 0, {WAVE}
        s_mul_i32 s7, s7, {CBP}
        s_add_u32 s7, s7, {CB0}
        v_lshl_add_u32 v6, v2, 4, s7
        v_lshl_add_u32 v{VCB}, v3, 5, v6
        v_sub_u32 v7, 15, v3
        v_and_b32 v8, 3, v7
        v_and_b32 v7, 12, v7
        v_lshl_add_u32 v6, v7, 1, v6
        v_mul_u32_u24 v{VCA}, {CPITCH}, v8
        v_add_u32 v{VCA}, v{VCA}, v6
        s_lshr_b32 s8, {XCD}, 1
        s_lshl_b32 s12, s8, 3
        s_lshl_b32 s8, s8, 2
        s_and_b32 s7, {JJ}, 3
        s_add_u32 s8, s8, s7
        s_and_b32 s7, {JJ}, 7
        s_add_u32 s12, s12, s7
        s_and_b32 s13, {XCD}, 1
        s_lshl_b32 s13, s13, 2
        s_lshr_b32 s7, {JJ}, 3
        s_add_u32 s13, s13, s7
        s_add_u32 s11, {"s7" if self.o.get("hrot", 0) else "0"}, {WAVE}
        s_and_b32 s11, s11, 3
        s_lshl_b32 {S_YB}, s8, 2
        s_add_u32 {S_YB}, {S_YB}, {WAVE}
        s_mul_i32 {S_HA}, {S_YB}, 96
        s_mul_i32 {S_YB}, {S_YB}, 40960
        s_add_u32 {S_YE}, {S_YB}, 40960
        s_lshl_b32 s7, s83, 12
        s_add_u32 {S_Y}, {S_YB}, s7
        s_lshl_b32 s86, s8, 8
        s_lshl_b32 s7, {WAVE}, 4
        s_add_u32 s86, s86, s7
        s_add_u32 s86, s86, {FY}
        """)

    def late_scalars(self):
        return [f"s_mul_i32 s73, s9, 3", f"s_add_u32 {S_HA}, {S_HA}, s73", f"s_lshl_b32 {S_HA}, {S_HA}, 10", f"s_add_u32 {S_HA}, {S_HA}, {HF}",
                f"s_add_u32 {S_HC}, {S_HA}, 2048", f"s_and_b32 s73, s9, 1", f"s_lshl_b32 s73, s73, 10", f"s_add_u32 {S_HA}, {S_HA}, s73",
                f"s_lshl_b32 s73, s73, 1", f"s_sub_u32 {S_HC}, {S_HC}, s73",
                f"s_mul_i32 s10, {XCD}, 80", f"s_mul_i32 s73, {JJ}, 3", f"s_add_u32 s10, s10, s73",
                f"s_cmp_lt_u32 {JJ}, 27\ns_cselect_b32 s10, s10, 0x20000", f"s_mul_i32 {S_ROW}, s10, {SP}", f"s_add_u32 {S_ROW}, {S_ROW}, {ST}",
                f"s_lshl_b32 s83, s10, 4", f"s_mul_i32 s73, {WAVE}, {64*XP}", f"s_add_u32 s83, s83, s73",
                f"s_cmp_lt_u32 {JJ}, 27\ns_cselect_b32 s83, s83, 0x1000000", f"s_add_u32 s83, s83, {XNT}",
                f"s_mul_i32 s85, s13, 20", f"s_add_u32 s85, s85, {WAVE}", f"s_mul_i32 s85, s85, {12*1024}", f"s_add_u32 s85, s85, {W2F}"]

    def step(self, a):
        a(f"s_lshl_b32 s7, s82, 1\ns_add_u32 m0, s7, {PAIR}\ns_add_u32 s7, s80, {S_PAIR}")
        for k in range(4): a(f"buffer_load_dwordx4 v{40+k}, {SW1}, s7 offen offset:{1024*k} lds")
        a(f"s_add_u32 m0, s82, {SNG}\ns_add_u32 s7, s80, {S_SNG}")
        for k in range(2): a(f"buffer_load_dwordx4 v{44+k}, {SW1}, s7 offen offset:{1024*k} lds")
        a(f"""
        s_add_u32 s82, s82, 2048
        s_add_u32 s80, s80, {32*3072}
        s_cmp_eq_u32 s82, 40960
        s_cselect_b32 s82, 0, s82
        s_cmp_eq_u32 s80, {640*3072}
        s_cselect_b32 s80, 0, s80
        """)

    def wave3a(self, a):
        o = self.o
        a(f"""
        v_lshrrev_b32 v4, 3, v0
        v_mul_u32_u24 v40, 3072, v4
        v_lshrrev_b32 v4, 2, v0
        v_mul_u32_u24 v44, 3072, v4
        v_xor_b32 v4, v4, v2
        v_and_b32 v4, 1, v4
        v_lshl_add_u32 v40, v4, 6, v40
        v_and_b32 v4, 3, v0
        v_lshl_add_u32 v40, v4, 4, v40
        v_lshl_add_u32 v44, v4, 4, v44
        v_add_u32 v41, {24576-1024}, v40
        v_add_u32 v42, {24576-1024}, v41
        v_add_u32 v43, {24576-1024}, v42
        v_add_u32 v45, {49152-1024}, v44
        s_and_b32 s7, {JJ}, 3
        s_mul_i32 s82, s7, 10240
        s_mul_i32 s80, s7, 5
        s_lshl_b32 s7, s83, 1
        s_add_u32 s80, s80, s7
        s_sub_u32 s7, s80, 20
        s_cselect_b32 s80, s80, s7
        s_mul_i32 s80, s80, {32*3072}
        s_mov_b32 s73, {o.get("n0", 4)}
        v_min_u32 v4, 59, v0
        v_mul_u32_u24 v5, 5462, v4
        v_lshrrev_b32 v5, 16, v5
        v_mul_u32_u24 v5, {3072-12*128}, v5
        v_lshl_add_u32 v46, v4, 7, v5
        v_add_u32 v47, {5*3072}, v46
        s_mul_i32 s74, {JJ}, {20*3072}
        s_and_b32 s7, {XCD}, 1
        s_mul_i32 s7, s7, 1536
        s_add_u32 s74, s74, s7
        s_add_u32 s75, s74, {10*3072}
        s_waitcnt lgkmcnt(0)
        s_mov_b64 s[52:53], {sp('x')}
        s_add_u32 s68, s48, {self.o.get("wsoff", 0)}
        s_addc_u32 s69, s49, 0
        s_mov_b64 s[56:57], {sp('w1')}
        """)
        self.pstart(a)
        a("s_barrier")
        if o.get("w1pf", 0):
            for i in range(4): a(f"buffer_load_dword v{V_DUM}, v{46+(i&1)}, {SW1}, s{74+(i>>1)} offen{o.get('w1nt', '')}")
        for _ in range(o.get("n0", 4)): self.step(a)

    def spin(self, name, off, both):
        t = (f"L_sp{name}:\nds_read_b64 v[4:5], v{V_CNT} offset:{off}\ns_waitcnt lgkmcnt(0)\n")
        if both: t += "v_and_b32 v4, v4, v5\n"
        t += f"v_readfirstlane_b32 s7, v4\ns_cmp_eq_u32 s7, 0\ns_cbranch_scc1 L_sp{name}"
        if not both: t += f"\nv_readfirstlane_b32 {TAG}, v5\nv_readfirstlane_b32 s51, v5"
        return t

    def wave3b(self, a):
        a(f"L_dma:\ns_waitcnt vmcnt({self.o.get('dcap', 24)})")
        self.step(a)
        a(f"s_add_u32 s73, s73, 1\ns_cmp_lt_u32 s73, 20\ns_cbranch_scc1 L_dma")
        a(self.st("w3.dma"))
        a(self.spin("3", 16, False))
        a(self.poll_load(4, False, V_FY, "s86"))
        a(self.poll_check("y3", 4, False, V_FY, "s86"))
        a(self.st("ypoll"))
        for x in self.yloads()[:self.o.get("ny", 8)]: a(x)

    def red16(self, v, fill):
        L = []
        for i, m in enumerate(("quad_perm:[1,0,3,2]", "quad_perm:[2,3,0,1]", "row_half_mirror", "row_mirror")):
            L += fill[2 * i:2 * i + 2] + [f"v_add_f32_dpp v{v}, v{v}, v{v} {m} row_mask:0xf bank_mask:0xf"]
        return L + fill[8:]

    def s4(self, a):
        R, X = 48, 112
        for k in range(20):
            a(f"v_lshlrev_b32 v{X+2*k}, 16, v{R+k}\nv_and_b32 v{X+2*k+1}, 0xffff0000, v{R+k}")
            if k == 0: a(self.st("s.x"))
        a(f"v_pk_add_f32 v[160:161], {vr(X,2)}, {vr(X+2,2)}")
        for k in range(2, 20): a(f"v_pk_add_f32 v[160:161], v[160:161], {vr(X+2*k,2)}")
        a("v_add_f32 v160, v160, v161")
        fill = [f"s_lshl_b32 s7, {WAVE}, 2", "v_add_u32 v6, s7, v2", f"v_add_u32 v8, s7, v{V_CNT}", f"v_mul_u32_u24 v4, {PY}, v6",
                f"v_mul_u32_u24 v5, {PX}, v6", "v_lshl_add_u32 v4, v3, 4, v4", "v_lshl_add_u32 v5, v3, 4, v5", f"s_mov_b32 s74, {fbits(1/640)}"]
        for x in self.red16(160, fill): a(x)
        a("v_mul_f32 v162, s74, v160")
        for k in range(20):
            a(f"v_pk_add_f32 {vr(X+2*k,2)}, {vr(X+2*k,2)}, v[162:163] op_sel_hi:[1,0] neg_lo:[0,1] neg_hi:[0,1]")
        a(f"v_pk_mul_f32 v[160:161], {vr(X,2)}, {vr(X,2)}")
        for k in range(1, 20): a(f"v_pk_fma_f32 v[160:161], {vr(X+2*k,2)}, {vr(X+2*k,2)}, v[160:161]")
        a("v_add_f32 v160, v160, v161")
        fill = ["v_cvt_pk_bf16_f32 v168, v162, v162", f"s_mov_b32 s75, {fbits(1e-5)}", "v_lshlrev_b32 v168, 16, v168", "v_mov_b32 v7, 1",
                "v_sub_f32 v168, v162, v168", "v_mov_b64 v[196:197], 0", "v_mov_b64 v[200:201], 0", "v_mov_b64 v[202:203], 0"]
        for x in self.red16(160, fill): a(x)
        a("v_mul_f32 v160, s74, v160")
        self.rbf(a, 161, 160)
        a("v_add_f32 v161, s75, v161")
        self.rbf(a, 161, 161)
        a("v_sqrt_f32 v161, v161")
        self.rbf(a, 161, 161)
        a("v_rcp_f32 v164, v161")
        a("v_mul_f32 v160, v160, v164\nv_mul_f32 v160, v160, v164")
        self.rbf(a, 161, 160)
        a("v_add_f32 v161, s75, v161")
        self.rbf(a, 161, 161)
        a("v_sqrt_f32 v161, v161\nv_mul_f32 v168, v168, v164")
        self.rbf(a, 161, 161)
        a("v_rcp_f32 v166, v161\nv_mul_f32 v166, v166, v164")
        for k in range(20):
            a(f"v_pk_mul_f32 v[170:171], {vr(X+2*k,2)}, v[166:167] op_sel_hi:[1,0]\nv_cvt_pk_bf16_f32 v{R+k}, v170, v171")
        for i in range(5): a(f"ds_write_b128 v4, {vr(R+4*i,4)} offset:{YT+256*i}")
        a("s_mov_b64 exec, 1\nds_write_b32 v8, v7\ns_mov_b64 exec, -1")
        pass
        for k in range(20):
            a(f"v_pk_fma_f32 v[170:171], {vr(X+2*k,2)}, v[164:165], v[168:169] op_sel_hi:[1,0,0]\nv_cvt_pk_bf16_f32 v{R+20+k}, v170, v171")
        for i in range(5): a(f"ds_write_b128 v5, {vr(R+20+4*i,4)} offset:{XT+256*i}")
        a("s_mov_b64 exec, 1\nds_write_b32 v8, v7 offset:8\ns_mov_b64 exec, -1")
        a(self.st("s.done"))

    def w2_pre(self, a):
        a(f"""
        v_and_b32 v4, 7, v0
        v_lshrrev_b32 v5, 3, v0
        v_mul_u32_u24 v196, {PY}, v4
        v_lshl_add_u32 v196, v5, 4, v196
        v_lshlrev_b32 v197, 9, v5
        v_lshl_add_u32 v197, v4, 4, v197
        v_bfe_u32 v4, v0, 2, 2
        v_and_b32 v5, 3, v0
        v_mul_u32_u24 v198, {PX}, v4
        v_lshl_add_u32 v198, v2, 5, v198
        v_lshl_add_u32 v198, v5, 3, v198
        v_lshrrev_b32 v4, 5, v0
        v_lshlrev_b32 v199, 12, v4
        v_bfe_u32 v4, v0, 2, 3
        v_lshl_add_u32 v199, v4, 8, v199
        v_lshl_add_u32 v199, v5, 3, v199
        v_mul_u32_u24 v200, 1280, v2
        v_lshl_add_u32 v200, v3, 4, v200
        v_add_u32 v201, {5120-1024}, v200
        v_add_u32 v202, {5120-1024}, v201
        v_add_u32 v203, {5120-1024}, v202
        s_min_u32 s7, s2, 239
        s_mul_i32 s14, s7, 52429
        s_lshr_b32 s14, s14, 18
        s_mul_i32 s15, s14, 5
        s_sub_u32 s15, s7, s15
        s_mul_i32 s84, s14, 40960
        s_lshl_b32 s7, s15, 8
        s_add_u32 s84, s84, s7
        s_mul_i32 s15, s15, {8*48}
        s_add_u32 s14, s14, s15
        s_lshl_b32 s14, s14, 10
        s_add_u32 s14, s14, {W2F}
        s_lshr_b32 s15, {SID}, 2
        s_mul_i32 s15, s15, 40960
        s_and_b32 s7, {SID}, 3
        s_lshl_b32 s7, s7, 7
        s_add_u32 s15, s15, s7
        s_lshr_b32 s81, {SID}, 4
        s_lshl_b32 s81, s81, 8
        s_and_b32 s7, {SID}, 15
        s_lshl_b32 s7, s7, 2
        s_add_u32 s81, s81, s7
        s_add_u32 s81, s81, {FY}
        s_mul_i32 s79, {SID}, {XP}
        s_add_u32 s79, s79, {XNT}
        v_readfirstlane_b32 s7, v9
        s_mul_i32 s7, s7, 1664525
        s_add_u32 {TAG}, s7, 1013904223
        s_mov_b32 s51, {TAG}
        v_mov_b32 v204, 1
        v_mov_b32 v205, {TAG}
        """)

    def only2(self, a, name, body, other=None):
        a(f"s_cmp_eq_u32 {WAVE}, 2\ns_cbranch_scc0 L_o{name}")
        st0 = a.state()
        for x in body: a(x)
        if other:
            a(f"s_branch L_j{name}\nL_o{name}:")
            st1 = a.state(); a.set_state(st0)
            for x in other: a(x)
            a(f"L_j{name}:")
            a.merge([st1, a.state()])
        else:
            a(f"L_o{name}:")
            st1 = a.state()
            a.merge([st0, st1])
        a.vmq = [(set(r), set(t)) for r, t in st1[0]]

    def kgen4(self, a):
        o = self.o
        VF, UF, CH = self.VF, self.UF, 112
        W1, W8, W256, T, C0 = 176, 178, 180, 182, 194
        DT, DTL = 30, 31
        L2E = 1.4426950408889634
        f32 = lambda x: struct.unpack("<f", struct.pack("<f", x))[0]
        I2P = 1 / (2 * math.pi)
        head = (f"""
        s_mov_b32 s72, {fbits(f32(L2E))}
        s_mov_b32 s73, {fbits(L2E-f32(L2E))}
        s_mov_b32 s76, {fbits(math.log(2))}
        v_mul_f32 v{T}, s72, v28
        v_fma_f32 v{T+1}, v28, s72, -v{T}
        v_fma_f32 v{T+1}, v28, s73, v{T+1}
        v_exp_f32 v{T}, v{T}
        v_mul_f32 v{T+1}, s76, v{T+1}
        v_cmp_eq_u32 vcc, 0, v0
        v_fma_f32 v{T}, v{T}, v{T+1}, v{T}
        v_cvt_pk_bf16_f32 v{DT}, v{T}, v{T}
        v_lshlrev_b32 v{DT}, 16, v{DT}
        v_cndmask_b32 v29, 0, v29, vcc
        v_mul_f32 v{DTL}, s72, v{DT}
        s_mov_b32 s74, {fbits(f32(I2P))}
        s_mov_b32 s75, {fbits(I2P-f32(I2P))}
        s_mov_b32 s77, {fbits(256.0)}
        s_mov_b32 s78, {fbits(8.0)}
        """)
        pass
        yl = self.yloads()[:o.get("ny", 8)]
        m0tab = f"s_mul_i32 m0, {WAVE}, {TABSZ}"
        P1 = [self.spin("y", 0, True)] + [f"ds_read_b128 {ar(4*I,4)}, v196 offset:{YT+128*I}" for I in range(10)]
        for I in range(10):
            P1.append(f"buffer_store_dwordx4 {ar(4*I,4)}, v197, {SWS}, s15 offen{SC} @yst" + ("\ns_add_u32 s15, s15, 4096" if I < 9 else ""))
        P1 += [self.st("p.yst"), self.spin("x", 8, True)]
        for I in range(10):
            P1 += [f"ds_read_b64_tr_b16 {ar(40+4*I,2)}, v198 offset:{XT+128*I}", f"ds_read_b64_tr_b16 {ar(42+4*I,2)}, v198 offset:{XT+128*I+4*PX}"]
        P1.append(f"s_mov_b64 exec, 1\nds_write_b64 v{V_CNT}, v[204:205] offset:16\ns_mov_b64 exec, -1")
        w2d = [f"s_mov_b32 m0, {W2S}"]
        for h in range(2):
            w2d += [f"buffer_load_dwordx4 v{200+k}, {SW2}, s84 offen offset:{1024*k}{o.get('wnt', '')} lds @w2dma" for k in range(4)]
            if h == 0: w2d.append(f"s_mov_b32 m0, {W2S+4096}\ns_add_u32 s84, s84, {4*5120}")
        xst = []
        for I in range(10):
            xst.append(("s_add_u32 s79, s79, 4096\n" if I in (4, 8) else "") + f"buffer_store_dwordx4 {ar(40+4*I,4)}, v1, {SWS}, s79 offen offset:{1024*(I%4)}{SC}")
        w2r = ["WAITVM w2dma"]
        for db in range(8):
            w2r += [f"ds_read_b64_tr_b16 {ar(80+4*db,2)}, v199 offset:{W2S+32*db}", f"ds_read_b64_tr_b16 {ar(82+4*db,2)}, v199 offset:{W2S+32*db+2048}"]
        w2s = [f"buffer_store_dwordx4 {ar(80+4*db,4)}, v1, {SWS}, s14 offen{SC}" + (f"\ns_add_u32 s14, s14, {48*1024}" if db < 7 else "") for db in range(8)]
        fy = ["WAITVM yst", f"s_mov_b64 exec, 1\nbuffer_store_dword v205, off, {SWS}, s81{SC}\ns_mov_b64 exec, -1", self.st("p.fy")]
        fx = [f"s_add_u32 s81, s81, {FX-FY}\ns_mov_b64 exec, 1\nbuffer_store_dword v205, off, {SWS}, s81{SC}\ns_mov_b64 exec, -1", ""]
        fypos = o.get("fypos", 1)
        p1pos = o.get("p1pos", 1)
        if p1pos == 0:
            self.only2(a, "p0", P1 + ["s_waitcnt vmcnt(10)"], ["s_waitcnt vmcnt(0)"])
            P1 = []
        a(head)
        for c in range(3):
            p = 10 + 6 * c
            setup = [f"v_mul_f32 v{T}, v{p}, v{DTL}", f"v_mul_f32 v{T+1}, v{p+1}, v{DT}",
                     f"v_mul_f32 v{T+2}, s74, v{T+1}", f"v_fma_f32 v{T+3}, v{T+1}, s74, -v{T+2}",
                     f"v_fma_f32 v{T+3}, v{T+1}, s75, v{T+3}",
                     f"v_mul_f32 v{T+4}, s78, v{T}", f"v_mul_f32 v{T+5}, s78, v{T+2}",
                     f"v_mul_f32 v{T+6}, s77, v{T}", f"v_mul_f32 v{T+7}, s77, v{T+2}",
                     f"v_exp_f32 v{T+4}, v{T+4}", f"v_fract_f32 v{T+5}, v{T+5}",
                     f"v_exp_f32 v{T+6}, v{T+6}", f"v_fract_f32 v{T+7}, v{T+7}",
                     f"v_exp_f32 v{T+8}, v{T}", f"v_fract_f32 v{T+9}, v{T+2}",
                     f"v_fma_f32 v{T+5}, v{T+3}, s78, v{T+5}", f"v_fma_f32 v{T+7}, v{T+3}, s77, v{T+7}",
                     f"v_add_f32 v{T+9}, v{T+3}, v{T+9}",
                     f"v_cos_f32 v{W8}, v{T+5}", f"v_sin_f32 v{W8+1}, v{T+5}",
                     f"v_cos_f32 v{W256}, v{T+7}", f"v_sin_f32 v{W256+1}, v{T+7}",
                     f"v_cos_f32 v{W1}, v{T+9}", f"v_sin_f32 v{W1+1}, v{T+9}"]
            setup += self.cmul(T + 10, p + 4, p + 2)
            setup += [f"v_pk_mul_f32 {vr(W8,2)}, {vr(W8,2)}, {vr(T+4,2)} op_sel_hi:[1,0]",
                      f"v_pk_mul_f32 {vr(W256,2)}, {vr(W256,2)}, {vr(T+6,2)} op_sel_hi:[1,0]",
                      f"v_pk_mul_f32 {vr(W1,2)}, {vr(W1,2)}, {vr(T+8,2)} op_sel_hi:[1,0]",
                      f"v_pk_mul_f32 {vr(C0,2)}, {vr(T+10,2)}, {vr(DT,2)} op_sel_hi:[1,0]"]
            Vv = lambda j: W8 if j == 1 else CH + 2 * j
            vchain = []
            for j in range(2, 32): vchain += self.cmul(Vv(j), Vv(j - 1), W8)
            vcvt = [f"v_mov_b32 v{CH}, 0x3f80"] + [f"v_cvt_pk_bf16_f32 v{CH+2*j}, v{Vv(j)}, v{Vv(j)+1}" for j in range(1, 32)]
            vwr = [f"ds_write_addtid_b32 v{CH+2*j} offset:{TP*j}" for j in range(32)]
            Ur = lambda i: C0 if i == 0 else CH + 2 * i
            uchain = []
            for i in range(1, 8): uchain += self.cmul(Ur(i), Ur(i - 1), W1)
            for i, s in ((8, 0), (9, 2), (10, 4), (11, 6), (12, 8), (13, 10), (14, 12), (15, 13), (16, 14), (17, 16), (18, 17), (19, 18), (20, 19)):
                uchain += self.cmul(Ur(i), Ur(s), W256)
            ucvt = [f"v_cvt_pk_bf16_f32 v{Ur(i)}, v{Ur(i)}, -v{Ur(i)+1}" for i in range(21)]
            uwr = [f"ds_write_addtid_b32 v{Ur(i)} offset:{TP*(i if i < 20 else 23)}" for i in range(21)]
            E = lambda L: [a(x) for x in L]
            ypos = o.get("ypos", 2)
            chk = lambda: (E([self.poll_check("y0", 2, False, V_FY, "s86"), self.st("ypoll")]), self.only2(a, "fx", fx))
            ng = {0: 5, 1: 4, 2: 2}[ypos]
            grp = [yl[len(yl) * k // ng:len(yl) * (k + 1) // ng] for k in range(ng)] if c == 2 else [[]] * 5
            grp = [[]] * (5 - ng) + grp
            E(setup[:6])
            if c: E(self.kreads(UF))
            if c == 1 and fypos == 1: self.only2(a, "fy", fy + xst[:5])
            if c == 2 and ypos == 1: E([self.poll_load(2, False, V_FY, "s86")])
            E(setup[6:])
            if c == 2 and ypos == 0: chk()
            E(grp[0] + vchain)
            if c == 0:
                E(vcvt + (["s_waitcnt vmcnt(0)"] if p1pos else []))
                self.only2(a, "p1", P1 + (fy + xst[:5] if fypos == 3 else []) + w2d, [self.spin("f", 16, False)])
                E([m0tab] + vwr)
            else:
                E(vcvt[:18])
                if c == 1: self.only2(a, "x2", (fy + xst if fypos == 2 else xst[5:]) + w2r)
                if c == 2 and ypos == 2: E([self.poll_load(2, False, V_FY, "s86")])
                if c == 2 and ypos == 1: chk()
                E(grp[1])
                mf = self.kmf(c == 1)
                for k in range(8): E([mf[k]] + vwr[4 * k:4 * k + 4] + vcvt[18 + 2 * k:20 + 2 * k])
            E(uchain[:8] + self.kreads(VF) + grp[2])
            if c == 1: self.only2(a, "w2", w2s)
            E(uchain[8:] + ucvt)
            if c == 1 and ypos == 0: E([self.poll_load(2, False, V_FY, "s86")])
            if c == 2 and ypos == 2: chk()
            E(grp[3] + uwr + grp[4])
            if c == 0 and fypos == 0: self.only2(a, "fy", fy + xst[:5])
            a(self.st(f"kg{c}"))
        for x in self.kreads(UF): a(x)
        a("s_waitcnt lgkmcnt(0)")

    def yloads(self):
        L = []
        for ks in range(40):
            x = f"buffer_load_dwordx4 {ar(4*ks,4)}, v1, {SWS}, {S_Y} offen offset:{1024*(ks%4)}{SC}"
            if ks % 4 == 0 and ks:
                x = f"s_add_u32 {S_Y}, {S_Y}, 4096\ns_cmp_eq_u32 {S_Y}, {S_YE}\ns_cselect_b32 {S_Y}, {S_YB}, {S_Y}\n" + x
            L.append(x)
        return L

    def gemm1f(self, a):
        o = self.o
        ACC = (48, 64, 32)
        uses = [[] for _ in range(10)]
        for ks in range(40): uses += [[(0, ks)], [(1, ks)]]
        uses += [[] for _ in range(41)]
        def reads(f, reg):
            p, ks = f
            base = V_P0 + p
            off = ks * 2048 - (65536 if ks >= 32 else 0)
            pre = [f"v_add_u32 v{base}, 0x10000, v{base}"] if ks == 32 else []
            return pre + [f"ds_read_b64_tr_b16 {vr(reg,2)}, v{base} offset:{off}", f"ds_read_b64_tr_b16 {vr(reg+2,2)}, v{base} offset:{off+512}"]
        fr = FragStream(uses, reads, list(range(112, 144, 4)), lead=6, name="pair")
        main = self.kmf(False)
        main += [f"v_mfma_f32_32x32x16_bf16 {vr(ACC[p],16)}, {vr(V_B1+2*p,4)}, {vr(V_ONE,4)}, 0" for p in range(2)]
        for ks in range(40):
            for p in range(2):
                main.append(lambda p=p, ks=ks: f"v_mfma_f32_32x32x16_bf16 {vr(ACC[p],16)}, {vr(fr.reg[(p,ks)],4)}, {ar(4*ks,4)}, {vr(ACC[p],16)}")
        main.append(self.st("g1.ab") + f"\nv_mfma_f32_32x32x16_bf16 {vr(ACC[2],16)}, {vr(V_B1+4,4)}, {vr(V_ONE,4)}, 0")
        for ks in range(40):
            main.append(f"v_mfma_f32_32x32x16_bf16 {vr(ACC[2],16)}, {self.creg(ks)[0]}, {ar(4*ks,4)}, {vr(ACC[2],16)}")
        for gidx in (10, 26, 42, 58, 70):
            t0 = main[gidx]
            st_ = self.st(f"m{gidx}")
            main[gidx] = (lambda t0=t0, st_=st_: st_ + "\n" + t0())
        mb = o.get("mb", 58)
        S = [fr]
        cpre = []
        for ks in range(40):
            cpre += [f"ds_read_b64_tr_b16 {self.creg(ks)[1](h)}, v{V_S} offset:{ks*1024+256*h}" for h in range(2)]
        S.append(Stream(cpre, 0, mb - 3, ahead=8, name="cpre"))
        ny = o.get("ny", 8)
        yl = [Item(x, hi=max(0, 10 + 2 * (ny + i) - o.get("ylead", 20))) for i, x in enumerate(self.yloads()[ny:])]
        S.append(Stream(yl, 0, o.get("yend", 60), ahead=3, name="y"))
        t1, t2 = self.ktail3()
        S.append(Stream(t1, 10, 26, name="t1"))
        S.append(Stream(t2, 30, mb - 4, name="t2"))
        misc = self.late_scalars() + [f"s_mov_b32 s74, {fbits(-1.5957691216057308*1.4426950408889634)}",
                f"s_mov_b32 s75, {fbits(-1.5957691216057308*0.044715*1.4426950408889634)}",
                "v_mov_b32 v8, s74", "v_mov_b32 v9, s75", "v_mov_b32 v30, 1.0", "v_mov_b32 v31, 1.0"]
        mxp, mx = o.get("mxp", 56), o.get("mx", 78)
        S.append(Stream(misc, 0, mx - 2, name="misc"))
        S.append(Stream([f"s_mov_b32 s84, {FX}\n" + self.poll_load(2, True, V_FX, "s84")], mxp, mxp + 1))
        S.append(Stream([self.poll_check("x", 2, True, V_FX, "s84") + "\n" + self.st("xpoll")] +
                        [("" if i == 0 else f"s_add_u32 s83, s83, {16*XP}\n") + f"buffer_load_dwordx4 {ar(240+4*i,4)}, v{V_UG}, {SWS}, s83 offen{SC}" for i in range(4)],
                        mx, mx + 12, ahead=0))
        nw = o.get("nw", 14)
        S.append(Stream([Item(x, lo=92 + i) for i, x in enumerate(self.w2f_items()[:nw])], max(93, mx + 12), 131, name="w2f"))
        S.append(Stream([f"s_lshl_b32 s7, {WAVE}, 10\ns_add_u32 m0, s7, {CB0}\ns_waitcnt lgkmcnt(0)\ns_barrier"], mb, mb + 1))
        exr, exw = [], []
        e0, e1 = mb + 1, o.get("exend", 89)
        for q in range(12):
            ch, row = divmod(q, 4)
            E, O = 10 + 2 * (q % 6), 22 + (q % 4)
            d = ch * CBP + row * 256
            g0 = e0 + 4 + (e1 - e0 - 4) * q // 12
            g1 = e0 + 4 + (e1 - e0 - 4) * (q + 1) // 12
            prev = e0 + 4 + (e1 - e0 - 4) * (q - 5) // 12 if q >= 6 else e0
            exr.append(Item(f"ds_read2_b32 {vr(E,2)}, v{V_ES+ch} offset0:{64*row} offset1:{64*row+1}", lo=prev + 1, hi=max(prev + 1, g0 - 3)))
            exw += [Item(f"ds_write_addtid_b32 v{E} offset:{d}", lo=g0, hi=g1), Item(f"ds_write_addtid_b32 v{E} offset:{d+2*CPITCH-4}", hi=g1),
                    Item(f"v_alignbit_b32 v{O}, v{E+1}, v{E}, 16", hi=g1),
                    Item(f"ds_write_addtid_b32 v{O} offset:{d+CPITCH}"), Item(f"ds_write_addtid_b32 v{O} offset:{d+3*CPITCH-4}")]
        exw += [f"ds_write_b32 v{V_Z1}, v26", f"ds_write_b64 v{V_Z2}, v[26:27]"]
        S.append(Stream(exr, e0, e1 - 6, ahead=100, name="exr"))
        S.append(Stream(exw, e0 + 4, e1 + 2, ahead=3, name="exw"))
        nB = o.get("nB", 2)
        S.append(Stream(self.gelu4(ACC[0], 10, range(8)) + self.hstore(10, S_HA, 0) + self.gelu4(ACC[1], 18, range(nB)), e1 + 3, 131, ahead=4, name="gelu"))
        gap_sched(a, main, S, "g1")
        a(self.st("g1.c"))
        gp = lambda acc_, out: [x.replace("v[10:11]", "v[30:31]") for x in self.gelu_packed(acc_, out, 2)]
        w2l = self.w2f_items()[nw:]
        nt = o.get("nt", 8)
        for x in gp(64, 18)[nB // 2 * 20:] + self.hstore(18, S_HA, 1024) + w2l[:nt // 2]: a(x)
        for i in range(4): a(f"ds_write_b128 v{V_UL}, {ar(240+4*i,4)} offset:{256*i}")
        gc = gp(32, 80)
        for x in gc[:20]: a(x)
        a("s_waitcnt lgkmcnt(0)\ns_barrier")
        self.tail = gc[20:40] + self.hstore(80, S_HC, 0)[:1] + w2l[nt // 2:nt] + gc[40:] + self.hstore(80, S_HC, 0)[1:]
        self.w2rest = w2l[nt:]

    def late_consts(self):
        t = 233
        L = []
        for i in range(3):
            L += [f"v_add_u32 v{t}, {64*i}, v0", f"v_mul_u32_u24 v{t+1}, 6554, v{t}", f"v_lshrrev_b32 v{t+1}, 16, v{t+1}",
                  f"v_mul_u32_u24 v{t+1}, 1120, v{t+1}", f"v_lshl_add_u32 v{VX+i}, v{t}, 4, v{t+1}"]
        L += [f"v_and_b32 v{t}, 15, v0", f"v_lshrrev_b32 v{t+1}, 4, v0", f"s_mul_i32 s73, s13, 160", f"v_lshl_add_u32 v{VB2}, v{t}, 1, s73",
              f"s_lshl_b32 s14, s12, 2", f"s_add_u32 s14, s14, s11", f"s_mul_i32 s14, s14, {16*1280}", f"s_add_u32 s14, s14, s73",
              f"v_cmp_gt_u32 vcc, 16, v0", f"s_mul_i32 s15, {WAVE}, 3072", f"s_add_u32 s15, s15, {G2X}", f"v_cndmask_b32 v{V_ONE}, 0, v{V_ONE}, vcc",
              f"s_mov_b32 m0, s15", f"v_add_u32 v{VXL}, s15, v1",
              f"v_mul_u32_u24 v{VXD}, 160, v{t}", f"v_lshl_add_u32 v{t+2}, v{t+1}, 3, s15", f"v_add_u32 v{VXD}, v{VXD}, v{t+2}",
              f"s_mul_i32 s73, {WAVE}, 10240", f"s_add_u32 s73, s73, {RING}", f"v_add_u32 v{VPW}, s73, v1",
              f"v_lshl_add_u32 v{t+2}, v{t+1}, 3, s73", f"v_lshl_add_u32 v{VCW}, v{t}, 5, v{t+2}",
              f"v_and_b32 v{t}, 3, v0", f"v_and_b32 v{t+1}, 4, v0", f"v_lshl_add_u32 v{VFH}, v{t}, 4, v{t+1}"]
        return L

    def late_consts2(self):
        t = 233
        return [f"s_add_u32 s73, {WAVE}, 1", f"s_and_b32 s73, s73, 3", f"s_mul_i32 s73, s73, 10240", f"s_add_u32 s73, s73, {RING}",
                f"v_lshl_add_u32 v{VPR}, v0, 2, s73",
                f"v_min_u32 v{t}, 26, v0", f"v_lshrrev_b32 v{t+1}, 2, v{t}", f"v_and_b32 v{t}, 3, v{t}", f"v_lshlrev_b32 v{VFS}, 8, v{t+1}",
                f"v_lshl_add_u32 v{VFS}, v{t}, 4, v{VFS}",
                f"v_lshrrev_b32 v{t}, 3, v0", f"v_and_b32 v{t+1}, 7, v0", f"v_mul_u32_u24 v{VSG}, {SP}, v{t}", f"v_lshl_add_u32 v{VSG}, v{t+1}, 4, v{VSG}",
                f"v_lshrrev_b32 v{t+1}, 1, v{t+1}", f"v_mul_u32_u24 v{VSL}, 2560, v{t+1}", f"v_lshl_add_u32 v{VSL}, v{t}, 5, v{VSL}",
                f"s_mul_i32 s73, {WAVE}, 640", f"s_add_u32 s73, s73, {G2S}",
                f"v_and_b32 v{t+1}, 1, v0", f"v_lshl_add_u32 v{t+1}, v{t+1}, 4, s73", f"v_add_u32 v{VSL}, v{VSL}, v{t+1}",
                f"s_mul_i32 s73, s11, 2560", f"s_add_u32 s73, s73, {G2S}", f"v_lshl_add_u32 v{VSR}, v0, 3, s73"]

    def conv(self, a, role):
        o = self.o
        seq = []
        if role == 0:
            blocks = [4, 5, 6, 7, 0]
            for r in range(8):
                for c in range(8):
                    if c == 4: seq.append((0, r, 0, 0))
                    for e in range(7, -1, -1):
                        if e + c in (4, 5, 6, 7): seq.append((0, r, e, c))
            acc = lambda ch, b: 2 + 4 * blocks.index(b)
        else:
            for r in range(8):
                for ch in range(3):
                    for c in range(4):
                        for e in range(3, -1, -1):
                            if e + c in (1, 2, 3): seq.append((ch, r, e, c))
            acc = lambda ch, b: 2 + 12 * ch + 4 * (b - 1)
        uses = [[("B", ch, r, c), ("A", ch, r, e)] for ch, r, e, c in seq]
        def reads(f, reg):
            k, ch, r, i = f
            if k == "B":
                return [f"ds_read_b128 {vr(reg,4)}, v{VCB} offset:{ch*CBP+U_OFF+480+512*i-64*r}"]
            off = ch * CBP + 4032 - 512 * i - 64 * r
            return [f"ds_read_b64 {vr(reg,2)}, v{VCA} offset:{off}", f"ds_read_b64 {vr(reg+2,2)}, v{VCA} offset:{off+8}"]
        pool = list(range(88, 128, 4)) + list(range(48, 88, 4))
        fr = FragStream(uses, reads, pool, lead=12, pre=o.get("cvpre", 9), name="cv")
        for x in fr.pro + self.tail: a(x)
        a(self.st("g1.tail"))
        n = len(seq)
        seen = set()
        main = []
        for ch, r, e, c in seq:
            d = vr(acc(ch, e + c), 4)
            cin = d if (ch, e + c) in seen else "0"
            seen.add((ch, e + c))
            main.append(lambda d=d, cin=cin, A=("A", ch, r, e), B=("B", ch, r, c): f"v_mfma_f32_16x16x32_bf16 {d}, {vr(fr.reg[A],4)}, {vr(fr.reg[B],4)}, {cin}")
        mf, mp, mc = o.get("mf", 66), o.get("mp", 150), o.get("mc", 190)
        S = [fr]
        S.append(Stream(self.w2rest, 4, o.get("wend", 190), name="w2f"))
        sal = [f"s_lshl_b32 s81, s8, 2", f"s_lshr_b32 s80, s9, 2", f"s_add_u32 s81, s81, s80", f"s_lshl_b32 s81, s81, 8",
               f"s_and_b32 s80, s9, 3", f"s_lshl_b32 s80, s80, 2", f"s_add_u32 s80, s80, {WAVE}", f"s_lshl_b32 s80, s80, 2",
               f"s_add_u32 s81, s81, s80", f"s_add_u32 s81, s81, {FH}", f"v_mov_b32 v232, {TAG}",
               f"s_lshr_b32 s86, s12, 1", f"s_lshl_b32 s86, s86, 2", f"s_add_u32 s86, s86, {WAVE}", f"s_lshl_b32 s86, s86, 8",
               f"s_and_b32 s80, s12, 1", f"s_lshl_b32 s80, s80, 3", f"s_add_u32 s86, s86, s80", f"s_add_u32 s86, s86, {FH}",
               f"s_lshl_b32 s82, s12, 4", f"s_add_u32 s82, s82, {WAVE}", f"s_mul_i32 s82, s82, {12*1024}", f"s_add_u32 s82, s82, {HF}"]
        S.append(Stream(sal, 1, mf - 2, name="sal"))
        S.append(Stream([f"WAITVM hst\ns_mov_b64 exec, 1\nbuffer_store_dword v232, off, {SWS}, s81{SC}\ns_mov_b64 exec, -1\n" + ""], mf, mf + 1))
        side = self.late_consts() + [f"v_accvgpr_write_b32 a{k}, 0" for k in (241, 243, 245, 247, 249, 250, 251)]
        side += [f"global_load_ushort a{240+2*jb}, v{VB2}, {sp('b2')} offset:{32*jb}" for jb in range(5)]
        S.append(Stream(side, 4, mp - 2, name="side"))
        S.append(Stream([self.poll_load(231, False, VFH, "s86")], mp, mp + 1))
        nh = o.get("nh", 7)
        hl = self.hloads(0) + self.hloads(1)
        S.append(Stream([self.poll_check(f"h{role}", 231, False, VFH, "s86") + "\n" + self.st("hpoll")] + hl[:nh], mc, n, ahead=0, name="h"))
        gap_sched(a, main, S, f"conv{role}")
        a(self.st("cv.main"))
        order = [4, 0, 1, 2, 3] if role == 0 else list(range(9))
        for q in order:
            a(f"v_cvt_pk_bf16_f32 v{96+2*q}, v{2+4*q}, v{3+4*q}\nv_cvt_pk_bf16_f32 v{97+2*q}, v{4+4*q}, v{5+4*q}")
        for q in order:
            a(f"ds_write_b64 v{VCW}, {vr(96+2*q,2)} offset:{512*q}")
        k1 = nh + 3
        for x in hl[nh:k1]: a(x)
        k2 = max(k1, 13)
        if role == 0:
            a(f"s_mul_i32 s7, {WAVE}, {SP}\ns_add_u32 s7, s7, {S_ROW}")
            for q in range(3): a(f"ds_read_b128 {vr(96+4*q,4)}, v{VPW} offset:{1024*q}")
            for x in hl[k1:k2]: a(x)
            for q in range(2): a(f"buffer_store_dwordx4 {vr(96+4*q,4)}, v1, {SWS}, s7 offen offset:{2048+1024*q}{SC} @sst")
            a(f"s_waitcnt lgkmcnt(0)\ns_mov_b64 exec, 0xffffffff\nbuffer_store_dwordx4 v[104:107], v1, {SWS}, s7 offen{SC} @sst\ns_mov_b64 exec, -1")
        else:
            for ch in range(3):
                a(f"ds_read_b128 {vr(96+8*ch,4)}, v{VPW} offset:{1536*ch}\nds_read_b128 {vr(100+8*ch,4)}, v{VPW} offset:{1536*ch+1024}")
            for x in hl[k1:k2]: a(x)
            a(f"s_add_u32 s7, {S_ROW}, {SP}\ns_add_u32 s73, {S_ROW}, {2*SP}")
            sr = [S_ROW, "s7", "s73"]
            for ch in range(3): a(f"buffer_store_dwordx4 {vr(96+8*ch,4)}, v1, {SWS}, {sr[ch]} offen offset:512{SC} @sst")
            a("s_waitcnt lgkmcnt(0)\ns_mov_b64 exec, 0xffffffff")
            for ch in range(3): a(f"buffer_store_dwordx4 {vr(100+8*ch,4)}, v1, {SWS}, {sr[ch]} offen offset:1536{SC} @sst")
            a("s_mov_b64 exec, -1")
        self.hrest = hl[k2:]
        a(self.st("cv.out"))

    def gemm2f(self, a):
        o = self.o
        AC = (2, 22)
        main, idx = [], {}
        for rho in range(4):
            for jb in range(5):
                d = vr(AC[rho & 1] + 4 * jb, 4)
                idx[(rho, jb)] = len(main)
                if rho == 0: main.append(f"v_mfma_f32_16x16x32_bf16 {d}, {ar(240+2*jb,4)}, {vr(V_ONE,4)}, 0")
                for kk in range(12):
                    main.append(f"v_mfma_f32_16x16x32_bf16 {d}, {ar(self.w2reg(jb*12+kk),4)}, {vr(self.breg(rho,kk),4)}, {d}")
        for rho in (1, 2, 3): main[idx[(rho, 0)]] = (self.st(f"g2.r{rho}") if rho != 2 else "") + "\n" + main[idx[(rho, 0)]]
        main[13] = "" + "\n" + main[13]
        idx[(4, 0)] = n = len(main)
        nxt = lambda rho, jb: idx[(rho, jb + 1)] if jb < 4 else idx[(rho + 1, 0)]
        for i in range(2): a(f"buffer_load_dwordx4 v{VX+i}, {SX}, s14 offen lds @xdma\ns_add_u32 m0, m0, 1024")
        a(f"s_mov_b64 exec, 0xffffffff\nbuffer_load_dwordx4 v{VX+2}, {SX}, s14 offen lds @xdma\ns_mov_b64 exec, -1")
        a(f"s_mul_i32 s7, {WAVE}, 10240\ns_add_u32 m0, s7, 32768")
        ring = []
        for rho in range(3):
            par = rho & 1
            def wr(jb):
                g = nxt(rho, jb) + 3
                return [Item(f"ds_write_addtid_b32 v{AC[par]+4*jb+k} offset:{RING-32768+5120*par+1024*jb+256*k} @pw", lo=g, hi=g + 3) for k in range(4)]
            def rd(jb, g):
                return [Item(f"ds_read2st64_b32 {vr(AC[par^1]+4*jb+2*k,2)}, v{VPR} offset0:{20*par+4*jb+2*k} offset1:{20*par+4*jb+2*k+1}", lo=g, hi=g + 6) for k in range(2)]
            b1, b2 = nxt(rho, 2) + 10, nxt(rho, 4) + 10
            ring += wr(0) + wr(1) + wr(2) + [Item("WAITLG pw\ns_barrier", lo=b1, hi=b1)] + rd(0, b1 + 1) + rd(1, b1 + 1) + rd(2, b1 + 1)
            ring += wr(3) + wr(4) + [Item("WAITLG pw\ns_barrier", lo=b2, hi=b2)] + rd(3, b2 + 1) + rd(4, b2 + 1)
        rs = Stream(ring, 0, n, ahead=0, name="ring")
        for it in rs.items: it.ideal = it.lo - 5
        S = [rs]
        S.append(Stream(self.hrest + self.hloads(2) + [Item(x, lo=idx[(1, 0)]) for x in self.hloads(3)], 0, o.get("hend", 130), name="h"))
        ms = o.get("ms", 62)
        S.append(Stream(self.late_consts2(), 0, 44, name="lc2"))
        sal = [f"s_lshl_b32 s81, {XCD}, 3", f"s_lshr_b32 s80, {JJ}, 2", f"s_add_u32 s81, s81, s80", f"s_lshl_b32 s81, s81, 8",
               f"s_and_b32 s80, {JJ}, 3", f"s_lshl_b32 s80, s80, 2", f"s_add_u32 s80, s80, {WAVE}", f"s_lshl_b32 s80, s80, 2",
               f"s_add_u32 s81, s81, s80", f"s_add_u32 s81, s81, {FS}",
               f"s_lshl_b32 s86, s13, 11", f"s_add_u32 s86, s86, {FS}",
               f"s_lshl_b32 s76, s13, 2", f"s_add_u32 s76, s76, {WAVE}", f"s_mul_i32 s76, s76, {20*SP}",
               f"s_lshl_b32 s80, s12, 7", f"s_add_u32 s76, s76, s80", f"s_add_u32 s76, s76, {ST}",
               f"s_add_u32 s77, s76, {8*SP}", f"s_add_u32 s78, s76, {16*SP}", f"s_mov_b32 s74, {fbits(-1.4426950408889634)}"]
        S.append(Stream(sal, 0, ms - 2, name="sal"))
        S.append(Stream([f"WAITVM sst\ns_mov_b64 exec, 1\nbuffer_store_dword v232, off, {SWS}, s81{SC}\ns_mov_b64 exec, -1\n" + ""], ms, ms + 1))
        XR, XF, SR, SD = 96, 176, 106, 116
        S.append(Stream(["WAITVM xdma"] + [f"ds_read_b64 {vr(XR+2*jb,2)}, v{VXD} offset:{32*jb}" for jb in range(5)], idx[(1, 3)], idx[(2, 0)], name="xr"))
        xu = []
        for q in range(10): xu += [f"v_lshlrev_b32 v{XF+2*q}, 16, v{XR+q}", f"v_and_b32 v{XF+2*q+1}, 0xffff0000, v{XR+q}"]
        S.append(Stream(xu, idx[(2, 1)], idx[(3, 0)], ahead=0, name="xu"))
        mp, mc = o.get("g2p", 140), o.get("g2c", 180)
        S.append(Stream([self.poll_load(196, True, VFS, "s86")], mp, mp + 1))
        S.append(Stream([self.poll_check("s", 196, True, VFS, "s86") + "\n" + self.st("spoll"),
                         f"buffer_load_dwordx4 {vr(SD,4)}, v{VSG}, {SWS}, s76 offen{SC}",
                         f"buffer_load_dwordx4 {vr(SD+4,4)}, v{VSG}, {SWS}, s77 offen{SC}",
                         f"s_mov_b64 exec, 0xffffffff\nbuffer_load_dwordx4 {vr(SD+8,4)}, v{VSG}, {SWS}, s78 offen{SC}\ns_mov_b64 exec, -1"], mc, mc + 5, ahead=0))
        Z = AC[1]
        def silu(jb):
            T = 200
            z = Z + 4 * jb
            L = [f"v_mul_f32 v{T+k}, s74, v{z+k}" for k in range(4)] + [f"v_exp_f32 v{T+k}, v{T+k}" for k in range(4)]
            L += [f"v_add_f32 v{T+k}, 1.0, v{T+k}" for k in range(4)] + [f"v_rcp_f32 v{T+k}, v{T+k}" for k in range(4)]
            L += [f"v_mul_f32 v{z+k}, v{z+k}, v{T+k}" for k in range(4)]
            return L
        sl = []
        for jb in range(3):
            L = [Item(x) for x in silu(jb)]
            L[0].lo = nxt(3, jb) + 2
            sl += L
        S.append(Stream(sl, nxt(3, 0) + 2, n, ahead=6, name="silu"))
        gap_sched(a, main, S, "g2")
        a(self.st("g2.mfma"))
        a(f"""
        ds_write_b128 v{VSL}, {vr(SD,4)}
        ds_write_b128 v{VSL}, {vr(SD+4,4)} offset:256
        s_waitcnt vmcnt(0)
        s_mov_b64 exec, 0xffffffff
        ds_write_b128 v{VSL}, {vr(SD+8,4)} offset:512
        s_mov_b64 exec, -1
        """)
        for x in silu(3): a(x)
        a("s_waitcnt lgkmcnt(0)\ns_barrier")
        pass
        for jb in range(5): a(f"ds_read_b64_tr_b16 {vr(SR+2*jb,2)}, v{VSR} offset:{512*jb}")
        for x in silu(4): a(x)
        T = 204
        for q in range(10):
            a(f"""
            v_lshlrev_b32 v{T}, 16, v{SR+q}
            v_and_b32 v{T+1}, 0xffff0000, v{SR+q}
            v_pk_fma_f32 {vr(T,2)}, {vr(T,2)}, {vr(Z+2*q,2)}, {vr(XF+2*q,2)}
            v_cvt_pk_bf16_f32 v{XR+q}, v{T}, v{T+1}
            """)
        for jb in range(5): a(f"ds_write_b64 v{VXD}, {vr(XR+2*jb,2)} offset:{32*jb}")
        a("s_waitcnt lgkmcnt(0)")
        for i in range(3): a(f"ds_read_b128 {vr(SD+4*i,4)}, v{VXL} offset:{1024*i}")
        osc = o.get("osc", SC)
        for i in range(2): a(f"buffer_store_dwordx4 {vr(SD+4*i,4)}, v{VX+i}, {SOUT}, s14 offen{osc}")
        a(f"s_waitcnt lgkmcnt(0)\ns_mov_b64 exec, 0xffffffff\nbuffer_store_dwordx4 {vr(SD+8,4)}, v{VX+2}, {SOUT}, s14 offen{osc}")
        a(self.st("g2.done"))

def build(prof=False, opt=None, cls=F4):
    g = cls(prof, opt or {})
    if prof == "min":
        full = g.st
        g.st = lambda n: full(n) if n in ("start", "end") else ""
    elif prof:
        g.st("start"); g.st("w3.dma")
    if (opt or {}).get("only"):
        lst_ = ["start"] + opt["only"].strip().split(",") + ["end"]
        pairs = [34, 16, 36, 40, 44, 46, 48, 18, 20, 22, 24, 26, 28, 30, 32]
        g.STAMPS = pairs + [p + 1 for p in pairs]
        g.names = list(lst_)
        g.st = lambda n: (f"S_MEMTIME s[{pairs[lst_.index(n)]}:{pairs[lst_.index(n)]+1}]" + ("\ns_waitcnt lgkmcnt(0)" if n in ("start", "end") else "")) if n in lst_ else ""
    if (opt or {}).get("rt"):
        st0_ = g.st
        g.st = lambda n: st0_(n).replace("s_memtime", "s_memrealtime")
    enc = (opt or {}).get("enc")
    if enc:
        g.st = lambda n: "s_memrealtime s[98:99]\ns_waitcnt lgkmcnt(0)" if n == enc.strip() else ""
    dbg = (opt or {}).get("dbg")
    if dbg:
        op, wsel, lst = dbg.strip().split(":")
        lst = ["start"] + lst.split(",") + ["end"]
        g.prof = True
        g.STAMPS = [r for r in g.STAMPS if r not in (46, 47)]
        g.names = list(lst)
        full2 = g.st
        g.st = lambda n: full2(n) if n in lst else ""
        def dump(a):
            a("s_mov_b64 exec, -1\ns_waitcnt vmcnt(0)")
            a(g.st("end"))
            a("s_memrealtime s[100:101]\ns_waitcnt lgkmcnt(0)\ns_sub_u32 s100, s100, s99\nv_mov_b32 v2, s100")
            for i in range(1, len(lst)):
                a(f"s_sub_u32 s7, s{g.STAMPS[i]}, s{g.STAMPS[0]}\ns_cmp_eq_u32 s{g.STAMPS[i]}, 0\ns_cselect_b32 s7, 0, s7\nv_writelane_b32 v2, s7, {i}")
            a(f"v_lshlrev_b32 v3, 2, v0\ns_cmp_eq_u32 {WAVE}, {wsel}\ns_cbranch_scc0 L_end\ns_mov_b64 exec, {(1 << len(lst)) - 1}\nglobal_atomic_{op} v3, v2, s[46:47]")
        g.dump = dump
    a = Asm(auto=True)
    if enc: a("s_memrealtime s[98:99]")
    g.start(a)
    a("L_consts:")
    g.consts(a)
    pass
    a(f"s_cmp_eq_u32 {WAVE}, 3\ns_cbranch_scc1 L_w3b\ns_cmp_eq_u32 {WAVE}, 2\ns_cbranch_scc1 L_w2")
    st0 = a.state()
    g.s4(a)
    a("s_branch L_kg\nL_w2:")
    st1 = a.state(); a.set_state(st0)
    g.w2_pre(a)
    a("L_kg:")
    a.merge([st1, a.state()])
    g.kgen4(a)
    a("s_branch L_g1\nL_w3:")
    st1 = a.state()
    a.set_state(([], []))
    g.wave3a(a)
    a("s_branch L_consts\nL_w3b:")
    g.wave3b(a)
    a("L_g1:")
    a.merge([st1, a.state()])
    a(g.st("g1.arrive"))
    a("s_barrier")
    g.gemm1f(a)
    a(f"s_cmp_eq_u32 {WAVE}, 3\ns_cbranch_scc1 L_cv3")
    st0 = a.state()
    g.conv(a, 0)
    a("s_branch L_g2\nL_cv3:")
    st1 = a.state()
    a.set_state(st0)
    g.conv(a, 1)
    a("L_g2:")
    a.merge([st1, a.state()])
    g.gemm2f(a)
    a(f"s_xor_b32 s7, {WAVE}, 3\ns_or_b32 s7, s2, s7\ns_cbranch_scc1 L_fin\ns_mov_b32 s7, {FLG}")
    a(g.flag_store("s7", 4))
    a("L_fin:")
    if enc:
        a(f"s_cmp_eq_u32 s2, {opt.get('ewg', 77)}\ns_cbranch_scc0 L_end\ns_cmp_eq_u32 {WAVE}, {opt.get('ewv', 0)}\ns_cbranch_scc0 L_end")
        a("s_add_u32 s98, s98, 4000\nL_spin:\ns_memrealtime s[100:101]\ns_waitcnt lgkmcnt(0)\ns_sub_u32 s7, s98, s100\ns_cmp_gt_u32 s7, 4000\ns_cbranch_scc0 L_spin")
    g.dump(a)
    a("L_end:\ns_endpgm")
    g.slow_paths(a)
    a("L_code_end:")
    body = a.finish().replace("S_MEMTIME", "s_memtime")
    if (opt or {}).get("dry"):
        body = body.replace(f"s_mov_b32 s70, {WS_BYTES}", "s_mov_b32 s70, 0").replace("s_mov_b32 s58, 1966080", "s_mov_b32 s58, 0")
        body = body.replace("s_mov_b32 s66, 2621440", "s_mov_b32 s66, 0")
        import re
        body = re.sub(r"s_cbranch_scc1 L_slow_\w+", "s_nop 0", body)
        body = body.replace("L_fin:\n", f"L_fin:\n    s_mov_b32 s70, {WS_BYTES}\n")
    if (opt or {}).get("al", 1): body = align8(body)
    out = header()
    out += f"; @launch grid=(256,1,1) block=(256,1,1) lds={LDS_BYTES}\n"
    if prof: out += "; stamps2: " + " ".join(g.names) + "\n"
    out += "; layout v3\n"
    out += '.amdgcn_target "amdgcn-amd-amdhsa--gfx950"\n.text\n'
    out += khead(NAME + "_kernel") + body
    out += '.section .rodata,"a"\n.p2align 6\n' + kdesc(NAME + "_kernel")
    print("instructions", sum(1 for i in a.ins if i.mn), "nops inserted", a.nops)
    return out

if __name__ == "__main__":
    open(sys.argv[1], "w").write(build("min" if "min" in sys.argv[2:] else "prof" in sys.argv[2:], parse(sys.argv[2:])))
```

```python
import sys, struct, math
from dsl import align8, Asm, interleave, Item, Stream, FragStream, gap_sched
import gen3
from gen import (NAME, fbits, FLG, PROF, WS_BYTES, PY, PX, CBP, CPITCH, U_OFF, LDS_BYTES, sp, SX, SW1, SW2, SOUT, SWS,
                 WAVE, XCD, JJ, SID, vr, ar, kdesc, khead, header)
from gen2 import FY, FX, FH, FS, TAG, SC, S_PAIR, S_SNG, S_HA, S_HC, S_Y, S_ROW
from gen3 import XNT, XP, W2F, HF, ST, SP, TABSZ, TP, RP, KC, CB0, SNG, PAIR, RING, G2X, G2S, parse

YT, XT, W2S, CNT = 40960, 51456, 26112, 34304
S_YB, S_YE = "s96", "s97"
V_FX, V_FY, V_KR, V_CNT = 208, 209, 210, 211
VCA, VCB = 212, 213
V_T = 214
V_UG, V_UL, V_ES, V_Z1, V_Z2 = 222, 223, 224, 227, 228
V_P0, V_P1, V_S, V_HF = 236, 237, 238, 239
V_B1, V_DUM, V_ONE = 240, 248, 252
VSL, VCW, VPW, VPR, VXL, VXD, VSR = 214, 215, 216, 217, 218, 219, 220
VX, VFH, VFS, VSG, VB2 = 224, 227, 228, 229, 230
for k in ("V_FX V_FY V_KR VCA VCB V_T V_P0 V_P1 V_S V_HF V_B1 V_DUM V_ONE VSL VCW VPW VPR VXL VXD VSR VX VFH VFS VSG VB2").split():
    setattr(gen3, k, globals()[k])

class F4(gen3.F3):
    def start(self, a):
        o = self.o
        a(f"""
        s_load_dwordx16 s[16:31], s[0:1], 0
        s_load_dwordx16 s[32:47], s[0:1], 64
        s_load_dwordx2 s[48:49], s[0:1], 128
        s_cmp_ge_u32 s2, 256
        s_cbranch_scc1 L_end
        s_getpc_b64 s[72:73]
        L_pc:
        v_lshrrev_b32 v1, 6, v0
        s_lshr_b32 {JJ}, s2, 3
        v_and_b32 v0, 63, v0
        s_lshl_b32 s7, {JJ}, 4
        v_lshl_add_u32 v8, v1, 2, v0
        v_readfirstlane_b32 {WAVE}, v1
        v_add_lshl_u32 v8, v8, s7, 7
        v_min_u32 v8, L_code_end-L_pc-4, v8
        s_mov_b64 exec, 15
        global_load_dword v{V_DUM}, v8, s[72:73]
        s_mov_b64 exec, -1
        s_and_b32 {XCD}, s2, 7
        s_lshl_b32 {SID}, {XCD}, 5
        s_add_u32 {SID}, {SID}, {JJ}
        v_lshrrev_b32 v2, 4, v0
        v_and_b32 v3, 15, v0
        v_lshrrev_b32 v4, 5, v0
        v_and_b32 v5, 31, v0
        v_mul_u32_u24 v7, 1280, v4
        v_lshl_add_u32 v7, v5, 3, v7
        s_lshl_b32 s72, {SID}, 2
        s_add_u32 s72, s72, {WAVE}
        s_mul_i32 s72, s72, 2560
        s_mov_b32 s54, 2621440
        s_mov_b32 s55, 0x20000
        s_mov_b32 s70, {WS_BYTES}
        s_mov_b32 s71, 0x20000
        s_mov_b32 s73, {FLG}
        s_lshr_b32 s9, {JJ}, 2
        s_and_b32 s7, {XCD}, 1
        s_lshl_b32 s7, s7, 3
        s_mul_i32 s83, s9, 10
        s_add_u32 s9, s9, s7
        s_lshr_b32 s83, s83, 3
        s_mul_i32 s83, s83, {1 if o.get("yrot", 1) else 0}
        s_and_b32 s7, s9, 1
        s_mul_i32 {S_PAIR}, s9, 192
        s_add_u32 {S_SNG}, {S_PAIR}, 128
        s_lshl_b32 s74, s7, 6
        s_add_u32 {S_PAIR}, {S_PAIR}, s74
        s_lshl_b32 s74, s7, 7
        s_sub_u32 {S_SNG}, {S_SNG}, s74
        s_mov_b32 s58, 1966080
        s_mov_b32 s59, 0x20000
        s_mov_b32 s62, 1966080
        s_mov_b32 s63, 0x20000
        s_lshl_b32 s7, {WAVE}, 1
        v_add_u32 v4, s7, v4
        v_mul_u32_u24 v204, {PY}, v4
        v_mul_u32_u24 v205, {PX}, v4
        v_lshl_add_u32 v204, v5, 3, v204
        v_lshl_add_u32 v205, v5, 3, v205
        s_waitcnt lgkmcnt(0)
        s_mov_b64 s[52:53], {sp('x')}
        s_mov_b64 s[68:69], {sp('ws')}
        """)
        for i in range(5):
            a(f"buffer_load_dwordx2 {vr(110+2*i,2)}, v7, {SX}, s72 offen offset:{256*i}")
        a(f"buffer_load_dword v109, off, {SWS}, s73{SC}")
        self.pstart(a)
        a(f"""
        s_mov_b64 s[56:57], {sp('w1')}
        s_mov_b64 s[60:61], {sp('w2')}
        s_cmp_eq_u32 {WAVE}, 3
        s_cbranch_scc1 L_st3
        s_mul_i32 s10, {XCD}, 80
        s_mul_i32 s7, {JJ}, 3
        s_add_u32 s10, s10, s7
        s_add_u32 s11, s10, {WAVE}
        s_min_u32 s11, s11, 639
        s_mul_i32 s7, s11, 384
        v_lshl_add_u32 v8, v0, 1, s7
        s_lshl_b32 s7, s11, 1
        v_mov_b32 v6, s7
        """)
        for k in list(range(10, 30, 2)) + [40, 42, 44, 196, 200, 202]: a(f"v_mov_b64 {vr(k,2)}, 0")
        a(f"global_load_short_d16_hi v28, v6, {sp('ldt')}\nglobal_load_short_d16_hi v29, v6, {sp('dsk')}")
        for c in range(3):
            for k, n in enumerate(("are", "aim", "bre", "bim", "cre", "cim")):
                a(f"global_load_short_d16_hi v{10+6*c+k}, v8, {sp(n)} offset:{128*c}")
        a("s_branch L_stj\nL_st3:")
        self.w3pre(a)
        a("L_stj:")

    def w3pre(self, a):
        o = self.o
        a(f"""
        v_min_u32 v4, 59, v0
        v_mul_u32_u24 v5, 5462, v4
        v_lshrrev_b32 v5, 16, v5
        v_mul_u32_u24 v5, {3072-12*128}, v5
        v_lshl_add_u32 v46, v4, 7, v5
        v_add_u32 v47, {5*3072}, v46
        s_mul_i32 s74, {JJ}, {20*3072}
        s_and_b32 s7, {XCD}, 1
        s_mul_i32 s7, s7, 1536
        s_add_u32 s74, s74, s7
        s_add_u32 s75, s74, {10*3072}
        v_lshrrev_b32 v4, 3, v0
        v_mul_u32_u24 v40, 3072, v4
        v_lshrrev_b32 v4, 2, v0
        v_mul_u32_u24 v44, 3072, v4
        v_xor_b32 v4, v4, v2
        v_and_b32 v4, 1, v4
        v_lshl_add_u32 v40, v4, 6, v40
        v_and_b32 v4, 3, v0
        v_lshl_add_u32 v40, v4, 4, v40
        v_lshl_add_u32 v44, v4, 4, v44
        v_add_u32 v41, {24576-1024}, v40
        v_add_u32 v42, {24576-1024}, v41
        v_add_u32 v43, {24576-1024}, v42
        v_add_u32 v45, {49152-1024}, v44
        s_and_b32 s7, {JJ}, 3
        s_mul_i32 s82, s7, 10240
        s_mul_i32 s80, s7, 5
        s_lshl_b32 s7, s83, 1
        s_add_u32 s80, s80, s7
        s_sub_u32 s7, s80, 20
        s_cselect_b32 s80, s80, s7
        s_mul_i32 s80, s80, {32*3072}
        """)
        self.w2_pre(a)
        self.n3 = 0
        if o.get("w1pf", 1):
            for i in range(4): a(f"buffer_load_dword v{V_DUM}, v{46+(i&1)}, {SW1}, s{74+(i>>1)} offen")
            self.n3 += 4
        for _ in range(o.get("n0", 0)): self.step(a)
        self.n3 += 6 * o.get("n0", 0)

    def pstart(self, a):
        if self.prof:
            a("s_memrealtime s[100:101]\ns_waitcnt lgkmcnt(0)\ns_mov_b32 s99, s100")
            a(self.st("start"))

    def consts(self, a):
        T = V_T
        a(f"""
        v_and_b32 v5, 31, v0
        v_lshl_add_u32 v8, v5, 1, {S_PAIR}
        v_lshl_add_u32 v6, v5, 1, {S_SNG}
        """)
        for k in range(V_B1, V_B1 + 8, 2): a(f"v_mov_b64 {vr(k,2)}, 0")
        a(f"""
        s_mov_b32 s66, 2621440
        s_mov_b32 s67, 0x20000
        s_mov_b64 s[64:65], {sp('out')}
        global_load_ushort v{V_B1}, v8, {sp('b1')}
        global_load_ushort v{V_B1+2}, v8, {sp('b1')} offset:64
        global_load_ushort v{V_B1+4}, v6, {sp('b1')}
        """)
        if self.prof:
            for r in self.STAMPS[1:]: a(f"s_mov_b32 s{r}, 0")
        a(f"""
        v_lshlrev_b32 v1, 4, v0
        v_lshrrev_b32 v4, 5, v0
        s_mul_i32 s7, {WAVE}, {TABSZ}
        v_mul_u32_u24 v{V_KR}, {TP}, v5
        v_lshl_add_u32 v6, v4, 4, s7
        v_add_u32 v{V_KR}, v{V_KR}, v6
        s_mul_i32 s7, {WAVE}, {RP}
        v_lshl_add_u32 v6, v4, 4, s7
        v_lshl_add_u32 v{T}, v5, 5, v6
        v_cmp_gt_u32 vcc, 32, v0
        v_lshl_add_u32 v6, v5, 4, s7
        v_lshl_add_u32 v7, v5, 3, s7
        v_add_u32 v8, 1024, v6
        v_add_u32 v30, 1536, v7
        v_cndmask_b32 v{T+1}, v30, v8, vcc
        v_add_u32 v8, 1032, v6
        v_add_u32 v30, 1792, v7
        v_cndmask_b32 v{T+2}, v30, v8, vcc
        v_mov_b32 v8, 0x3f80
        v_cndmask_b32 v{V_ONE}, 0, v8, vcc
        v_mov_b32 v{V_ONE+1}, 0
        v_mov_b64 {vr(V_ONE+2,2)}, 0
        v_sub_u32 v6, 63, v0
        v_lshl_add_u32 v{T+3}, v6, 3, s7
        v_lshl_add_u32 v{T+4}, v6, 4, s7
        v_lshl_add_u32 v{T+5}, v0, 5, s7
        v_lshl_add_u32 v{T+6}, v0, 4, s7
        v_lshl_add_u32 v{T+7}, v0, 3, s7
        s_lshl_b32 s7, {WAVE}, 10
        v_lshl_add_u32 v{V_ES}, v0, 2, s7
        v_add_u32 v{V_ES+1}, {RP}, v{V_ES}
        v_add_u32 v{V_ES+2}, {2*RP}, v{V_ES}
        s_add_u32 s74, s7, {CB0+U_OFF+512}
        v_and_b32 v6, 3, v0
        v_lshrrev_b32 v7, 2, v0
        v_min_u32 v8, 2, v6
        v_mul_u32_u24 v{V_UG}, {XP}, v7
        v_lshl_add_u32 v{V_UG}, v8, 4, v{V_UG}
        v_mul_u32_u24 v{V_UL}, {CBP}, v8
        v_lshl_add_u32 v30, v7, 4, s74
        v_add_u32 v{V_UL}, v{V_UL}, v30
        v_lshlrev_b32 v{V_FX}, 8, v7
        v_lshl_add_u32 v{V_FX}, v6, 4, v{V_FX}
        v_lshlrev_b32 v{V_FY}, 2, v6
        s_min_u32 s7, {WAVE}, 2
        s_mul_i32 s7, s7, {CBP}
        s_add_u32 s74, s7, {CB0+4096}
        s_add_u32 s7, s7, {CB0+U_OFF}
        v_lshl_add_u32 v{V_Z2}, v0, 3, s7
        v_sub_u32 v8, v3, v4
        v_lshl_add_u32 v8, v8, 2, s74
        v_mul_u32_u24 v{V_Z1}, {CPITCH}, v2
        v_add_u32 v{V_Z1}, v{V_Z1}, v8
        v_and_b32 v8, 1, v2
        v_lshlrev_b32 v6, 3, v6
        v_lshl_add_u32 v6, v8, 5, v6
        v_and_b32 v7, 3, v7
        v_lshl_add_u32 v7, v4, 3, v7
        v_lshl_add_u32 v{V_S}, v7, 6, v6
        v_add_u32 v{V_S}, {SNG}, v{V_S}
        v_lshl_add_u32 v{V_P0}, v7, 7, v6
        v_and_b32 v7, 8, v0
        v_lshl_add_u32 v{V_P0}, v7, 3, v{V_P0}
        v_add_u32 v{V_P0}, {PAIR}, v{V_P0}
        v_xor_b32 v{V_P1}, 64, v{V_P0}
        v_mul_u32_u24 v{V_HF}, 49152, v8
        v_lshl_add_u32 v{V_HF}, v4, 8, v{V_HF}
        v_lshl_add_u32 v{V_HF}, v3, 4, v{V_HF}
        s_cmp_eq_u32 {WAVE}, 3
        s_cselect_b32 s7, 0, {WAVE}
        s_mul_i32 s7, s7, {CBP}
        s_add_u32 s7, s7, {CB0}
        v_lshl_add_u32 v6, v2, 4, s7
        v_lshl_add_u32 v{VCB}, v3, 5, v6
        v_sub_u32 v7, 15, v3
        v_and_b32 v8, 3, v7
        v_and_b32 v7, 12, v7
        v_lshl_add_u32 v6, v7, 1, v6
        v_mul_u32_u24 v{VCA}, {CPITCH}, v8
        v_add_u32 v{VCA}, v{VCA}, v6
        s_lshr_b32 s8, {XCD}, 1
        s_lshl_b32 s12, s8, 3
        s_lshl_b32 s8, s8, 2
        s_and_b32 s7, {JJ}, 3
        s_add_u32 s8, s8, s7
        s_and_b32 s7, {JJ}, 7
        s_add_u32 s12, s12, s7
        s_and_b32 s13, {XCD}, 1
        s_lshl_b32 s13, s13, 2
        s_lshr_b32 s7, {JJ}, 3
        s_add_u32 s13, s13, s7
        s_add_u32 s11, {"s7" if self.o.get("hrot", 0) else "0"}, {WAVE}
        s_and_b32 s11, s11, 3
        s_lshl_b32 {S_YB}, s8, 2
        s_add_u32 {S_YB}, {S_YB}, {WAVE}
        s_mul_i32 {S_HA}, {S_YB}, 96
        s_mul_i32 {S_YB}, {S_YB}, 40960
        s_add_u32 {S_YE}, {S_YB}, 40960
        s_lshl_b32 s7, s83, 12
        s_add_u32 {S_Y}, {S_YB}, s7
        s_lshl_b32 s86, s8, 8
        s_lshl_b32 s7, {WAVE}, 4
        s_add_u32 s86, s86, s7
        s_add_u32 s86, s86, {FY}
        """)

    def late_scalars(self):
        return [f"s_mul_i32 s73, s9, 3", f"s_add_u32 {S_HA}, {S_HA}, s73", f"s_lshl_b32 {S_HA}, {S_HA}, 10", f"s_add_u32 {S_HA}, {S_HA}, {HF}",
                f"s_add_u32 {S_HC}, {S_HA}, 2048", f"s_and_b32 s73, s9, 1", f"s_lshl_b32 s73, s73, 10", f"s_add_u32 {S_HA}, {S_HA}, s73",
                f"s_lshl_b32 s73, s73, 1", f"s_sub_u32 {S_HC}, {S_HC}, s73",
                f"s_mul_i32 s10, {XCD}, 80", f"s_mul_i32 s73, {JJ}, 3", f"s_add_u32 s10, s10, s73",
                f"s_cmp_lt_u32 {JJ}, 27\ns_cselect_b32 s10, s10, 0x20000", f"s_mul_i32 {S_ROW}, s10, {SP}", f"s_add_u32 {S_ROW}, {S_ROW}, {ST}",
                f"s_lshl_b32 s83, s10, 4", f"s_mul_i32 s73, {WAVE}, {64*XP}", f"s_add_u32 s83, s83, s73",
                f"s_cmp_lt_u32 {JJ}, 27\ns_cselect_b32 s83, s83, 0x1000000", f"s_add_u32 s83, s83, {XNT}",
                f"s_mul_i32 s85, s13, 20", f"s_add_u32 s85, s85, {WAVE}", f"s_mul_i32 s85, s85, {12*1024}", f"s_add_u32 s85, s85, {W2F}"]

    def step(self, a):
        a(f"s_lshl_b32 s7, s82, 1\ns_add_u32 m0, s7, {PAIR}\ns_add_u32 s7, s80, {S_PAIR}")
        for k in range(4): a(f"buffer_load_dwordx4 v{40+k}, {SW1}, s7 offen offset:{1024*k} lds")
        a(f"s_add_u32 m0, s82, {SNG}\ns_add_u32 s7, s80, {S_SNG}")
        for k in range(2): a(f"buffer_load_dwordx4 v{44+k}, {SW1}, s7 offen offset:{1024*k} lds")
        a(f"""
        s_add_u32 s82, s82, 2048
        s_add_u32 s80, s80, {32*3072}
        s_cmp_eq_u32 s82, 40960
        s_cselect_b32 s82, 0, s82
        s_cmp_eq_u32 s80, {640*3072}
        s_cselect_b32 s80, 0, s80
        """)

    def s_compute3(self, a):
        X = 120
        a.auto = False
        a(f"""
        s_mov_b32 s74, {fbits(1/640)}
        s_mov_b32 s75, {fbits(1e-5)}
        s_cmp_eq_u32 {WAVE}, 3
        s_cbranch_scc1 L_xw3
        s_waitcnt vmcnt(23)
        s_branch L_xwj
        L_xw3:
        s_waitcnt vmcnt({self.n3+3})
        L_xwj:
        """)
        a.auto = True
        a.vmq = []
        a(self.st("s.x"))
        for k in range(10):
            a(f"v_lshlrev_b32 v{X+2*k}, 16, v{110+k}\nv_and_b32 v{X+2*k+1}, 0xffff0000, v{110+k}")
        a(f"v_pk_add_f32 v[140:141], {vr(X,2)}, {vr(X+2,2)}")
        for k in range(2, 10):
            a(f"v_pk_add_f32 v[140:141], v[140:141], {vr(X+2*k,2)}")
        a("v_add_f32 v140, v140, v141")
        self.reduce32(a, 140, 141)
        a("v_mul_f32 v142, s74, v140")
        for k in range(10):
            a(f"v_pk_add_f32 {vr(X+2*k,2)}, {vr(X+2*k,2)}, v[142:143] op_sel_hi:[1,0] neg_lo:[0,1] neg_hi:[0,1]")
        a(f"v_pk_mul_f32 v[140:141], {vr(X,2)}, {vr(X,2)}")
        for k in range(1, 10):
            a(f"v_pk_fma_f32 v[140:141], {vr(X+2*k,2)}, {vr(X+2*k,2)}, v[140:141]")
        a(f"""
        v_add_f32 v140, v140, v141
        v_cvt_pk_bf16_f32 v148, v142, v142
        v_readfirstlane_b32 s7, v109
        v_add_f32_dpp v140, v140, v140 quad_perm:[1,0,3,2] row_mask:0xf bank_mask:0xf
        v_lshlrev_b32 v148, 16, v148
        s_mul_i32 s7, s7, 1664525
        v_add_f32_dpp v140, v140, v140 quad_perm:[2,3,0,1] row_mask:0xf bank_mask:0xf
        v_sub_f32 v148, v142, v148
        s_add_u32 {TAG}, s7, 1013904223
        v_add_f32_dpp v140, v140, v140 row_half_mirror row_mask:0xf bank_mask:0xf
        s_mov_b32 s51, {TAG}
        v_add_f32_dpp v140, v140, v140 row_mirror row_mask:0xf bank_mask:0xf
        v_mov_b32 v141, v140
        v_permlane16_swap_b32 v140, v141
        v_add_f32 v140, v140, v141
        v_mul_f32 v140, s74, v140
        """)
        self.rbf(a, 141, 140)
        a("v_add_f32 v141, s75, v141")
        self.rbf(a, 141, 141)
        a("v_sqrt_f32 v141, v141")
        self.rbf(a, 141, 141)
        a("v_rcp_f32 v144, v141")
        a("v_mul_f32 v140, v140, v144\nv_mul_f32 v140, v140, v144")
        self.rbf(a, 141, 140)
        a("v_add_f32 v141, s75, v141")
        self.rbf(a, 141, 141)
        a("v_sqrt_f32 v141, v141\nv_mul_f32 v148, v148, v144")
        self.rbf(a, 141, 141)
        a("v_rcp_f32 v146, v141")
        for k in range(10):
            a(f"v_pk_fma_f32 v[150:151], {vr(X+2*k,2)}, v[144:145], v[148:149] op_sel_hi:[1,0,0]")
            if k == 0: a("v_mul_f32 v146, v146, v144")
            a(f"v_cvt_pk_bf16_f32 v{152+k}, v150, v151")
        for k in range(10):
            a(f"v_pk_mul_f32 v[150:151], {vr(X+2*k,2)}, v[146:147] op_sel_hi:[1,0]")
            a(f"v_cvt_pk_bf16_f32 v{110+k}, v150, v151")
        for i in range(5): a(f"ds_write_b64 v204, {vr(110+2*i,2)} offset:{YT+256*i}")
        for i in range(5): a(f"ds_write_b64 v205, {vr(152+2*i,2)} offset:{XT+256*i}")

    def wave3(self, a):
        o = self.o
        n0, n1 = o.get("n0", 0), o.get("n1", 4)
        a(f"v_mov_b32 v206, {TAG}\ns_waitcnt lgkmcnt(0)\ns_barrier")
        for I in range(10): a(f"ds_read_b128 {vr(110+4*I,4)}, v196 offset:{YT+128*I}")
        for I in range(10):
            a(f"buffer_store_dwordx4 {vr(110+4*I,4)}, v197, {SWS}, s15 offen{SC} @yst" + ("\ns_add_u32 s15, s15, 4096" if I < 9 else ""))
            if I == 4:
                for K in range(10):
                    a(f"ds_read_b64_tr_b16 {vr(150+4*K,2)}, v198 offset:{XT+128*K}\nds_read_b64_tr_b16 {vr(152+4*K,2)}, v198 offset:{XT+128*K+4*PX}")
        a("s_waitcnt lgkmcnt(0)")
        assert n0 == 0
        a(self.st("p.yst"))
        a(f"s_mov_b32 m0, {W2S}")
        for h in range(2):
            for k in range(4): a(f"buffer_load_dwordx4 v{200+k}, {SW2}, s84 offen offset:{1024*k} lds @w2dma")
            if h == 0: a(f"s_mov_b32 m0, {W2S+4096}\ns_add_u32 s84, s84, {4*5120}")
        for _ in range(n1): self.step(a)
        a(f"WAITVM yst\ns_mov_b64 exec, 1\nbuffer_store_dword v206, off, {SWS}, s81{SC}\ns_mov_b64 exec, -1")
        a(self.st("p.fy"))
        st = []
        for I in range(10):
            st.append(("s_add_u32 s79, s79, 4096\n" if I in (4, 8) else "") + f"buffer_store_dwordx4 {vr(150+4*I,4)}, v1, {SWS}, s79 offen offset:{1024*(I%4)}{SC}")
        st += [f"buffer_store_dwordx4 {vr(48+4*db,4)}, v1, {SWS}, s14 offen{SC}" + (f"\ns_add_u32 s14, s14, {48*1024}" if db < 7 else "") for db in range(8)]
        per = o.get("per", 3)
        dcap = o.get("dcap", 36)
        skip = o.get("skip", 0)
        done = n0 + n1
        if skip:
            a(f"s_mov_b32 s73, 0\nL_dma0:\ns_waitcnt vmcnt({dcap})")
            self.step(a)
            a(f"s_add_u32 s73, s73, 1\ns_cmp_lt_u32 s73, {skip}\ns_cbranch_scc1 L_dma0")
            done += skip
        for k in range(0, 18, per):
            if k <= 10 - per < k + per or (per > 10 and k == 0):
                a("WAITVM w2dma")
                for db in range(8):
                    a(f"ds_read_b64_tr_b16 {vr(48+4*db,2)}, v199 offset:{W2S+32*db}\nds_read_b64_tr_b16 {vr(50+4*db,2)}, v199 offset:{W2S+32*db+2048}")
            a(f"s_waitcnt vmcnt({dcap})")
            for x in st[k:k + per]: a(x)
            if done < 20:
                self.step(a); done += 1
        fx = f"s_add_u32 s81, s81, {FX-FY}\ns_mov_b64 exec, 1\nbuffer_store_dword v206, off, {SWS}, s81{SC}\ns_mov_b64 exec, -1\n" + self.st("p.fx")
        mid = done + (dcap + 5) // 6
        a(f"s_mov_b32 s73, {done}")
        for lab, end in (("L_dma1", min(mid, 20)), ("L_dma2", 20)):
            if done < end:
                a(f"{lab}:\ns_waitcnt vmcnt({dcap})")
                self.step(a)
                a(f"s_add_u32 s73, s73, 1\ns_cmp_lt_u32 s73, {end}\ns_cbranch_scc1 {lab}")
                done = end
            if lab == "L_dma1" and mid <= 20: a(fx)
        a(self.st("w3.dma"))
        a(self.poll_load(4, False, V_FY, "s86"))
        a(self.poll_check("y3", 4, False, V_FY, "s86"))
        a(self.st("ypoll"))
        if mid > 20: a(fx)
        for x in self.yloads()[:o.get("ny", 8)]: a(x)

    def w2_pre(self, a):
        a(f"""
        v_and_b32 v4, 7, v0
        v_lshrrev_b32 v5, 3, v0
        v_mul_u32_u24 v196, {PY}, v4
        v_lshl_add_u32 v196, v5, 4, v196
        v_lshlrev_b32 v197, 9, v5
        v_lshl_add_u32 v197, v4, 4, v197
        v_bfe_u32 v4, v0, 2, 2
        v_and_b32 v5, 3, v0
        v_mul_u32_u24 v198, {PX}, v4
        v_lshl_add_u32 v198, v2, 5, v198
        v_lshl_add_u32 v198, v5, 3, v198
        v_lshrrev_b32 v4, 5, v0
        v_lshlrev_b32 v199, 12, v4
        v_bfe_u32 v4, v0, 2, 3
        v_lshl_add_u32 v199, v4, 8, v199
        v_lshl_add_u32 v199, v5, 3, v199
        v_mul_u32_u24 v200, 1280, v2
        v_lshl_add_u32 v200, v3, 4, v200
        v_add_u32 v201, {5120-1024}, v200
        v_add_u32 v202, {5120-1024}, v201
        v_add_u32 v203, {5120-1024}, v202
        s_min_u32 s7, s2, 239
        s_mul_i32 s14, s7, 52429
        s_lshr_b32 s14, s14, 18
        s_mul_i32 s15, s14, 5
        s_sub_u32 s15, s7, s15
        s_mul_i32 s84, s14, 40960
        s_lshl_b32 s7, s15, 8
        s_add_u32 s84, s84, s7
        s_mul_i32 s15, s15, {8*48}
        s_add_u32 s14, s14, s15
        s_lshl_b32 s14, s14, 10
        s_add_u32 s14, s14, {W2F}
        s_lshr_b32 s15, {SID}, 2
        s_mul_i32 s15, s15, 40960
        s_and_b32 s7, {SID}, 3
        s_lshl_b32 s7, s7, 7
        s_add_u32 s15, s15, s7
        s_lshr_b32 s81, {SID}, 4
        s_lshl_b32 s81, s81, 8
        s_and_b32 s7, {SID}, 15
        s_lshl_b32 s7, s7, 2
        s_add_u32 s81, s81, s7
        s_add_u32 s81, s81, {FY}
        s_mul_i32 s79, {SID}, {XP}
        s_add_u32 s79, s79, {XNT}
        """)

    def only2(self, a, name, body, other=None):
        a(f"s_cmp_eq_u32 {WAVE}, 2\ns_cbranch_scc0 L_o{name}")
        st0 = a.state()
        for x in body: a(x)
        if other:
            a(f"s_branch L_j{name}\nL_o{name}:")
            st1 = a.state(); a.set_state(st0)
            for x in other: a(x)
            a(f"L_j{name}:")
            a.merge([st1, a.state()])
        else:
            a(f"L_o{name}:")
            st1 = a.state()
            a.merge([st0, st1])
        a.vmq = [(set(r), set(t)) for r, t in st1[0]]

    def kgen4(self, a):
        o = self.o
        VF, UF, CH = self.VF, self.UF, 112
        W1, W8, W256, T, C0 = 176, 178, 180, 182, 194
        DT, DTL = 30, 31
        L2E = 1.4426950408889634
        f32 = lambda x: struct.unpack("<f", struct.pack("<f", x))[0]
        I2P = 1 / (2 * math.pi)
        head = (f"""
        s_mov_b32 s72, {fbits(f32(L2E))}
        s_mov_b32 s73, {fbits(L2E-f32(L2E))}
        s_mov_b32 s76, {fbits(math.log(2))}
        v_mul_f32 v{T}, s72, v28
        v_fma_f32 v{T+1}, v28, s72, -v{T}
        v_fma_f32 v{T+1}, v28, s73, v{T+1}
        v_exp_f32 v{T}, v{T}
        v_mul_f32 v{T+1}, s76, v{T+1}
        v_cmp_eq_u32 vcc, 0, v0
        v_fma_f32 v{T}, v{T}, v{T+1}, v{T}
        v_cvt_pk_bf16_f32 v{DT}, v{T}, v{T}
        v_lshlrev_b32 v{DT}, 16, v{DT}
        v_cndmask_b32 v29, 0, v29, vcc
        v_mul_f32 v{DTL}, s72, v{DT}
        s_mov_b32 s74, {fbits(f32(I2P))}
        s_mov_b32 s75, {fbits(I2P-f32(I2P))}
        s_mov_b32 s77, {fbits(256.0)}
        s_mov_b32 s78, {fbits(8.0)}
        """)
        pass
        yl = self.yloads()[:o.get("ny", 8)]
        m0tab = f"s_mul_i32 m0, {WAVE}, {TABSZ}"
        a.vmq = [({("v", r)}, set()) for r in [28, 29] + list(range(10, 28))] + [({("v", r) for r in range(V_B1, V_B1 + 6)}, set())] * 3
        a("s_waitcnt lgkmcnt(0)\ns_barrier")
        a(head)
        a(m0tab)
        for c in range(3):
            p = 10 + 6 * c
            setup = [f"v_mul_f32 v{T}, v{p}, v{DTL}", f"v_mul_f32 v{T+1}, v{p+1}, v{DT}",
                     f"v_mul_f32 v{T+2}, s74, v{T+1}", f"v_fma_f32 v{T+3}, v{T+1}, s74, -v{T+2}",
                     f"v_fma_f32 v{T+3}, v{T+1}, s75, v{T+3}",
                     f"v_mul_f32 v{T+4}, s78, v{T}", f"v_mul_f32 v{T+5}, s78, v{T+2}",
                     f"v_mul_f32 v{T+6}, s77, v{T}", f"v_mul_f32 v{T+7}, s77, v{T+2}",
                     f"v_exp_f32 v{T+4}, v{T+4}", f"v_fract_f32 v{T+5}, v{T+5}",
                     f"v_exp_f32 v{T+6}, v{T+6}", f"v_fract_f32 v{T+7}, v{T+7}",
                     f"v_exp_f32 v{T+8}, v{T}", f"v_fract_f32 v{T+9}, v{T+2}",
                     f"v_fma_f32 v{T+5}, v{T+3}, s78, v{T+5}", f"v_fma_f32 v{T+7}, v{T+3}, s77, v{T+7}",
                     f"v_add_f32 v{T+9}, v{T+3}, v{T+9}",
                     f"v_cos_f32 v{W8}, v{T+5}", f"v_sin_f32 v{W8+1}, v{T+5}",
                     f"v_cos_f32 v{W256}, v{T+7}", f"v_sin_f32 v{W256+1}, v{T+7}",
                     f"v_cos_f32 v{W1}, v{T+9}", f"v_sin_f32 v{W1+1}, v{T+9}"]
            setup += self.cmul(T + 10, p + 4, p + 2)
            setup += [f"v_pk_mul_f32 {vr(W8,2)}, {vr(W8,2)}, {vr(T+4,2)} op_sel_hi:[1,0]",
                      f"v_pk_mul_f32 {vr(W256,2)}, {vr(W256,2)}, {vr(T+6,2)} op_sel_hi:[1,0]",
                      f"v_pk_mul_f32 {vr(W1,2)}, {vr(W1,2)}, {vr(T+8,2)} op_sel_hi:[1,0]",
                      f"v_pk_mul_f32 {vr(C0,2)}, {vr(T+10,2)}, {vr(DT,2)} op_sel_hi:[1,0]"]
            Vv = lambda j: W8 if j == 1 else CH + 2 * j
            vchain = []
            for j in range(2, 32): vchain += self.cmul(Vv(j), Vv(j - 1), W8)
            vcvt = [f"v_mov_b32 v{CH}, 0x3f80"] + [f"v_cvt_pk_bf16_f32 v{CH+2*j}, v{Vv(j)}, v{Vv(j)+1}" for j in range(1, 32)]
            vwr = [f"ds_write_addtid_b32 v{CH+2*j} offset:{TP*j}" for j in range(32)]
            Ur = lambda i: C0 if i == 0 else CH + 2 * i
            uchain = []
            for i in range(1, 8): uchain += self.cmul(Ur(i), Ur(i - 1), W1)
            for i, s in ((8, 0), (9, 2), (10, 4), (11, 6), (12, 8), (13, 10), (14, 12), (15, 13), (16, 14), (17, 16), (18, 17), (19, 18), (20, 19)):
                uchain += self.cmul(Ur(i), Ur(s), W256)
            ucvt = [f"v_cvt_pk_bf16_f32 v{Ur(i)}, v{Ur(i)}, -v{Ur(i)+1}" for i in range(21)]
            uwr = [f"ds_write_addtid_b32 v{Ur(i)} offset:{TP*(i if i < 20 else 23)}" for i in range(21)]
            E = lambda L: [a(x) for x in L]
            ypos = o.get("ypos", 2)
            chk = lambda: E([self.poll_check("y0", 2, False, V_FY, "s86"), self.st("ypoll")])
            ng = {0: 5, 1: 4, 2: 2}[ypos]
            grp = [yl[len(yl) * k // ng:len(yl) * (k + 1) // ng] for k in range(ng)] if c == 2 else [[]] * 5
            grp = [[]] * (5 - ng) + grp
            E(setup[:6])
            if c: E(self.kreads(UF))
            if c == 2 and ypos == 1: E([self.poll_load(2, False, V_FY, "s86")])
            E(setup[6:])
            if c == 2 and ypos == 0: chk()
            E(grp[0] + vchain)
            if c == 0:
                E(vcvt + vwr)
            else:
                E(vcvt[:18])
                if c == 2 and ypos == 2: E([self.poll_load(2, False, V_FY, "s86")])
                if c == 2 and ypos == 1: chk()
                E(grp[1])
                mf = self.kmf(c == 1)
                for k in range(8): E([mf[k]] + vwr[4 * k:4 * k + 4] + vcvt[18 + 2 * k:20 + 2 * k])
            E(uchain[:8] + self.kreads(VF) + grp[2])
            E(uchain[8:] + ucvt)
            if c == 1 and ypos == 0: E([self.poll_load(2, False, V_FY, "s86")])
            if c == 2 and ypos == 2: chk()
            E(grp[3] + uwr + grp[4])
            a(self.st(f"kg{c}"))
        for x in self.kreads(UF): a(x)
        a("s_waitcnt lgkmcnt(0)")

    def yloads(self):
        L = []
        for ks in range(40):
            x = f"buffer_load_dwordx4 {ar(4*ks,4)}, v1, {SWS}, {S_Y} offen offset:{1024*(ks%4)}{SC}"
            if ks % 4 == 0 and ks:
                x = f"s_add_u32 {S_Y}, {S_Y}, 4096\ns_cmp_eq_u32 {S_Y}, {S_YE}\ns_cselect_b32 {S_Y}, {S_YB}, {S_Y}\n" + x
            L.append(x)
        return L

    def gemm1f(self, a):
        o = self.o
        ACC = (48, 64, 32)
        uses = [[] for _ in range(10)]
        for ks in range(40): uses += [[(0, ks)], [(1, ks)]]
        uses += [[] for _ in range(41)]
        def reads(f, reg):
            p, ks = f
            base = V_P0 + p
            off = ks * 2048 - (65536 if ks >= 32 else 0)
            pre = [f"v_add_u32 v{base}, 0x10000, v{base}"] if ks == 32 else []
            return pre + [f"ds_read_b64_tr_b16 {vr(reg,2)}, v{base} offset:{off}", f"ds_read_b64_tr_b16 {vr(reg+2,2)}, v{base} offset:{off+512}"]
        fr = FragStream(uses, reads, list(range(112, 144, 4)), lead=6, name="pair")
        main = self.kmf(False)
        main += [f"v_mfma_f32_32x32x16_bf16 {vr(ACC[p],16)}, {vr(V_B1+2*p,4)}, {vr(V_ONE,4)}, 0" for p in range(2)]
        for ks in range(40):
            for p in range(2):
                main.append(lambda p=p, ks=ks: f"v_mfma_f32_32x32x16_bf16 {vr(ACC[p],16)}, {vr(fr.reg[(p,ks)],4)}, {ar(4*ks,4)}, {vr(ACC[p],16)}")
        main.append(self.st("g1.ab") + f"\nv_mfma_f32_32x32x16_bf16 {vr(ACC[2],16)}, {vr(V_B1+4,4)}, {vr(V_ONE,4)}, 0")
        for ks in range(40):
            main.append(f"v_mfma_f32_32x32x16_bf16 {vr(ACC[2],16)}, {self.creg(ks)[0]}, {ar(4*ks,4)}, {vr(ACC[2],16)}")
        mb = o.get("mb", 58)
        S = [fr]
        cpre = []
        for ks in range(40):
            cpre += [f"ds_read_b64_tr_b16 {self.creg(ks)[1](h)}, v{V_S} offset:{ks*1024+256*h}" for h in range(2)]
        S.append(Stream(cpre, 0, mb - 3, ahead=8, name="cpre"))
        ny = o.get("ny", 8)
        yl = [Item(x, hi=max(0, 10 + 2 * (ny + i) - o.get("ylead", 20))) for i, x in enumerate(self.yloads()[ny:])]
        S.append(Stream(yl, 0, o.get("yend", 60), ahead=3, name="y"))
        t1, t2 = self.ktail3()
        S.append(Stream(t1, 10, 26, name="t1"))
        S.append(Stream(t2, 30, mb - 4, name="t2"))
        misc = self.late_scalars() + [f"s_mov_b32 s74, {fbits(-1.5957691216057308*1.4426950408889634)}",
                f"s_mov_b32 s75, {fbits(-1.5957691216057308*0.044715*1.4426950408889634)}",
                "v_mov_b32 v8, s74", "v_mov_b32 v9, s75", "v_mov_b32 v30, 1.0", "v_mov_b32 v31, 1.0"]
        mxp, mx = o.get("mxp", 56), o.get("mx", 78)
        S.append(Stream(misc, 0, mx - 2, name="misc"))
        S.append(Stream([f"s_mov_b32 s84, {FX}\n" + self.poll_load(2, True, V_FX, "s84")], mxp, mxp + 1))
        S.append(Stream([self.poll_check("x", 2, True, V_FX, "s84") + "\n" + self.st("xpoll")] +
                        [("" if i == 0 else f"s_add_u32 s83, s83, {16*XP}\n") + f"buffer_load_dwordx4 {ar(240+4*i,4)}, v{V_UG}, {SWS}, s83 offen{SC}" for i in range(4)],
                        mx, mx + 12, ahead=0))
        nw = o.get("nw", 14)
        S.append(Stream([Item(x, lo=92 + i) for i, x in enumerate(self.w2f_items()[:nw])], max(93, mx + 12), 131, name="w2f"))
        S.append(Stream([f"s_lshl_b32 s7, {WAVE}, 10\ns_add_u32 m0, s7, {CB0}\ns_waitcnt lgkmcnt(0)\ns_barrier"], mb, mb + 1))
        exr, exw = [], []
        e0, e1 = mb + 1, o.get("exend", 89)
        for q in range(12):
            ch, row = divmod(q, 4)
            E, O = 10 + 2 * (q % 6), 22 + (q % 4)
            d = ch * CBP + row * 256
            g0 = e0 + 4 + (e1 - e0 - 4) * q // 12
            g1 = e0 + 4 + (e1 - e0 - 4) * (q + 1) // 12
            prev = e0 + 4 + (e1 - e0 - 4) * (q - 5) // 12 if q >= 6 else e0
            exr.append(Item(f"ds_read2_b32 {vr(E,2)}, v{V_ES+ch} offset0:{64*row} offset1:{64*row+1}", lo=prev + 1, hi=max(prev + 1, g0 - 3)))
            exw += [Item(f"ds_write_addtid_b32 v{E} offset:{d}", lo=g0, hi=g1), Item(f"ds_write_addtid_b32 v{E} offset:{d+2*CPITCH-4}", hi=g1),
                    Item(f"v_alignbit_b32 v{O}, v{E+1}, v{E}, 16", hi=g1),
                    Item(f"ds_write_addtid_b32 v{O} offset:{d+CPITCH}"), Item(f"ds_write_addtid_b32 v{O} offset:{d+3*CPITCH-4}")]
        exw += [f"ds_write_b32 v{V_Z1}, v26", f"ds_write_b64 v{V_Z2}, v[26:27]"]
        S.append(Stream(exr, e0, e1 - 6, ahead=100, name="exr"))
        S.append(Stream(exw, e0 + 4, e1 + 2, ahead=3, name="exw"))
        nB = o.get("nB", 2)
        S.append(Stream(self.gelu4(ACC[0], 10, range(8)) + self.hstore(10, S_HA, 0) + self.gelu4(ACC[1], 18, range(nB)), e1 + 3, 131, ahead=4, name="gelu"))
        gap_sched(a, main, S, "g1")
        a(self.st("g1.c"))
        gp = lambda acc_, out: [x.replace("v[10:11]", "v[30:31]") for x in self.gelu_packed(acc_, out, 2)]
        w2l = self.w2f_items()[nw:]
        nt = o.get("nt", 8)
        for x in gp(64, 18)[nB // 2 * 20:] + self.hstore(18, S_HA, 1024) + w2l[:nt // 2]: a(x)
        for i in range(4): a(f"ds_write_b128 v{V_UL}, {ar(240+4*i,4)} offset:{256*i}")
        gc = gp(32, 80)
        for x in gc[:20]: a(x)
        a("s_waitcnt lgkmcnt(0)\ns_barrier")
        self.tail = gc[20:40] + self.hstore(80, S_HC, 0)[:1] + w2l[nt // 2:nt] + gc[40:] + self.hstore(80, S_HC, 0)[1:]
        self.w2rest = w2l[nt:]

    def late_consts(self):
        t = 233
        L = []
        for i in range(3):
            L += [f"v_add_u32 v{t}, {64*i}, v0", f"v_mul_u32_u24 v{t+1}, 6554, v{t}", f"v_lshrrev_b32 v{t+1}, 16, v{t+1}",
                  f"v_mul_u32_u24 v{t+1}, 1120, v{t+1}", f"v_lshl_add_u32 v{VX+i}, v{t}, 4, v{t+1}"]
        L += [f"v_and_b32 v{t}, 15, v0", f"v_lshrrev_b32 v{t+1}, 4, v0", f"s_mul_i32 s73, s13, 160", f"v_lshl_add_u32 v{VB2}, v{t}, 1, s73",
              f"s_lshl_b32 s14, s12, 2", f"s_add_u32 s14, s14, s11", f"s_mul_i32 s14, s14, {16*1280}", f"s_add_u32 s14, s14, s73",
              f"v_cmp_gt_u32 vcc, 16, v0", f"s_mul_i32 s15, {WAVE}, 3072", f"s_add_u32 s15, s15, {G2X}", f"v_cndmask_b32 v{V_ONE}, 0, v{V_ONE}, vcc",
              f"s_mov_b32 m0, s15", f"v_add_u32 v{VXL}, s15, v1",
              f"v_mul_u32_u24 v{VXD}, 160, v{t}", f"v_lshl_add_u32 v{t+2}, v{t+1}, 3, s15", f"v_add_u32 v{VXD}, v{VXD}, v{t+2}",
              f"s_mul_i32 s73, {WAVE}, 10240", f"s_add_u32 s73, s73, {RING}", f"v_add_u32 v{VPW}, s73, v1",
              f"v_lshl_add_u32 v{t+2}, v{t+1}, 3, s73", f"v_lshl_add_u32 v{VCW}, v{t}, 5, v{t+2}",
              f"v_and_b32 v{t}, 3, v0", f"v_and_b32 v{t+1}, 4, v0", f"v_lshl_add_u32 v{VFH}, v{t}, 4, v{t+1}"]
        return L

    def late_consts2(self):
        t = 233
        return [f"s_add_u32 s73, {WAVE}, 1", f"s_and_b32 s73, s73, 3", f"s_mul_i32 s73, s73, 10240", f"s_add_u32 s73, s73, {RING}",
                f"v_lshl_add_u32 v{VPR}, v0, 2, s73",
                f"v_min_u32 v{t}, 26, v0", f"v_lshrrev_b32 v{t+1}, 2, v{t}", f"v_and_b32 v{t}, 3, v{t}", f"v_lshlrev_b32 v{VFS}, 8, v{t+1}",
                f"v_lshl_add_u32 v{VFS}, v{t}, 4, v{VFS}",
                f"v_lshrrev_b32 v{t}, 3, v0", f"v_and_b32 v{t+1}, 7, v0", f"v_mul_u32_u24 v{VSG}, {SP}, v{t}", f"v_lshl_add_u32 v{VSG}, v{t+1}, 4, v{VSG}",
                f"v_lshrrev_b32 v{t+1}, 1, v{t+1}", f"v_mul_u32_u24 v{VSL}, 2560, v{t+1}", f"v_lshl_add_u32 v{VSL}, v{t}, 5, v{VSL}",
                f"s_mul_i32 s73, {WAVE}, 640", f"s_add_u32 s73, s73, {G2S}",
                f"v_and_b32 v{t+1}, 1, v0", f"v_lshl_add_u32 v{t+1}, v{t+1}, 4, s73", f"v_add_u32 v{VSL}, v{VSL}, v{t+1}",
                f"s_mul_i32 s73, s11, 2560", f"s_add_u32 s73, s73, {G2S}", f"v_lshl_add_u32 v{VSR}, v0, 3, s73"]

    def conv(self, a, role):
        o = self.o
        seq = []
        if role == 0:
            blocks = [4, 5, 6, 7, 0]
            for r in range(8):
                for c in range(8):
                    if c == 4: seq.append((0, r, 0, 0))
                    for e in range(7, -1, -1):
                        if e + c in (4, 5, 6, 7): seq.append((0, r, e, c))
            acc = lambda ch, b: 2 + 4 * blocks.index(b)
        else:
            for r in range(8):
                for ch in range(3):
                    for c in range(4):
                        for e in range(3, -1, -1):
                            if e + c in (1, 2, 3): seq.append((ch, r, e, c))
            acc = lambda ch, b: 2 + 12 * ch + 4 * (b - 1)
        uses = [[("B", ch, r, c), ("A", ch, r, e)] for ch, r, e, c in seq]
        def reads(f, reg):
            k, ch, r, i = f
            if k == "B":
                return [f"ds_read_b128 {vr(reg,4)}, v{VCB} offset:{ch*CBP+U_OFF+480+512*i-64*r}"]
            off = ch * CBP + 4032 - 512 * i - 64 * r
            return [f"ds_read_b64 {vr(reg,2)}, v{VCA} offset:{off}", f"ds_read_b64 {vr(reg+2,2)}, v{VCA} offset:{off+8}"]
        pool = list(range(88, 128, 4)) + list(range(48, 88, 4))
        fr = FragStream(uses, reads, pool, lead=12, pre=o.get("cvpre", 9), name="cv")
        for x in fr.pro + self.tail: a(x)
        a(self.st("g1.tail"))
        n = len(seq)
        seen = set()
        main = []
        for ch, r, e, c in seq:
            d = vr(acc(ch, e + c), 4)
            cin = d if (ch, e + c) in seen else "0"
            seen.add((ch, e + c))
            main.append(lambda d=d, cin=cin, A=("A", ch, r, e), B=("B", ch, r, c): f"v_mfma_f32_16x16x32_bf16 {d}, {vr(fr.reg[A],4)}, {vr(fr.reg[B],4)}, {cin}")
        mf, mp, mc = o.get("mf", 66), o.get("mp", 150), o.get("mc", 190)
        S = [fr]
        S.append(Stream(self.w2rest, 4, o.get("wend", 190), name="w2f"))
        sal = [f"s_lshl_b32 s81, s8, 2", f"s_lshr_b32 s80, s9, 2", f"s_add_u32 s81, s81, s80", f"s_lshl_b32 s81, s81, 8",
               f"s_and_b32 s80, s9, 3", f"s_lshl_b32 s80, s80, 2", f"s_add_u32 s80, s80, {WAVE}", f"s_lshl_b32 s80, s80, 2",
               f"s_add_u32 s81, s81, s80", f"s_add_u32 s81, s81, {FH}", f"v_mov_b32 v232, {TAG}",
               f"s_lshr_b32 s86, s12, 1", f"s_lshl_b32 s86, s86, 2", f"s_add_u32 s86, s86, {WAVE}", f"s_lshl_b32 s86, s86, 8",
               f"s_and_b32 s80, s12, 1", f"s_lshl_b32 s80, s80, 3", f"s_add_u32 s86, s86, s80", f"s_add_u32 s86, s86, {FH}",
               f"s_lshl_b32 s82, s12, 4", f"s_add_u32 s82, s82, {WAVE}", f"s_mul_i32 s82, s82, {12*1024}", f"s_add_u32 s82, s82, {HF}"]
        S.append(Stream(sal, 1, mf - 2, name="sal"))
        S.append(Stream([f"WAITVM hst\ns_mov_b64 exec, 1\nbuffer_store_dword v232, off, {SWS}, s81{SC}\ns_mov_b64 exec, -1\n" + self.st("cv.fh")], mf, mf + 1))
        side = self.late_consts() + [f"v_accvgpr_write_b32 a{k}, 0" for k in (241, 243, 245, 247, 249, 250, 251)]
        side += [f"global_load_ushort a{240+2*jb}, v{VB2}, {sp('b2')} offset:{32*jb}" for jb in range(5)]
        S.append(Stream(side, 4, mp - 2, name="side"))
        S.append(Stream([self.poll_load(231, False, VFH, "s86")], mp, mp + 1))
        nh = o.get("nh", 7)
        hl = self.hloads(0) + self.hloads(1)
        hpf = []
        if o.get("hpf", 0):
            side2 = [f"v_min_u32 v233, 47, v0", f"v_cmp_lt_u32 vcc, 23, v233", f"v_lshlrev_b32 v234, 7, v233", f"s_add_u32 s73, s11, 3", f"s_and_b32 s73, s73, 3",
                     f"s_mul_i32 s73, s73, {48*1024}", f"s_mul_i32 s80, s11, {48*1024}", f"s_sub_u32 s80, s80, 3072", f"v_mov_b32 v235, s73", f"v_mov_b32 v233, s80",
                     f"v_cndmask_b32 v235, v235, v233, vcc", f"v_add_u32 v234, v234, v235", f"s_lshr_b32 s73, {JJ}, 3", f"s_mul_i32 s73, s73, 3072", f"s_add_u32 s83, s82, s73"]
            S.append(Stream(side2, mp, mc - 1, name="side2"))
            hpf = [f"buffer_load_dword v231, v234, {SWS}, s83 offen{SC}"]
        k = o.get("hpfpos", 7)
        S.append(Stream([self.poll_check(f"h{role}", 231, False, VFH, "s86") + "\n" + self.st("hpoll")] + hl[:min(k, nh)] + hpf + hl[min(k, nh):nh], mc, n, ahead=0, name="h"))
        gap_sched(a, main, S, f"conv{role}")
        a(self.st("cv.main"))
        order = [4, 0, 1, 2, 3] if role == 0 else list(range(9))
        for q in order:
            a(f"v_cvt_pk_bf16_f32 v{96+2*q}, v{2+4*q}, v{3+4*q}\nv_cvt_pk_bf16_f32 v{97+2*q}, v{4+4*q}, v{5+4*q}")
        for q in order:
            a(f"ds_write_b64 v{VCW}, {vr(96+2*q,2)} offset:{512*q}")
        k1 = nh + 3
        for x in hl[nh:k1]: a(x)
        k2 = max(k1, 13)
        if role == 0:
            a(f"s_mul_i32 s7, {WAVE}, {SP}\ns_add_u32 s7, s7, {S_ROW}")
            for q in range(3): a(f"ds_read_b128 {vr(96+4*q,4)}, v{VPW} offset:{1024*q}")
            for x in hl[k1:k2]: a(x)
            for q in range(2): a(f"buffer_store_dwordx4 {vr(96+4*q,4)}, v1, {SWS}, s7 offen offset:{2048+1024*q}{SC} @sst")
            a(f"s_waitcnt lgkmcnt(0)\ns_mov_b64 exec, 0xffffffff\nbuffer_store_dwordx4 v[104:107], v1, {SWS}, s7 offen{SC} @sst\ns_mov_b64 exec, -1")
        else:
            for ch in range(3):
                a(f"ds_read_b128 {vr(96+8*ch,4)}, v{VPW} offset:{1536*ch}\nds_read_b128 {vr(100+8*ch,4)}, v{VPW} offset:{1536*ch+1024}")
            for x in hl[k1:k2]: a(x)
            a(f"s_add_u32 s7, {S_ROW}, {SP}\ns_add_u32 s73, {S_ROW}, {2*SP}")
            sr = [S_ROW, "s7", "s73"]
            for ch in range(3): a(f"buffer_store_dwordx4 {vr(96+8*ch,4)}, v1, {SWS}, {sr[ch]} offen offset:512{SC} @sst")
            a("s_waitcnt lgkmcnt(0)\ns_mov_b64 exec, 0xffffffff")
            for ch in range(3): a(f"buffer_store_dwordx4 {vr(100+8*ch,4)}, v1, {SWS}, {sr[ch]} offen offset:1536{SC} @sst")
            a("s_mov_b64 exec, -1")
        self.hrest = hl[k2:]
        a(self.st("cv.out"))

    def gemm2f(self, a):
        o = self.o
        AC = (2, 22)
        main, idx = [], {}
        for rho in range(4):
            for jb in range(5):
                d = vr(AC[rho & 1] + 4 * jb, 4)
                idx[(rho, jb)] = len(main)
                if rho == 0: main.append(f"v_mfma_f32_16x16x32_bf16 {d}, {ar(240+2*jb,4)}, {vr(V_ONE,4)}, 0")
                for kk in range(12):
                    main.append(f"v_mfma_f32_16x16x32_bf16 {d}, {ar(self.w2reg(jb*12+kk),4)}, {vr(self.breg(rho,kk),4)}, {d}")
        for rho in (1, 2, 3): main[idx[(rho, 0)]] = self.st(f"g2.r{rho}") + "\n" + main[idx[(rho, 0)]]
        main[13] = self.st("g2.c1") + "\n" + main[13]
        idx[(4, 0)] = n = len(main)
        nxt = lambda rho, jb: idx[(rho, jb + 1)] if jb < 4 else idx[(rho + 1, 0)]
        for i in range(2): a(f"buffer_load_dwordx4 v{VX+i}, {SX}, s14 offen lds @xdma\ns_add_u32 m0, m0, 1024")
        a(f"s_mov_b64 exec, 0xffffffff\nbuffer_load_dwordx4 v{VX+2}, {SX}, s14 offen lds @xdma\ns_mov_b64 exec, -1")
        a(f"s_mul_i32 s7, {WAVE}, 10240\ns_add_u32 m0, s7, 32768")
        ring = []
        for rho in range(3):
            par = rho & 1
            def wr(jb):
                g = nxt(rho, jb) + 3
                return [Item(f"ds_write_addtid_b32 v{AC[par]+4*jb+k} offset:{RING-32768+5120*par+1024*jb+256*k} @pw", lo=g, hi=g + 3) for k in range(4)]
            def rd(jb, g):
                return [Item(f"ds_read2st64_b32 {vr(AC[par^1]+4*jb+2*k,2)}, v{VPR} offset0:{20*par+4*jb+2*k} offset1:{20*par+4*jb+2*k+1}", lo=g, hi=g + 6) for k in range(2)]
            b1, b2 = nxt(rho, 2) + 10, nxt(rho, 4) + 10
            ring += wr(0) + wr(1) + wr(2) + [Item("WAITLG pw\ns_barrier", lo=b1, hi=b1)] + rd(0, b1 + 1) + rd(1, b1 + 1) + rd(2, b1 + 1)
            ring += wr(3) + wr(4) + [Item("WAITLG pw\ns_barrier", lo=b2, hi=b2)] + rd(3, b2 + 1) + rd(4, b2 + 1)
        rs = Stream(ring, 0, n, ahead=0, name="ring")
        for it in rs.items: it.ideal = it.lo - 5
        S = [rs]
        S.append(Stream(self.hrest + self.hloads(2) + [Item(x, lo=idx[(1, 0)]) for x in self.hloads(3)], 0, o.get("hend", 130), name="h"))
        ms = o.get("ms", 62)
        S.append(Stream(self.late_consts2(), 0, 44, name="lc2"))
        sal = [f"s_lshl_b32 s81, {XCD}, 3", f"s_lshr_b32 s80, {JJ}, 2", f"s_add_u32 s81, s81, s80", f"s_lshl_b32 s81, s81, 8",
               f"s_and_b32 s80, {JJ}, 3", f"s_lshl_b32 s80, s80, 2", f"s_add_u32 s80, s80, {WAVE}", f"s_lshl_b32 s80, s80, 2",
               f"s_add_u32 s81, s81, s80", f"s_add_u32 s81, s81, {FS}",
               f"s_lshl_b32 s86, s13, 11", f"s_add_u32 s86, s86, {FS}",
               f"s_lshl_b32 s76, s13, 2", f"s_add_u32 s76, s76, {WAVE}", f"s_mul_i32 s76, s76, {20*SP}",
               f"s_lshl_b32 s80, s12, 7", f"s_add_u32 s76, s76, s80", f"s_add_u32 s76, s76, {ST}",
               f"s_add_u32 s77, s76, {8*SP}", f"s_add_u32 s78, s76, {16*SP}", f"s_mov_b32 s74, {fbits(-1.4426950408889634)}"]
        S.append(Stream(sal, 0, ms - 2, name="sal"))
        S.append(Stream([f"WAITVM sst\ns_mov_b64 exec, 1\nbuffer_store_dword v232, off, {SWS}, s81{SC}\ns_mov_b64 exec, -1\n" + self.st("g2.fs")], ms, ms + 1))
        XR, XF, SR, SD = 96, 176, 106, 116
        S.append(Stream(["WAITVM xdma"] + [f"ds_read_b64 {vr(XR+2*jb,2)}, v{VXD} offset:{32*jb}" for jb in range(5)], idx[(1, 3)], idx[(2, 0)], name="xr"))
        xu = []
        for q in range(10): xu += [f"v_lshlrev_b32 v{XF+2*q}, 16, v{XR+q}", f"v_and_b32 v{XF+2*q+1}, 0xffff0000, v{XR+q}"]
        S.append(Stream(xu, idx[(2, 1)], idx[(3, 0)], ahead=0, name="xu"))
        mp, mc = o.get("g2p", 140), o.get("g2c", 180)
        S.append(Stream([self.poll_load(196, True, VFS, "s86")], mp, mp + 1))
        S.append(Stream([self.poll_check("s", 196, True, VFS, "s86") + "\n" + self.st("spoll"),
                         f"buffer_load_dwordx4 {vr(SD,4)}, v{VSG}, {SWS}, s76 offen{SC}",
                         f"buffer_load_dwordx4 {vr(SD+4,4)}, v{VSG}, {SWS}, s77 offen{SC}",
                         f"s_mov_b64 exec, 0xffffffff\nbuffer_load_dwordx4 {vr(SD+8,4)}, v{VSG}, {SWS}, s78 offen{SC}\ns_mov_b64 exec, -1"], mc, mc + 5, ahead=0))
        Z = AC[1]
        def silu(jb):
            T = 200
            z = Z + 4 * jb
            L = [f"v_mul_f32 v{T+k}, s74, v{z+k}" for k in range(4)] + [f"v_exp_f32 v{T+k}, v{T+k}" for k in range(4)]
            L += [f"v_add_f32 v{T+k}, 1.0, v{T+k}" for k in range(4)] + [f"v_rcp_f32 v{T+k}, v{T+k}" for k in range(4)]
            L += [f"v_mul_f32 v{z+k}, v{z+k}, v{T+k}" for k in range(4)]
            return L
        sl = []
        for jb in range(3):
            L = [Item(x) for x in silu(jb)]
            L[0].lo = nxt(3, jb) + 2
            sl += L
        S.append(Stream(sl, nxt(3, 0) + 2, n, ahead=6, name="silu"))
        gap_sched(a, main, S, "g2")
        a(self.st("g2.mfma"))
        a(f"""
        ds_write_b128 v{VSL}, {vr(SD,4)}
        ds_write_b128 v{VSL}, {vr(SD+4,4)} offset:256
        s_waitcnt vmcnt(0)
        s_mov_b64 exec, 0xffffffff
        ds_write_b128 v{VSL}, {vr(SD+8,4)} offset:512
        s_mov_b64 exec, -1
        """)
        for x in silu(3): a(x)
        a("s_waitcnt lgkmcnt(0)\ns_barrier")
        a(self.st("g2.bar"))
        for jb in range(5): a(f"ds_read_b64_tr_b16 {vr(SR+2*jb,2)}, v{VSR} offset:{512*jb}")
        for x in silu(4): a(x)
        T = 204
        for q in range(10):
            a(f"""
            v_lshlrev_b32 v{T}, 16, v{SR+q}
            v_and_b32 v{T+1}, 0xffff0000, v{SR+q}
            v_pk_fma_f32 {vr(T,2)}, {vr(T,2)}, {vr(Z+2*q,2)}, {vr(XF+2*q,2)}
            v_cvt_pk_bf16_f32 v{XR+q}, v{T}, v{T+1}
            """)
        for jb in range(5): a(f"ds_write_b64 v{VXD}, {vr(XR+2*jb,2)} offset:{32*jb}")
        a("s_waitcnt lgkmcnt(0)")
        for i in range(3): a(f"ds_read_b128 {vr(SD+4*i,4)}, v{VXL} offset:{1024*i}")
        osc = o.get("osc", SC)
        for i in range(2): a(f"buffer_store_dwordx4 {vr(SD+4*i,4)}, v{VX+i}, {SOUT}, s14 offen{osc}")
        a(f"s_waitcnt lgkmcnt(0)\ns_mov_b64 exec, 0xffffffff\nbuffer_store_dwordx4 {vr(SD+8,4)}, v{VX+2}, {SOUT}, s14 offen{osc}")
        a(self.st("g2.done"))

def build(prof=False, opt=None, cls=F4):
    g = cls(prof, opt or {})
    if prof == "min":
        full = g.st
        g.st = lambda n: full(n) if n in ("start", "end") else ""
    elif prof:
        g.st("start"); g.st("w3.dma")
    if (opt or {}).get("only"):
        lst_ = ["start"] + opt["only"].strip().split(",") + ["end"]
        pairs = [34, 16, 36, 40, 44, 46, 48, 18, 20, 22, 24, 26, 28, 30, 32]
        g.STAMPS = pairs + [p + 1 for p in pairs]
        g.names = list(lst_)
        g.st = lambda n: (f"S_MEMTIME s[{pairs[lst_.index(n)]}:{pairs[lst_.index(n)]+1}]" + ("\ns_waitcnt lgkmcnt(0)" if n in ("start", "end") else "")) if n in lst_ else ""
    if (opt or {}).get("rt"):
        st0_ = g.st
        g.st = lambda n: st0_(n).replace("s_memtime", "s_memrealtime")
    enc = (opt or {}).get("enc")
    if enc:
        g.st = lambda n: "s_memrealtime s[98:99]\ns_waitcnt lgkmcnt(0)" if n == enc.strip() else ""
    dbg = (opt or {}).get("dbg")
    if dbg:
        op, wsel, lst = dbg.strip().split(":")
        lst = ["start"] + lst.split(",") + ["end"]
        g.prof = True
        g.STAMPS = [r for r in g.STAMPS if r not in (46, 47)]
        g.names = list(lst)
        full2 = g.st
        g.st = lambda n: full2(n) if n in lst else ""
        def dump(a):
            a("s_mov_b64 exec, -1\ns_waitcnt vmcnt(0)")
            a(g.st("end"))
            a("s_memrealtime s[100:101]\ns_waitcnt lgkmcnt(0)\ns_sub_u32 s100, s100, s99\nv_mov_b32 v2, s100")
            for i in range(1, len(lst)):
                a(f"s_sub_u32 s7, s{g.STAMPS[i]}, s{g.STAMPS[0]}\ns_cmp_eq_u32 s{g.STAMPS[i]}, 0\ns_cselect_b32 s7, 0, s7\nv_writelane_b32 v2, s7, {i}")
            a(f"v_lshlrev_b32 v3, 2, v0\ns_cmp_eq_u32 {WAVE}, {wsel}\ns_cbranch_scc0 L_end\ns_mov_b64 exec, {(1 << len(lst)) - 1}\nglobal_atomic_{op} v3, v2, s[46:47]")
        g.dump = dump
    a = Asm(auto=True)
    if enc: a("s_memrealtime s[98:99]")
    g.start(a)
    g.consts(a)
    g.s_compute3(a)
    a(g.st("s.done"))
    a(f"s_cmp_eq_u32 {WAVE}, 3\ns_cbranch_scc1 L_w3")
    st0 = a.state()
    g.kgen4(a)
    a("s_branch L_g1\nL_w3:")
    st1 = a.state()
    a.set_state(st0)
    g.wave3(a)
    a("L_g1:")
    a.merge([st1, a.state()])
    a(g.st("g1.arrive"))
    a("s_barrier")
    g.gemm1f(a)
    a(f"s_cmp_eq_u32 {WAVE}, 3\ns_cbranch_scc1 L_cv3")
    st0 = a.state()
    g.conv(a, 0)
    a("s_branch L_g2\nL_cv3:")
    st1 = a.state()
    a.set_state(st0)
    g.conv(a, 1)
    a("L_g2:")
    a.merge([st1, a.state()])
    g.gemm2f(a)
    a(f"s_or_b32 s7, s2, {WAVE}\ns_cbranch_scc1 L_fin\ns_mov_b32 s7, {FLG}")
    a(g.flag_store("s7", 4))
    a("L_fin:")
    if enc:
        a(f"s_cmp_eq_u32 s2, {opt.get('ewg', 77)}\ns_cbranch_scc0 L_end\ns_cmp_eq_u32 {WAVE}, {opt.get('ewv', 0)}\ns_cbranch_scc0 L_end")
        a("s_add_u32 s98, s98, 4000\nL_spin:\ns_memrealtime s[100:101]\ns_waitcnt lgkmcnt(0)\ns_sub_u32 s7, s98, s100\ns_cmp_gt_u32 s7, 4000\ns_cbranch_scc0 L_spin")
    g.dump(a)
    a("L_end:\ns_endpgm")
    g.slow_paths(a)
    a("L_code_end:")
    body = a.finish().replace("S_MEMTIME", "s_memtime")
    if (opt or {}).get("dry"):
        body = body.replace(f"s_mov_b32 s70, {WS_BYTES}", "s_mov_b32 s70, 0").replace("s_mov_b32 s58, 1966080", "s_mov_b32 s58, 0")
        body = body.replace("s_mov_b32 s66, 2621440", "s_mov_b32 s66, 0")
        import re
        body = re.sub(r"s_cbranch_scc1 L_slow_\w+", "s_nop 0", body)
        body = body.replace("L_fin:\n", f"L_fin:\n    s_mov_b32 s70, {WS_BYTES}\n")
    if (opt or {}).get("al", 1): body = align8(body)
    out = header()
    out += f"; @launch grid=(256,1,1) block=(256,1,1) lds={LDS_BYTES}\n"
    if prof: out += "; stamps2: " + " ".join(g.names) + "\n"
    out += "; layout v3\n"
    out += '.amdgcn_target "amdgcn-amd-amdhsa--gfx950"\n.text\n'
    out += khead(NAME + "_kernel") + body
    out += '.section .rodata,"a"\n.p2align 6\n' + kdesc(NAME + "_kernel")
    print("instructions", sum(1 for i in a.ins if i.mn), "nops inserted", a.nops)
    return out

if __name__ == "__main__":
    open(sys.argv[1], "w").write(build("min" if "min" in sys.argv[2:] else "prof" in sys.argv[2:], parse(sys.argv[2:])))
```

```python
import sys
from dsl import Item, Stream, FragStream, gap_sched, weave, interleave
import gen3, gen4, gen7
from gen4 import *
CBP, CB0 = 21280, 18080
for m_ in (gen4, gen7): m_.CBP, m_.CB0 = CBP, CB0

class Late:
    def gemm1f(self, a):
        o = self.o
        ACC = (48, 64, 32)
        uses = [[] for _ in range(10)]
        for ks in range(40): uses += [[(0, ks)], [(1, ks)]]
        uses += [[] for _ in range(41)]
        def reads(f, reg):
            p, ks = f
            base = V_P0 + p
            off = ks * 2048 - (65536 if ks >= 32 else 0)
            pre = [f"v_add_u32 v{base}, 0x10000, v{base}"] if ks == 32 else []
            return pre + [f"ds_read_b64_tr_b16 {vr(reg,2)}, v{base} offset:{off}", f"ds_read_b64_tr_b16 {vr(reg+2,2)}, v{base} offset:{off+512}"]
        fr = FragStream(uses, reads, list(range(112, 144, 4)), lead=6, name="pair")
        main = self.kmf(False)
        main += [f"v_mfma_f32_32x32x16_bf16 {vr(ACC[p],16)}, {vr(V_B1+2*p,4)}, {vr(V_ONE,4)}, 0" for p in range(2)]
        for ks in range(40):
            for p in range(2):
                main.append(lambda p=p, ks=ks: f"v_mfma_f32_32x32x16_bf16 {vr(ACC[p],16)}, {vr(fr.reg[(p,ks)],4)}, {ar(4*ks,4)}, {vr(ACC[p],16)}")
        main.append(self.st("g1.ab") + f"\nv_mfma_f32_32x32x16_bf16 {vr(ACC[2],16)}, {vr(V_B1+4,4)}, {vr(V_ONE,4)}, 0")
        for ks in range(40):
            main.append(f"v_mfma_f32_32x32x16_bf16 {vr(ACC[2],16)}, {self.creg(ks)[0]}, {ar(4*ks,4)}, {vr(ACC[2],16)}")
        mb = o.get("mb", 86)
        S = [fr]
        cpre = []
        for ks in range(40):
            cpre += [f"ds_read_b64_tr_b16 {self.creg(ks)[1](h)}, v{V_S} offset:{ks*1024+256*h}" for h in range(2)]
        S.append(Stream(cpre, 0, mb - 3, ahead=3, name="cpre"))
        ny = o.get("ny", 8)
        yl = [Item(x, hi=max(0, 10 + 2 * (ny + i) - o.get("ylead", 20))) for i, x in enumerate(self.yloads()[ny:])]
        S.append(Stream(yl, 0, o.get("yend", 60), ahead=3, name="y"))
        t1, t2 = self.ktail3()
        S.append(Stream(t1, 10, 36, name="t1"))
        S.append(Stream(t2, 41, mb - 4, name="t2"))
        misc = self.late_scalars() + [f"s_mov_b32 s74, {fbits(-1.5957691216057308*1.4426950408889634)}",
                f"s_mov_b32 s75, {fbits(-1.5957691216057308*0.044715*1.4426950408889634)}",
                "v_mov_b32 v8, s74", "v_mov_b32 v9, s75", "v_mov_b32 v30, 1.0", "v_mov_b32 v31, 1.0"]
        mxp, mx = o.get("mxp", 56), o.get("mx", 78)
        S.append(Stream(misc, 0, mx - 2, name="misc"))
        S.append(Stream([f"s_mov_b32 s84, {FX}\n" + self.poll_load(2, True, V_FX, "s84")], mxp, mxp + 1))
        S.append(Stream([self.poll_check("x", 2, True, V_FX, "s84") + "\n" + self.st("xpoll")] +
                        [("" if i == 0 else f"s_add_u32 s83, s83, {16*XP}\n") + f"buffer_load_dwordx4 {ar(240+4*i,4)}, v{V_UG}, {SWS}, s83 offen{SC}" for i in range(4)],
                        mx, mx + 12, ahead=0))
        nw = o.get("nw", 14)
        S.append(Stream([Item(x, lo=92 + i) for i, x in enumerate(self.w2f_items()[:nw])], max(93, mx + 12), 131, name="w2f"))
        S.append(Stream([f"s_lshl_b32 s7, {WAVE}, 10\ns_add_u32 m0, s7, {CB0}\ns_waitcnt lgkmcnt(0)\ns_barrier"], mb, mb + 1))
        exr, exw = [], []
        e0, e1 = mb + 1, o.get("exend", 124)
        for q in range(12):
            ch, row = divmod(q, 4)
            E, O = 80 + 2 * (q % 6), 92 + (q % 4)
            d = ch * CBP + row * 256
            g0 = e0 + 4 + (e1 - e0 - 4) * q // 12
            g1 = e0 + 4 + (e1 - e0 - 4) * (q + 1) // 12
            prev = e0 + 4 + (e1 - e0 - 4) * (q - 5) // 12 if q >= 6 else e0
            exr.append(Item(f"ds_read2_b32 {vr(E,2)}, v{V_ES+ch} offset0:{64*row} offset1:{64*row+1}", lo=prev + 1, hi=max(prev + 1, g0 - 3)))
            exw += [Item(f"ds_write_addtid_b32 v{E} offset:{d}", lo=g0, hi=g1), Item(f"ds_write_addtid_b32 v{E} offset:{d+2*CPITCH-4}", hi=g1),
                    Item(f"v_alignbit_b32 v{O}, v{E+1}, v{E}, 16", hi=g1),
                    Item(f"ds_write_addtid_b32 v{O} offset:{d+CPITCH}"), Item(f"ds_write_addtid_b32 v{O} offset:{d+3*CPITCH-4}")]
        exw += [f"ds_write_b32 v{V_Z1}, v26", f"ds_write_b64 v{V_Z2}, v[26:27]"]
        S.append(Stream(exr, e0, e1 - 6, ahead=100, name="exr"))
        S.append(Stream(exw, e0 + 4, e1 + 2, ahead=3, name="exw"))
        nG = o.get("nG", 6)
        gl = self.gelu4(ACC[0], 10, range(min(nG, 8)))
        hs = self.hstore(10, S_HA, 0)
        if nG >= 4: gl.insert(60, hs[0])
        if nG >= 8: gl += [hs[1]] + self.gelu4(ACC[1], 18, range(nG - 8))
        S.append(Stream(gl, 91, 131, ahead=4, name="gelu"))
        uw = [f"ds_write_b64 v{V_UL}, {ar(240+2*i,2)} offset:{256*(i>>1)+8*(i&1)}" for i in range(8)]
        ush = o.get("ush", 0)
        if ush: S.append(Stream(uw, ush, 130, ahead=0, name="uw"))
        gap_sched(a, main, S, "g1", dscap=lambda m: int(o.get("dscap", 3.5) * (m + 1)) - int(o.get("dscap", 3.5) * m))
        a(self.st("g1.c"))
        gp = lambda acc_, out, first=0: [x.replace("v[10:11]", "v[30:31]") for x in self.gelu_packed(acc_, out, 2)][first // 2 * 20:]
        assert nG % 2 == 0
        w2l = self.w2f_items()[nw:]
        groups = []
        for p, out, sreg, off in ((0, 10, S_HA, 0), (1, 18, S_HA, 1024), (2, 80, S_HC, 0)):
            g = gp(ACC[p], out)
            for k in range(4):
                if 8 * p + 2 * k < nG: continue
                groups.append((g[20 * k:20 * k + 20], self.hstore(out, sreg, off)[k // 2] if k & 1 else None))
        nbar = len(groups) - o.get("nlast", 2)
        seq, self.tail = [], []
        uwg = [] if ush else [uw[2 * i:2 * i + 2] for i in range(4)]
        k = 0
        for gi, (g, st_) in enumerate(groups):
            dst = seq if gi < nbar else self.tail
            mid = []
            if uwg and gi >= nbar - 5: mid = uwg.pop(0)
            dst += g[:10] + mid + [w2l[k]] + g[10:]
            k += 1
            if st_: dst.append(st_)
            elif o.get("nt2", 0):
                dst.append(w2l[k]); k += 1
        assert not uwg
        for x in seq: a(x)
        a("s_waitcnt lgkmcnt(0)\ns_barrier")
        self.w2rest = w2l[k:]

    def conv(self, a, role):
        o = self.o
        seq = []
        if role == 0:
            blocks = [4, 5, 6, 7, 0]
            for r in range(8):
                for c in range(8):
                    if c == 4: seq.append((0, r, 0, 0))
                    for e in range(7, -1, -1):
                        if e + c in (4, 5, 6, 7): seq.append((0, r, e, c))
            acc = lambda ch, b: 2 + 4 * blocks.index(b)
        else:
            for r in range(8):
                for ch in range(3):
                    for c in range(4):
                        for e in range(3, -1, -1):
                            if e + c in (1, 2, 3): seq.append((ch, r, e, c))
            acc = lambda ch, b: 2 + 12 * ch + 4 * (b - 1)
        uses = [[("B", ch, r, c), ("A", ch, r, e)] for ch, r, e, c in seq]
        def reads(f, reg):
            k, ch, r, i = f
            if k == "B":
                return [f"ds_read_b128 {vr(reg,4)}, v{VCB} offset:{ch*CBP+U_OFF+480+512*i-64*r}"]
            off = ch * CBP + 4032 - 512 * i - 64 * r
            return [f"ds_read_b64 {vr(reg,2)}, v{VCA} offset:{off}", f"ds_read_b64 {vr(reg+2,2)}, v{VCA} offset:{off+8}"]
        pool = list(range(88, 128, 4)) + list(range(48, 88, 4))
        fr = FragStream(uses, reads, pool, lead=12, pre=o.get("cvpre", 9), name="cv")
        for x in fr.pro + self.tail: a(x)
        a(self.st("g1.tail"))
        n = len(seq)
        seen = set()
        main = []
        for ch, r, e, c in seq:
            d = vr(acc(ch, e + c), 4)
            cin = d if (ch, e + c) in seen else "0"
            seen.add((ch, e + c))
            main.append(lambda d=d, cin=cin, A=("A", ch, r, e), B=("B", ch, r, c): f"v_mfma_f32_16x16x32_bf16 {d}, {vr(fr.reg[A],4)}, {vr(fr.reg[B],4)}, {cin}")
        mf, mp, mc = o.get("mf", 60), o.get("mp", 130), o.get("mc", 168)
        S = [fr]
        S.append(Stream(self.w2rest, 4, o.get("wend", 166), name="w2f"))
        sal = [f"s_lshl_b32 s81, s8, 2", f"s_lshr_b32 s80, s9, 2", f"s_add_u32 s81, s81, s80", f"s_lshl_b32 s81, s81, 8",
               f"s_and_b32 s80, s9, 3", f"s_lshl_b32 s80, s80, 2", f"s_add_u32 s80, s80, {WAVE}", f"s_lshl_b32 s80, s80, 2",
               f"s_add_u32 s81, s81, s80", f"s_add_u32 s81, s81, {FH}", f"v_mov_b32 v232, {TAG}",
               f"s_lshr_b32 s86, s12, 1", f"s_lshl_b32 s86, s86, 2", f"s_add_u32 s86, s86, {WAVE}", f"s_lshl_b32 s86, s86, 8",
               f"s_and_b32 s80, s12, 1", f"s_lshl_b32 s80, s80, 3", f"s_add_u32 s86, s86, s80", f"s_add_u32 s86, s86, {FH}",
               f"s_lshl_b32 s82, s12, 4", f"s_add_u32 s82, s82, {WAVE}", f"s_mul_i32 s82, s82, {12*1024}", f"s_add_u32 s82, s82, {HF}"]
        S.append(Stream(sal, 1, mf - 2, name="sal"))
        S.append(Stream([f"WAITVM hst\ns_mov_b64 exec, 1\nbuffer_store_dword v232, off, {SWS}, s81{SC}\ns_mov_b64 exec, -1\n" + self.st("cv.fh")], mf, mf + 1))
        side = self.late_consts() + [f"v_accvgpr_write_b32 a{k}, 0" for k in (241, 243, 245, 247, 249, 250, 251)]
        side += [f"global_load_ushort a{240+2*jb}, v{VB2}, {sp('b2')} offset:{32*jb}" for jb in range(5)]
        side += [f"buffer_load_dwordx4 v{VX+i}, {SX}, s14 offen lds @xdma\ns_add_u32 m0, m0, 1024" for i in range(2)]
        side += [f"s_mov_b64 exec, 0xffffffff\nbuffer_load_dwordx4 v{VX+2}, {SX}, s14 offen lds @xdma\ns_mov_b64 exec, -1"]
        S.append(Stream(side, 4, mp - 2, name="side"))
        S.append(Stream([self.poll_load(231, False, VFH, "s86")], mp, mp + 1))
        nh = o.get("nh", 11)
        hl = self.hloads(0) + self.hloads(1)
        hpf = []
        if o.get("hpf", 0):
            side2 = [f"v_min_u32 v233, 47, v0", f"v_cmp_lt_u32 vcc, 23, v233", f"v_lshlrev_b32 v234, 7, v233", f"s_add_u32 s73, s11, 3", f"s_and_b32 s73, s73, 3",
                     f"s_mul_i32 s73, s73, {48*1024}", f"s_mul_i32 s80, s11, {48*1024}", f"s_sub_u32 s80, s80, 3072", f"v_mov_b32 v235, s73", f"v_mov_b32 v233, s80",
                     f"v_cndmask_b32 v235, v235, v233, vcc", f"v_add_u32 v234, v234, v235", f"s_lshr_b32 s73, {JJ}, 3", f"s_mul_i32 s73, s73, 3072", f"s_add_u32 s83, s82, s73"]
            S.append(Stream(side2, mp, mc - 1, name="side2"))
            hpf = [f"buffer_load_dword v231, v234, {SWS}, s83 offen{SC}"]
        k = o.get("hpfpos", 7)
        S.append(Stream([self.poll_check(f"h{role}", 231, False, VFH, "s86") + "\n" + self.st("hpoll")] + hl[:min(k, nh)] + hpf + hl[min(k, nh):nh], mc, n, ahead=0, name="h"))
        gap_sched(a, main, S, f"conv{role}", vspace=o.get("vs", 64), budget=lambda m: o.get(f"cbud{role}", (2, 2.34)[role]))
        a(self.st("cv.main"))
        order = [4, 0, 1, 2, 3] if role == 0 else list(range(9))
        for q in order:
            a(f"v_cvt_pk_bf16_f32 v{96+2*q}, v{2+4*q}, v{3+4*q}\nv_cvt_pk_bf16_f32 v{97+2*q}, v{4+4*q}, v{5+4*q}")
        for q in order:
            a(f"ds_write_b64 v{VCW}, {vr(96+2*q,2)} offset:{512*q}")
        a(hl[nh])
        if role == 0:
            a(f"s_mul_i32 s7, {WAVE}, {SP}\ns_add_u32 s7, s7, {S_ROW}")
            for q in range(3): a(f"ds_read_b128 {vr(96+4*q,4)}, v{VPW} offset:{1024*q}")
            a(hl[nh + 1])
            for q in range(2): a(f"buffer_store_dwordx4 {vr(96+4*q,4)}, v1, {SWS}, s7 offen offset:{2048+1024*q}{SC} @sst")
            a(f"s_waitcnt lgkmcnt(0)\ns_mov_b64 exec, 0xffffffff\nbuffer_store_dwordx4 v[104:107], v1, {SWS}, s7 offen{SC} @sst\ns_mov_b64 exec, -1")
        else:
            for ch in range(3):
                a(f"ds_read_b128 {vr(96+8*ch,4)}, v{VPW} offset:{1536*ch}\nds_read_b128 {vr(100+8*ch,4)}, v{VPW} offset:{1536*ch+1024}")
            a(hl[nh + 1])
            a(f"s_add_u32 s7, {S_ROW}, {SP}\ns_add_u32 s73, {S_ROW}, {2*SP}")
            sr = [S_ROW, "s7", "s73"]
            for ch in range(3): a(f"buffer_store_dwordx4 {vr(96+8*ch,4)}, v1, {SWS}, {sr[ch]} offen offset:512{SC} @sst")
            a("s_waitcnt lgkmcnt(0)\ns_mov_b64 exec, 0xffffffff")
            for ch in range(3): a(f"buffer_store_dwordx4 {vr(100+8*ch,4)}, v1, {SWS}, {sr[ch]} offen offset:1536{SC} @sst")
            a("s_mov_b64 exec, -1")
        assert nh + 2 >= 13
        self.hrest = hl[nh + 2:]
        a(self.st("cv.out"))

    def gemm2f(self, a):
        o = self.o
        AC = (2, 22)
        main, idx = [], {}
        for rho in range(4):
            for jb in range(5):
                d = vr(AC[rho & 1] + 4 * jb, 4)
                idx[(rho, jb)] = len(main)
                if rho == 0: main.append(f"v_mfma_f32_16x16x32_bf16 {d}, {ar(240+2*jb,4)}, {vr(V_ONE,4)}, 0")
                for kk in range(12):
                    main.append(f"v_mfma_f32_16x16x32_bf16 {d}, {ar(self.w2reg(jb*12+kk),4)}, {vr(self.breg(rho,kk),4)}, {d}")
        for rho in (1, 2, 3): main[idx[(rho, 0)]] = self.st(f"g2.r{rho}") + "\n" + main[idx[(rho, 0)]]
        main[13] = self.st("g2.c1") + "\n" + main[13]
        idx[(4, 0)] = n = len(main)
        nxt = lambda rho, jb: idx[(rho, jb + 1)] if jb < 4 else idx[(rho + 1, 0)]
        a(f"s_mul_i32 s7, {WAVE}, 10240\ns_add_u32 m0, s7, 32768")
        ring = []
        for rho in range(3):
            par = rho & 1
            def wr(jb):
                g = nxt(rho, jb) + 3
                return [Item(f"ds_write_addtid_b32 v{AC[par]+4*jb+k} offset:{RING-32768+5120*par+1024*jb+256*k} @pw", lo=g, hi=g + 3) for k in range(4)]
            def rd(jb, g):
                return [Item(f"ds_read2st64_b32 {vr(AC[par^1]+4*jb+2*k,2)}, v{VPR} offset0:{20*par+4*jb+2*k} offset1:{20*par+4*jb+2*k+1}", lo=g, hi=g + 6) for k in range(2)]
            b1, b2 = nxt(rho, 2) + 10, nxt(rho, 4) + 10
            ring += wr(0) + wr(1) + wr(2) + [Item("WAITLG pw\ns_barrier", lo=b1, hi=b1)] + rd(0, b1 + 1) + rd(1, b1 + 1) + rd(2, b1 + 1)
            ring += wr(3) + wr(4) + [Item("WAITLG pw\ns_barrier", lo=b2, hi=b2)] + rd(3, b2 + 1) + rd(4, b2 + 1)
        rs = Stream(ring, 0, n, ahead=0, name="ring")
        for it in rs.items: it.ideal = it.lo - 5
        S = [rs]
        hlead = o.get("hlead", 14)
        hh = [Item(x, hi=idx[(1, 0)] - hlead) for x in self.hrest] + [Item(x, hi=idx[(2, 0)] - hlead) for x in self.hloads(2)]
        hh += [Item(x, lo=idx[(1, 0)], hi=idx[(3, 0)] - hlead) for x in self.hloads(3)]
        S.append(Stream(hh, 0, o.get("hend", 150), ahead=30, name="h"))
        ms = o.get("ms", 62)
        S.append(Stream(self.late_consts2(), 0, 44, name="lc2"))
        sal = [f"s_lshl_b32 s81, {XCD}, 3", f"s_lshr_b32 s80, {JJ}, 2", f"s_add_u32 s81, s81, s80", f"s_lshl_b32 s81, s81, 8",
               f"s_and_b32 s80, {JJ}, 3", f"s_lshl_b32 s80, s80, 2", f"s_add_u32 s80, s80, {WAVE}", f"s_lshl_b32 s80, s80, 2",
               f"s_add_u32 s81, s81, s80", f"s_add_u32 s81, s81, {FS}",
               f"s_lshl_b32 s86, s13, 11", f"s_add_u32 s86, s86, {FS}",
               f"s_lshl_b32 s76, s13, 2", f"s_add_u32 s76, s76, {WAVE}", f"s_mul_i32 s76, s76, {20*SP}",
               f"s_lshl_b32 s80, s12, 7", f"s_add_u32 s76, s76, s80", f"s_add_u32 s76, s76, {ST}",
               f"s_add_u32 s77, s76, {8*SP}", f"s_add_u32 s78, s76, {16*SP}", f"s_mov_b32 s74, {fbits(-1.4426950408889634)}"]
        S.append(Stream(sal, 0, ms - 2, name="sal"))
        S.append(Stream([f"WAITVM sst\ns_mov_b64 exec, 1\nbuffer_store_dword v232, off, {SWS}, s81{SC}\ns_mov_b64 exec, -1\n" + self.st("g2.fs")], ms, ms + 1))
        XR, XF, SR, SD = 96, 176, 106, 116
        S.append(Stream(["WAITVM xdma"] + [f"ds_read_b64 {vr(XR+2*jb,2)}, v{VXD} offset:{32*jb}" for jb in range(5)], idx[(1, 3)], idx[(2, 0)], name="xr"))
        xu = []
        for q in range(10): xu += [f"v_lshlrev_b32 v{XF+2*q}, 16, v{XR+q}", f"v_and_b32 v{XF+2*q+1}, 0xffff0000, v{XR+q}"]
        S.append(Stream(xu, idx[(2, 1)], idx[(3, 0)], ahead=0, name="xu"))
        mp, mc = o.get("g2p", 134), o.get("g2c", 170)
        S.append(Stream([self.poll_load(196, True, VFS, "s86")], mp, mp + 1))
        S.append(Stream([self.poll_check("s", 196, True, VFS, "s86") + "\n" + self.st("spoll"),
                         f"buffer_load_dwordx4 {vr(SD,4)}, v{VSG}, {SWS}, s76 offen{SC}",
                         f"buffer_load_dwordx4 {vr(SD+4,4)}, v{VSG}, {SWS}, s77 offen{SC}",
                         f"s_mov_b64 exec, 0xffffffff\nbuffer_load_dwordx4 {vr(SD+8,4)}, v{VSG}, {SWS}, s78 offen{SC} @sld\ns_mov_b64 exec, -1"], mc, mc + 10, ahead=0))
        Z = AC[1]
        def silu(jb):
            T = 200
            z = Z + 4 * jb
            L = [f"v_mul_f32 v{T+k}, s74, v{z+k}" for k in range(4)] + [f"v_exp_f32 v{T+k}, v{T+k}" for k in range(4)]
            L += [f"v_add_f32 v{T+k}, 1.0, v{T+k}" for k in range(4)] + [f"v_rcp_f32 v{T+k}, v{T+k}" for k in range(4)]
            L += [f"v_mul_f32 v{z+k}, v{z+k}, v{T+k}" for k in range(4)]
            return L
        def comb(jb):
            L = []
            for q in (2 * jb, 2 * jb + 1):
                L += [f"v_lshlrev_b32 v204, 16, v{SR+q}", f"v_and_b32 v205, 0xffff0000, v{SR+q}",
                      f"v_pk_fma_f32 v[204:205], v[204:205], {vr(Z+2*q,2)}, {vr(XF+2*q,2)}", f"v_cvt_pk_bf16_f32 v{XR+q}, v204, v205"]
            return L
        sw = [f"ds_write_b64 v{VSL}, {vr(SD+2*i,2)} offset:{256*(i>>1)+8*(i&1)}" for i in range(4)]
        sw += [f"WAITVM sld\ns_mov_b64 exec, 0xffffffff\nds_write_b128 v{VSL}, {vr(SD+8,4)} offset:512\ns_mov_b64 exec, -1"]
        srd = [f"ds_read_b64_tr_b16 {vr(SR+2*jb,2)}, v{VSR} offset:{512*jb}" for jb in range(5)]
        spos = o.get("spos", 226)
        nsil = 3
        if spos < n:
            S.append(Stream(sw + [Item("s_waitcnt lgkmcnt(0)\ns_barrier", lo=spos + 12)] + srd, spos, n, ahead=3, name="sw"))
            nsil = o.get("nsil", 2)
        sl = []
        for jb in range(nsil):
            L = [Item(x) for x in silu(jb)]
            L[0].lo = nxt(3, jb) + 2
            sl += L
        S.append(Stream(sl, nxt(3, 0) + 2, n, ahead=12, name="silu"))
        gap_sched(a, main, S, "g2", vspace=o.get("vs", 64))
        a(self.st("g2.mfma"))
        def silu_pk(jb):
            T = 200
            z = Z + 4 * jb
            L = [f"v_pk_mul_f32 {vr(T+k,2)}, {vr(z+k,2)}, v[206:207] op_sel_hi:[1,0]" for k in (0, 2)] + [f"v_exp_f32 v{T+k}, v{T+k}" for k in range(4)]
            L += [f"v_pk_add_f32 {vr(T+k,2)}, {vr(T+k,2)}, v[206:207] op_sel:[0,1]" for k in (0, 2)] + [f"v_rcp_f32 v{T+k}, v{T+k}" for k in range(4)]
            L += [f"v_pk_mul_f32 {vr(z+k,2)}, {vr(z+k,2)}, {vr(T+k,2)}" for k in (0, 2)]
            return L
        ow = lambda jb: f"ds_write_b64 v{VXD}, {vr(XR+2*jb,2)} offset:{32*jb}"
        a("v_mov_b32 v206, s74\nv_mov_b32 v207, 1.0")
        if spos >= n:
            seq = sw + silu_pk(3) + ["s_waitcnt lgkmcnt(0)\ns_barrier"] + srd + silu_pk(4)
            seq += comb(0) + comb(1) + comb(2) + [ow(0), ow(1), ow(2)] + comb(3) + comb(4) + [ow(3), ow(4)]
        else:
            seq = []
            for jb in range(nsil, 4): seq += silu_pk(jb)
            seq += comb(0) + comb(1) + comb(2) + comb(3) + [ow(0), ow(1), ow(2), ow(3)] + silu_pk(4) + comb(4) + [ow(4)]
        for x in seq: a(x)
        a("s_nop 3")
        for i in range(3): a(f"ds_read_b128 {vr(SD+4*i,4)}, v{VXL} offset:{1024*i}")
        osc = o.get("osc", SC)
        for i in range(2): a(f"buffer_store_dwordx4 {vr(SD+4*i,4)}, v{VX+i}, {SOUT}, s14 offen{osc}")
        a(f"s_waitcnt lgkmcnt(0)\ns_mov_b64 exec, 0xffffffff\nbuffer_store_dwordx4 {vr(SD+8,4)}, v{VX+2}, {SOUT}, s14 offen{osc}")
        a(self.st("g2.done"))

class A8(Late, gen4.F4): pass
class B8(Late, gen7.F4): pass

if __name__ == "__main__":
    opt = parse(sys.argv[2:])
    mod, cls = (gen7, B8) if opt.get("early", 4) == 7 else (gen4, A8)
    open(sys.argv[1], "w").write(mod.build("min" if "min" in sys.argv[2:] else "prof" in sys.argv[2:], opt, cls=cls))
```

```python
import sys, struct, math
from dsl import Item, Stream, FragStream, gap_sched, weave, interleave
import gen3, gen4, gen8
from gen4 import *
from gen8 import CBP, CB0
FY, FH, FS = FLG + 0x10000, FLG + 0x100000, FLG + 0x140000
WS_BYTES = 0x1180000
gen4.WS_BYTES = WS_BYTES

class F10(gen8.A8):
    def consts(self, a):
        T = V_T
        a(f"""
        v_and_b32 v5, 31, v0
        v_lshl_add_u32 v8, v5, 1, {S_PAIR}
        v_lshl_add_u32 v6, v5, 1, {S_SNG}
        """)
        for k in range(V_B1, V_B1 + 8, 2): a(f"v_mov_b64 {vr(k,2)}, 0")
        a(f"""
        s_mov_b32 s62, 1966080
        s_mov_b32 s63, 0x20000
        s_mov_b32 s66, 2621440
        s_mov_b32 s67, 0x20000
        s_mov_b64 s[56:57], {sp('w1')}
        s_mov_b64 s[60:61], {sp('w2')}
        s_mov_b64 s[64:65], {sp('out')}
        global_load_ushort v{V_B1}, v8, {sp('b1')}
        global_load_ushort v{V_B1+2}, v8, {sp('b1')} offset:64
        global_load_ushort v{V_B1+4}, v6, {sp('b1')}
        """)
        if self.prof:
            for r in self.STAMPS[1:]: a(f"s_mov_b32 s{r}, 0")
        a(f"""
        v_lshlrev_b32 v1, 4, v0
        v_lshrrev_b32 v4, 5, v0
        s_mul_i32 s7, {WAVE}, {TABSZ}
        v_mul_u32_u24 v{V_KR}, {TP}, v5
        v_lshl_add_u32 v6, v4, 4, s7
        v_add_u32 v{V_KR}, v{V_KR}, v6
        s_mul_i32 s7, {WAVE}, {RP}
        v_lshl_add_u32 v6, v4, 4, s7
        v_lshl_add_u32 v{T}, v5, 5, v6
        v_cmp_gt_u32 vcc, 32, v0
        v_lshl_add_u32 v6, v5, 4, s7
        v_lshl_add_u32 v7, v5, 3, s7
        v_add_u32 v8, 1024, v6
        v_add_u32 v30, 1536, v7
        v_cndmask_b32 v{T+1}, v30, v8, vcc
        v_add_u32 v8, 1032, v6
        v_add_u32 v30, 1792, v7
        v_cndmask_b32 v{T+2}, v30, v8, vcc
        v_mov_b32 v8, 0x3f80
        v_cndmask_b32 v{V_ONE}, 0, v8, vcc
        v_mov_b32 v{V_ONE+1}, 0
        v_mov_b64 {vr(V_ONE+2,2)}, 0
        v_sub_u32 v6, 63, v0
        v_lshl_add_u32 v{T+3}, v6, 3, s7
        v_lshl_add_u32 v{T+4}, v6, 4, s7
        v_lshl_add_u32 v{T+5}, v0, 5, s7
        v_lshl_add_u32 v{T+6}, v0, 4, s7
        v_lshl_add_u32 v{T+7}, v0, 3, s7
        s_lshl_b32 s7, {WAVE}, 10
        v_lshl_add_u32 v{V_ES}, v0, 2, s7
        v_add_u32 v{V_ES+1}, {RP}, v{V_ES}
        v_add_u32 v{V_ES+2}, {2*RP}, v{V_ES}
        s_add_u32 s74, s7, {CB0+U_OFF+512}
        v_and_b32 v6, 3, v0
        v_lshrrev_b32 v7, 2, v0
        v_min_u32 v8, 2, v6
        v_mul_u32_u24 v{V_UG}, {XP}, v7
        v_lshl_add_u32 v{V_UG}, v8, 4, v{V_UG}
        v_mul_u32_u24 v{V_UL}, {CBP}, v8
        v_lshl_add_u32 v30, v7, 4, s74
        v_add_u32 v{V_UL}, v{V_UL}, v30
        v_lshlrev_b32 v{V_FX}, 8, v7
        v_lshl_add_u32 v{V_FX}, v6, 4, v{V_FX}
        v_lshlrev_b32 v{V_FY}, 8, v6
        s_min_u32 s7, {WAVE}, 2
        s_mul_i32 s7, s7, {CBP}
        s_add_u32 s74, s7, {CB0+4096}
        s_add_u32 s7, s7, {CB0+U_OFF}
        v_lshl_add_u32 v{V_Z2}, v0, 3, s7
        v_sub_u32 v8, v3, v4
        v_lshl_add_u32 v8, v8, 2, s74
        v_mul_u32_u24 v{V_Z1}, {CPITCH}, v2
        v_add_u32 v{V_Z1}, v{V_Z1}, v8
        v_and_b32 v8, 1, v2
        v_lshlrev_b32 v6, 3, v6
        v_lshl_add_u32 v6, v8, 5, v6
        v_and_b32 v7, 3, v7
        v_lshl_add_u32 v7, v4, 3, v7
        v_lshl_add_u32 v{V_S}, v7, 6, v6
        v_add_u32 v{V_S}, {SNG}, v{V_S}
        v_lshl_add_u32 v{V_P0}, v7, 7, v6
        v_and_b32 v7, 8, v0
        v_lshl_add_u32 v{V_P0}, v7, 3, v{V_P0}
        v_add_u32 v{V_P0}, {PAIR}, v{V_P0}
        v_xor_b32 v{V_P1}, 64, v{V_P0}
        v_mul_u32_u24 v{V_HF}, 49152, v8
        v_lshl_add_u32 v{V_HF}, v4, 8, v{V_HF}
        v_lshl_add_u32 v{V_HF}, v3, 4, v{V_HF}
        s_cmp_eq_u32 {WAVE}, 3
        s_cselect_b32 s7, 0, {WAVE}
        s_mul_i32 s7, s7, {CBP}
        s_add_u32 s7, s7, {CB0}
        v_lshl_add_u32 v6, v2, 4, s7
        v_lshl_add_u32 v{VCB}, v3, 5, v6
        v_sub_u32 v7, 15, v3
        v_and_b32 v8, 3, v7
        v_and_b32 v7, 12, v7
        v_lshl_add_u32 v6, v7, 1, v6
        v_mul_u32_u24 v{VCA}, {CPITCH}, v8
        v_add_u32 v{VCA}, v{VCA}, v6
        s_lshr_b32 s8, {XCD}, 1
        s_lshl_b32 s12, s8, 3
        s_lshl_b32 s8, s8, 2
        s_and_b32 s7, {JJ}, 3
        s_add_u32 s8, s8, s7
        s_and_b32 s7, {JJ}, 7
        s_add_u32 s12, s12, s7
        s_and_b32 s13, {XCD}, 1
        s_lshl_b32 s13, s13, 2
        s_lshr_b32 s7, {JJ}, 3
        s_add_u32 s13, s13, s7
        s_add_u32 s11, {"s7" if self.o.get("hrot", 0) else "0"}, {WAVE}
        s_and_b32 s11, s11, 3
        s_lshl_b32 {S_YB}, s8, 2
        s_add_u32 {S_YB}, {S_YB}, {WAVE}
        s_mul_i32 {S_HA}, {S_YB}, 96
        s_mul_i32 {S_YB}, {S_YB}, 40960
        s_add_u32 {S_YE}, {S_YB}, 40960
        s_lshl_b32 s7, s83, 12
        s_add_u32 {S_Y}, {S_YB}, s7
        s_lshl_b32 s86, s8, 12
        s_lshl_b32 s7, {WAVE}, 10
        s_add_u32 s86, s86, s7
        s_add_u32 s86, s86, {FY}
        """)

    def w2_pre(self, a):
        a(f"""
        v_and_b32 v4, 7, v0
        v_lshrrev_b32 v5, 3, v0
        v_mul_u32_u24 v196, {PY}, v4
        v_lshl_add_u32 v196, v5, 4, v196
        v_lshlrev_b32 v197, 9, v5
        v_lshl_add_u32 v197, v4, 4, v197
        v_bfe_u32 v4, v0, 2, 2
        v_and_b32 v5, 3, v0
        v_mul_u32_u24 v198, {PX}, v4
        v_lshl_add_u32 v198, v2, 5, v198
        v_lshl_add_u32 v198, v5, 3, v198
        v_lshrrev_b32 v4, 5, v0
        v_lshlrev_b32 v199, 12, v4
        v_bfe_u32 v4, v0, 2, 3
        v_lshl_add_u32 v199, v4, 8, v199
        v_lshl_add_u32 v199, v5, 3, v199
        v_mul_u32_u24 v200, 1280, v2
        v_lshl_add_u32 v200, v3, 4, v200
        v_add_u32 v201, {5120-1024}, v200
        v_add_u32 v202, {5120-1024}, v201
        v_add_u32 v203, {5120-1024}, v202
        s_min_u32 s7, s2, 239
        s_mul_i32 s14, s7, 52429
        s_lshr_b32 s14, s14, 18
        s_mul_i32 s15, s14, 5
        s_sub_u32 s15, s7, s15
        s_mul_i32 s84, s14, 40960
        s_lshl_b32 s7, s15, 8
        s_add_u32 s84, s84, s7
        s_mul_i32 s15, s15, {8*48}
        s_add_u32 s14, s14, s15
        s_lshl_b32 s14, s14, 10
        s_add_u32 s14, s14, {W2F}
        s_lshr_b32 s15, {SID}, 2
        s_mul_i32 s15, s15, 40960
        s_and_b32 s7, {SID}, 3
        s_lshl_b32 s7, s7, 7
        s_add_u32 s15, s15, s7
        s_lshr_b32 s81, {SID}, 4
        s_lshl_b32 s81, s81, 8
        s_and_b32 s7, {SID}, 15
        s_lshl_b32 s7, s7, 2
        s_add_u32 s81, s81, s7
        s_add_u32 s85, s81, {FX}
        s_lshl_b32 s81, {SID}, 8
        s_add_u32 s81, s81, {FY}
        s_mul_i32 s79, {SID}, {XP}
        s_add_u32 s79, s79, {XNT}
        v_readfirstlane_b32 s7, v9
        s_mul_i32 s7, s7, 1664525
        s_add_u32 {TAG}, s7, 1013904223
        s_mov_b32 s51, {TAG}
        v_mov_b32 v204, 1
        v_mov_b32 v205, {TAG}
        """)

    def kgen4(self, a):
        o = self.o
        VF, UF, CH = self.VF, self.UF, 112
        W1, W8, W256, T, C0 = 176, 178, 180, 182, 194
        DT, DTL = 30, 31
        L2E = 1.4426950408889634
        f32 = lambda x: struct.unpack("<f", struct.pack("<f", x))[0]
        I2P = 1 / (2 * math.pi)
        head = (f"""
        s_mov_b32 s72, {fbits(f32(L2E))}
        s_mov_b32 s73, {fbits(L2E-f32(L2E))}
        s_mov_b32 s76, {fbits(math.log(2))}
        v_mul_f32 v{T}, s72, v28
        v_fma_f32 v{T+1}, v28, s72, -v{T}
        v_fma_f32 v{T+1}, v28, s73, v{T+1}
        v_exp_f32 v{T}, v{T}
        v_mul_f32 v{T+1}, s76, v{T+1}
        v_cmp_eq_u32 vcc, 0, v0
        v_fma_f32 v{T}, v{T}, v{T+1}, v{T}
        v_cvt_pk_bf16_f32 v{DT}, v{T}, v{T}
        v_lshlrev_b32 v{DT}, 16, v{DT}
        v_cndmask_b32 v29, 0, v29, vcc
        v_mul_f32 v{DTL}, s72, v{DT}
        s_mov_b32 s74, {fbits(f32(I2P))}
        s_mov_b32 s75, {fbits(I2P-f32(I2P))}
        s_mov_b32 s77, {fbits(256.0)}
        s_mov_b32 s78, {fbits(8.0)}
        """)
        pass
        yl = self.yloads()[:o.get("ny", 8)]
        m0tab = f"s_mul_i32 m0, {WAVE}, {TABSZ}"
        P1 = [self.spin("y", 0, True)] + [f"ds_read_b128 {ar(4*I,4)}, v196 offset:{YT+128*I}" for I in range(10)]
        for I in range(10):
            P1.append(f"buffer_store_dwordx4 {ar(4*I,4)}, v197, {SWS}, s15 offen{SC} @yst" + ("\ns_add_u32 s15, s15, 4096" if I < 9 else ""))
        P1 += [self.st("p.yst"), self.spin("x", 8, True)]
        for I in range(10):
            P1 += [f"ds_read_b64_tr_b16 {ar(40+4*I,2)}, v198 offset:{XT+128*I}", f"ds_read_b64_tr_b16 {ar(42+4*I,2)}, v198 offset:{XT+128*I+4*PX}"]
        P1.append(f"s_mov_b64 exec, 1\nds_write_b64 v{V_CNT}, v[204:205] offset:16\ns_mov_b64 exec, -1")
        w2d = [f"s_mov_b32 m0, {W2S}"]
        for h in range(2):
            w2d += [f"buffer_load_dwordx4 v{200+k}, {SW2}, s84 offen offset:{1024*k}{o.get('wnt', '')} lds @w2dma" for k in range(4)]
            if h == 0: w2d.append(f"s_mov_b32 m0, {W2S+4096}\ns_add_u32 s84, s84, {4*5120}")
        xst = []
        for I in range(10):
            xst.append(("s_add_u32 s79, s79, 4096\n" if I in (4, 8) else "") + f"buffer_store_dwordx4 {ar(40+4*I,4)}, v1, {SWS}, s79 offen offset:{1024*(I%4)}{SC}")
        w2r = ["WAITVM w2dma"]
        for db in range(8):
            w2r += [f"ds_read_b64_tr_b16 {ar(80+4*db,2)}, v199 offset:{W2S+32*db}", f"ds_read_b64_tr_b16 {ar(82+4*db,2)}, v199 offset:{W2S+32*db+2048}"]
        w2s = [f"buffer_store_dwordx4 {ar(80+4*db,4)}, v1, {SWS}, s14 offen{SC}" + (f"\ns_add_u32 s14, s14, {48*1024}" if db < 7 else "") for db in range(8)]
        fy = ["WAITVM yst", f"s_mov_b64 exec, 1\nbuffer_store_dword v205, off, {SWS}, s81{SC}\ns_mov_b64 exec, -1", self.st("p.fy")]
        fx = [f"s_mov_b64 exec, 1\nbuffer_store_dword v205, off, {SWS}, s85{SC}\ns_mov_b64 exec, -1", ""]
        fypos = o.get("fypos", 1)
        p1pos = o.get("p1pos", 1)
        if p1pos == 0:
            self.only2(a, "p0", P1 + ["s_waitcnt vmcnt(10)"], ["s_waitcnt vmcnt(0)"])
            P1 = []
        a(head)
        for c in range(3):
            p = 10 + 6 * c
            setup = [f"v_mul_f32 v{T}, v{p}, v{DTL}", f"v_mul_f32 v{T+1}, v{p+1}, v{DT}",
                     f"v_mul_f32 v{T+2}, s74, v{T+1}", f"v_fma_f32 v{T+3}, v{T+1}, s74, -v{T+2}",
                     f"v_fma_f32 v{T+3}, v{T+1}, s75, v{T+3}",
                     f"v_mul_f32 v{T+4}, s78, v{T}", f"v_mul_f32 v{T+5}, s78, v{T+2}",
                     f"v_mul_f32 v{T+6}, s77, v{T}", f"v_mul_f32 v{T+7}, s77, v{T+2}",
                     f"v_exp_f32 v{T+4}, v{T+4}", f"v_fract_f32 v{T+5}, v{T+5}",
                     f"v_exp_f32 v{T+6}, v{T+6}", f"v_fract_f32 v{T+7}, v{T+7}",
                     f"v_exp_f32 v{T+8}, v{T}", f"v_fract_f32 v{T+9}, v{T+2}",
                     f"v_fma_f32 v{T+5}, v{T+3}, s78, v{T+5}", f"v_fma_f32 v{T+7}, v{T+3}, s77, v{T+7}",
                     f"v_add_f32 v{T+9}, v{T+3}, v{T+9}",
                     f"v_cos_f32 v{W8}, v{T+5}", f"v_sin_f32 v{W8+1}, v{T+5}",
                     f"v_cos_f32 v{W256}, v{T+7}", f"v_sin_f32 v{W256+1}, v{T+7}",
                     f"v_cos_f32 v{W1}, v{T+9}", f"v_sin_f32 v{W1+1}, v{T+9}"]
            setup += self.cmul(T + 10, p + 4, p + 2)
            setup += [f"v_pk_mul_f32 {vr(W8,2)}, {vr(W8,2)}, {vr(T+4,2)} op_sel_hi:[1,0]",
                      f"v_pk_mul_f32 {vr(W256,2)}, {vr(W256,2)}, {vr(T+6,2)} op_sel_hi:[1,0]",
                      f"v_pk_mul_f32 {vr(W1,2)}, {vr(W1,2)}, {vr(T+8,2)} op_sel_hi:[1,0]",
                      f"v_pk_mul_f32 {vr(C0,2)}, {vr(T+10,2)}, {vr(DT,2)} op_sel_hi:[1,0]"]
            Vv = lambda j: W8 if j == 1 else CH + 2 * j
            vchain = []
            for j in range(2, 32): vchain += self.cmul(Vv(j), Vv(j - 1), W8)
            vcvt = [f"v_mov_b32 v{CH}, 0x3f80"] + [f"v_cvt_pk_bf16_f32 v{CH+2*j}, v{Vv(j)}, v{Vv(j)+1}" for j in range(1, 32)]
            vwr = [f"ds_write_addtid_b32 v{CH+2*j} offset:{TP*j}" for j in range(32)]
            Ur = lambda i: C0 if i == 0 else CH + 2 * i
            uchain = []
            for i in range(1, 8): uchain += self.cmul(Ur(i), Ur(i - 1), W1)
            for i, s in ((8, 0), (9, 2), (10, 4), (11, 6), (12, 8), (13, 10), (14, 12), (15, 13), (16, 14), (17, 16), (18, 17), (19, 18), (20, 19)):
                uchain += self.cmul(Ur(i), Ur(s), W256)
            ucvt = [f"v_cvt_pk_bf16_f32 v{Ur(i)}, v{Ur(i)}, -v{Ur(i)+1}" for i in range(21)]
            uwr = [f"ds_write_addtid_b32 v{Ur(i)} offset:{TP*(i if i < 20 else 23)}" for i in range(21)]
            E = lambda L: [a(x) for x in L]
            ypos = o.get("ypos", 2)
            chk = lambda: (E([self.poll_check("y0", 2, False, V_FY, "s86"), self.st("ypoll")]), self.only2(a, "fx", fx))
            ng = {0: 5, 1: 4, 2: 2}[ypos]
            grp = [yl[len(yl) * k // ng:len(yl) * (k + 1) // ng] for k in range(ng)] if c == 2 else [[]] * 5
            grp = [[]] * (5 - ng) + grp
            E(setup[:6])
            if c: E(self.kreads(UF))
            if c == 1 and fypos == 1: self.only2(a, "fy", fy + xst[:5])
            if c == 2 and ypos == 1: E([self.poll_load(2, False, V_FY, "s86")])
            E(setup[6:])
            if c == 2 and ypos == 0: chk()
            E(grp[0] + vchain)
            if c == 0:
                E(vcvt + (["s_waitcnt vmcnt(0)"] if p1pos else []))
                self.only2(a, "p1", P1 + (fy + xst[:5] if fypos == 3 else []) + w2d, [self.spin("f", 16, False)])
                E([m0tab] + vwr)
            else:
                E(vcvt[:18])
                if c == 1: self.only2(a, "x2", (fy + xst if fypos == 2 else xst[5:]) + w2r)
                if c == 2 and ypos == 2: E([self.poll_load(2, False, V_FY, "s86")])
                if c == 2 and ypos == 1: chk()
                E(grp[1])
                mf = self.kmf(c == 1)
                for k in range(8): E([mf[k]] + vwr[4 * k:4 * k + 4] + vcvt[18 + 2 * k:20 + 2 * k])
            E(uchain[:8] + self.kreads(VF) + grp[2])
            if c == 1: self.only2(a, "w2", w2s)
            E(uchain[8:] + ucvt)
            if c == 1 and ypos == 0: E([self.poll_load(2, False, V_FY, "s86")])
            if c == 2 and ypos == 2: chk()
            E(grp[3] + uwr + grp[4])
            if c == 0 and fypos == 0: self.only2(a, "fy", fy + xst[:5])
            a(self.st(f"kg{c}"))
        for x in self.kreads(UF): a(x)
        a("s_waitcnt lgkmcnt(0)")

    def wave3b(self, a):
        o = self.o
        nl = o.get("nl", 3)
        a(f"L_dma:\ns_waitcnt vmcnt({o.get('dcap', 24)})")
        self.step(a)
        a(f"s_add_u32 s73, s73, 1\ns_cmp_lt_u32 s73, {20-nl}\ns_cbranch_scc1 L_dma")
        a(self.spin("3", 16, False))
        a(self.poll_load(4, False, V_FY, "s86"))
        for _ in range(nl): self.step(a)
        a(self.st("w3.dma"))
        a(self.poll_check("y3", 4, False, V_FY, "s86"))
        a(self.st("ypoll"))
        ny = o.get("ny", 8)
        for x in self.yloads()[:ny]: a(x)
        a(f"s_waitcnt vmcnt({ny})")

    def flag_scalars(self):
        return [f"s_lshl_b32 s81, s8, 4", f"s_add_u32 s81, s81, s9", f"s_lshl_b32 s81, s81, 2", f"s_add_u32 s81, s81, {WAVE}",
               f"s_lshl_b32 s81, s81, 8", f"s_add_u32 s81, s81, {FH}",
               f"s_lshr_b32 s86, s12, 1", f"s_lshl_b32 s86, s86, 2", f"s_add_u32 s86, s86, {WAVE}", f"s_lshl_b32 s86, s86, 12",
               f"s_and_b32 s80, s12, 1", f"s_lshl_b32 s80, s80, 9", f"s_add_u32 s86, s86, s80", f"s_add_u32 s86, s86, {FH}",
               f"s_lshl_b32 s82, s12, 4", f"s_add_u32 s82, s82, {WAVE}", f"s_mul_i32 s82, s82, {12*1024}", f"s_add_u32 s82, s82, {HF}"]

    def late_consts(self):
        return super().late_consts() + [f"v_lshlrev_b32 v{VFH}, 6, v{VFH}"]

    def late_consts2(self):
        L = super().late_consts2()
        t = 233
        new = [f"s_mul_i32 s73, {WAVE}, 27", f"s_and_b32 s73, s73, 0x7c", f"v_and_b32 v{t}, 31, v0", f"v_add_u32 v{t}, s73, v{t}", f"v_min_u32 v{t}, 107, v{t}",
               f"v_lshlrev_b32 v{VFS}, 8, v{t}"]
        return L[:5] + new + L[10:]

    def slow_paths(self, a):
        for name, dst, wide, vaddr, soff in self.slow:
            a(f"""
            L_slow_{name}:
            s_mov_b32 s87, 0
            L_spin_{name}:
            s_sleep {self.o.get("slw", 12) if name[0] == "x" else self.o.get("sl", 2)}
            {self.poll_load(dst, wide, vaddr, soff)}
            s_add_u32 s87, s87, 1
            s_cmp_gt_u32 s87, 0x40000
            s_cbranch_scc1 L_ok_{name}
            s_waitcnt vmcnt(0)
            {self.poll_cmp(dst, wide)}
            s_cbranch_scc1 L_spin_{name}
            s_branch L_ok_{name}
            """)

    def conv(self, a, role):
        o = self.o
        seq = []
        if role == 0:
            blocks = [4, 5, 6, 7, 1]
            for r in range(8):
                for c in range(8):
                    if c == 4: seq += [(0, r, 1, 0), (0, r, 0, 1)]
                    for e in range(7, -1, -1):
                        if e + c in (4, 5, 6, 7): seq.append((0, r, e, c))
            acc = lambda ch, b: 2 + 4 * blocks.index(b)
        else:
            for r in range(8):
                for ch in range(3):
                    for c in range(4):
                        for e in range(3, -1, -1):
                            if e + c in (0, 2, 3): seq.append((ch, r, e, c))
            acc = lambda ch, b: 2 + 12 * ch + 4 * (2, None, 0, 1)[b]
        uses = [[("B", ch, r, c), ("A", ch, r, e)] for ch, r, e, c in seq]
        def reads(f, reg):
            k, ch, r, i = f
            if k == "B":
                return [f"ds_read_b128 {vr(reg,4)}, v{VCB} offset:{ch*CBP+U_OFF+480+512*i-64*r}"]
            off = ch * CBP + 4032 - 512 * i - 64 * r
            return [f"ds_read_b64 {vr(reg,2)}, v{VCA} offset:{off}", f"ds_read_b64 {vr(reg+2,2)}, v{VCA} offset:{off+8}"]
        pool = list(range(88, 128, 4)) + list(range(48, 88, 4))
        fr = FragStream(uses, reads, pool, lead=12, pre=o.get("cvpre", 9), name="cv")
        for x in fr.pro + self.tail: a(x)
        a(self.st("g1.tail"))
        n = len(seq)
        seen = set()
        main = []
        for ch, r, e, c in seq:
            d = vr(acc(ch, e + c), 4)
            cin = d if (ch, e + c) in seen else "0"
            seen.add((ch, e + c))
            main.append(lambda d=d, cin=cin, A=("A", ch, r, e), B=("B", ch, r, c): f"v_mfma_f32_16x16x32_bf16 {d}, {vr(fr.reg[A],4)}, {vr(fr.reg[B],4)}, {cin}")
        sc_ = lambda x: x * n // 224
        mf, mp, mc = sc_(o.get("mf", 60)), sc_(o.get("mp", 125)), sc_(o.get("mc", 165))
        S = [fr]
        S.append(Stream(self.w2rest, 4, sc_(o.get("wend", 166)), name="w2f"))
        sal = [f"v_mov_b32 v232, {TAG}"] + self.flag_scalars()
        S.append(Stream(sal, 1, mf - 2, name="sal"))
        S.append(Stream([f"WAITVM hst\ns_mov_b64 exec, 1\nbuffer_store_dword v232, off, {SWS}, s81{SC}\ns_mov_b64 exec, -1\n" + self.st("cv.fh")], mf, mf + 1))
        side = self.late_consts() + [f"v_accvgpr_write_b32 a{k}, 0" for k in (241, 243, 245, 247, 249, 250, 251)]
        side += [f"global_load_ushort a{240+2*jb}, v{VB2}, {sp('b2')} offset:{32*jb}" for jb in range(5)]
        side += [f"buffer_load_dwordx4 v{VX+i}, {SX}, s14 offen lds @xdma\ns_add_u32 m0, m0, 1024" for i in range(2)]
        side += [f"s_mov_b64 exec, 0xffffffff\nbuffer_load_dwordx4 v{VX+2}, {SX}, s14 offen lds @xdma\ns_mov_b64 exec, -1"]
        S.append(Stream(side, 4, mp - 2, name="side"))
        S.append(Stream([self.poll_load(231, False, VFH, "s86")], mp, mp + 1))
        nh = o.get("nh", 11)
        hl = self.hloads(0) + self.hloads(1)
        hpf = []
        if o.get("hpf", 0):
            side2 = [f"v_min_u32 v233, 47, v0", f"v_cmp_lt_u32 vcc, 23, v233", f"v_lshlrev_b32 v234, 7, v233", f"s_add_u32 s73, s11, 3", f"s_and_b32 s73, s73, 3",
                     f"s_mul_i32 s73, s73, {48*1024}", f"s_mul_i32 s80, s11, {48*1024}", f"s_sub_u32 s80, s80, 3072", f"v_mov_b32 v235, s73", f"v_mov_b32 v233, s80",
                     f"v_cndmask_b32 v235, v235, v233, vcc", f"v_add_u32 v234, v234, v235", f"s_lshr_b32 s73, {JJ}, 3", f"s_mul_i32 s73, s73, 3072", f"s_add_u32 s83, s82, s73"]
            S.append(Stream(side2, mp, mc - 1, name="side2"))
            hpf = [f"buffer_load_dword v231, v234, {SWS}, s83 offen{SC}"]
        k = o.get("hpfpos", 7)
        S.append(Stream([self.poll_check(f"h{role}", 231, False, VFH, "s86") + "\n" + self.st("hpoll")] + hl[:min(k, nh)] + hpf + hl[min(k, nh):nh], mc, n, ahead=0, name="h"))
        gap_sched(a, main, S, f"conv{role}", vspace=o.get("vs", 64), budget=lambda m: o.get(f"cbud{role}", (2, 2.75)[role]))
        a(self.st("cv.main"))
        order = [4, 0, 1, 2, 3] if role == 0 else list(range(9))
        for q in order:
            a(f"v_cvt_pk_bf16_f32 v{96+2*q}, v{2+4*q}, v{3+4*q}\nv_cvt_pk_bf16_f32 v{97+2*q}, v{4+4*q}, v{5+4*q}")
        for q in order:
            a(f"ds_write_b64 v{VCW}, {vr(96+2*q,2)} offset:{512*q}")
        a(hl[nh])
        if role == 0:
            a(f"s_mul_i32 s7, {WAVE}, {SP}\ns_add_u32 s7, s7, {S_ROW}")
            for q in range(3): a(f"ds_read_b128 {vr(96+4*q,4)}, v{VPW} offset:{1024*q}")
            a(hl[nh + 1])
            for q in range(2): a(f"buffer_store_dwordx4 {vr(96+4*q,4)}, v1, {SWS}, s7 offen offset:{2048+1024*q}{SC} @sst")
            a(f"s_waitcnt lgkmcnt(0)\ns_mov_b64 exec, 0xffffffff\nbuffer_store_dwordx4 v[104:107], v1, {SWS}, s7 offen offset:512{SC} @sst\ns_mov_b64 exec, -1")
        else:
            for ch in range(3):
                a(f"ds_read_b128 {vr(96+8*ch,4)}, v{VPW} offset:{1536*ch}\nds_read_b128 {vr(100+8*ch,4)}, v{VPW} offset:{1536*ch+1024}")
            a(hl[nh + 1])
            a(f"s_add_u32 s7, {S_ROW}, {SP}\ns_add_u32 s73, {S_ROW}, {2*SP}")
            sr = [S_ROW, "s7", "s73"]
            for ch in range(3): a(f"buffer_store_dwordx4 {vr(96+8*ch,4)}, v1, {SWS}, {sr[ch]} offen offset:1024{SC} @sst")
            a("s_waitcnt lgkmcnt(0)\ns_mov_b64 exec, 0xffffffff")
            for ch in range(3): a(f"buffer_store_dwordx4 {vr(100+8*ch,4)}, v1, {SWS}, {sr[ch]} offen{SC} @sst")
            a("s_mov_b64 exec, -1")
        assert nh + 2 >= 13
        self.hrest = hl[nh + 2:]
        a(self.st("cv.out"))

    def gemm2f(self, a):
        o = self.o
        AC = (2, 22)
        main, idx = [], {}
        for rho in range(4):
            for jb in range(5):
                d = vr(AC[rho & 1] + 4 * jb, 4)
                idx[(rho, jb)] = len(main)
                if rho == 0: main.append(f"v_mfma_f32_16x16x32_bf16 {d}, {ar(240+2*jb,4)}, {vr(V_ONE,4)}, 0")
                for kk in range(12):
                    main.append(f"v_mfma_f32_16x16x32_bf16 {d}, {ar(self.w2reg(jb*12+kk),4)}, {vr(self.breg(rho,kk),4)}, {d}")
        for rho in (1, 2, 3): main[idx[(rho, 0)]] = self.st(f"g2.r{rho}") + "\n" + main[idx[(rho, 0)]]
        main[13] = self.st("g2.c1") + "\n" + main[13]
        idx[(4, 0)] = n = len(main)
        nxt = lambda rho, jb: idx[(rho, jb + 1)] if jb < 4 else idx[(rho + 1, 0)]
        a(f"s_mul_i32 s7, {WAVE}, 10240\ns_add_u32 m0, s7, 32768")
        ring = []
        for rho in range(3):
            par = rho & 1
            def wr(jb):
                g = nxt(rho, jb) + 3
                return [Item(f"ds_write_addtid_b32 v{AC[par]+4*jb+k} offset:{RING-32768+5120*par+1024*jb+256*k} @pw", lo=g, hi=g + 3) for k in range(4)]
            def rd(jb, g):
                return [Item(f"ds_read2st64_b32 {vr(AC[par^1]+4*jb+2*k,2)}, v{VPR} offset0:{20*par+4*jb+2*k} offset1:{20*par+4*jb+2*k+1}", lo=g, hi=g + 6) for k in range(2)]
            b1, b2 = nxt(rho, 2) + 10, nxt(rho, 4) + 10
            ring += wr(0) + wr(1) + wr(2) + [Item("WAITLG pw\ns_barrier", lo=b1, hi=b1)] + rd(0, b1 + 1) + rd(1, b1 + 1) + rd(2, b1 + 1)
            ring += wr(3) + wr(4) + [Item("WAITLG pw\ns_barrier", lo=b2, hi=b2)] + rd(3, b2 + 1) + rd(4, b2 + 1)
        rs = Stream(ring, 0, n, ahead=0, name="ring")
        for it in rs.items: it.ideal = it.lo - 5
        S = [rs]
        hlead = o.get("hlead", 14)
        hh = [Item(x, hi=idx[(1, 0)] - hlead) for x in self.hrest] + [Item(x, hi=idx[(2, 0)] - hlead) for x in self.hloads(2)]
        hh += [Item(x, lo=idx[(1, 0)], hi=idx[(3, 0)] - hlead) for x in self.hloads(3)]
        S.append(Stream(hh, 0, o.get("hend", 150), ahead=30, name="h"))
        ms = o.get("ms", 62)
        S.append(Stream(self.late_consts2(), 0, 44, name="lc2"))
        sal = [f"s_lshl_b32 s81, {SID}, 2", f"s_add_u32 s81, s81, {WAVE}", f"s_lshl_b32 s81, s81, 8", f"s_add_u32 s81, s81, {FS}",
               f"s_lshl_b32 s86, s13, 15", f"s_add_u32 s86, s86, {FS}",
               f"s_lshl_b32 s76, s13, 2", f"s_add_u32 s76, s76, {WAVE}", f"s_mul_i32 s76, s76, {20*SP}",
               f"s_lshl_b32 s80, s12, 7", f"s_add_u32 s76, s76, s80", f"s_add_u32 s76, s76, {ST}",
               f"s_add_u32 s77, s76, {8*SP}", f"s_add_u32 s78, s76, {16*SP}", f"s_mov_b32 s74, {fbits(-1.4426950408889634)}"]
        S.append(Stream(sal, 0, ms - 2, name="sal"))
        S.append(Stream([f"WAITVM sst\ns_mov_b64 exec, 1\nbuffer_store_dword v232, off, {SWS}, s81{SC}\ns_mov_b64 exec, -1\n" + self.st("g2.fs")], ms, ms + 1))
        XR, XF, SR, SD = 96, 176, 106, 116
        S.append(Stream(["WAITVM xdma"] + [f"ds_read_b64 {vr(XR+2*jb,2)}, v{VXD} offset:{32*jb}" for jb in range(5)], idx[(1, 3)], idx[(2, 0)], name="xr"))
        xu = []
        for q in range(10): xu += [f"v_lshlrev_b32 v{XF+2*q}, 16, v{XR+q}", f"v_and_b32 v{XF+2*q+1}, 0xffff0000, v{XR+q}"]
        S.append(Stream(xu, idx[(2, 1)], idx[(3, 0)], ahead=0, name="xu"))
        mp, mc = o.get("g2p", 134), o.get("g2c", 170)
        assert mp >= idx[(2, 0)]
        S.append(Stream([self.poll_load(196, False, VFS, "s86")], mp, mp + 1))
        S.append(Stream([self.poll_check("s", 196, False, VFS, "s86") + "\n" + self.st("spoll"),
                         f"buffer_load_dwordx4 {vr(SD,4)}, v{VSG}, {SWS}, s76 offen{SC}",
                         f"buffer_load_dwordx4 {vr(SD+4,4)}, v{VSG}, {SWS}, s77 offen{SC}",
                         f"s_mov_b64 exec, 0xffffffff\nbuffer_load_dwordx4 {vr(SD+8,4)}, v{VSG}, {SWS}, s78 offen{SC} @sld\ns_mov_b64 exec, -1"], mc, mc + 10, ahead=0))
        Z = AC[1]
        def silu(jb):
            T = 200
            z = Z + 4 * jb
            L = [f"v_mul_f32 v{T+k}, s74, v{z+k}" for k in range(4)] + [f"v_exp_f32 v{T+k}, v{T+k}" for k in range(4)]
            L += [f"v_add_f32 v{T+k}, 1.0, v{T+k}" for k in range(4)] + [f"v_rcp_f32 v{T+k}, v{T+k}" for k in range(4)]
            L += [f"v_mul_f32 v{z+k}, v{z+k}, v{T+k}" for k in range(4)]
            return L
        def comb(jb):
            L = []
            for q in (2 * jb, 2 * jb + 1):
                L += [f"v_lshlrev_b32 v204, 16, v{SR+q}", f"v_and_b32 v205, 0xffff0000, v{SR+q}",
                      f"v_pk_fma_f32 v[204:205], v[204:205], {vr(Z+2*q,2)}, {vr(XF+2*q,2)}", f"v_cvt_pk_bf16_f32 v{XR+q}, v204, v205"]
            return L
        sw = [f"ds_write_b64 v{VSL}, {vr(SD+2*i,2)} offset:{256*(i>>1)+8*(i&1)}" for i in range(4)]
        sw += [f"WAITVM sld\ns_mov_b64 exec, 0xffffffff\nds_write_b128 v{VSL}, {vr(SD+8,4)} offset:512\ns_mov_b64 exec, -1"]
        srd = [f"ds_read_b64_tr_b16 {vr(SR+2*jb,2)}, v{VSR} offset:{512*jb}" for jb in range(5)]
        spos = o.get("spos", 226)
        nsil = 3
        if spos < n:
            S.append(Stream(sw + [Item("s_waitcnt lgkmcnt(0)\ns_barrier", lo=spos + 12)] + srd, spos, n, ahead=3, name="sw"))
            nsil = o.get("nsil", 2)
        sl = []
        for jb in range(nsil):
            L = [Item(x) for x in silu(jb)]
            L[0].lo = nxt(3, jb) + 2
            sl += L
        S.append(Stream(sl, nxt(3, 0) + 2, n, ahead=12, name="silu"))
        gap_sched(a, main, S, "g2", vspace=o.get("vs", 64))
        a(self.st("g2.mfma"))
        def silu_pk(jb):
            T = 200
            z = Z + 4 * jb
            L = [f"v_pk_mul_f32 {vr(T+k,2)}, {vr(z+k,2)}, v[206:207] op_sel_hi:[1,0]" for k in (0, 2)] + [f"v_exp_f32 v{T+k}, v{T+k}" for k in range(4)]
            L += [f"v_pk_add_f32 {vr(T+k,2)}, {vr(T+k,2)}, v[206:207] op_sel:[0,1]" for k in (0, 2)] + [f"v_rcp_f32 v{T+k}, v{T+k}" for k in range(4)]
            L += [f"v_pk_mul_f32 {vr(z+k,2)}, {vr(z+k,2)}, {vr(T+k,2)}" for k in (0, 2)]
            return L
        ow = lambda jb: f"ds_write_b64 v{VXD}, {vr(XR+2*jb,2)} offset:{32*jb}"
        a("v_mov_b32 v206, s74\nv_mov_b32 v207, 1.0")
        if spos >= n:
            seq = sw + silu_pk(3) + ["s_waitcnt lgkmcnt(0)\ns_barrier"] + srd + silu_pk(4)
            seq += comb(0) + comb(1) + comb(2) + [ow(0), ow(1), ow(2)] + comb(3) + comb(4) + [ow(3), ow(4)]
        else:
            seq = []
            for jb in range(nsil, 4): seq += silu_pk(jb)
            seq += comb(0) + comb(1) + comb(2) + comb(3) + [ow(0), ow(1), ow(2), ow(3)] + silu_pk(4) + comb(4) + [ow(4)]
        for x in seq: a(x)
        a("s_nop 3")
        for i in range(3): a(f"ds_read_b128 {vr(SD+4*i,4)}, v{VXL} offset:{1024*i}")
        osc = o.get("osc", SC)
        for i in range(2): a(f"buffer_store_dwordx4 {vr(SD+4*i,4)}, v{VX+i}, {SOUT}, s14 offen{osc}")
        a(f"s_waitcnt lgkmcnt(0)\ns_mov_b64 exec, 0xffffffff\nbuffer_store_dwordx4 {vr(SD+8,4)}, v{VX+2}, {SOUT}, s14 offen{osc}")
        a(self.st("g2.done"))

if __name__ == "__main__":
    opt = parse(sys.argv[2:])
    for k_, v_ in dict(w1pf=1, n0=0, dscap=4).items(): opt.setdefault(k_, v_)
    open(sys.argv[1], "w").write(gen4.build("min" if "min" in sys.argv[2:] else "prof" in sys.argv[2:], opt, cls=F10))
```

```python
import sys, struct, math
from dsl import Item, Stream, FragStream, gap_sched, weave, interleave
import gen3, gen4, gen8
from gen4 import *
from gen8 import CBP, CB0
FY, FH, FS = FLG + 0x10000, FLG + 0x100000, FLG + 0x140000
WS_BYTES = 0x1180000
gen4.WS_BYTES = WS_BYTES

class F10(gen8.A8):
    def start(self, a):
        o = self.o
        a(f"""
        s_load_dwordx16 s[16:31], s[0:1], 0
        s_load_dwordx16 s[32:47], s[0:1], 64
        s_load_dwordx2 s[48:49], s[0:1], 128
        s_cmp_ge_u32 s2, 256
        s_cbranch_scc1 L_end
        s_getpc_b64 s[72:73]
        L_pc:
        v_lshrrev_b32 v1, 6, v0
        s_lshr_b32 {JJ}, s2, 3
        v_and_b32 v0, 63, v0
        s_lshl_b32 s7, {JJ}, 4
        v_lshl_add_u32 v8, v1, 2, v0
        v_readfirstlane_b32 {WAVE}, v1
        v_add_lshl_u32 v8, v8, s7, 7
        v_mov_b32 v{V_CNT}, {CNT}
        v_min_u32 v8, L_code_end-L_pc-4, v8
        v_mov_b64 v[4:5], 0
        v_mov_b64 v[6:7], 0
        s_mov_b64 exec, 15
        global_load_dword v{V_DUM}, v8, s[72:73]
        ds_write_b128 v{V_CNT}, v[4:7]
        ds_write_b64 v{V_CNT}, v[4:5] offset:16
        s_mov_b64 exec, -1
        s_and_b32 {XCD}, s2, 7
        s_lshl_b32 {SID}, {XCD}, 5
        s_add_u32 {SID}, {SID}, {JJ}
        v_lshrrev_b32 v2, 4, v0
        v_and_b32 v3, 15, v0
        s_lshr_b32 s9, {JJ}, 2
        s_and_b32 s7, {XCD}, 1
        s_lshl_b32 s7, s7, 3
        s_mul_i32 s83, s9, 10
        s_add_u32 s9, s9, s7
        s_lshr_b32 s83, s83, 3
        s_mul_i32 s83, s83, {1 if o.get("yrot", 1) else 0}
        s_and_b32 s7, s9, 1
        s_mul_i32 {S_PAIR}, s9, 192
        s_add_u32 {S_SNG}, {S_PAIR}, 128
        s_lshl_b32 s74, s7, 6
        s_add_u32 {S_PAIR}, {S_PAIR}, s74
        s_lshl_b32 s74, s7, 7
        s_sub_u32 {S_SNG}, {S_SNG}, s74
        s_mov_b32 s54, 2621440
        s_mov_b32 s55, 0x20000
        s_mov_b32 s58, 1966080
        s_mov_b32 s59, 0x20000
        s_mov_b32 s70, {WS_BYTES}
        s_mov_b32 s71, 0x20000
        v_and_b32 v5, 31, v0
        v_lshl_add_u32 v30, v5, 1, {S_PAIR}
        v_lshl_add_u32 v31, v5, 1, {S_SNG}
        v_mov_b64 v[240:241], 0
        v_mov_b64 v[242:243], 0
        v_mov_b64 v[244:245], 0
        v_mov_b64 v[246:247], 0
        s_cmp_eq_u32 {WAVE}, 3
        s_cbranch_scc1 L_w3
        v_mul_u32_u24 v7, 1280, v2
        v_lshl_add_u32 v7, v3, 4, v7
        s_lshl_b32 s72, {SID}, 1
        s_add_u32 s72, s72, {WAVE}
        s_mul_i32 s72, s72, 5120
        s_cmp_eq_u32 {WAVE}, 2
        s_cselect_b32 s72, 0x1000000, s72
        s_cselect_b32 s73, {FLG}, s70
        s_mul_i32 s10, {XCD}, 80
        s_mul_i32 s7, {JJ}, 3
        s_add_u32 s10, s10, s7
        s_add_u32 s11, s10, {WAVE}
        s_min_u32 s11, s11, 639
        s_mul_i32 s7, s11, 384
        v_lshl_add_u32 v8, v0, 1, s7
        s_lshl_b32 s7, s11, 1
        v_mov_b32 v6, s7
        """)
        for k in list(range(10, 30, 2)) + [40, 42, 44]: a(f"v_mov_b64 {vr(k,2)}, 0")
        a(f"""
        s_waitcnt lgkmcnt(0)
        s_mov_b64 s[52:53], {sp('x')}
        s_add_u32 s68, s48, {self.o.get("wsoff", 0)}
        s_addc_u32 s69, s49, 0
        """)
        for i in range(5):
            a(f"buffer_load_dwordx4 {vr(48+4*i,4)}, v7, {SX}, s72 offen offset:{256*i}{o.get('xnt', '')}")
        a(f"buffer_load_dword v9, off, {SWS}, s73{SC}")
        self.pstart(a)
        a(f"global_load_short_d16_hi v28, v6, {sp('ldt')}\nglobal_load_short_d16_hi v29, v6, {sp('dsk')}")
        for c in range(3):
            for k, n in enumerate(("are", "aim", "bre", "bim", "cre", "cim")):
                a(f"global_load_short_d16_hi v{10+6*c+k}, v8, {sp(n)} offset:{128*c}{o.get('pnt', '')}")
        self.bias(a)
        a("s_barrier")

    def wave3a(self, a):
        o = self.o
        a(f"""
        v_lshrrev_b32 v4, 3, v0
        v_mul_u32_u24 v40, 3072, v4
        v_lshrrev_b32 v4, 2, v0
        v_mul_u32_u24 v44, 3072, v4
        v_xor_b32 v4, v4, v2
        v_and_b32 v4, 1, v4
        v_lshl_add_u32 v40, v4, 6, v40
        v_and_b32 v4, 3, v0
        v_lshl_add_u32 v40, v4, 4, v40
        v_lshl_add_u32 v44, v4, 4, v44
        v_add_u32 v41, {24576-1024}, v40
        v_add_u32 v42, {24576-1024}, v41
        v_add_u32 v43, {24576-1024}, v42
        v_add_u32 v45, {49152-1024}, v44
        s_and_b32 s7, {JJ}, 3
        s_mul_i32 s82, s7, 10240
        s_mul_i32 s80, s7, 5
        s_lshl_b32 s7, s83, 1
        s_add_u32 s80, s80, s7
        s_sub_u32 s7, s80, 20
        s_cselect_b32 s80, s80, s7
        s_mul_i32 s80, s80, {32*3072}
        s_mov_b32 s73, {o.get("n0", 4)}
        v_min_u32 v4, 59, v0
        v_mul_u32_u24 v5, 5462, v4
        v_lshrrev_b32 v5, 16, v5
        v_mul_u32_u24 v5, {3072-12*128}, v5
        v_lshl_add_u32 v46, v4, 7, v5
        v_add_u32 v47, {5*3072}, v46
        s_mul_i32 s74, {JJ}, {20*3072}
        s_and_b32 s7, {XCD}, 1
        s_mul_i32 s7, s7, 1536
        s_add_u32 s74, s74, s7
        s_add_u32 s75, s74, {10*3072}
        s_waitcnt lgkmcnt(0)
        s_mov_b64 s[52:53], {sp('x')}
        s_add_u32 s68, s48, {self.o.get("wsoff", 0)}
        s_addc_u32 s69, s49, 0
        s_mov_b64 s[56:57], {sp('w1')}
        """)
        self.pstart(a)
        self.bias(a)
        a("s_barrier")
        if o.get("w1pf", 0):
            for i in range(4): a(f"buffer_load_dword v{V_DUM}, v{46+(i&1)}, {SW1}, s{74+(i>>1)} offen{o.get('w1nt', '')}")
        for _ in range(o.get("n0", 4)): self.step(a)

    def bias(self, a):
        a(f"""
        global_load_ushort v{V_B1}, v30, {sp('b1')}
        global_load_ushort v{V_B1+2}, v30, {sp('b1')} offset:64
        global_load_ushort v{V_B1+4}, v31, {sp('b1')}
        """)

    def consts(self, a):
        T = V_T
        a(f"""
        v_and_b32 v5, 31, v0
        s_mov_b32 s62, 1966080
        s_mov_b32 s63, 0x20000
        s_mov_b32 s66, 2621440
        s_mov_b32 s67, 0x20000
        s_mov_b64 s[56:57], {sp('w1')}
        s_mov_b64 s[60:61], {sp('w2')}
        s_mov_b64 s[64:65], {sp('out')}
        """)
        if self.prof:
            for r in self.STAMPS[1:]: a(f"s_mov_b32 s{r}, 0")
        a(f"""
        v_lshlrev_b32 v1, 4, v0
        v_lshrrev_b32 v4, 5, v0
        s_mul_i32 s7, {WAVE}, {TABSZ}
        v_mul_u32_u24 v{V_KR}, {TP}, v5
        v_lshl_add_u32 v6, v4, 4, s7
        v_add_u32 v{V_KR}, v{V_KR}, v6
        s_mul_i32 s7, {WAVE}, {RP}
        v_lshl_add_u32 v6, v4, 4, s7
        v_lshl_add_u32 v{T}, v5, 5, v6
        v_cmp_gt_u32 vcc, 32, v0
        v_lshl_add_u32 v6, v5, 4, s7
        v_lshl_add_u32 v7, v5, 3, s7
        v_add_u32 v8, 1024, v6
        v_add_u32 v30, 1536, v7
        v_cndmask_b32 v{T+1}, v30, v8, vcc
        v_add_u32 v8, 1032, v6
        v_add_u32 v30, 1792, v7
        v_cndmask_b32 v{T+2}, v30, v8, vcc
        v_mov_b32 v8, 0x3f80
        v_cndmask_b32 v{V_ONE}, 0, v8, vcc
        v_mov_b32 v{V_ONE+1}, 0
        v_mov_b64 {vr(V_ONE+2,2)}, 0
        v_sub_u32 v6, 63, v0
        v_lshl_add_u32 v{T+3}, v6, 3, s7
        v_lshl_add_u32 v{T+4}, v6, 4, s7
        v_lshl_add_u32 v{T+5}, v0, 5, s7
        v_lshl_add_u32 v{T+6}, v0, 4, s7
        v_lshl_add_u32 v{T+7}, v0, 3, s7
        s_lshl_b32 s7, {WAVE}, 10
        v_lshl_add_u32 v{V_ES}, v0, 2, s7
        v_add_u32 v{V_ES+1}, {RP}, v{V_ES}
        v_add_u32 v{V_ES+2}, {2*RP}, v{V_ES}
        s_add_u32 s74, s7, {CB0+U_OFF+512}
        v_and_b32 v6, 3, v0
        v_lshrrev_b32 v7, 2, v0
        v_min_u32 v8, 2, v6
        v_mul_u32_u24 v{V_UG}, {XP}, v7
        v_lshl_add_u32 v{V_UG}, v8, 4, v{V_UG}
        v_mul_u32_u24 v{V_UL}, {CBP}, v8
        v_lshl_add_u32 v30, v7, 4, s74
        v_add_u32 v{V_UL}, v{V_UL}, v30
        v_lshlrev_b32 v{V_FX}, 8, v7
        v_lshl_add_u32 v{V_FX}, v6, 4, v{V_FX}
        v_lshlrev_b32 v{V_FY}, 8, v6
        s_min_u32 s7, {WAVE}, 2
        s_mul_i32 s7, s7, {CBP}
        s_add_u32 s74, s7, {CB0+4096}
        s_add_u32 s7, s7, {CB0+U_OFF}
        v_lshl_add_u32 v{V_Z2}, v0, 3, s7
        v_sub_u32 v8, v3, v4
        v_lshl_add_u32 v8, v8, 2, s74
        v_mul_u32_u24 v{V_Z1}, {CPITCH}, v2
        v_add_u32 v{V_Z1}, v{V_Z1}, v8
        v_and_b32 v8, 1, v2
        v_lshlrev_b32 v6, 3, v6
        v_lshl_add_u32 v6, v8, 5, v6
        v_and_b32 v7, 3, v7
        v_lshl_add_u32 v7, v4, 3, v7
        v_lshl_add_u32 v{V_S}, v7, 6, v6
        v_add_u32 v{V_S}, {SNG}, v{V_S}
        v_lshl_add_u32 v{V_P0}, v7, 7, v6
        v_and_b32 v7, 8, v0
        v_lshl_add_u32 v{V_P0}, v7, 3, v{V_P0}
        v_add_u32 v{V_P0}, {PAIR}, v{V_P0}
        v_xor_b32 v{V_P1}, 64, v{V_P0}
        v_mul_u32_u24 v{V_HF}, 49152, v8
        v_lshl_add_u32 v{V_HF}, v4, 8, v{V_HF}
        v_lshl_add_u32 v{V_HF}, v3, 4, v{V_HF}
        s_cmp_eq_u32 {WAVE}, 3
        s_cselect_b32 s7, 0, {WAVE}
        s_mul_i32 s7, s7, {CBP}
        s_add_u32 s7, s7, {CB0}
        v_lshl_add_u32 v6, v2, 4, s7
        v_lshl_add_u32 v{VCB}, v3, 5, v6
        v_sub_u32 v7, 15, v3
        v_and_b32 v8, 3, v7
        v_and_b32 v7, 12, v7
        v_lshl_add_u32 v6, v7, 1, v6
        v_mul_u32_u24 v{VCA}, {CPITCH}, v8
        v_add_u32 v{VCA}, v{VCA}, v6
        s_lshr_b32 s8, {XCD}, 1
        s_lshl_b32 s12, s8, 3
        s_lshl_b32 s8, s8, 2
        s_and_b32 s7, {JJ}, 3
        s_add_u32 s8, s8, s7
        s_and_b32 s7, {JJ}, 7
        s_add_u32 s12, s12, s7
        s_and_b32 s13, {XCD}, 1
        s_lshl_b32 s13, s13, 2
        s_lshr_b32 s7, {JJ}, 3
        s_add_u32 s13, s13, s7
        s_add_u32 s11, {"s7" if self.o.get("hrot", 0) else "0"}, {WAVE}
        s_and_b32 s11, s11, 3
        s_lshl_b32 {S_YB}, s8, 2
        s_add_u32 {S_YB}, {S_YB}, {WAVE}
        s_mul_i32 {S_HA}, {S_YB}, 96
        s_mul_i32 {S_YB}, {S_YB}, 40960
        s_add_u32 {S_YE}, {S_YB}, 40960
        s_lshl_b32 s7, s83, 12
        s_add_u32 {S_Y}, {S_YB}, s7
        s_lshl_b32 s86, s8, 12
        s_lshl_b32 s7, {WAVE}, 10
        s_add_u32 s86, s86, s7
        s_add_u32 s86, s86, {FY}
        """)

    def w2_pre(self, a):
        a(f"""
        v_and_b32 v4, 7, v0
        v_lshrrev_b32 v5, 3, v0
        v_mul_u32_u24 v196, {PY}, v4
        v_lshl_add_u32 v196, v5, 4, v196
        v_lshlrev_b32 v197, 9, v5
        v_lshl_add_u32 v197, v4, 4, v197
        v_bfe_u32 v4, v0, 2, 2
        v_and_b32 v5, 3, v0
        v_mul_u32_u24 v198, {PX}, v4
        v_lshl_add_u32 v198, v2, 5, v198
        v_lshl_add_u32 v198, v5, 3, v198
        v_lshrrev_b32 v4, 5, v0
        v_lshlrev_b32 v199, 12, v4
        v_bfe_u32 v4, v0, 2, 3
        v_lshl_add_u32 v199, v4, 8, v199
        v_lshl_add_u32 v199, v5, 3, v199
        v_mul_u32_u24 v200, 1280, v2
        v_lshl_add_u32 v200, v3, 4, v200
        v_add_u32 v201, {5120-1024}, v200
        v_add_u32 v202, {5120-1024}, v201
        v_add_u32 v203, {5120-1024}, v202
        s_min_u32 s7, s2, 239
        s_mul_i32 s14, s7, 52429
        s_lshr_b32 s14, s14, 18
        s_mul_i32 s15, s14, 5
        s_sub_u32 s15, s7, s15
        s_mul_i32 s84, s14, 40960
        s_lshl_b32 s7, s15, 8
        s_add_u32 s84, s84, s7
        s_mul_i32 s15, s15, {8*48}
        s_add_u32 s14, s14, s15
        s_lshl_b32 s14, s14, 10
        s_add_u32 s14, s14, {W2F}
        s_lshr_b32 s15, {SID}, 2
        s_mul_i32 s15, s15, 40960
        s_and_b32 s7, {SID}, 3
        s_lshl_b32 s7, s7, 7
        s_add_u32 s15, s15, s7
        s_lshr_b32 s81, {SID}, 4
        s_lshl_b32 s81, s81, 8
        s_and_b32 s7, {SID}, 15
        s_lshl_b32 s7, s7, 2
        s_add_u32 s81, s81, s7
        s_add_u32 s85, s81, {FX}
        s_lshl_b32 s81, {SID}, 8
        s_add_u32 s81, s81, {FY}
        s_mul_i32 s79, {SID}, {XP}
        s_add_u32 s79, s79, {XNT}
        v_readfirstlane_b32 s7, v9
        s_mul_i32 s7, s7, 1664525
        s_add_u32 {TAG}, s7, 1013904223
        s_mov_b32 s51, {TAG}
        v_mov_b32 v204, 1
        v_mov_b32 v205, {TAG}
        """)

    def kgen4(self, a):
        o = self.o
        VF, UF, CH = self.VF, self.UF, 112
        W1, W8, W256, T, C0 = 176, 178, 180, 182, 194
        DT, DTL = 30, 31
        L2E = 1.4426950408889634
        f32 = lambda x: struct.unpack("<f", struct.pack("<f", x))[0]
        I2P = 1 / (2 * math.pi)
        head = (f"""
        s_mov_b32 s72, {fbits(f32(L2E))}
        s_mov_b32 s73, {fbits(L2E-f32(L2E))}
        s_mov_b32 s76, {fbits(math.log(2))}
        v_mul_f32 v{T}, s72, v28
        v_fma_f32 v{T+1}, v28, s72, -v{T}
        v_fma_f32 v{T+1}, v28, s73, v{T+1}
        v_exp_f32 v{T}, v{T}
        v_mul_f32 v{T+1}, s76, v{T+1}
        v_cmp_eq_u32 vcc, 0, v0
        v_fma_f32 v{T}, v{T}, v{T+1}, v{T}
        v_cvt_pk_bf16_f32 v{DT}, v{T}, v{T}
        v_lshlrev_b32 v{DT}, 16, v{DT}
        v_cndmask_b32 v29, 0, v29, vcc
        v_mul_f32 v{DTL}, s72, v{DT}
        s_mov_b32 s74, {fbits(f32(I2P))}
        s_mov_b32 s75, {fbits(I2P-f32(I2P))}
        s_mov_b32 s77, {fbits(256.0)}
        s_mov_b32 s78, {fbits(8.0)}
        """)
        pass
        yl = self.yloads()[:o.get("ny", 8)]
        m0tab = f"s_mul_i32 m0, {WAVE}, {TABSZ}"
        P1 = [self.spin("y", 0, True)] + [f"ds_read_b128 {ar(4*I,4)}, v196 offset:{YT+128*I}" for I in range(10)]
        for I in range(10):
            P1.append(f"buffer_store_dwordx4 {ar(4*I,4)}, v197, {SWS}, s15 offen{SC} @yst" + ("\ns_add_u32 s15, s15, 4096" if I < 9 else ""))
        P1 += [self.st("p.yst"), self.spin("x", 8, True)]
        for I in range(10):
            P1 += [f"ds_read_b64_tr_b16 {ar(40+4*I,2)}, v198 offset:{XT+128*I}", f"ds_read_b64_tr_b16 {ar(42+4*I,2)}, v198 offset:{XT+128*I+4*PX}"]
        P1.append(f"s_mov_b64 exec, 1\nds_write_b64 v{V_CNT}, v[204:205] offset:16\ns_mov_b64 exec, -1")
        w2d = [f"s_mov_b32 m0, {W2S}"]
        for h in range(2):
            w2d += [f"buffer_load_dwordx4 v{200+k}, {SW2}, s84 offen offset:{1024*k}{o.get('wnt', '')} lds @w2dma" for k in range(4)]
            if h == 0: w2d.append(f"s_mov_b32 m0, {W2S+4096}\ns_add_u32 s84, s84, {4*5120}")
        xst = []
        for I in range(10):
            xst.append(("s_add_u32 s79, s79, 4096\n" if I in (4, 8) else "") + f"buffer_store_dwordx4 {ar(40+4*I,4)}, v1, {SWS}, s79 offen offset:{1024*(I%4)}{SC} @xst")
        w2r = ["WAITVM w2dma"]
        for db in range(8):
            w2r += [f"ds_read_b64_tr_b16 {ar(80+4*db,2)}, v199 offset:{W2S+32*db}", f"ds_read_b64_tr_b16 {ar(82+4*db,2)}, v199 offset:{W2S+32*db+2048}"]
        w2s = [f"buffer_store_dwordx4 {ar(80+4*db,4)}, v1, {SWS}, s14 offen{SC} @xst" + (f"\ns_add_u32 s14, s14, {48*1024}" if db < 7 else "") for db in range(8)]
        fy = ["WAITVM yst", f"s_mov_b64 exec, 1\nbuffer_store_dword v205, off, {SWS}, s81{SC}\ns_mov_b64 exec, -1", self.st("p.fy")]
        fx = [f"s_mov_b64 exec, 1\nbuffer_store_dword v205, off, {SWS}, s85{SC}\ns_mov_b64 exec, -1", ""]
        fypos = o.get("fypos", 1)
        p1pos = o.get("p1pos", 1)
        w2pos, fxpos = o.get("w2pos", 0), o.get("fxpos", 0)
        if w2pos == 1: fy = fy + w2d + [m0tab]
        fx = ["WAITVM xst"] + fx + [self.st("p.fx")]
        if p1pos == 0:
            self.only2(a, "p0", P1 + ["s_waitcnt vmcnt(10)"], ["s_waitcnt vmcnt(0)"])
            P1 = []
        a(head)
        for c in range(3):
            p = 10 + 6 * c
            setup = [f"v_mul_f32 v{T}, v{p}, v{DTL}", f"v_mul_f32 v{T+1}, v{p+1}, v{DT}",
                     f"v_mul_f32 v{T+2}, s74, v{T+1}", f"v_fma_f32 v{T+3}, v{T+1}, s74, -v{T+2}",
                     f"v_fma_f32 v{T+3}, v{T+1}, s75, v{T+3}",
                     f"v_mul_f32 v{T+4}, s78, v{T}", f"v_mul_f32 v{T+5}, s78, v{T+2}",
                     f"v_mul_f32 v{T+6}, s77, v{T}", f"v_mul_f32 v{T+7}, s77, v{T+2}",
                     f"v_exp_f32 v{T+4}, v{T+4}", f"v_fract_f32 v{T+5}, v{T+5}",
                     f"v_exp_f32 v{T+6}, v{T+6}", f"v_fract_f32 v{T+7}, v{T+7}",
                     f"v_exp_f32 v{T+8}, v{T}", f"v_fract_f32 v{T+9}, v{T+2}",
                     f"v_fma_f32 v{T+5}, v{T+3}, s78, v{T+5}", f"v_fma_f32 v{T+7}, v{T+3}, s77, v{T+7}",
                     f"v_add_f32 v{T+9}, v{T+3}, v{T+9}",
                     f"v_cos_f32 v{W8}, v{T+5}", f"v_sin_f32 v{W8+1}, v{T+5}",
                     f"v_cos_f32 v{W256}, v{T+7}", f"v_sin_f32 v{W256+1}, v{T+7}",
                     f"v_cos_f32 v{W1}, v{T+9}", f"v_sin_f32 v{W1+1}, v{T+9}"]
            setup += self.cmul(T + 10, p + 4, p + 2)
            setup += [f"v_pk_mul_f32 {vr(W8,2)}, {vr(W8,2)}, {vr(T+4,2)} op_sel_hi:[1,0]",
                      f"v_pk_mul_f32 {vr(W256,2)}, {vr(W256,2)}, {vr(T+6,2)} op_sel_hi:[1,0]",
                      f"v_pk_mul_f32 {vr(W1,2)}, {vr(W1,2)}, {vr(T+8,2)} op_sel_hi:[1,0]",
                      f"v_pk_mul_f32 {vr(C0,2)}, {vr(T+10,2)}, {vr(DT,2)} op_sel_hi:[1,0]"]
            Vv = lambda j: W8 if j == 1 else CH + 2 * j
            vchain = []
            for j in range(2, 32): vchain += self.cmul(Vv(j), Vv(j - 1), W8)
            vcvt = [f"v_mov_b32 v{CH}, 0x3f80"] + [f"v_cvt_pk_bf16_f32 v{CH+2*j}, v{Vv(j)}, v{Vv(j)+1}" for j in range(1, 32)]
            vwr = [f"ds_write_addtid_b32 v{CH+2*j} offset:{TP*j}" for j in range(32)]
            Ur = lambda i: C0 if i == 0 else CH + 2 * i
            uchain = []
            for i in range(1, 8): uchain += self.cmul(Ur(i), Ur(i - 1), W1)
            for i, s in ((8, 0), (9, 2), (10, 4), (11, 6), (12, 8), (13, 10), (14, 12), (15, 13), (16, 14), (17, 16), (18, 17), (19, 18), (20, 19)):
                uchain += self.cmul(Ur(i), Ur(s), W256)
            ucvt = [f"v_cvt_pk_bf16_f32 v{Ur(i)}, v{Ur(i)}, -v{Ur(i)+1}" for i in range(21)]
            uwr = [f"ds_write_addtid_b32 v{Ur(i)} offset:{TP*(i if i < 20 else 23)}" for i in range(21)]
            E = lambda L: [a(x) for x in L]
            ypos = o.get("ypos", 2)
            assert ypos == 2 or fxpos == 2
            chk = lambda: (E([self.poll_check("y0", 2, False, V_FY, "s86"), self.st("ypoll")]), self.only2(a, "fx", fx) if fxpos == 2 else None)
            ng = {0: 5, 1: 4, 2: 2}[ypos]
            grp = [yl[len(yl) * k // ng:len(yl) * (k + 1) // ng] for k in range(ng)] if c == 2 else [[]] * 5
            grp = [[]] * (5 - ng) + grp
            E(setup[:6])
            if c: E(self.kreads(UF))
            if c == 1 and fypos == 1: self.only2(a, "fy", fy + xst[:5])
            if c == 2 and ypos == 1: E([self.poll_load(2, False, V_FY, "s86")])
            E(setup[6:])
            if c == 2 and fxpos == 0: self.only2(a, "fx", fx)
            if c == 2 and ypos == 0: chk()
            E(grp[0] + vchain)
            if c == 0:
                E(vcvt)
                self.only2(a, "p1", P1 + (["s_waitcnt vmcnt(10)"] if p1pos else []) + (w2d if w2pos == 0 else []),
                           [self.spin("f", 16, False)] + (["s_waitcnt vmcnt(0)"] if p1pos else []))
                E([m0tab] + vwr)
            else:
                E(vcvt[:18])
                if c == 1: self.only2(a, "x2", (fy + xst if fypos == 2 else xst[5:]) + w2r)
                if c == 2 and fxpos == 1: self.only2(a, "fx", fx)
                if c == 2 and ypos == 2: E([self.poll_load(2, False, V_FY, "s86")])
                if c == 2 and ypos == 1: chk()
                E(grp[1])
                mf = self.kmf(c == 1)
                for k in range(8): E([mf[k]] + vwr[4 * k:4 * k + 4] + vcvt[18 + 2 * k:20 + 2 * k])
            E(uchain[:8] + self.kreads(VF) + grp[2])
            if c == 1: self.only2(a, "w2", w2s)
            E(uchain[8:] + ucvt)
            if c == 1 and ypos == 0: E([self.poll_load(2, False, V_FY, "s86")])
            if c == 2 and ypos == 2: chk()
            E(grp[3] + uwr + grp[4])
            if c == 0 and fypos == 0: self.only2(a, "fy", fy + xst[:5])
            a(self.st(f"kg{c}"))
        for x in self.kreads(UF): a(x)
        a("s_waitcnt lgkmcnt(0)")

    def wave3b(self, a):
        o = self.o
        nl = o.get("nl", 3)
        a(f"L_dma:\ns_waitcnt vmcnt({o.get('dcap', 24)})")
        self.step(a)
        a(f"s_add_u32 s73, s73, 1\ns_cmp_lt_u32 s73, {20-nl}\ns_cbranch_scc1 L_dma")
        a(self.spin("3", 16, False))
        a(self.poll_load(4, False, V_FY, "s86"))
        for _ in range(nl): self.step(a)
        a(self.st("w3.dma"))
        a(self.poll_check("y3", 4, False, V_FY, "s86"))
        a(self.st("ypoll"))
        ny = o.get("ny", 8)
        for x in self.yloads()[:ny]: a(x)
        a(f"s_waitcnt vmcnt({ny})")

    def flag_scalars(self):
        return [f"s_lshl_b32 s81, s8, 4", f"s_add_u32 s81, s81, s9", f"s_lshl_b32 s81, s81, 2", f"s_add_u32 s81, s81, {WAVE}",
               f"s_lshl_b32 s81, s81, 8", f"s_add_u32 s81, s81, {FH}",
               f"s_lshr_b32 s86, s12, 1", f"s_lshl_b32 s86, s86, 2", f"s_add_u32 s86, s86, {WAVE}", f"s_lshl_b32 s86, s86, 12",
               f"s_and_b32 s80, s12, 1", f"s_lshl_b32 s80, s80, 9", f"s_add_u32 s86, s86, s80", f"s_add_u32 s86, s86, {FH}",
               f"s_lshl_b32 s82, s12, 4", f"s_add_u32 s82, s82, {WAVE}", f"s_mul_i32 s82, s82, {12*1024}", f"s_add_u32 s82, s82, {HF}"]

    def late_consts(self):
        return super().late_consts() + [f"v_lshlrev_b32 v{VFH}, 6, v{VFH}"]

    def late_consts2(self):
        L = super().late_consts2()
        t = 233
        new = [f"s_mul_i32 s73, {WAVE}, 27", f"s_and_b32 s73, s73, 0x7c", f"v_and_b32 v{t}, 31, v0", f"v_add_u32 v{t}, s73, v{t}", f"v_min_u32 v{t}, 107, v{t}",
               f"v_lshlrev_b32 v{VFS}, 8, v{t}"]
        return L[:5] + new + L[10:]

    def slow_paths(self, a):
        for name, dst, wide, vaddr, soff in self.slow:
            a(f"""
            L_slow_{name}:
            s_mov_b32 s87, 0
            L_spin_{name}:
            s_sleep {self.o.get("slw", 12) if name[0] == "x" else self.o.get("sl", 2)}
            {self.poll_load(dst, wide, vaddr, soff)}
            s_add_u32 s87, s87, 1
            s_cmp_gt_u32 s87, 0x40000
            s_cbranch_scc1 L_ok_{name}
            s_waitcnt vmcnt(0)
            {self.poll_cmp(dst, wide)}
            s_cbranch_scc1 L_spin_{name}
            s_branch L_ok_{name}
            """)

    def conv(self, a, role):
        o = self.o
        seq = []
        if role == 0:
            blocks = [4, 5, 6, 7, 1]
            for r in range(8):
                for c in range(8):
                    if c == 4: seq += [(0, r, 1, 0), (0, r, 0, 1)]
                    for e in range(7, -1, -1):
                        if e + c in (4, 5, 6, 7): seq.append((0, r, e, c))
            acc = lambda ch, b: 2 + 4 * blocks.index(b)
        else:
            for r in range(8):
                for ch in range(3):
                    for c in range(4):
                        for e in range(3, -1, -1):
                            if e + c in (0, 2, 3): seq.append((ch, r, e, c))
            acc = lambda ch, b: 2 + 12 * ch + 4 * (2, None, 0, 1)[b]
        uses = [[("B", ch, r, c), ("A", ch, r, e)] for ch, r, e, c in seq]
        def reads(f, reg):
            k, ch, r, i = f
            if k == "B":
                return [f"ds_read_b128 {vr(reg,4)}, v{VCB} offset:{ch*CBP+U_OFF+480+512*i-64*r}"]
            off = ch * CBP + 4032 - 512 * i - 64 * r
            return [f"ds_read_b64 {vr(reg,2)}, v{VCA} offset:{off}", f"ds_read_b64 {vr(reg+2,2)}, v{VCA} offset:{off+8}"]
        pool = list(range(88, 128, 4)) + list(range(48, 88, 4))
        fr = FragStream(uses, reads, pool, lead=12, pre=o.get("cvpre", 9), name="cv")
        for x in fr.pro + self.tail: a(x)
        a(self.st("g1.tail"))
        n = len(seq)
        seen = set()
        main = []
        for ch, r, e, c in seq:
            d = vr(acc(ch, e + c), 4)
            cin = d if (ch, e + c) in seen else "0"
            seen.add((ch, e + c))
            main.append(lambda d=d, cin=cin, A=("A", ch, r, e), B=("B", ch, r, c): f"v_mfma_f32_16x16x32_bf16 {d}, {vr(fr.reg[A],4)}, {vr(fr.reg[B],4)}, {cin}")
        sc_ = lambda x: x * n // 224
        mf, mp, mc = sc_(o.get("mf", 60)), sc_(o.get("mp", 125)), sc_(o.get("mc", 165))
        S = [fr]
        S.append(Stream(self.w2rest, 4, sc_(o.get("wend", 166)), name="w2f"))
        sal = [f"v_mov_b32 v232, {TAG}"] + self.flag_scalars()
        S.append(Stream(sal, 1, mf - 2, name="sal"))
        S.append(Stream([f"WAITVM hst\ns_mov_b64 exec, 1\nbuffer_store_dword v232, off, {SWS}, s81{SC}\ns_mov_b64 exec, -1\n" + self.st("cv.fh")], mf, mf + 1))
        side = self.late_consts() + [f"v_accvgpr_write_b32 a{k}, 0" for k in (241, 243, 245, 247, 249, 250, 251)]
        side += [f"global_load_ushort a{240+2*jb}, v{VB2}, {sp('b2')} offset:{32*jb}" for jb in range(5)]
        side += [f"buffer_load_dwordx4 v{VX+i}, {SX}, s14 offen lds @xdma\ns_add_u32 m0, m0, 1024" for i in range(2)]
        side += [f"s_mov_b64 exec, 0xffffffff\nbuffer_load_dwordx4 v{VX+2}, {SX}, s14 offen lds @xdma\ns_mov_b64 exec, -1"]
        S.append(Stream(side, 4, mp - 2, name="side"))
        S.append(Stream([self.poll_load(231, False, VFH, "s86")], mp, mp + 1))
        nh = o.get("nh", 11)
        hl = self.hloads(0) + self.hloads(1)
        hpf = []
        if o.get("hpf", 0):
            side2 = [f"v_min_u32 v233, 47, v0", f"v_cmp_lt_u32 vcc, 23, v233", f"v_lshlrev_b32 v234, 7, v233", f"s_add_u32 s73, s11, 3", f"s_and_b32 s73, s73, 3",
                     f"s_mul_i32 s73, s73, {48*1024}", f"s_mul_i32 s80, s11, {48*1024}", f"s_sub_u32 s80, s80, 3072", f"v_mov_b32 v235, s73", f"v_mov_b32 v233, s80",
                     f"v_cndmask_b32 v235, v235, v233, vcc", f"v_add_u32 v234, v234, v235", f"s_lshr_b32 s73, {JJ}, 3", f"s_mul_i32 s73, s73, 3072", f"s_add_u32 s83, s82, s73"]
            S.append(Stream(side2, mp, mc - 1, name="side2"))
            hpf = [f"buffer_load_dword v231, v234, {SWS}, s83 offen{SC}"]
        k = o.get("hpfpos", 7)
        S.append(Stream([self.poll_check(f"h{role}", 231, False, VFH, "s86") + "\n" + self.st("hpoll")] + hl[:min(k, nh)] + hpf + hl[min(k, nh):nh], mc, n, ahead=0, name="h"))
        gap_sched(a, main, S, f"conv{role}", vspace=o.get("vs", 64), budget=lambda m: o.get(f"cbud{role}", (2, 2.75)[role]))
        a(self.st("cv.main"))
        order = [4, 0, 1, 2, 3] if role == 0 else list(range(9))
        for q in order:
            a(f"v_cvt_pk_bf16_f32 v{96+2*q}, v{2+4*q}, v{3+4*q}\nv_cvt_pk_bf16_f32 v{97+2*q}, v{4+4*q}, v{5+4*q}")
        for q in order:
            a(f"ds_write_b64 v{VCW}, {vr(96+2*q,2)} offset:{512*q}")
        a(hl[nh])
        if role == 0:
            a(f"s_mul_i32 s7, {WAVE}, {SP}\ns_add_u32 s7, s7, {S_ROW}")
            for q in range(3): a(f"ds_read_b128 {vr(96+4*q,4)}, v{VPW} offset:{1024*q}")
            a(hl[nh + 1])
            for q in range(2): a(f"buffer_store_dwordx4 {vr(96+4*q,4)}, v1, {SWS}, s7 offen offset:{2048+1024*q}{SC} @sst")
            a(f"s_waitcnt lgkmcnt(0)\ns_mov_b64 exec, 0xffffffff\nbuffer_store_dwordx4 v[104:107], v1, {SWS}, s7 offen offset:512{SC} @sst\ns_mov_b64 exec, -1")
        else:
            for ch in range(3):
                a(f"ds_read_b128 {vr(96+8*ch,4)}, v{VPW} offset:{1536*ch}\nds_read_b128 {vr(100+8*ch,4)}, v{VPW} offset:{1536*ch+1024}")
            a(hl[nh + 1])
            a(f"s_add_u32 s7, {S_ROW}, {SP}\ns_add_u32 s73, {S_ROW}, {2*SP}")
            sr = [S_ROW, "s7", "s73"]
            for ch in range(3): a(f"buffer_store_dwordx4 {vr(96+8*ch,4)}, v1, {SWS}, {sr[ch]} offen offset:1024{SC} @sst")
            a("s_waitcnt lgkmcnt(0)\ns_mov_b64 exec, 0xffffffff")
            for ch in range(3): a(f"buffer_store_dwordx4 {vr(100+8*ch,4)}, v1, {SWS}, {sr[ch]} offen{SC} @sst")
            a("s_mov_b64 exec, -1")
        assert nh + 2 >= 13
        self.hrest = hl[nh + 2:]
        a(self.st("cv.out"))

    def gemm2f(self, a):
        o = self.o
        AC = (2, 22)
        main, idx = [], {}
        for rho in range(4):
            for jb in range(5):
                d = vr(AC[rho & 1] + 4 * jb, 4)
                idx[(rho, jb)] = len(main)
                if rho == 0: main.append(f"v_mfma_f32_16x16x32_bf16 {d}, {ar(240+2*jb,4)}, {vr(V_ONE,4)}, 0")
                for kk in range(12):
                    main.append(f"v_mfma_f32_16x16x32_bf16 {d}, {ar(self.w2reg(jb*12+kk),4)}, {vr(self.breg(rho,kk),4)}, {d}")
        for rho in (1, 2, 3): main[idx[(rho, 0)]] = self.st(f"g2.r{rho}") + "\n" + main[idx[(rho, 0)]]
        main[13] = self.st("g2.c1") + "\n" + main[13]
        idx[(4, 0)] = n = len(main)
        nxt = lambda rho, jb: idx[(rho, jb + 1)] if jb < 4 else idx[(rho + 1, 0)]
        a(f"s_mul_i32 s7, {WAVE}, 10240\ns_add_u32 m0, s7, 32768")
        ring = []
        for rho in range(3):
            par = rho & 1
            def wr(jb):
                g = nxt(rho, jb) + 3
                return [Item(f"ds_write_addtid_b32 v{AC[par]+4*jb+k} offset:{RING-32768+5120*par+1024*jb+256*k} @pw", lo=g, hi=g + 3) for k in range(4)]
            def rd(jb, g):
                return [Item(f"ds_read2st64_b32 {vr(AC[par^1]+4*jb+2*k,2)}, v{VPR} offset0:{20*par+4*jb+2*k} offset1:{20*par+4*jb+2*k+1}", lo=g, hi=g + 6) for k in range(2)]
            b1, b2 = nxt(rho, 2) + 10, nxt(rho, 4) + 10
            ring += wr(0) + wr(1) + wr(2) + [Item("WAITLG pw\ns_barrier", lo=b1, hi=b1)] + rd(0, b1 + 1) + rd(1, b1 + 1) + rd(2, b1 + 1)
            ring += wr(3) + wr(4) + [Item("WAITLG pw\ns_barrier", lo=b2, hi=b2)] + rd(3, b2 + 1) + rd(4, b2 + 1)
        rs = Stream(ring, 0, n, ahead=0, name="ring")
        for it in rs.items: it.ideal = it.lo - 5
        S = [rs]
        hlead = o.get("hlead", 14)
        hh = [Item(x, hi=idx[(1, 0)] - hlead) for x in self.hrest] + [Item(x, hi=idx[(2, 0)] - hlead) for x in self.hloads(2)]
        hh += [Item(x, lo=idx[(1, 0)], hi=idx[(3, 0)] - hlead) for x in self.hloads(3)]
        S.append(Stream(hh, 0, o.get("hend", 150), ahead=30, name="h"))
        ms = o.get("ms", 62)
        S.append(Stream(self.late_consts2(), 0, 44, name="lc2"))
        sal = [f"s_lshl_b32 s81, {SID}, 2", f"s_add_u32 s81, s81, {WAVE}", f"s_lshl_b32 s81, s81, 8", f"s_add_u32 s81, s81, {FS}",
               f"s_lshl_b32 s86, s13, 15", f"s_add_u32 s86, s86, {FS}",
               f"s_lshl_b32 s76, s13, 2", f"s_add_u32 s76, s76, {WAVE}", f"s_mul_i32 s76, s76, {20*SP}",
               f"s_lshl_b32 s80, s12, 7", f"s_add_u32 s76, s76, s80", f"s_add_u32 s76, s76, {ST}",
               f"s_add_u32 s77, s76, {8*SP}", f"s_add_u32 s78, s76, {16*SP}", f"s_mov_b32 s74, {fbits(-1.4426950408889634)}"]
        S.append(Stream(sal, 0, ms - 2, name="sal"))
        S.append(Stream([f"WAITVM sst\ns_mov_b64 exec, 1\nbuffer_store_dword v232, off, {SWS}, s81{SC}\ns_mov_b64 exec, -1\n" + self.st("g2.fs")], ms, ms + 1))
        XR, XF, SR, SD = 96, 176, 106, 116
        S.append(Stream(["WAITVM xdma"] + [f"ds_read_b64 {vr(XR+2*jb,2)}, v{VXD} offset:{32*jb}" for jb in range(5)], idx[(1, 3)], idx[(2, 0)], name="xr"))
        xu = []
        for q in range(10): xu += [f"v_lshlrev_b32 v{XF+2*q}, 16, v{XR+q}", f"v_and_b32 v{XF+2*q+1}, 0xffff0000, v{XR+q}"]
        S.append(Stream(xu, idx[(2, 1)], idx[(3, 0)], ahead=0, name="xu"))
        mp, mc = o.get("g2p", 134), o.get("g2c", 170)
        assert mp >= idx[(2, 0)]
        S.append(Stream([self.poll_load(196, False, VFS, "s86")], mp, mp + 1))
        S.append(Stream([self.poll_check("s", 196, False, VFS, "s86") + "\n" + self.st("spoll"),
                         f"buffer_load_dwordx4 {vr(SD,4)}, v{VSG}, {SWS}, s76 offen{SC}",
                         f"buffer_load_dwordx4 {vr(SD+4,4)}, v{VSG}, {SWS}, s77 offen{SC}",
                         f"s_mov_b64 exec, 0xffffffff\nbuffer_load_dwordx4 {vr(SD+8,4)}, v{VSG}, {SWS}, s78 offen{SC} @sld\ns_mov_b64 exec, -1"], mc, mc + 10, ahead=0))
        Z = AC[1]
        def silu(jb):
            T = 200
            z = Z + 4 * jb
            L = [f"v_mul_f32 v{T+k}, s74, v{z+k}" for k in range(4)] + [f"v_exp_f32 v{T+k}, v{T+k}" for k in range(4)]
            L += [f"v_add_f32 v{T+k}, 1.0, v{T+k}" for k in range(4)] + [f"v_rcp_f32 v{T+k}, v{T+k}" for k in range(4)]
            L += [f"v_mul_f32 v{z+k}, v{z+k}, v{T+k}" for k in range(4)]
            return L
        def comb(jb):
            L = []
            for q in (2 * jb, 2 * jb + 1):
                L += [f"v_lshlrev_b32 v204, 16, v{SR+q}", f"v_and_b32 v205, 0xffff0000, v{SR+q}",
                      f"v_pk_fma_f32 v[204:205], v[204:205], {vr(Z+2*q,2)}, {vr(XF+2*q,2)}", f"v_cvt_pk_bf16_f32 v{XR+q}, v204, v205"]
            return L
        sw = [f"ds_write_b64 v{VSL}, {vr(SD+2*i,2)} offset:{256*(i>>1)+8*(i&1)}" for i in range(4)]
        sw += [f"WAITVM sld\ns_mov_b64 exec, 0xffffffff\nds_write_b128 v{VSL}, {vr(SD+8,4)} offset:512\ns_mov_b64 exec, -1"]
        srd = [f"ds_read_b64_tr_b16 {vr(SR+2*jb,2)}, v{VSR} offset:{512*jb}" for jb in range(5)]
        spos = o.get("spos", 226)
        nsil = 3
        if spos < n:
            S.append(Stream(sw + [Item("s_waitcnt lgkmcnt(0)\ns_barrier", lo=spos + 12)] + srd, spos, n, ahead=3, name="sw"))
            nsil = o.get("nsil", 2)
        sl = []
        for jb in range(nsil):
            L = [Item(x) for x in silu(jb)]
            L[0].lo = nxt(3, jb) + 2
            sl += L
        S.append(Stream(sl, nxt(3, 0) + 2, n, ahead=12, name="silu"))
        gap_sched(a, main, S, "g2", vspace=o.get("vs", 64))
        a(self.st("g2.mfma"))
        def silu_pk(jb):
            T = 200
            z = Z + 4 * jb
            L = [f"v_pk_mul_f32 {vr(T+k,2)}, {vr(z+k,2)}, v[206:207] op_sel_hi:[1,0]" for k in (0, 2)] + [f"v_exp_f32 v{T+k}, v{T+k}" for k in range(4)]
            L += [f"v_pk_add_f32 {vr(T+k,2)}, {vr(T+k,2)}, v[206:207] op_sel:[0,1]" for k in (0, 2)] + [f"v_rcp_f32 v{T+k}, v{T+k}" for k in range(4)]
            L += [f"v_pk_mul_f32 {vr(z+k,2)}, {vr(z+k,2)}, {vr(T+k,2)}" for k in (0, 2)]
            return L
        ow = lambda jb: f"ds_write_b64 v{VXD}, {vr(XR+2*jb,2)} offset:{32*jb}"
        a("v_mov_b32 v206, s74\nv_mov_b32 v207, 1.0")
        if spos >= n:
            seq = sw + silu_pk(3) + ["s_waitcnt lgkmcnt(0)\ns_barrier"] + srd + silu_pk(4)
            seq += comb(0) + comb(1) + comb(2) + [ow(0), ow(1), ow(2)] + comb(3) + comb(4) + [ow(3), ow(4)]
        else:
            seq = []
            for jb in range(nsil, 4): seq += silu_pk(jb)
            seq += comb(0) + comb(1) + comb(2) + comb(3) + [ow(0), ow(1), ow(2), ow(3)] + silu_pk(4) + comb(4) + [ow(4)]
        for x in seq: a(x)
        a("s_nop 3")
        for i in range(3): a(f"ds_read_b128 {vr(SD+4*i,4)}, v{VXL} offset:{1024*i}")
        osc = o.get("osc", SC)
        for i in range(2): a(f"buffer_store_dwordx4 {vr(SD+4*i,4)}, v{VX+i}, {SOUT}, s14 offen{osc}")
        a(f"s_waitcnt lgkmcnt(0)\ns_mov_b64 exec, 0xffffffff\nbuffer_store_dwordx4 {vr(SD+8,4)}, v{VX+2}, {SOUT}, s14 offen{osc}")
        a(self.st("g2.done"))

if __name__ == "__main__":
    opt = parse(sys.argv[2:])
    for k_, v_ in dict(w1pf=1, n0=0, dscap=4).items(): opt.setdefault(k_, v_)
    open(sys.argv[1], "w").write(gen4.build("min" if "min" in sys.argv[2:] else "prof" in sys.argv[2:], opt, cls=F10))
```

```python
import sys, struct, math
from dsl import Item, Stream, FragStream, gap_sched, weave, interleave
import gen3, gen4, gen8
from gen4 import *
from gen8 import CBP, CB0
FY, FH, FS = FLG + 0x10000, FLG + 0x100000, FLG + 0x140000
WS_BYTES = 0x1180000
gen4.WS_BYTES = WS_BYTES

class F10(gen8.A8):
    def start(self, a):
        o = self.o
        t4 = o.get("t4", 0)
        a(f"""
        s_load_dwordx16 s[16:31], s[0:1], 0
        s_load_dwordx16 s[32:47], s[0:1], 64
        s_load_dwordx2 s[48:49], s[0:1], 128
        s_cmp_ge_u32 s2, 256
        s_cbranch_scc1 L_end
        s_getpc_b64 s[72:73]
        L_pc:
        v_lshrrev_b32 v1, 6, v0
        s_lshr_b32 {JJ}, s2, 3
        v_and_b32 v0, 63, v0
        s_lshl_b32 s7, {JJ}, 4
        v_lshl_add_u32 v8, v1, 2, v0
        v_readfirstlane_b32 {WAVE}, v1
        v_add_lshl_u32 v8, v8, s7, 7
        v_mov_b32 v{V_CNT}, {CNT}
        v_min_u32 v8, L_code_end-L_pc-4, v8
        v_mov_b64 v[4:5], 0
        v_mov_b64 v[6:7], 0
        s_mov_b64 exec, 15
        global_load_dword v{V_DUM}, v8, s[72:73]
        ds_write_b128 v{V_CNT}, v[4:7]
        ds_write_b128 v{V_CNT}, v[4:7] offset:16
        s_mov_b64 exec, -1
        s_and_b32 {XCD}, s2, 7
        s_lshl_b32 {SID}, {XCD}, 5
        s_add_u32 {SID}, {SID}, {JJ}
        v_lshrrev_b32 v2, 4, v0
        v_and_b32 v3, 15, v0
        s_lshr_b32 s9, {JJ}, {3 if t4 else 2}
        s_and_b32 s7, {XCD}, {3 if t4 else 1}
        s_lshl_b32 s7, s7, {2 if t4 else 3}
        s_mul_i32 s83, s9, 10
        s_add_u32 s9, s9, s7
        s_lshr_b32 s83, s83, {2 if t4 else 3}
        s_mul_i32 s83, s83, {1 if o.get("yrot", 1) else 0}
        s_and_b32 s7, s9, 1
        s_mul_i32 {S_PAIR}, s9, 192
        s_add_u32 {S_SNG}, {S_PAIR}, 128
        s_lshl_b32 s74, s7, 6
        s_add_u32 {S_PAIR}, {S_PAIR}, s74
        s_lshl_b32 s74, s7, 7
        s_sub_u32 {S_SNG}, {S_SNG}, s74
        s_mov_b32 s54, 2621440
        s_mov_b32 s55, 0x20000
        s_mov_b32 s58, 1966080
        s_mov_b32 s59, 0x20000
        s_mov_b32 s70, {WS_BYTES}
        s_mov_b32 s71, 0x20000
        v_and_b32 v5, 31, v0
        v_lshl_add_u32 v30, v5, 1, {S_PAIR}
        v_lshl_add_u32 v31, v5, 1, {S_SNG}
        v_mov_b64 v[240:241], 0
        v_mov_b64 v[242:243], 0
        v_mov_b64 v[244:245], 0
        v_mov_b64 v[246:247], 0
        s_cmp_eq_u32 {WAVE}, 3
        s_cbranch_scc1 L_w3
        v_mul_u32_u24 v7, 1280, v2
        v_lshl_add_u32 v7, v3, 4, v7
        s_lshl_b32 s72, {SID}, 1
        s_add_u32 s72, s72, {WAVE}
        s_mul_i32 s72, s72, 5120
        s_cmp_eq_u32 {WAVE}, 2
        s_cselect_b32 s72, 0x1000000, s72
        s_cselect_b32 s73, {FLG}, s70
        s_mul_i32 s10, {XCD}, 80
        s_mul_i32 s7, {JJ}, 3
        s_add_u32 s10, s10, s7
        s_add_u32 s11, s7, {WAVE}
        s_min_u32 s11, s11, 79
        s_mul_i32 s7, {XCD}, 80
        s_add_u32 s11, s11, s7
        s_mul_i32 s7, s11, 384
        v_lshl_add_u32 v8, v0, 1, s7
        s_lshl_b32 s7, s11, 1
        v_mov_b32 v6, s7
        """)
        for k in list(range(10, 30, 2)) + [40, 42, 44]: a(f"v_mov_b64 {vr(k,2)}, 0")
        a(f"""
        s_waitcnt lgkmcnt(0)
        s_mov_b64 s[52:53], {sp('x')}
        s_add_u32 s68, s48, {self.o.get("wsoff", 0)}
        s_addc_u32 s69, s49, 0
        """)
        for i in range(5):
            a(f"buffer_load_dwordx4 {vr(48+4*i,4)}, v7, {SX}, s72 offen offset:{256*i}{o.get('xnt', '')}")
        a(f"buffer_load_dword v9, off, {SWS}, s73{SC}")
        self.pstart(a)
        a(f"global_load_short_d16_hi v28, v6, {sp('ldt')}\nglobal_load_short_d16_hi v29, v6, {sp('dsk')}")
        for c in range(3):
            for k, n in enumerate(("are", "aim", "bre", "bim", "cre", "cim")):
                a(f"global_load_short_d16_hi v{10+6*c+k}, v8, {sp(n)} offset:{128*c}{o.get('pnt', '')}")
        self.bias(a)
        if o.get("burst", 0):
            a(f"""
            s_cmp_eq_u32 {WAVE}, 2
            s_cbranch_scc0 L_nw2
            s_mov_b32 s62, 1966080
            s_mov_b32 s63, 0x20000
            s_mov_b64 s[60:61], {sp('w2')}
            v_add_u32 v201, {5120-1024}, v7
            v_add_u32 v202, {5120-1024}, v201
            v_add_u32 v203, {5120-1024}, v202
            s_min_u32 s7, s2, 239
            s_mul_i32 s14, s7, 52429
            s_lshr_b32 s14, s14, 18
            s_mul_i32 s15, s14, 5
            s_sub_u32 s15, s7, s15
            s_mul_i32 s84, s14, 40960
            s_lshl_b32 s7, s15, 8
            s_add_u32 s84, s84, s7
            s_mov_b32 m0, {W2S}
            """)
            a.auto = False
            for h in range(2):
                for k in range(4): a(f"buffer_load_dwordx4 v{(7, 201, 202, 203)[k]}, {SW2}, s84 offen offset:{1024*k} lds")
                if h == 0: a(f"s_mov_b32 m0, {W2S+4096}\ns_add_u32 s84, s84, {4*5120}")
            a.auto = True
            a("L_nw2:")
        a("s_barrier")

    def wave3a(self, a):
        o = self.o
        t4 = o.get("t4", 0)
        a(f"""
        v_lshrrev_b32 v4, 3, v0
        v_mul_u32_u24 v40, 3072, v4
        v_lshrrev_b32 v4, 2, v0
        v_mul_u32_u24 v44, 3072, v4
        v_xor_b32 v4, v4, v2
        v_and_b32 v4, 1, v4
        v_lshl_add_u32 v40, v4, 6, v40
        v_and_b32 v4, 3, v0
        v_lshl_add_u32 v40, v4, 4, v40
        v_lshl_add_u32 v44, v4, 4, v44
        v_add_u32 v41, {24576-1024}, v40
        v_add_u32 v42, {24576-1024}, v41
        v_add_u32 v43, {24576-1024}, v42
        v_add_u32 v45, {49152-1024}, v44
        s_and_b32 s7, {JJ}, 3
        s_mul_i32 s82, s7, 10240
        s_mul_i32 s80, s7, 5
        s_lshl_b32 s7, s83, 1
        s_add_u32 s80, s80, s7
        s_sub_u32 s7, s80, 20
        s_cselect_b32 s80, s80, s7
        s_mul_i32 s80, s80, {32*3072}
        s_mov_b32 s73, {o.get("n0", 4)}
        v_min_u32 v4, 59, v0
        v_mul_u32_u24 v5, {10923 if t4 else 5462}, v4
        v_lshrrev_b32 v5, 16, v5
        v_mul_u32_u24 v5, {3072-(6 if t4 else 12)*128}, v5
        v_lshl_add_u32 v46, v4, 7, v5
        v_add_u32 v47, {5*3072}, v46
        s_mul_i32 s74, {JJ}, {20*3072}
        s_and_b32 s7, {XCD}, {3 if t4 else 1}
        s_mul_i32 s7, s7, {768 if t4 else 1536}
        s_add_u32 s74, s74, s7
        s_add_u32 s75, s74, {10*3072}
        s_waitcnt lgkmcnt(0)
        s_mov_b64 s[52:53], {sp('x')}
        s_add_u32 s68, s48, {self.o.get("wsoff", 0)}
        s_addc_u32 s69, s49, 0
        s_mov_b64 s[56:57], {sp('w1')}
        """)
        self.pstart(a)
        if not o.get("pfearly", 0):
            self.bias(a)
            a("s_barrier")
        if o.get("w1pf", 0):
            for i in (range(0, 4, 2) if t4 else range(4)): a(f"buffer_load_dword v{V_DUM}, v{46+(i&1)}, {SW1}, s{74+(i>>1)} offen{o.get('w1nt', '')}")
        if o.get("pfearly", 0):
            self.bias(a)
            a("s_barrier")
        if o.get("b2pf", 1):
            a(f"v_min_u32 v4, 9, v0\nv_lshlrev_b32 v4, 7, v4\nglobal_load_dword v{V_DUM}, v4, {sp('b2')}")
        for _ in range(o.get("n0", 4)): self.step(a)

    def fstore(self, r, soff):
        m = self.o.get("fl", 0)
        if not m: return f"s_mov_b64 exec, 1\nbuffer_store_dword v{r}, off, {SWS}, {soff}{SC}\ns_mov_b64 exec, -1"
        return f"s_mov_b64 exec, {(1 << m) - 1}\nbuffer_store_dwordx4 {vr(r,4)}, v1, {SWS}, {soff} offen{SC}\ns_mov_b64 exec, -1"

    def bias(self, a):
        a(f"""
        global_load_ushort v{V_B1}, v30, {sp('b1')}
        global_load_ushort v{V_B1+2}, v30, {sp('b1')} offset:64
        global_load_ushort v{V_B1+4}, v31, {sp('b1')}
        """)

    def consts(self, a):
        T = V_T
        t4 = self.o.get("t4", 0)
        a(f"""
        v_and_b32 v5, 31, v0
        s_mov_b32 s62, 1966080
        s_mov_b32 s63, 0x20000
        s_mov_b32 s66, 2621440
        s_mov_b32 s67, 0x20000
        s_mov_b64 s[56:57], {sp('w1')}
        s_mov_b64 s[60:61], {sp('w2')}
        s_mov_b64 s[64:65], {sp('out')}
        """)
        if self.prof:
            for r in self.STAMPS[1:]: a(f"s_mov_b32 s{r}, 0")
        a(f"""
        v_lshlrev_b32 v1, 4, v0
        v_lshrrev_b32 v4, 5, v0
        s_mul_i32 s7, {WAVE}, {TABSZ}
        v_mul_u32_u24 v{V_KR}, {TP}, v5
        v_lshl_add_u32 v6, v4, 4, s7
        v_add_u32 v{V_KR}, v{V_KR}, v6
        s_mul_i32 s7, {WAVE}, {RP}
        v_lshl_add_u32 v6, v4, 4, s7
        v_lshl_add_u32 v{T}, v5, 5, v6
        v_cmp_gt_u32 vcc, 32, v0
        v_lshl_add_u32 v6, v5, 4, s7
        v_lshl_add_u32 v7, v5, 3, s7
        v_add_u32 v8, 1024, v6
        v_add_u32 v30, 1536, v7
        v_cndmask_b32 v{T+1}, v30, v8, vcc
        v_add_u32 v8, 1032, v6
        v_add_u32 v30, 1792, v7
        v_cndmask_b32 v{T+2}, v30, v8, vcc
        v_mov_b32 v8, 0x3f80
        v_cndmask_b32 v{V_ONE}, 0, v8, vcc
        v_mov_b32 v{V_ONE+1}, 0
        v_mov_b64 {vr(V_ONE+2,2)}, 0
        v_sub_u32 v6, 63, v0
        v_lshl_add_u32 v{T+3}, v6, 3, s7
        v_lshl_add_u32 v{T+4}, v6, 4, s7
        v_lshl_add_u32 v{T+5}, v0, 5, s7
        v_lshl_add_u32 v{T+6}, v0, 4, s7
        v_lshl_add_u32 v{T+7}, v0, 3, s7
        s_lshl_b32 s7, {WAVE}, 10
        v_lshl_add_u32 v{V_ES}, v0, 2, s7
        v_add_u32 v{V_ES+1}, {RP}, v{V_ES}
        v_add_u32 v{V_ES+2}, {2*RP}, v{V_ES}
        s_add_u32 s74, s7, {CB0+U_OFF+512}
        v_and_b32 v6, 3, v0
        v_lshrrev_b32 v7, 2, v0
        v_min_u32 v8, 2, v6
        s_cmp_eq_u32 {JJ}, 26
        s_cselect_b32 s7, 1, 2
        v_min_u32 v30, s7, v6
        v_mul_u32_u24 v{V_UG}, {XP}, v7
        v_lshl_add_u32 v{V_UG}, v30, 4, v{V_UG}
        v_mul_u32_u24 v{V_UL}, {CBP}, v8
        v_lshl_add_u32 v30, v7, 4, s74
        v_add_u32 v{V_UL}, v{V_UL}, v30
        v_lshlrev_b32 v{V_FX}, 8, v7
        v_lshl_add_u32 v{V_FX}, v6, 4, v{V_FX}
        v_lshlrev_b32 v{V_FY}, 8, v6
        s_min_u32 s7, {WAVE}, 2
        s_mul_i32 s7, s7, {CBP}
        s_add_u32 s74, s7, {CB0+4096}
        s_add_u32 s7, s7, {CB0+U_OFF}
        v_lshl_add_u32 v{V_Z2}, v0, 3, s7
        v_sub_u32 v8, v3, v4
        v_lshl_add_u32 v8, v8, 2, s74
        v_mul_u32_u24 v{V_Z1}, {CPITCH}, v2
        v_add_u32 v{V_Z1}, v{V_Z1}, v8
        v_and_b32 v8, 1, v2
        v_lshlrev_b32 v6, 3, v6
        v_lshl_add_u32 v6, v8, 5, v6
        v_and_b32 v7, 3, v7
        v_lshl_add_u32 v7, v4, 3, v7
        v_lshl_add_u32 v{V_S}, v7, 6, v6
        v_add_u32 v{V_S}, {SNG}, v{V_S}
        v_lshl_add_u32 v{V_P0}, v7, 7, v6
        v_and_b32 v7, 8, v0
        v_lshl_add_u32 v{V_P0}, v7, 3, v{V_P0}
        v_add_u32 v{V_P0}, {PAIR}, v{V_P0}
        v_xor_b32 v{V_P1}, 64, v{V_P0}
        v_mul_u32_u24 v{V_HF}, 49152, v8
        v_lshl_add_u32 v{V_HF}, v4, 8, v{V_HF}
        v_lshl_add_u32 v{V_HF}, v3, 4, v{V_HF}
        s_cmp_eq_u32 {WAVE}, 3
        s_cselect_b32 s7, 0, {WAVE}
        s_mul_i32 s7, s7, {CBP}
        s_add_u32 s7, s7, {CB0}
        v_lshl_add_u32 v6, v2, 4, s7
        v_lshl_add_u32 v{VCB}, v3, 5, v6
        v_sub_u32 v7, 15, v3
        v_and_b32 v8, 3, v7
        v_and_b32 v7, 12, v7
        v_lshl_add_u32 v6, v7, 1, v6
        v_mul_u32_u24 v{VCA}, {CPITCH}, v8
        v_add_u32 v{VCA}, v{VCA}, v6
        s_lshr_b32 s8, {XCD}, 1
        s_lshl_b32 s12, s8, 3
        s_lshr_b32 s8, {XCD}, {2 if t4 else 1}
        s_lshl_b32 s8, s8, {3 if t4 else 2}
        s_and_b32 s7, {JJ}, {7 if t4 else 3}
        s_add_u32 s8, s8, s7
        s_and_b32 s7, {JJ}, 7
        s_add_u32 s12, s12, s7
        s_and_b32 s13, {XCD}, 1
        s_lshl_b32 s13, s13, 2
        s_lshr_b32 s7, {JJ}, 3
        s_add_u32 s13, s13, s7
        s_add_u32 s11, {"s7" if self.o.get("hrot", 0) else "0"}, {WAVE}
        s_and_b32 s11, s11, 3
        s_lshl_b32 {S_YB}, s8, 2
        s_add_u32 {S_YB}, {S_YB}, {WAVE}
        s_mul_i32 {S_HA}, {S_YB}, 96
        s_mul_i32 {S_YB}, {S_YB}, 40960
        s_add_u32 {S_YE}, {S_YB}, 40960
        s_lshl_b32 s7, s83, 12
        s_add_u32 {S_Y}, {S_YB}, s7
        s_lshl_b32 s86, s8, 12
        s_lshl_b32 s7, {WAVE}, 10
        s_add_u32 s86, s86, s7
        s_add_u32 s86, s86, {FY}
        """)

    def w2_pre(self, a):
        a(f"""
        v_and_b32 v4, 7, v0
        v_lshrrev_b32 v5, 3, v0
        v_mul_u32_u24 v196, {PY}, v4
        v_lshl_add_u32 v196, v5, 4, v196
        v_lshlrev_b32 v197, 9, v5
        v_lshl_add_u32 v197, v4, 4, v197
        v_bfe_u32 v4, v0, 2, 2
        v_and_b32 v5, 3, v0
        v_mul_u32_u24 v198, {PX}, v4
        v_lshl_add_u32 v198, v2, 5, v198
        v_lshl_add_u32 v198, v5, 3, v198
        v_lshrrev_b32 v4, 5, v0
        v_lshlrev_b32 v199, 12, v4
        v_bfe_u32 v4, v0, 2, 3
        v_lshl_add_u32 v199, v4, 8, v199
        v_lshl_add_u32 v199, v5, 3, v199
        v_mul_u32_u24 v200, 1280, v2
        v_lshl_add_u32 v200, v3, 4, v200
        v_add_u32 v201, {5120-1024}, v200
        v_add_u32 v202, {5120-1024}, v201
        v_add_u32 v203, {5120-1024}, v202
        s_min_u32 s7, s2, 239
        s_mul_i32 s14, s7, 52429
        s_lshr_b32 s14, s14, 18
        s_mul_i32 s15, s14, 5
        s_sub_u32 s15, s7, s15
        s_mul_i32 s84, s14, 40960
        s_lshl_b32 s7, s15, 8
        s_add_u32 s84, s84, s7
        s_mul_i32 s15, s15, {8*48}
        s_add_u32 s14, s14, s15
        s_lshl_b32 s14, s14, 10
        s_add_u32 s14, s14, {W2F}
        s_lshr_b32 s15, {SID}, 2
        s_mul_i32 s15, s15, 40960
        s_and_b32 s7, {SID}, 3
        s_lshl_b32 s7, s7, 7
        s_add_u32 s15, s15, s7
        s_lshr_b32 s81, {SID}, 4
        s_lshl_b32 s81, s81, 8
        s_and_b32 s7, {SID}, 15
        s_lshl_b32 s7, s7, 2
        s_add_u32 s81, s81, s7
        s_add_u32 s85, s81, {FX}
        s_lshl_b32 s81, {SID}, 8
        s_add_u32 s81, s81, {FY}
        s_mul_i32 s79, {SID}, {XP}
        s_add_u32 s79, s79, {XNT}
        v_readfirstlane_b32 s7, v9
        s_mul_i32 s7, s7, 1664525
        s_add_u32 {TAG}, s7, 1013904223
        s_mov_b32 s51, {TAG}
        v_mov_b32 v204, 1
        v_mov_b32 v205, {TAG}
        v_mov_b32 v206, {TAG}
        """)

    def kgen4(self, a):
        o = self.o
        VF, UF, CH = self.VF, self.UF, 112
        W1, W8, W256, T, C0 = 176, 178, 180, 182, 194
        DT, DTL = 30, 31
        L2E = 1.4426950408889634
        f32 = lambda x: struct.unpack("<f", struct.pack("<f", x))[0]
        I2P = 1 / (2 * math.pi)
        head = (f"""
        s_mov_b32 s72, {fbits(f32(L2E))}
        s_mov_b32 s73, {fbits(L2E-f32(L2E))}
        s_mov_b32 s76, {fbits(math.log(2))}
        v_mul_f32 v{T}, s72, v28
        v_fma_f32 v{T+1}, v28, s72, -v{T}
        v_fma_f32 v{T+1}, v28, s73, v{T+1}
        v_exp_f32 v{T}, v{T}
        v_mul_f32 v{T+1}, s76, v{T+1}
        v_cmp_eq_u32 vcc, 0, v0
        v_fma_f32 v{T}, v{T}, v{T+1}, v{T}
        v_cvt_pk_bf16_f32 v{DT}, v{T}, v{T}
        v_lshlrev_b32 v{DT}, 16, v{DT}
        v_cndmask_b32 v29, 0, v29, vcc
        v_mul_f32 v{DTL}, s72, v{DT}
        s_mov_b32 s74, {fbits(f32(I2P))}
        s_mov_b32 s75, {fbits(I2P-f32(I2P))}
        s_mov_b32 s77, {fbits(256.0)}
        s_mov_b32 s78, {fbits(8.0)}
        """)
        pass
        yl = self.yloads()[:o.get("ny", 8)]
        m0tab = f"s_mul_i32 m0, {WAVE}, {TABSZ}"
        P1 = [self.spin("y", 0, True)] + [f"ds_read_b128 {ar(4*I,4)}, v196 offset:{YT+128*I}" for I in range(10)]
        for I in range(10):
            P1.append(f"buffer_store_dwordx4 {ar(4*I,4)}, v197, {SWS}, s15 offen{SC} @yst" + ("\ns_add_u32 s15, s15, 4096" if I < 9 else ""))
        P1 += [self.st("p.yst"), self.spin("x", 8, True)]
        for I in range(10):
            P1 += [f"ds_read_b64_tr_b16 {ar(40+4*I,2)}, v198 offset:{XT+128*I}", f"ds_read_b64_tr_b16 {ar(42+4*I,2)}, v198 offset:{XT+128*I+4*PX}"]
        P1.append(f"s_mov_b64 exec, 1\nds_write_b64 v{V_CNT}, v[204:205] offset:16\ns_mov_b64 exec, -1")
        w2d = [f"s_mov_b32 m0, {W2S}"]
        for h in range(2):
            w2d += [f"buffer_load_dwordx4 v{200+k}, {SW2}, s84 offen offset:{1024*k}{o.get('wnt', '')} lds @w2dma" for k in range(4)]
            if h == 0: w2d.append(f"s_mov_b32 m0, {W2S+4096}\ns_add_u32 s84, s84, {4*5120}")
        xst = []
        for I in range(10):
            xst.append(("s_add_u32 s79, s79, 4096\n" if I in (4, 8) else "") + f"buffer_store_dwordx4 {ar(40+4*I,4)}, v1, {SWS}, s79 offen offset:{1024*(I%4)}{SC} @xst")
        w2r = ["WAITVM w2dma"]
        for db in range(8):
            w2r += [f"ds_read_b64_tr_b16 {ar(80+4*db,2)}, v199 offset:{W2S+32*db}", f"ds_read_b64_tr_b16 {ar(82+4*db,2)}, v199 offset:{W2S+32*db+2048}"]
        w2s = [f"buffer_store_dwordx4 {ar(80+4*db,4)}, v1, {SWS}, s14 offen{SC} @xst" + (f"\ns_add_u32 s14, s14, {48*1024}" if db < 7 else "") for db in range(8)]
        fy = ["WAITVM yst", self.fstore(206, "s81"), self.st("p.fy")]
        fx = [f"s_mov_b64 exec, 1\nbuffer_store_dword v205, off, {SWS}, s85{SC}\ns_mov_b64 exec, -1", ""]
        fypos = o.get("fypos", 1)
        p1pos = o.get("p1pos", 1)
        burst = o.get("burst", 0)
        if burst:
            P1 = P1[:22] + ["s_waitcnt vmcnt(10)"] + w2r[1:] + w2s + P1[22:-1] + (xst + P1[-1:] if burst == 1 else P1[-1:] + xst)
            if burst == 3: P1.append(f"s_mov_b64 exec, 1\nds_write_b64 v{V_CNT}, v[204:205] offset:24\ns_mov_b64 exec, -1")
            w2d, w2r, w2s, xst = [], [], [], []
        w2pos, fxpos = o.get("w2pos", 0), o.get("fxpos", 0)
        if w2pos == 1: fy = fy + w2d + [m0tab]
        fx = ["WAITVM xst"] + fx + [self.st("p.fx")]
        if p1pos == 0:
            self.only2(a, "p0", P1 + ([] if burst else ["s_waitcnt vmcnt(10)"]), ["s_waitcnt vmcnt(0)"])
            P1 = []
        a(head)
        for c in range(3):
            p = 10 + 6 * c
            setup = [f"v_mul_f32 v{T}, v{p}, v{DTL}", f"v_mul_f32 v{T+1}, v{p+1}, v{DT}",
                     f"v_mul_f32 v{T+2}, s74, v{T+1}", f"v_fma_f32 v{T+3}, v{T+1}, s74, -v{T+2}",
                     f"v_fma_f32 v{T+3}, v{T+1}, s75, v{T+3}",
                     f"v_mul_f32 v{T+4}, s78, v{T}", f"v_mul_f32 v{T+5}, s78, v{T+2}",
                     f"v_mul_f32 v{T+6}, s77, v{T}", f"v_mul_f32 v{T+7}, s77, v{T+2}",
                     f"v_exp_f32 v{T+4}, v{T+4}", f"v_fract_f32 v{T+5}, v{T+5}",
                     f"v_exp_f32 v{T+6}, v{T+6}", f"v_fract_f32 v{T+7}, v{T+7}",
                     f"v_exp_f32 v{T+8}, v{T}", f"v_fract_f32 v{T+9}, v{T+2}",
                     f"v_fma_f32 v{T+5}, v{T+3}, s78, v{T+5}", f"v_fma_f32 v{T+7}, v{T+3}, s77, v{T+7}",
                     f"v_add_f32 v{T+9}, v{T+3}, v{T+9}",
                     f"v_cos_f32 v{W8}, v{T+5}", f"v_sin_f32 v{W8+1}, v{T+5}",
                     f"v_cos_f32 v{W256}, v{T+7}", f"v_sin_f32 v{W256+1}, v{T+7}",
                     f"v_cos_f32 v{W1}, v{T+9}", f"v_sin_f32 v{W1+1}, v{T+9}"]
            setup += self.cmul(T + 10, p + 4, p + 2)
            setup += [f"v_pk_mul_f32 {vr(W8,2)}, {vr(W8,2)}, {vr(T+4,2)} op_sel_hi:[1,0]",
                      f"v_pk_mul_f32 {vr(W256,2)}, {vr(W256,2)}, {vr(T+6,2)} op_sel_hi:[1,0]",
                      f"v_pk_mul_f32 {vr(W1,2)}, {vr(W1,2)}, {vr(T+8,2)} op_sel_hi:[1,0]",
                      f"v_pk_mul_f32 {vr(C0,2)}, {vr(T+10,2)}, {vr(DT,2)} op_sel_hi:[1,0]"]
            Vv = lambda j: W8 if j == 1 else CH + 2 * j
            vchain = []
            for j in range(2, 32): vchain += self.cmul(Vv(j), Vv(j - 1), W8)
            vcvt = [f"v_mov_b32 v{CH}, 0x3f80"] + [f"v_cvt_pk_bf16_f32 v{CH+2*j}, v{Vv(j)}, v{Vv(j)+1}" for j in range(1, 32)]
            vwr = [f"ds_write_addtid_b32 v{CH+2*j} offset:{TP*j}" for j in range(32)]
            Ur = lambda i: C0 if i == 0 else CH + 2 * i
            uchain = []
            for i in range(1, 8): uchain += self.cmul(Ur(i), Ur(i - 1), W1)
            for i, s in ((8, 0), (9, 2), (10, 4), (11, 6), (12, 8), (13, 10), (14, 12), (15, 13), (16, 14), (17, 16), (18, 17), (19, 18), (20, 19)):
                uchain += self.cmul(Ur(i), Ur(s), W256)
            ucvt = [f"v_cvt_pk_bf16_f32 v{Ur(i)}, v{Ur(i)}, -v{Ur(i)+1}" for i in range(21)]
            uwr = [f"ds_write_addtid_b32 v{Ur(i)} offset:{TP*(i if i < 20 else 23)}" for i in range(21)]
            E = lambda L: [a(x) for x in L]
            ypos = o.get("ypos", 2)
            assert ypos == 2 or fxpos == 2
            chk = lambda: (E([self.poll_check("y0", 2, False, V_FY, "s86"), self.st("ypoll")]), self.only2(a, "fx", fx) if fxpos == 2 else None)
            ng = {0: 5, 1: 4, 2: 2}[ypos]
            grp = [yl[len(yl) * k // ng:len(yl) * (k + 1) // ng] for k in range(ng)] if c == 2 else [[]] * 5
            grp = [[]] * (5 - ng) + grp
            E(setup[:6])
            if c: E(self.kreads(UF))
            if c == 1 and fypos == 1: self.only2(a, "fy", fy + xst[:5])
            if c == 2 and ypos == 1: E([self.poll_load(2, False, V_FY, "s86")])
            E(setup[6:])
            if c == 2 and fxpos == 0: self.only2(a, "fx", fx)
            if c == 2 and ypos == 0: chk()
            E(grp[0] + vchain)
            if c == 0:
                E(vcvt)
                self.only2(a, "p1", P1 + (["s_waitcnt vmcnt(10)"] if p1pos and not burst else []) + (w2d if w2pos == 0 else []) + (fy if fypos == 3 else []),
                           [self.spin("f", 16, False)] + (["s_waitcnt vmcnt(0)"] if p1pos else []))
                E([m0tab] + vwr)
            else:
                E(vcvt[:18])
                if c == 1 and not burst: self.only2(a, "x2", (fy + xst if fypos == 2 else xst[5:]) + w2r)
                if c == 1 and fxpos == 3: self.only2(a, "fx", fx)
                if c == 2 and fxpos == 1: self.only2(a, "fx", fx)
                if c == 2 and ypos == 2: E([self.poll_load(2, False, V_FY, "s86")])
                if c == 2 and ypos == 1: chk()
                E(grp[1])
                mf = self.kmf(c == 1)
                for k in range(8): E([mf[k]] + vwr[4 * k:4 * k + 4] + vcvt[18 + 2 * k:20 + 2 * k])
            E(uchain[:8] + self.kreads(VF) + grp[2])
            if c == 1 and not burst: self.only2(a, "w2", w2s)
            if c == 0 and fypos == 4: self.only2(a, "fy", fy)
            E(uchain[8:] + ucvt)
            if c == 1 and ypos == 0: E([self.poll_load(2, False, V_FY, "s86")])
            if c == 2 and ypos == 2: chk()
            E(grp[3] + uwr + grp[4])
            if c == 0 and fypos == 0: self.only2(a, "fy", fy + xst[:5])
            a(self.st(f"kg{c}"))
        for x in self.kreads(UF): a(x)
        a("s_waitcnt lgkmcnt(0)")

    def wave3b(self, a):
        o = self.o
        nl = o.get("nl", 3)
        if o.get("pfwait", 0): a("s_waitcnt vmcnt(0)\n" + self.st("w3.pf"))
        if o.get("hold", 0): a(self.spin("3", 24 if o.get("burst", 0) == 3 else 16, False))
        a(f"L_dma:\ns_waitcnt vmcnt({o.get('dcap', 24)})")
        self.step(a)
        a(f"s_add_u32 s73, s73, 1\ns_cmp_lt_u32 s73, {20-nl}\ns_cbranch_scc1 L_dma")
        if not o.get("hold", 0): a(self.spin("3", 16, False))
        a(self.poll_load(4, False, V_FY, "s86"))
        for _ in range(nl): self.step(a)
        a(self.st("w3.dma"))
        a(self.poll_check("y3", 4, False, V_FY, "s86"))
        a(self.st("ypoll"))
        ny = o.get("ny", 8)
        for x in self.yloads()[:ny]: a(x)
        a(f"s_waitcnt vmcnt({ny})")

    def flag_scalars(self):
        return [f"s_lshl_b32 s81, s8, 4", f"s_add_u32 s81, s81, s9", f"s_lshl_b32 s81, s81, 2", f"s_add_u32 s81, s81, {WAVE}",
               f"s_lshl_b32 s81, s81, 8", f"s_add_u32 s81, s81, {FH}",
               f"s_lshr_b32 s86, s12, 1", f"s_lshl_b32 s86, s86, 2", f"s_add_u32 s86, s86, {WAVE}", f"s_lshl_b32 s86, s86, 12",
               f"s_and_b32 s80, s12, 1", f"s_lshl_b32 s80, s80, 9", f"s_add_u32 s86, s86, s80", f"s_add_u32 s86, s86, {FH}",
               f"s_lshl_b32 s82, s12, 4", f"s_add_u32 s82, s82, {WAVE}", f"s_mul_i32 s82, s82, {12*1024}", f"s_add_u32 s82, s82, {HF}"]

    def late_consts(self):
        return super().late_consts() + [f"v_lshlrev_b32 v{VFH}, 6, v{VFH}"]

    def late_consts2(self):
        L = super().late_consts2()
        t = 233
        new = [f"s_mul_i32 s73, {WAVE}, 27", f"s_and_b32 s73, s73, 0x7c", f"v_and_b32 v{t}, 31, v0", f"v_add_u32 v{t}, s73, v{t}", f"v_min_u32 v{t}, 107, v{t}",
               f"v_lshlrev_b32 v{VFS}, 8, v{t}"]
        return L[:5] + new + L[10:]

    def slow_paths(self, a):
        for name, dst, wide, vaddr, soff in self.slow:
            a(f"""
            L_slow_{name}:
            s_mov_b32 s87, 0
            L_spin_{name}:
            s_sleep {self.o.get("slw", 12) if name[0] == "x" else self.o.get("sl", 2)}
            {self.poll_load(dst, wide, vaddr, soff)}
            s_add_u32 s87, s87, 1
            s_cmp_gt_u32 s87, 0x40000
            s_cbranch_scc1 L_ok_{name}
            s_waitcnt vmcnt(0)
            {self.poll_cmp(dst, wide)}
            s_cbranch_scc1 L_spin_{name}
            s_branch L_ok_{name}
            """)

    def conv(self, a, role):
        o = self.o
        seq = []
        if role == 0:
            blocks = [4, 5, 6, 7, 1]
            for r in range(8):
                for c in range(8):
                    if c == 4: seq += [(0, r, 1, 0), (0, r, 0, 1)]
                    for e in range(7, -1, -1):
                        if e + c in (4, 5, 6, 7): seq.append((0, r, e, c))
            acc = lambda ch, b: 2 + 4 * blocks.index(b)
        else:
            for r in range(8):
                for ch in range(3):
                    for c in range(4):
                        for e in range(3, -1, -1):
                            if e + c in (0, 2, 3): seq.append((ch, r, e, c))
            acc = lambda ch, b: 2 + 12 * ch + 4 * (2, None, 0, 1)[b]
        uses = [[("B", ch, r, c), ("A", ch, r, e)] for ch, r, e, c in seq]
        def reads(f, reg):
            k, ch, r, i = f
            if k == "B":
                return [f"ds_read_b128 {vr(reg,4)}, v{VCB} offset:{ch*CBP+U_OFF+480+512*i-64*r}"]
            off = ch * CBP + 4032 - 512 * i - 64 * r
            return [f"ds_read_b64 {vr(reg,2)}, v{VCA} offset:{off}", f"ds_read_b64 {vr(reg+2,2)}, v{VCA} offset:{off+8}"]
        pool = list(range(88, 128, 4)) + list(range(48, 88, 4))
        fr = FragStream(uses, reads, pool, lead=12, pre=o.get("cvpre", 9), name="cv")
        for x in fr.pro + self.tail: a(x)
        a(self.st("g1.tail"))
        n = len(seq)
        seen = set()
        main = []
        for ch, r, e, c in seq:
            d = vr(acc(ch, e + c), 4)
            cin = d if (ch, e + c) in seen else "0"
            seen.add((ch, e + c))
            main.append(lambda d=d, cin=cin, A=("A", ch, r, e), B=("B", ch, r, c): f"v_mfma_f32_16x16x32_bf16 {d}, {vr(fr.reg[A],4)}, {vr(fr.reg[B],4)}, {cin}")
        sc_ = lambda x: x * n // 224
        mf, mp, mc = sc_(o.get("mf", 60)), sc_(o.get("mp", 125)), sc_(o.get("mc", 165))
        S = [fr]
        S.append(Stream(self.w2rest, 4, sc_(o.get("wend", 166)), name="w2f"))
        sal = [f"v_mov_b32 v232, {TAG}"] + self.flag_scalars()
        S.append(Stream(sal, 1, mf - 2, name="sal"))
        S.append(Stream(["WAITVM hst\n" + self.fstore(232, "s81") + "\n" + self.st("cv.fh")], mf, mf + 1))
        side = self.late_consts() + [f"v_accvgpr_write_b32 a{k}, 0" for k in (241, 243, 245, 247, 249, 250, 251)]
        side += [f"global_load_ushort a{240+2*jb}, v{VB2}, {sp('b2')} offset:{32*jb}" for jb in range(5)]
        side += [f"buffer_load_dwordx4 v{VX+i}, {SX}, s14 offen lds @xdma\ns_add_u32 m0, m0, 1024" for i in range(2)]
        side += [f"s_mov_b64 exec, 0xffffffff\nbuffer_load_dwordx4 v{VX+2}, {SX}, s14 offen lds @xdma\ns_mov_b64 exec, -1"]
        if o.get("opf", 0):
            side += [f"v_lshrrev_b32 v233, 1, v0", f"v_and_b32 v233, 15, v233", f"v_mul_u32_u24 v233, 1280, v233", f"v_and_b32 v234, 1, v0", f"v_mul_u32_u24 v234, 156, v234",
                     f"v_add_u32 v233, v233, v234", f"buffer_load_dword v231, v233, {SOUT}, s14 offen"]
        S.append(Stream(side, 4, mp - 2, name="side"))
        S.append(Stream([self.poll_load(231, False, VFH, "s86")], mp, mp + 1))
        nh = o.get("nh", 11)
        hl = self.hloads(0) + self.hloads(1)
        hpf = []
        if o.get("hpf", 0):
            side2 = [f"v_min_u32 v233, 47, v0", f"v_cmp_lt_u32 vcc, 23, v233", f"v_lshlrev_b32 v234, 7, v233", f"s_add_u32 s73, s11, 3", f"s_and_b32 s73, s73, 3",
                     f"s_mul_i32 s73, s73, {48*1024}", f"s_mul_i32 s80, s11, {48*1024}", f"s_sub_u32 s80, s80, 3072", f"v_mov_b32 v235, s73", f"v_mov_b32 v233, s80",
                     f"v_cndmask_b32 v235, v235, v233, vcc", f"v_add_u32 v234, v234, v235", f"s_lshr_b32 s73, {JJ}, 3", f"s_mul_i32 s73, s73, 3072", f"s_add_u32 s83, s82, s73"]
            S.append(Stream(side2, mp, mc - 1, name="side2"))
            hpf = [f"buffer_load_dword v231, v234, {SWS}, s83 offen{SC}"]
        k = o.get("hpfpos", 7)
        S.append(Stream([self.poll_check(f"h{role}", 231, False, VFH, "s86") + "\n" + self.st("hpoll")] + hl[:min(k, nh)] + hpf + hl[min(k, nh):nh], mc, n, ahead=0, name="h"))
        gap_sched(a, main, S, f"conv{role}", vspace=o.get("vs", 64), budget=lambda m: o.get(f"cbud{role}", (2, 2.75)[role]))
        a(self.st("cv.main"))
        order = [4, 0, 1, 2, 3] if role == 0 else list(range(9))
        for q in order:
            a(f"v_cvt_pk_bf16_f32 v{96+2*q}, v{2+4*q}, v{3+4*q}\nv_cvt_pk_bf16_f32 v{97+2*q}, v{4+4*q}, v{5+4*q}")
        for q in order:
            a(f"ds_write_b64 v{VCW}, {vr(96+2*q,2)} offset:{512*q}")
        a(hl[nh])
        if role == 0:
            a(f"s_lshl_b32 s73, {JJ}, 2\ns_add_u32 s73, s73, {WAVE}\ns_mul_i32 s7, {WAVE}, {SP}\ns_add_u32 s7, s7, {S_ROW}\ns_cmp_eq_u32 s73, 106\ns_cselect_b32 s7, {WS_BYTES}, s7")
            for q in range(3): a(f"ds_read_b128 {vr(96+4*q,4)}, v{VPW} offset:{1024*q}")
            a(hl[nh + 1])
            for q in range(2): a(f"buffer_store_dwordx4 {vr(96+4*q,4)}, v1, {SWS}, s7 offen offset:{2048+1024*q}{SC} @sst")
            a(f"s_waitcnt lgkmcnt(0)\ns_mov_b64 exec, 0xffffffff\nbuffer_store_dwordx4 v[104:107], v1, {SWS}, s7 offen offset:512{SC} @sst\ns_mov_b64 exec, -1")
        else:
            for ch in range(3):
                a(f"ds_read_b128 {vr(96+8*ch,4)}, v{VPW} offset:{1536*ch}\nds_read_b128 {vr(100+8*ch,4)}, v{VPW} offset:{1536*ch+1024}")
            a(hl[nh + 1])
            a(f"s_add_u32 s7, {S_ROW}, {SP}\ns_add_u32 s73, {S_ROW}, {2*SP}\ns_cmp_eq_u32 {JJ}, 26\ns_cselect_b32 s73, {WS_BYTES}, s73")
            sr = [S_ROW, "s7", "s73"]
            for ch in range(3): a(f"buffer_store_dwordx4 {vr(96+8*ch,4)}, v1, {SWS}, {sr[ch]} offen offset:1024{SC} @sst")
            a("s_waitcnt lgkmcnt(0)\ns_mov_b64 exec, 0xffffffff")
            for ch in range(3): a(f"buffer_store_dwordx4 {vr(100+8*ch,4)}, v1, {SWS}, {sr[ch]} offen{SC} @sst")
            a("s_mov_b64 exec, -1")
        assert nh + 2 >= 13
        self.hrest = hl[nh + 2:]
        a(self.st("cv.out"))

    def gemm2f(self, a):
        o = self.o
        AC = (2, 22)
        main, idx = [], {}
        for rho in range(4):
            for jb in range(5):
                d = vr(AC[rho & 1] + 4 * jb, 4)
                idx[(rho, jb)] = len(main)
                if rho == 0: main.append(f"v_mfma_f32_16x16x32_bf16 {d}, {ar(240+2*jb,4)}, {vr(V_ONE,4)}, 0")
                for kk in range(12):
                    main.append(f"v_mfma_f32_16x16x32_bf16 {d}, {ar(self.w2reg(jb*12+kk),4)}, {vr(self.breg(rho,kk),4)}, {d}")
        for rho in (1, 2, 3): main[idx[(rho, 0)]] = self.st(f"g2.r{rho}") + "\n" + main[idx[(rho, 0)]]
        main[13] = self.st("g2.c1") + "\n" + main[13]
        idx[(4, 0)] = n = len(main)
        nxt = lambda rho, jb: idx[(rho, jb + 1)] if jb < 4 else idx[(rho + 1, 0)]
        a(f"s_mul_i32 s7, {WAVE}, 10240\ns_add_u32 m0, s7, 32768")
        ring = []
        for rho in range(3):
            par = rho & 1
            def wr(jb):
                g = nxt(rho, jb) + 3
                return [Item(f"ds_write_addtid_b32 v{AC[par]+4*jb+k} offset:{RING-32768+5120*par+1024*jb+256*k} @pw", lo=g, hi=g + 3) for k in range(4)]
            def rd(jb, g):
                return [Item(f"ds_read2st64_b32 {vr(AC[par^1]+4*jb+2*k,2)}, v{VPR} offset0:{20*par+4*jb+2*k} offset1:{20*par+4*jb+2*k+1}", lo=g, hi=g + 6) for k in range(2)]
            b1, b2 = nxt(rho, 2) + 10, nxt(rho, 4) + 10
            ring += wr(0) + wr(1) + wr(2) + [Item("WAITLG pw\ns_barrier", lo=b1, hi=b1)] + rd(0, b1 + 1) + rd(1, b1 + 1) + rd(2, b1 + 1)
            ring += wr(3) + wr(4) + [Item("WAITLG pw\ns_barrier", lo=b2, hi=b2)] + rd(3, b2 + 1) + rd(4, b2 + 1)
        rs = Stream(ring, 0, n, ahead=0, name="ring")
        for it in rs.items: it.ideal = it.lo - 5
        S = [rs]
        hlead = o.get("hlead", 14)
        hh = [Item(x, hi=idx[(1, 0)] - hlead) for x in self.hrest] + [Item(x, hi=idx[(2, 0)] - hlead) for x in self.hloads(2)]
        hh += [Item(x, lo=idx[(1, 0)], hi=idx[(3, 0)] - hlead) for x in self.hloads(3)]
        S.append(Stream(hh, 0, o.get("hend", 150), ahead=30, name="h"))
        ms = o.get("ms", 62)
        S.append(Stream(self.late_consts2(), 0, 44, name="lc2"))
        sal = [f"s_lshl_b32 s81, {SID}, 2", f"s_add_u32 s81, s81, {WAVE}", f"s_lshl_b32 s81, s81, 8", f"s_add_u32 s81, s81, {FS}",
               f"s_lshl_b32 s86, s13, 15", f"s_add_u32 s86, s86, {FS}",
               f"s_lshl_b32 s76, s13, 2", f"s_add_u32 s76, s76, {WAVE}", f"s_mul_i32 s76, s76, {20*SP}",
               f"s_lshl_b32 s80, s12, 7", f"s_add_u32 s76, s76, s80", f"s_add_u32 s76, s76, {ST}",
               f"s_add_u32 s77, s76, {8*SP}", f"s_add_u32 s78, s76, {16*SP}", f"s_mov_b32 s74, {fbits(-1.4426950408889634)}"]
        S.append(Stream(sal, 0, ms - 2, name="sal"))
        S.append(Stream(["WAITVM sst\n" + self.fstore(232, "s81") + "\n" + self.st("g2.fs")], ms, ms + 1))
        XR, XF, SR, SD = 96, 176, 106, 116
        S.append(Stream(["WAITVM xdma"] + [f"ds_read_b64 {vr(XR+2*jb,2)}, v{VXD} offset:{32*jb}" for jb in range(5)], idx[(1, 3)], idx[(2, 0)], name="xr"))
        xu = []
        for q in range(10): xu += [f"v_lshlrev_b32 v{XF+2*q}, 16, v{XR+q}", f"v_and_b32 v{XF+2*q+1}, 0xffff0000, v{XR+q}"]
        S.append(Stream(xu, idx[(2, 1)], idx[(3, 0)], ahead=0, name="xu"))
        mp, mc = o.get("g2p", 134), o.get("g2c", 170)
        assert mp >= idx[(2, 0)]
        S.append(Stream([self.poll_load(196, False, VFS, "s86")], mp, mp + 1))
        S.append(Stream([self.poll_check("s", 196, False, VFS, "s86") + "\n" + self.st("spoll"),
                         f"buffer_load_dwordx4 {vr(SD,4)}, v{VSG}, {SWS}, s76 offen{SC}",
                         f"buffer_load_dwordx4 {vr(SD+4,4)}, v{VSG}, {SWS}, s77 offen{SC}",
                         f"s_mov_b64 exec, 0xffffffff\nbuffer_load_dwordx4 {vr(SD+8,4)}, v{VSG}, {SWS}, s78 offen{SC} @sld\ns_mov_b64 exec, -1"], mc, mc + 10, ahead=0))
        Z = AC[1]
        def silu(jb):
            T = 200
            z = Z + 4 * jb
            L = [f"v_mul_f32 v{T+k}, s74, v{z+k}" for k in range(4)] + [f"v_exp_f32 v{T+k}, v{T+k}" for k in range(4)]
            L += [f"v_add_f32 v{T+k}, 1.0, v{T+k}" for k in range(4)] + [f"v_rcp_f32 v{T+k}, v{T+k}" for k in range(4)]
            L += [f"v_mul_f32 v{z+k}, v{z+k}, v{T+k}" for k in range(4)]
            return L
        def comb(jb):
            L = []
            for q in (2 * jb, 2 * jb + 1):
                L += [f"v_lshlrev_b32 v204, 16, v{SR+q}", f"v_and_b32 v205, 0xffff0000, v{SR+q}",
                      f"v_pk_fma_f32 v[204:205], v[204:205], {vr(Z+2*q,2)}, {vr(XF+2*q,2)}", f"v_cvt_pk_bf16_f32 v{XR+q}, v204, v205"]
            return L
        sw = [f"ds_write_b64 v{VSL}, {vr(SD+2*i,2)} offset:{256*(i>>1)+8*(i&1)}" for i in range(4)]
        sw += [f"WAITVM sld\ns_mov_b64 exec, 0xffffffff\nds_write_b128 v{VSL}, {vr(SD+8,4)} offset:512\ns_mov_b64 exec, -1"]
        srd = [f"ds_read_b64_tr_b16 {vr(SR+2*jb,2)}, v{VSR} offset:{512*jb}" for jb in range(5)]
        spos = o.get("spos", 226)
        nsil = 3
        if spos < n:
            S.append(Stream(sw + [Item("s_waitcnt lgkmcnt(0)\ns_barrier", lo=spos + 12)] + srd, spos, n, ahead=3, name="sw"))
            nsil = o.get("nsil", 2)
        sl = []
        for jb in range(nsil):
            L = [Item(x) for x in silu(jb)]
            L[0].lo = nxt(3, jb) + 2
            sl += L
        S.append(Stream(sl, nxt(3, 0) + 2, n, ahead=12, name="silu"))
        gap_sched(a, main, S, "g2", vspace=o.get("vs", 64))
        a(self.st("g2.mfma"))
        def silu_pk(jb):
            T = 200
            z = Z + 4 * jb
            L = [f"v_pk_mul_f32 {vr(T+k,2)}, {vr(z+k,2)}, v[206:207] op_sel_hi:[1,0]" for k in (0, 2)] + [f"v_exp_f32 v{T+k}, v{T+k}" for k in range(4)]
            L += [f"v_pk_add_f32 {vr(T+k,2)}, {vr(T+k,2)}, v[206:207] op_sel:[0,1]" for k in (0, 2)] + [f"v_rcp_f32 v{T+k}, v{T+k}" for k in range(4)]
            L += [f"v_pk_mul_f32 {vr(z+k,2)}, {vr(z+k,2)}, {vr(T+k,2)}" for k in (0, 2)]
            return L
        ow = lambda jb: f"ds_write_b64 v{VXD}, {vr(XR+2*jb,2)} offset:{32*jb}"
        a("v_mov_b32 v206, s74\nv_mov_b32 v207, 1.0")
        if spos >= n:
            seq = sw + silu_pk(3) + ["s_waitcnt lgkmcnt(0)\ns_barrier"] + srd + silu_pk(4)
            seq += comb(0) + comb(1) + comb(2) + [ow(0), ow(1), ow(2)] + comb(3) + comb(4) + [ow(3), ow(4)]
        else:
            seq = []
            for jb in range(nsil, 4): seq += silu_pk(jb)
            seq += comb(0) + comb(1) + comb(2) + comb(3) + [ow(0), ow(1), ow(2), ow(3)] + silu_pk(4) + comb(4) + [ow(4)]
        for x in seq: a(x)
        a("s_nop 3")
        for i in range(3): a(f"ds_read_b128 {vr(SD+4*i,4)}, v{VXL} offset:{1024*i}")
        osc = o.get("osc", SC)
        for i in range(2): a(f"buffer_store_dwordx4 {vr(SD+4*i,4)}, v{VX+i}, {SOUT}, s14 offen{osc}")
        a(f"s_waitcnt lgkmcnt(0)\ns_mov_b64 exec, 0xffffffff\nbuffer_store_dwordx4 {vr(SD+8,4)}, v{VX+2}, {SOUT}, s14 offen{osc}")
        a(self.st("g2.done"))

if __name__ == "__main__":
    opt = parse(sys.argv[2:])
    for k_, v_ in dict(burst=3, fypos=4, fxpos=3).items(): opt.setdefault(k_, v_)
    for k_, v_ in dict(w1pf=1, n0=0, dscap=4, fypos=0, hold=1, t4=1, yrot=0).items(): opt.setdefault(k_, v_)
    open(sys.argv[1], "w").write(gen4.build("min" if "min" in sys.argv[2:] else "prof" in sys.argv[2:], opt, cls=F10))
```

```python
import re

TRANS = ("v_exp_f32", "v_log_f32", "v_rcp_f32", "v_rsq_f32", "v_sqrt_f32", "v_sin_f32", "v_cos_f32")
REG_RE = re.compile(r"^(-|abs\(|\|)?([vas])(\d+|\[(\d+):(\d+)\])\)?\|?$")


def regs_of(tok):
    tok = tok.strip()
    if tok == "vcc":
        return {("s", "vcc")}
    if tok in ("vcc_lo", "vcc_hi"):
        return {("s", "vcc")}
    if tok == "exec":
        return {("s", "exec")}
    if tok == "m0":
        return {("s", "m0")}
    m = REG_RE.match(tok)
    if not m:
        return set()
    k = m.group(2)
    if m.group(4) is not None:
        return {(k, i) for i in range(int(m.group(4)), int(m.group(5)) + 1)}
    return {(k, int(m.group(3)))}


def split_ops(rest):
    ops, depth, cur = [], 0, ""
    for ch in rest:
        if ch in "[(":
            depth += 1
        if ch in "])":
            depth -= 1
        if ch == "," and depth == 0:
            ops.append(cur.strip())
            cur = ""
        else:
            cur += ch
    if cur.strip():
        ops.append(cur.strip())
    mods = ""
    if ops:
        parts = ops[-1].split(None, 1)
        ops[-1] = parts[0]
        if len(parts) > 1:
            mods = parts[1]
    return ops, mods


class Ins:
    def __init__(self, text):
        self.text = text
        t = text.split(";")[0].strip()
        self.label = t.endswith(":")
        self.directive = t.startswith(".")
        self.mn = ""
        self.w = set()
        self.r = set()
        self.srcc = set()
        self.srcab = set()
        self.sdata = set()
        self.ws = 1
        if self.label or self.directive or not t:
            self.ws = 0
            return
        p = t.split(None, 1)
        mn = self.mn = p[0]
        ops, mods = split_ops(p[1]) if len(p) > 1 else ([], "")
        self.ops, self.mods = ops, mods
        R = [regs_of(o) for o in ops]
        self.mfma = mn.startswith("v_mfma")
        self.valu = mn.startswith("v_") and not self.mfma
        self.trans = any(mn.startswith(x) for x in TRANS)
        self.ds = mn.startswith("ds_")
        self.vmem = mn.startswith("buffer_") or mn.startswith("global_")
        self.salu = mn.startswith("s_")
        self.dpp = "_dpp" in mn
        self.dot = mn.startswith("v_dot")
        self.ldsdma = self.vmem and (" lds" in (" " + mods) or "load_lds" in mn)
        if mn == "s_nop":
            self.ws = int(ops[0], 0) + 1
            return
        if self.mfma:
            self.passes = 8 if "32x32" in mn else 4
            self.w = R[0]
            self.srcab = R[1] | R[2]
            self.srcc = R[3]
            self.r = self.srcab | self.srcc
        elif self.valu:
            if mn.startswith("v_permlane"):
                self.w = R[0] | R[1]
                self.r = R[0] | R[1]
            elif mn.startswith("v_cmp"):
                self.w = R[0]
                self.r = set().union(*R[1:])
            elif "_co_" in mn:
                self.w = R[0] | R[1]
                self.r = set().union(*R[2:])
            else:
                self.w = R[0]
                self.r = set().union(*R[1:]) if len(R) > 1 else set()
                if mn.startswith(("v_fmac", "v_dot2c", "v_writelane")) or self.dpp:
                    self.r |= R[0]
        elif self.ds:
            if mn.startswith(("ds_read", "ds_bpermute", "ds_permute", "ds_swizzle")):
                self.w = R[0]
                self.r = set().union(*R[1:])
                if "d16" in mn:
                    self.r |= R[0]
            elif "_rtn" in mn:
                self.w = R[0]
                self.r = set().union(*R[1:])
            else:
                self.r = set().union(*R)
        elif self.vmem:
            if mn.startswith(("buffer_inv", "buffer_wb")):
                pass
            elif self.ldsdma:
                self.r = set().union(*R) | {("s", "m0")}
            elif "_load" in mn:
                self.w = R[0]
                self.r = set().union(*R[1:])
            else:
                self.r = set().union(*R)
                data = R[0] if mn.startswith("buffer_") else R[1]
                if mn.endswith(("x3", "x4")):
                    self.sdata = data
                if "atomic" in mn and "sc0" in mods and mn.startswith("buffer_"):
                    self.w = R[0]
        elif self.salu:
            if mn.startswith(("s_cmp", "s_cbranch", "s_branch", "s_waitcnt", "s_barrier", "s_endpgm", "s_sleep",
                              "s_setprio", "s_bitcmp", "s_setpc")):
                self.r = set().union(*R) if R else set()
            else:
                self.w = R[0] if R else set()
                self.r = set().union(*R[1:]) if len(R) > 1 else set()
                if "saveexec" in mn:
                    self.w = self.w | {("s", "exec")}


def need(P, C):
    n = 0
    if not P.mn or not C.mn or P.mn == "s_nop" or C.mn == "s_nop":
        return 0
    Pvw = {r for r in P.w if r[0] in "va"}
    Psw = {r for r in P.w if r[0] == "s"}
    if P.valu:
        if C.mfma and Pvw & C.r:
            n = max(n, 2)
        if P.trans and C.valu and not C.trans and Pvw & C.r:
            n = max(n, 1)
        if C.valu and C.dpp and Pvw & C.r:
            n = max(n, 2)
        if C.mn.startswith(("v_readlane", "v_readfirstlane")) and Pvw & C.r:
            n = max(n, 1)
        if C.mn.startswith("v_permlane") and Pvw & C.r:
            n = max(n, 2)
        if Psw:
            if C.valu and Psw & C.r:
                n = max(n, 4 if C.mn.startswith(("v_readlane", "v_writelane")) else 2)
            if C.vmem and Psw & C.r:
                n = max(n, 5)
            if C.salu and Psw & C.r:
                n = max(n, 1)
        if P.dot and (C.valu or C.mfma or C.vmem or C.ds) and Pvw & (C.r | C.w):
            if not (C.mn == P.mn and not (Pvw & set().union(*[regs_of(o) for o in C.ops[1:3]]))):
                n = max(n, 3)
        if ("sdwa" in P.mn) and C.valu and Pvw & (C.r | C.w):
            n = max(n, 1)
    if P.mfma:
        big = P.passes == 8
        if C.mfma:
            if P.w & C.srcc:
                if not (P.w == C.srcc and P.passes == C.passes):
                    n = max(n, 10 if big else 6)
            if P.w & C.srcab:
                n = max(n, 12 if big else 8)
        elif C.valu or C.vmem or C.ds:
            if P.w & (C.r | C.w):
                n = max(n, 12 if big else 8)
            if C.valu and P.srcc & C.w:
                n = max(n, 7 if big else 3)
    if P.vmem and P.sdata and P.sdata & C.w:
        n = max(n, 2 if C.valu else 1)
    if P.salu and ("s", "m0") in P.w and (C.ldsdma or "addtid" in C.mn):
        n = max(n, 1)
    return n


WAIT_RE = re.compile(r"(vmcnt|lgkmcnt)\((\d+)\)")


class Asm:
    def __init__(self, auto=False):
        self.ins = []
        self.nops = 0
        self.auto = auto
        self.vmq = []
        self.lgq = []

    def _need(self, q, regs=None, tag=None):
        idx = -1
        for i, (r, t) in enumerate(q):
            if (regs and r & regs) or (tag and tag in t):
                idx = i
        return None if idx < 0 else len(q) - 1 - idx

    def _emit_wait(self, nv, nl):
        parts = []
        if nv is not None:
            nv = min(nv, 62)
            parts.append(f"vmcnt({nv})")
            self.vmq = self.vmq[len(self.vmq) - nv:] if nv else []
        if nl is not None:
            nl = min(nl, 14)
            parts.append(f"lgkmcnt({nl})")
            self.lgq = self.lgq[len(self.lgq) - nl:] if nl else []
        if parts:
            self.ins.append(Ins("s_waitcnt " + " ".join(parts)))

    def wait_vm(self, tag):
        self._emit_wait(self._need(self.vmq, tag=tag), None)

    def wait_lgkm(self, tag):
        self._emit_wait(None, self._need(self.lgq, tag=tag))

    def state(self):
        return ([(set(r), set(t)) for r, t in self.vmq], [(set(r), set(t)) for r, t in self.lgq])

    def set_state(self, st):
        self.vmq = [(set(r), set(t)) for r, t in st[0]]
        self.lgq = [(set(r), set(t)) for r, t in st[1]]

    def merge(self, states):
        res = []
        for k in (0, 1):
            n = max(len(st[k]) for st in states)
            q = [(set(), set()) for _ in range(n)]
            for st in states:
                m = len(st[k])
                for i, (r, t) in enumerate(st[k]):
                    q[n - m + i][0].update(r)
                    q[n - m + i][1].update(t)
            res.append(q)
        self.set_state(tuple(res))

    def __call__(self, text):
        for line in text.split("\n"):
            line = line.strip()
            if not line or line.startswith(";"):
                continue
            if line.startswith("WAITVM "):
                self.wait_vm(line.split()[1]); continue
            if line.startswith("WAITLG "):
                self.wait_lgkm(line.split()[1]); continue
            tags = set()
            if " @" in line:
                line, tg = line.rsplit(" @", 1)
                tags = {tg.strip()}
            I = Ins(line)
            if self.auto and I.mn:
                if I.mn == "s_waitcnt":
                    for k, n in WAIT_RE.findall(line):
                        n = int(n)
                        if k == "vmcnt":
                            self.vmq = self.vmq[max(0, len(self.vmq) - n):] if n else []
                        else:
                            self.lgq = self.lgq[max(0, len(self.lgq) - n):] if n else []
                elif I.mn != "s_nop":
                    regs = {r for r in (I.r | I.w) if r[0] in "va"}
                    rv = {r for r in I.r if r[0] in "va"} if I.vmem else regs
                    rl = {r for r in I.r if r[0] in "va"} if I.ds else regs
                    self._emit_wait(self._need(self.vmq, regs=rv), self._need(self.lgq, regs=rl))
                    if I.vmem and not I.mn.startswith(("buffer_inv", "buffer_wb")):
                        self.vmq.append(({r for r in I.w}, tags))
                    elif I.ds:
                        self.lgq.append(({r for r in I.w}, tags))
                    elif I.mn.startswith(("s_load", "s_memtime", "s_memrealtime")):
                        self.lgq.append((set(), {"SMEM"}))
            self.ins.append(I)

    def label(self, name):
        self.ins.append(Ins(name + ":"))

    def _pad(self, out, C):
        dist = 0
        req = 0
        for P in reversed(out):
            if dist >= 20:
                break
            if P.ws == 0:
                continue
            k = need(P, C) - dist
            if k > req:
                req = k
            dist += P.ws
        return req

    def finish(self):
        out = []
        for C in self.ins:
            if C.mn:
                req = self._pad(out, C)
                if req > 0:
                    out.append(Ins(f"s_nop {req-1}"))
                    self.nops += 1
            out.append(C)
        labels = {I.text.split(";")[0].strip()[:-1]: i for i, I in enumerate(out) if I.label}
        for i, I in enumerate(out):
            if I.mn.startswith(("s_cbranch", "s_branch")):
                tgt = labels[I.ops[0]]
                hist = out[max(0, i - 40): i + 1]
                dist = 0
                j = tgt
                hist = list(hist)
                while j < len(out) and dist < 20:
                    C = out[j]
                    if C.mn:
                        req = self._pad(hist, C)
                        if req > 0:
                            raise RuntimeError(f"hazard across branch '{I.text}' at '{C.text}' needs {req} more wait states")
                        dist += C.ws
                        if C.mn in ("s_branch", "s_endpgm"):
                            break
                    hist.append(C)
                    j += 1
        txt = []
        for I in out:
            txt.append(I.text if (I.label or I.directive) else "    " + I.text)
        return "\n".join(txt) + "\n"


def interleave(main, fill, ratio=None):
    out = []
    n, m = len(main), len(fill)
    k = 0
    for i, x in enumerate(main):
        out.append(x)
        tgt = (i + 1) * m // n if ratio is None else min(m, int((i + 1) * ratio))
        while k < tgt:
            out.append(fill[k])
            k += 1
    out.extend(fill[k:])
    return out


def spread(slots, items, lo, hi):
    n = len(items)
    span = hi - lo
    for i, x in enumerate(items):
        slots[lo + (i * span) // n].append(x)


def cost(x):
    c = 0
    for line in x.split("\n"):
        mn = line.strip().split(None, 1)[0] if line.strip() else ""
        if not mn:
            continue
        c += 2 if any(mn.startswith(t) for t in TRANS) or mn.startswith("v_permlane") else 1
    return c


def spread_cost(slots, items, lo, hi):
    have = [sum(cost(x) for x in slots[m]) for m in range(lo, hi)]
    total = sum(have) + sum(cost(x) for x in items)
    per = total / (hi - lo)
    k = 0
    acc = 0.0
    for m in range(lo, hi):
        acc += have[m - lo]
        while k < len(items) and (acc + cost(items[k]) / 2 <= per * (m - lo + 1) or m == hi - 1):
            slots[m].append(items[k])
            acc += cost(items[k])
            k += 1


def pool_sched(uses, reads, pool, maxper, gate=None, pre=0):
    order = []
    last = {}
    first = {}
    for m, fs in enumerate(uses):
        for f in fs:
            if f not in first:
                first[f] = m
                order.append(f)
            last[f] = m
    free = list(pool)
    reg = {}
    slots = [[] for _ in uses]
    pro = []
    k = 0
    while k < len(order) and k < pre:
        reg[order[k]] = free.pop(0)
        pro += reads(order[k], reg[order[k]])
        k += 1
    minlead = 10 ** 9
    credit = 0.0
    for m, fs in enumerate(uses):
        for f in fs:
            assert f in reg, f"fragment {f} not loaded before use at {m}"
            if last[f] == m:
                free.append(reg[f])
        credit = min(credit + maxper(m), max(1.0, maxper(m)) + 0.999)
        while k < len(order) and free and credit >= 1 and (gate is None or gate(order[k], m)):
            f = order[k]
            reg[f] = free.pop(0)
            slots[m] += reads(f, reg[f])
            minlead = min(minlead, first[f] - m)
            k += 1
            credit -= 1
    return reg, pro, slots, minlead


def kind_cost(line):
    t = line.strip()
    mn = t.split(None, 1)[0]
    if mn.endswith(":"):
        return 0, 0
    if mn in ("WAITVM", "WAITLG", "S_MEMTIME") or mn.startswith("s_"):
        return 0, 1
    if mn.startswith("ds_read"):
        return 1, 1
    if mn.startswith(("buffer_", "global_")):
        return 2, 2 if "load" in mn else 3
    if mn.startswith("ds_write"):
        if "addtid" in mn: return 3, 1
        if "b128" in mn: return 3, 6
        if "b64" in mn or "write2" in mn: return 3, 3
        return 3, 2
    if any(mn.startswith(x) for x in TRANS) or mn.startswith("v_permlane"):
        return 4, 2
    return 4, 1


def ds_units(l):
    mn = l.strip().split(None, 1)[0]
    if mn.startswith("ds_read"):
        return 2 if ("b128" in mn or "read2" in mn) else 1
    if "addtid" in mn: return 1
    return 6 if "b128" in mn else 3 if ("b64" in mn or "write2" in mn) else 2


def weave(valu, mem, start=0, end=None):
    end = len(valu) if end is None else end
    out = []
    n = len(mem)
    pos = [start + (end - start) * i // max(1, n) for i in range(n)]
    k = 0
    for i in range(len(valu) + 1):
        while k < n and pos[k] <= i:
            out += mem[k] if isinstance(mem[k], list) else [mem[k]]
            k += 1
        if i < len(valu): out.append(valu[i])
    return out


class Item:
    def __init__(self, text, lo=None, hi=None):
        self.text = text
        self.lo, self.hi = lo, hi
        ls = [l for l in text.split("\n") if l.strip()] if isinstance(text, str) else None
        self.set(ls)

    def set(self, ls):
        self.lines = ls
        kc = [kind_cost(l) for l in ls]
        non = [k for k, c in kc if k]
        self.first = non[0] if non else 0
        self.last = non[-1] if non else 0
        self.cost = sum(c for k, c in kc)
        prev = None
        for k, c in kc:
            if prev == 4 and k in (1, 2, 3): self.cost += 2
            if k: prev = k
        self.lead_salu = bool(kc) and kc[0] == (0, 1)
        self.vm = sum((1.5 if "store" in l else 1.0) if "x4" in l else 0.25 for l, (k, c) in zip(ls, kc) if k == 2)
        self.ds = sum(ds_units(l) for l, (k, c) in zip(ls, kc) if k in (1, 3))


class Stream:
    def __init__(self, items, lo, hi, ahead=2, name=""):
        self.items = [x if isinstance(x, Item) else Item(x) for x in items if (isinstance(x, Item) or x.strip())]
        self.lo, self.hi, self.ahead, self.name = lo, hi, ahead, name
        tot = sum(max(1, x.cost) for x in self.items) or 1
        acc = 0
        for x in self.items:
            x.ideal = lo + (hi - lo) * acc / tot
            acc += max(1, x.cost)
        self.k = 0

    def peek(self, m):
        return self.items[self.k] if self.k < len(self.items) else None

    def take(self, m):
        self.k += 1

    def after_main(self, m):
        pass


class FragStream:
    def __init__(self, uses, reads, pool, lead, gate=None, pre=0, ahead=None, name="frag", fixed=None):
        self.uses, self.reads, self.free = uses, reads, list(pool)
        self.order, self.first, self.last = [], {}, {}
        for m, fs in enumerate(uses):
            for f in fs:
                if f not in self.first:
                    self.first[f] = m
                    self.order.append(f)
                self.last[f] = m
        self.reg = {}
        self.lead, self.gate, self.name = lead, gate, name
        self.ahead = ahead if ahead is not None else 10 ** 6
        self.k = 0
        self.pend = []
        self.pro = []
        self.minlead = 10 ** 9
        while self.k < pre:
            f = self.order[self.k]
            self.reg[f] = self.free.pop(0)
            self.pro += reads(f, self.reg[f])
            self.k += 1

    def after_main(self, m):
        for f in self.uses[m]:
            assert f in self.reg and not any(p.f == f for p in self.pend), f"fragment {f} not loaded before {m}"
            if self.last[f] == m:
                self.free.append(self.reg[f])

    def peek(self, m):
        if not self.pend:
            if self.k >= len(self.order) or not self.free: return None
            f = self.order[self.k]
            if self.gate and not self.gate(f, m): return None
            if self.first[f] - self.lead - self.ahead > m: return None
            self.reg[f] = self.free.pop(0)
            self.k += 1
            for t in self.reads(f, self.reg[f]):
                it = Item(t)
                it.f = f
                it.ideal = self.first[f] - self.lead
                it.hi = max(0, self.first[f] - max(2, self.lead // 2))
                self.pend.append(it)
        return self.pend[0]

    def take(self, m):
        it = self.pend.pop(0)
        self.minlead = min(self.minlead, self.first[it.f] - m)


def gap_sched(a, main, streams, verbose="", budget=None, vspace=64, dscap=None):
    n = len(main)
    over = 0
    bfun, carry = budget, 0.0
    now, vfree = 0, -10 ** 9
    text = lambda m: main[m]() if callable(main[m]) else main[m]
    for m in range(n):
        t = text(m)
        a(t)
        mf = [l for l in t.split("\n") if "v_mfma" in l][-1]
        nominal = 6 if "32x32" in mf else 2
        budget = nominal
        if bfun is not None:
            carry += bfun(m)
            budget = int(carry + 1e-9)
            carry -= budget
        for s in streams: s.after_main(m)
        free_salu = True
        if m + 1 < n:
            try:
                nt = text(m + 1)
            except KeyError:
                nt = None
            if nt is not None:
                I = Ins([l for l in nt.split("\n") if "v_mfma" in l][-1].strip())
                regs = {r for r in (I.r | I.w)}
                k0 = len(a.ins)
                a._emit_wait(a._need(a.vmq, regs=regs), a._need(a.lgq, regs=regs))
                if len(a.ins) > k0: free_salu = False
        chosen = []
        lastrank = {}
        used = 0
        dsu = 0
        cap = dscap(m) if dscap else 99
        while True:
            best = None
            for s in streams:
                it = s.peek(m)
                if it is None: continue
                lo = it.lo if it.lo is not None else getattr(s, "lo", 0)
                if m < lo: continue
                hi = it.hi if it.hi is not None else getattr(s, "hi", n) - 1
                forced = m >= hi or m == n - 1
                if not forced:
                    if it.ideal - s.ahead > m: continue
                    if it.vm and now < vfree: continue
                    if it.ds and dsu and dsu + it.ds > cap: continue
                    if id(s) in lastrank and it.first and it.first < lastrank[id(s)]: continue
                    c = it.cost - (1 if (it.lead_salu and free_salu and id(s) not in lastrank) else 0)
                    if used + c > budget and not (used == 0 and c > budget and it.ideal <= m): continue
                key = (0 if forced else 1, it.ideal)
                if best is None or key < best[0]: best = (key, s, it)
            if best is None: break
            _, s, it = best
            c = it.cost
            front = False
            if it.lead_salu and free_salu and id(s) not in lastrank:
                c -= 1; free_salu = False; front = True
            used += c
            dsu += it.ds
            if it.vm: vfree = max(now, vfree) + vspace * it.vm
            rank = max(lastrank.get(id(s), 0), it.first)
            chosen.append((-1 if front else rank, len(chosen), it))
            lastrank[id(s)] = max(rank, it.last)
            s.take(m)
        now += 4 * (max(used, nominal) + 2)
        over += max(0, used - nominal)
        worst = max(locals().get('worst', 0), used)
        chosen.sort(key=lambda x: (x[0] if x[0] >= 0 or x[2].last <= 1 else x[2].first, x[1]))
        for _, _, it in chosen:
            a("\n".join(it.lines))
    for s in streams:
        assert s.peek(n) is None, f"stream {s.name} not drained"
    if verbose:
        print(verbose, "overflow slots", over, "worst gap", worst, [(s.name, s.minlead) for s in streams if hasattr(s, "minlead")])


import subprocess, tempfile, os

def _sizes(lines):
    src = '.amdgcn_target "amdgcn-amd-amdhsa--gfx950"\n.text\n' + "\n".join(lines) + "\n"
    d = tempfile.mkdtemp()
    open(d + "/a.s", "w").write(src)
    r = subprocess.run(["clang", "-x", "assembler", "-target", "amdgcn-amd-amdhsa", "-mcpu=gfx950", "-c", d + "/a.s", "-o", d + "/a.o"],
                       capture_output=True, text=True)
    assert r.returncode == 0, r.stderr[:2000]
    out = subprocess.run(["llvm-objdump", "-d", "--mcpu=gfx950", d + "/a.o"], capture_output=True, text=True).stdout
    res = []
    for l in out.splitlines():
        if "//" in l and l.startswith("\t"):
            enc = l.split("//")[1].split(":")[1].split("<")[0].split()
            res.append((4 * len(enc), l.split()[0]))
    return res

NO_WIDEN = ("v_readfirstlane", "v_permlane", "v_accvgpr", "v_nop", "v_fmac", "v_cmp", "v_cndmask")

def align8(text, nop_cost=4.0):
    m = re.search(r"\.p2align 7\n\.fill (\d+), 4, 0xbf800000\n", text)
    if m:
        assert int(m.group(1)) % 2 == 0
        t2 = align8(text.replace(m.group(0), "L_padmark:\n"), nop_cost)
        return t2.replace("L_padmark:\n", m.group(0))
    lines = text.split("\n")
    mark = next((i for i, l in enumerate(lines) if l.strip() == "L_padmark:"), None)
    idx = [i for i, l in enumerate(lines) if l.strip() and not l.strip().endswith(":") and not l.strip().startswith((".", ";"))]
    sz = _sizes(lines)
    assert len(sz) == len(idx), (len(sz), len(idx))
    n = len(idx)
    INF = 1e18
    best = {(0, 0): (0.0, None)}
    hist = []
    for k in range(n):
        s, mn = sz[k]
        can = s == 4 and mn.endswith("_e32") and not mn.startswith(NO_WIDEN)
        nxt = {}
        reset = mark is not None and k > 0 and idx[k - 1] < mark < idx[k]
        for (par, p8), (c, _) in best.items():
            pe, qe = (0, 0) if reset else (par, p8)
            opts = [(0, s, 0.0, pe, qe)]
            if can: opts.append((1, 8, 0.03, pe, qe))
            if s == 8 and pe == 1: opts.append((2, s, nop_cost, 0, 0))
            for act, size, extra, par2, q8 in opts:
                pen = 1.1 if (size == 8 and par2 == 1 and q8) else 0.0
                st = ((par2 + size // 4) & 1, 1 if size == 8 else 0)
                cc = c + extra + pen
                if st not in nxt or cc < nxt[st][0]:
                    nxt[st] = (cc, ((par, p8), act))
        hist.append(nxt)
        best = nxt
    st = min(best, key=lambda t: best[t][0])
    total = best[st][0]
    acts = [0] * n
    for k in range(n - 1, -1, -1):
        prev, act = hist[k][st][1]
        acts[k] = act
        st = prev
    out = list(lines)
    for k, act in enumerate(acts):
        l = out[idx[k]]
        if act == 1:
            t = l.strip().split(None, 1)
            out[idx[k]] = "    " + t[0] + "_e64 " + t[1]
        elif act == 2:
            out[idx[k]] = "    s_nop 0\n" + l
    print("align8: widened", acts.count(1), "nops", acts.count(2), "residual cost %.0f" % total)
    return "\n".join(out)
```

```python
import sys, struct, math
from dsl import Item, Stream, FragStream, gap_sched, weave, interleave
import gen3, gen4, gen8
from gen4 import *
from gen8 import CBP, CB0
FY, FH, FS = FLG + 0x10000, FLG + 0x100000, FLG + 0x140000
WS_BYTES = 0x1180000
gen4.WS_BYTES = WS_BYTES

class F10(gen8.A8):
    def start(self, a):
        o = self.o
        t4 = o.get("t4", 0)
        a(f"""
        s_load_dwordx16 s[16:31], s[0:1], 0
        s_load_dwordx16 s[32:47], s[0:1], 64
        s_load_dwordx2 s[48:49], s[0:1], 128
        s_cmp_ge_u32 s2, 256
        s_cbranch_scc1 L_end
        s_getpc_b64 s[72:73]
        L_pc:
        v_lshrrev_b32 v1, 6, v0
        s_lshr_b32 {JJ}, s2, 3
        v_and_b32 v0, 63, v0
        s_lshl_b32 s7, {JJ}, 4
        v_lshl_add_u32 v8, v1, 2, v0
        v_readfirstlane_b32 {WAVE}, v1
        v_add_lshl_u32 v8, v8, s7, 7
        v_mov_b32 v{V_CNT}, {CNT}
        v_min_u32 v8, L_code_end-L_pc-4, v8
        v_mov_b64 v[4:5], 0
        v_mov_b64 v[6:7], 0
        s_mov_b64 exec, 15
        global_load_dword v{V_DUM}, v8, s[72:73]
        ds_write_b128 v{V_CNT}, v[4:7]
        ds_write_b128 v{V_CNT}, v[4:7] offset:16
        s_mov_b64 exec, -1
        s_and_b32 {XCD}, s2, 7
        s_lshl_b32 {SID}, {XCD}, 5
        s_add_u32 {SID}, {SID}, {JJ}
        v_lshrrev_b32 v2, 4, v0
        v_and_b32 v3, 15, v0
        s_lshr_b32 s9, {JJ}, {3 if t4 else 2}
        s_and_b32 s7, {XCD}, {3 if t4 else 1}
        s_lshl_b32 s7, s7, {2 if t4 else 3}
        s_mul_i32 s83, s9, 10
        s_add_u32 s9, s9, s7
        s_lshr_b32 s83, s83, {2 if t4 else 3}
        s_mul_i32 s83, s83, {1 if o.get("yrot", 1) else 0}
        s_and_b32 s7, s9, 1
        s_mul_i32 {S_PAIR}, s9, 192
        s_add_u32 {S_SNG}, {S_PAIR}, 128
        s_lshl_b32 s74, s7, 6
        s_add_u32 {S_PAIR}, {S_PAIR}, s74
        s_lshl_b32 s74, s7, 7
        s_sub_u32 {S_SNG}, {S_SNG}, s74
        s_mov_b32 s54, 2621440
        s_mov_b32 s55, 0x20000
        s_mov_b32 s58, 1966080
        s_mov_b32 s59, 0x20000
        s_mov_b32 s70, {WS_BYTES}
        s_mov_b32 s71, 0x20000
        v_and_b32 v5, 31, v0
        v_lshl_add_u32 v30, v5, 1, {S_PAIR}
        v_lshl_add_u32 v31, v5, 1, {S_SNG}
        v_mov_b64 v[240:241], 0
        v_mov_b64 v[242:243], 0
        v_mov_b64 v[244:245], 0
        v_mov_b64 v[246:247], 0
        s_cmp_eq_u32 {WAVE}, 3
        s_cbranch_scc1 L_w3
        v_mul_u32_u24 v7, 1280, v2
        v_lshl_add_u32 v7, v3, 4, v7
        s_lshl_b32 s72, {SID}, 1
        s_add_u32 s72, s72, {WAVE}
        s_mul_i32 s72, s72, 5120
        s_cmp_eq_u32 {WAVE}, 2
        s_cselect_b32 s72, 0x1000000, s72
        s_cselect_b32 s73, {FLG}, s70
        s_mul_i32 s10, {XCD}, 80
        s_mul_i32 s7, {JJ}, 3
        s_add_u32 s10, s10, s7
        s_add_u32 s11, s7, {WAVE}
        s_min_u32 s11, s11, 79
        s_mul_i32 s7, {XCD}, 80
        s_add_u32 s11, s11, s7
        s_mul_i32 s7, s11, 384
        v_lshl_add_u32 v8, v0, 1, s7
        s_lshl_b32 s7, s11, 1
        v_mov_b32 v6, s7
        """)
        for k in list(range(10, 30, 2)) + [40, 42, 44]: a(f"v_mov_b64 {vr(k,2)}, 0")
        a(f"""
        s_waitcnt lgkmcnt(0)
        s_mov_b64 s[52:53], {sp('x')}
        s_add_u32 s68, s48, {self.o.get("wsoff", 0)}
        s_addc_u32 s69, s49, 0
        """)
        for i in range(5):
            a(f"buffer_load_dwordx4 {vr(48+4*i,4)}, v7, {SX}, s72 offen offset:{256*i}{o.get('xnt', '')}")
        a(f"buffer_load_dword v9, off, {SWS}, s73{SC}")
        self.pstart(a)
        a(f"global_load_short_d16_hi v28, v6, {sp('ldt')}\nglobal_load_short_d16_hi v29, v6, {sp('dsk')}")
        for c in range(3):
            for k, n in enumerate(("are", "aim", "bre", "bim", "cre", "cim")):
                a(f"global_load_short_d16_hi v{10+6*c+k}, v8, {sp(n)} offset:{128*c}{o.get('pnt', '')}")
        self.bias(a)
        if o.get("burst", 0):
            a(f"""
            s_cmp_eq_u32 {WAVE}, 2
            s_cbranch_scc0 L_nw2
            s_mov_b32 s62, 1966080
            s_mov_b32 s63, 0x20000
            s_mov_b64 s[60:61], {sp('w2')}
            v_add_u32 v201, {5120-1024}, v7
            v_add_u32 v202, {5120-1024}, v201
            v_add_u32 v203, {5120-1024}, v202
            s_min_u32 s7, s2, 239
            s_mul_i32 s14, s7, 52429
            s_lshr_b32 s14, s14, 18
            s_mul_i32 s15, s14, 5
            s_sub_u32 s15, s7, s15
            s_mul_i32 s84, s14, 40960
            s_lshl_b32 s7, s15, 8
            s_add_u32 s84, s84, s7
            s_mov_b32 m0, {W2S}
            """)
            a.auto = False
            for h in range(2):
                for k in range(4): a(f"buffer_load_dwordx4 v{(7, 201, 202, 203)[k]}, {SW2}, s84 offen offset:{1024*k} lds")
                if h == 0: a(f"s_mov_b32 m0, {W2S+4096}\ns_add_u32 s84, s84, {4*5120}")
            a.auto = True
            a("L_nw2:")
        a("s_barrier")

    def wave3a(self, a):
        o = self.o
        t4 = o.get("t4", 0)
        a(f"""
        v_lshrrev_b32 v4, 3, v0
        v_mul_u32_u24 v40, 3072, v4
        v_lshrrev_b32 v4, 2, v0
        v_mul_u32_u24 v44, 3072, v4
        v_xor_b32 v4, v4, v2
        v_and_b32 v4, 1, v4
        v_lshl_add_u32 v40, v4, 6, v40
        v_and_b32 v4, 3, v0
        v_lshl_add_u32 v40, v4, 4, v40
        v_lshl_add_u32 v44, v4, 4, v44
        v_add_u32 v41, {24576-1024}, v40
        v_add_u32 v42, {24576-1024}, v41
        v_add_u32 v43, {24576-1024}, v42
        v_add_u32 v45, {49152-1024}, v44
        s_and_b32 s7, {JJ}, {7 if t4 else 3}
        s_mul_i32 s80, s7, 5
        s_lshr_b32 s80, s80, {1 if t4 else 0}
        s_lshl_b32 s82, s80, 11
        s_lshl_b32 s7, s83, 1
        s_add_u32 s80, s80, s7
        s_sub_u32 s7, s80, 20
        s_cselect_b32 s80, s80, s7
        s_mul_i32 s80, s80, {32*3072}
        s_mov_b32 s73, {o.get("n0", 4)}
        v_min_u32 v4, 59, v0
        v_mul_u32_u24 v5, {10923 if t4 else 5462}, v4
        v_lshrrev_b32 v5, 16, v5
        v_mul_u32_u24 v5, {3072-(6 if t4 else 12)*128}, v5
        v_lshl_add_u32 v46, v4, 7, v5
        v_add_u32 v47, {5*3072}, v46
        s_mul_i32 s74, {JJ}, {20*3072}
        s_and_b32 s7, {XCD}, {3 if t4 else 1}
        s_mul_i32 s7, s7, {768 if t4 else 1536}
        s_add_u32 s74, s74, s7
        s_add_u32 s75, s74, {10*3072}
        s_waitcnt lgkmcnt(0)
        s_mov_b64 s[52:53], {sp('x')}
        s_add_u32 s68, s48, {self.o.get("wsoff", 0)}
        s_addc_u32 s69, s49, 0
        s_mov_b64 s[56:57], {sp('w1')}
        """)
        self.pstart(a)
        if not o.get("pfearly", 0):
            self.bias(a)
            a("s_barrier")
        if o.get("w1pf", 0):
            for i in (range(0, 4, 2) if t4 else range(4)): a(f"buffer_load_dword v{V_DUM}, v{46+(i&1)}, {SW1}, s{74+(i>>1)} offen{o.get('w1nt', '')}")
        if o.get("pfearly", 0):
            self.bias(a)
            a("s_barrier")
        if o.get("b2pf", 1):
            a(f"v_min_u32 v4, 9, v0\nv_lshlrev_b32 v4, 7, v4\nglobal_load_dword v{V_DUM}, v4, {sp('b2')}")
        for _ in range(o.get("n0", 4)): self.step(a)

    def fstore(self, r, soff):
        m = self.o.get("fl", 0)
        if not m: return f"s_mov_b64 exec, 1\nbuffer_store_dword v{r}, off, {SWS}, {soff}{SC}\ns_mov_b64 exec, -1"
        return f"s_mov_b64 exec, {(1 << m) - 1}\nbuffer_store_dwordx4 {vr(r,4)}, v1, {SWS}, {soff} offen{SC}\ns_mov_b64 exec, -1"

    def bias(self, a):
        a(f"""
        global_load_ushort v{V_B1}, v30, {sp('b1')}
        global_load_ushort v{V_B1+2}, v30, {sp('b1')} offset:64
        global_load_ushort v{V_B1+4}, v31, {sp('b1')}
        """)

    def consts(self, a):
        T = V_T
        t4 = self.o.get("t4", 0)
        a(f"""
        v_and_b32 v5, 31, v0
        s_mov_b32 s62, 1966080
        s_mov_b32 s63, 0x20000
        s_mov_b32 s66, 2621440
        s_mov_b32 s67, 0x20000
        s_mov_b64 s[56:57], {sp('w1')}
        s_mov_b64 s[60:61], {sp('w2')}
        s_mov_b64 s[64:65], {sp('out')}
        """)
        if self.prof:
            for r in self.STAMPS[1:]: a(f"s_mov_b32 s{r}, 0")
        a(f"""
        v_lshlrev_b32 v1, 4, v0
        v_lshrrev_b32 v4, 5, v0
        s_mul_i32 s7, {WAVE}, {TABSZ}
        v_mul_u32_u24 v{V_KR}, {TP}, v5
        v_lshl_add_u32 v6, v4, 4, s7
        v_add_u32 v{V_KR}, v{V_KR}, v6
        s_mul_i32 s7, {WAVE}, {RP}
        v_lshl_add_u32 v6, v4, 4, s7
        v_lshl_add_u32 v{T}, v5, 5, v6
        v_cmp_gt_u32 vcc, 32, v0
        v_lshl_add_u32 v6, v5, 4, s7
        v_lshl_add_u32 v7, v5, 3, s7
        v_add_u32 v8, 1024, v6
        v_add_u32 v30, 1536, v7
        v_cndmask_b32 v{T+1}, v30, v8, vcc
        v_add_u32 v8, 1032, v6
        v_add_u32 v30, 1792, v7
        v_cndmask_b32 v{T+2}, v30, v8, vcc
        v_mov_b32 v8, 0x3f80
        v_cndmask_b32 v{V_ONE}, 0, v8, vcc
        v_mov_b32 v{V_ONE+1}, 0
        v_mov_b64 {vr(V_ONE+2,2)}, 0
        v_sub_u32 v6, 63, v0
        v_lshl_add_u32 v{T+3}, v6, 3, s7
        v_lshl_add_u32 v{T+4}, v6, 4, s7
        v_lshl_add_u32 v{T+5}, v0, 5, s7
        v_lshl_add_u32 v{T+6}, v0, 4, s7
        v_lshl_add_u32 v{T+7}, v0, 3, s7
        s_lshl_b32 s7, {WAVE}, 10
        v_lshl_add_u32 v{V_ES}, v0, 2, s7
        v_add_u32 v{V_ES+1}, {RP}, v{V_ES}
        v_add_u32 v{V_ES+2}, {2*RP}, v{V_ES}
        s_add_u32 s74, s7, {CB0+U_OFF+512}
        v_and_b32 v6, 3, v0
        v_lshrrev_b32 v7, 2, v0
        v_min_u32 v8, 2, v6
        s_cmp_eq_u32 {JJ}, 26
        s_cselect_b32 s7, 1, 2
        v_min_u32 v30, s7, v6
        v_mul_u32_u24 v{V_UG}, {XP}, v7
        v_lshl_add_u32 v{V_UG}, v30, 4, v{V_UG}
        v_mul_u32_u24 v{V_UL}, {CBP}, v8
        v_lshl_add_u32 v30, v7, 4, s74
        v_add_u32 v{V_UL}, v{V_UL}, v30
        v_lshlrev_b32 v{V_FX}, 8, v7
        v_lshl_add_u32 v{V_FX}, v6, 4, v{V_FX}
        v_lshlrev_b32 v{V_FY}, 8, v6
        s_min_u32 s7, {WAVE}, 2
        s_mul_i32 s7, s7, {CBP}
        s_add_u32 s74, s7, {CB0+4096}
        s_add_u32 s7, s7, {CB0+U_OFF}
        v_lshl_add_u32 v{V_Z2}, v0, 3, s7
        v_sub_u32 v8, v3, v4
        v_lshl_add_u32 v8, v8, 2, s74
        v_mul_u32_u24 v{V_Z1}, {CPITCH}, v2
        v_add_u32 v{V_Z1}, v{V_Z1}, v8
        v_and_b32 v8, 1, v2
        v_lshlrev_b32 v6, 3, v6
        v_lshl_add_u32 v6, v8, 5, v6
        v_and_b32 v7, 3, v7
        v_lshl_add_u32 v7, v4, 3, v7
        v_lshl_add_u32 v{V_S}, v7, 6, v6
        v_add_u32 v{V_S}, {SNG}, v{V_S}
        v_lshl_add_u32 v{V_P0}, v7, 7, v6
        v_and_b32 v7, 8, v0
        v_lshl_add_u32 v{V_P0}, v7, 3, v{V_P0}
        v_add_u32 v{V_P0}, {PAIR}, v{V_P0}
        v_xor_b32 v{V_P1}, 64, v{V_P0}
        v_mul_u32_u24 v{V_HF}, 49152, v8
        v_lshl_add_u32 v{V_HF}, v4, 8, v{V_HF}
        v_lshl_add_u32 v{V_HF}, v3, 4, v{V_HF}
        s_cmp_eq_u32 {WAVE}, 3
        s_cselect_b32 s7, 0, {WAVE}
        s_mul_i32 s7, s7, {CBP}
        s_add_u32 s7, s7, {CB0}
        v_lshl_add_u32 v6, v2, 4, s7
        v_lshl_add_u32 v{VCB}, v3, 5, v6
        v_sub_u32 v7, 15, v3
        v_and_b32 v8, 3, v7
        v_and_b32 v7, 12, v7
        v_lshl_add_u32 v6, v7, 1, v6
        v_mul_u32_u24 v{VCA}, {CPITCH}, v8
        v_add_u32 v{VCA}, v{VCA}, v6
        s_lshr_b32 s8, {XCD}, 1
        s_lshl_b32 s12, s8, 3
        s_lshr_b32 s8, {XCD}, {2 if t4 else 1}
        s_lshl_b32 s8, s8, {3 if t4 else 2}
        s_and_b32 s7, {JJ}, {7 if t4 else 3}
        s_add_u32 s8, s8, s7
        s_and_b32 s7, {JJ}, 7
        s_add_u32 s12, s12, s7
        s_and_b32 s13, {XCD}, 1
        s_lshl_b32 s13, s13, 2
        s_lshr_b32 s7, {JJ}, 3
        s_add_u32 s13, s13, s7
        s_add_u32 s11, {"s7" if self.o.get("hrot", 0) else "0"}, {WAVE}
        s_and_b32 s11, s11, 3
        s_lshl_b32 {S_YB}, s8, 2
        s_add_u32 {S_YB}, {S_YB}, {WAVE}
        s_mul_i32 {S_HA}, {S_YB}, 96
        s_mul_i32 {S_YB}, {S_YB}, 40960
        s_add_u32 {S_YE}, {S_YB}, 40960
        s_lshl_b32 s7, s83, 12
        s_add_u32 {S_Y}, {S_YB}, s7
        s_lshl_b32 s86, s8, 12
        s_lshl_b32 s7, {WAVE}, 10
        s_add_u32 s86, s86, s7
        s_add_u32 s86, s86, {FY}
        """)

    def w2_pre(self, a):
        a(f"""
        v_and_b32 v4, 7, v0
        v_lshrrev_b32 v5, 3, v0
        v_mul_u32_u24 v196, {PY}, v4
        v_lshl_add_u32 v196, v5, 4, v196
        v_lshlrev_b32 v197, 9, v5
        v_lshl_add_u32 v197, v4, 4, v197
        v_bfe_u32 v4, v0, 2, 2
        v_and_b32 v5, 3, v0
        v_mul_u32_u24 v198, {PX}, v4
        v_lshl_add_u32 v198, v2, 5, v198
        v_lshl_add_u32 v198, v5, 3, v198
        v_lshrrev_b32 v4, 5, v0
        v_lshlrev_b32 v199, 12, v4
        v_bfe_u32 v4, v0, 2, 3
        v_lshl_add_u32 v199, v4, 8, v199
        v_lshl_add_u32 v199, v5, 3, v199
        v_mul_u32_u24 v200, 1280, v2
        v_lshl_add_u32 v200, v3, 4, v200
        v_add_u32 v201, {5120-1024}, v200
        v_add_u32 v202, {5120-1024}, v201
        v_add_u32 v203, {5120-1024}, v202
        s_min_u32 s7, s2, 239
        s_mul_i32 s14, s7, 52429
        s_lshr_b32 s14, s14, 18
        s_mul_i32 s15, s14, 5
        s_sub_u32 s15, s7, s15
        s_mul_i32 s84, s14, 40960
        s_lshl_b32 s7, s15, 8
        s_add_u32 s84, s84, s7
        s_mul_i32 s15, s15, {8*48}
        s_add_u32 s14, s14, s15
        s_lshl_b32 s14, s14, 10
        s_add_u32 s14, s14, {W2F}
        s_lshr_b32 s15, {SID}, 2
        s_mul_i32 s15, s15, 40960
        s_and_b32 s7, {SID}, 3
        s_lshl_b32 s7, s7, 7
        s_add_u32 s15, s15, s7
        s_lshr_b32 s81, {SID}, 4
        s_lshl_b32 s81, s81, 8
        s_and_b32 s7, {SID}, 15
        s_lshl_b32 s7, s7, 2
        s_add_u32 s81, s81, s7
        s_add_u32 s85, s81, {FX}
        s_lshl_b32 s81, {SID}, 8
        s_add_u32 s81, s81, {FY}
        s_mul_i32 s79, {SID}, {XP}
        s_add_u32 s79, s79, {XNT}
        v_readfirstlane_b32 s7, v9
        s_mul_i32 s7, s7, 1664525
        s_add_u32 {TAG}, s7, 1013904223
        s_mov_b32 s51, {TAG}
        v_mov_b32 v204, 1
        v_mov_b32 v205, {TAG}
        v_mov_b32 v206, {TAG}
        """)

    def kgen4(self, a):
        o = self.o
        VF, UF, CH = self.VF, self.UF, 112
        W1, W8, W256, T, C0 = 176, 178, 180, 182, 194
        DT, DTL = 30, 31
        L2E = 1.4426950408889634
        f32 = lambda x: struct.unpack("<f", struct.pack("<f", x))[0]
        I2P = 1 / (2 * math.pi)
        head = (f"""
        s_mov_b32 s72, {fbits(f32(L2E))}
        s_mov_b32 s73, {fbits(L2E-f32(L2E))}
        s_mov_b32 s76, {fbits(math.log(2))}
        v_mul_f32 v{T}, s72, v28
        v_fma_f32 v{T+1}, v28, s72, -v{T}
        v_fma_f32 v{T+1}, v28, s73, v{T+1}
        v_exp_f32 v{T}, v{T}
        v_mul_f32 v{T+1}, s76, v{T+1}
        v_cmp_eq_u32 vcc, 0, v0
        v_fma_f32 v{T}, v{T}, v{T+1}, v{T}
        v_cvt_pk_bf16_f32 v{DT}, v{T}, v{T}
        v_lshlrev_b32 v{DT}, 16, v{DT}
        v_cndmask_b32 v29, 0, v29, vcc
        v_mul_f32 v{DTL}, s72, v{DT}
        s_mov_b32 s74, {fbits(f32(I2P))}
        s_mov_b32 s75, {fbits(I2P-f32(I2P))}
        s_mov_b32 s77, {fbits(256.0)}
        s_mov_b32 s78, {fbits(8.0)}
        """)
        pass
        yl = self.yloads()[:o.get("ny", 8)]
        m0tab = f"s_mul_i32 m0, {WAVE}, {TABSZ}"
        P1 = [self.spin("y", 0, True)] + [f"ds_read_b128 {ar(4*I,4)}, v196 offset:{YT+128*I}" for I in range(10)]
        for I in range(10):
            P1.append(f"buffer_store_dwordx4 {ar(4*I,4)}, v197, {SWS}, s15 offen{SC} @yst" + ("\ns_add_u32 s15, s15, 4096" if I < 9 else ""))
        P1 += [self.st("p.yst"), self.spin("x", 8, True)]
        for I in range(10):
            P1 += [f"ds_read_b64_tr_b16 {ar(40+4*I,2)}, v198 offset:{XT+128*I}", f"ds_read_b64_tr_b16 {ar(42+4*I,2)}, v198 offset:{XT+128*I+4*PX}"]
        P1.append(f"s_mov_b64 exec, 1\nds_write_b64 v{V_CNT}, v[204:205] offset:16\ns_mov_b64 exec, -1")
        w2d = [f"s_mov_b32 m0, {W2S}"]
        for h in range(2):
            w2d += [f"buffer_load_dwordx4 v{200+k}, {SW2}, s84 offen offset:{1024*k}{o.get('wnt', '')} lds @w2dma" for k in range(4)]
            if h == 0: w2d.append(f"s_mov_b32 m0, {W2S+4096}\ns_add_u32 s84, s84, {4*5120}")
        xst = []
        for I in range(10):
            xst.append(("s_add_u32 s79, s79, 4096\n" if I in (4, 8) else "") + f"buffer_store_dwordx4 {ar(40+4*I,4)}, v1, {SWS}, s79 offen offset:{1024*(I%4)}{SC} @xst")
        w2r = ["WAITVM w2dma"]
        for db in range(8):
            w2r += [f"ds_read_b64_tr_b16 {ar(80+4*db,2)}, v199 offset:{W2S+32*db}", f"ds_read_b64_tr_b16 {ar(82+4*db,2)}, v199 offset:{W2S+32*db+2048}"]
        w2s = [f"buffer_store_dwordx4 {ar(80+4*db,4)}, v1, {SWS}, s14 offen{SC} @xst" + (f"\ns_add_u32 s14, s14, {48*1024}" if db < 7 else "") for db in range(8)]
        fy = ["WAITVM yst", self.fstore(206, "s81"), self.st("p.fy")]
        fx = [f"s_mov_b64 exec, 1\nbuffer_store_dword v205, off, {SWS}, s85{SC}\ns_mov_b64 exec, -1", ""]
        fypos = o.get("fypos", 1)
        p1pos = o.get("p1pos", 1)
        burst = o.get("burst", 0)
        if burst:
            P1 = P1[:22] + ["s_waitcnt vmcnt(10)"] + w2r[1:] + w2s + P1[22:-1] + (xst + P1[-1:] if burst == 1 else P1[-1:] + xst)
            if burst == 3: P1.append(f"s_mov_b64 exec, 1\nds_write_b64 v{V_CNT}, v[204:205] offset:24\ns_mov_b64 exec, -1")
            w2d, w2r, w2s, xst = [], [], [], []
        w2pos, fxpos = o.get("w2pos", 0), o.get("fxpos", 0)
        if w2pos == 1: fy = fy + w2d + [m0tab]
        fx = ["WAITVM xst"] + fx + [self.st("p.fx")]
        if p1pos == 0:
            self.only2(a, "p0", P1 + ([] if burst else ["s_waitcnt vmcnt(10)"]), ["s_waitcnt vmcnt(0)"])
            P1 = []
        a(head)
        for c in range(3):
            p = 10 + 6 * c
            setup = [f"v_mul_f32 v{T}, v{p}, v{DTL}", f"v_mul_f32 v{T+1}, v{p+1}, v{DT}",
                     f"v_mul_f32 v{T+2}, s74, v{T+1}", f"v_fma_f32 v{T+3}, v{T+1}, s74, -v{T+2}",
                     f"v_fma_f32 v{T+3}, v{T+1}, s75, v{T+3}",
                     f"v_mul_f32 v{T+4}, s78, v{T}", f"v_mul_f32 v{T+5}, s78, v{T+2}",
                     f"v_mul_f32 v{T+6}, s77, v{T}", f"v_mul_f32 v{T+7}, s77, v{T+2}",
                     f"v_exp_f32 v{T+4}, v{T+4}", f"v_fract_f32 v{T+5}, v{T+5}",
                     f"v_exp_f32 v{T+6}, v{T+6}", f"v_fract_f32 v{T+7}, v{T+7}",
                     f"v_exp_f32 v{T+8}, v{T}", f"v_fract_f32 v{T+9}, v{T+2}",
                     f"v_fma_f32 v{T+5}, v{T+3}, s78, v{T+5}", f"v_fma_f32 v{T+7}, v{T+3}, s77, v{T+7}",
                     f"v_add_f32 v{T+9}, v{T+3}, v{T+9}",
                     f"v_cos_f32 v{W8}, v{T+5}", f"v_sin_f32 v{W8+1}, v{T+5}",
                     f"v_cos_f32 v{W256}, v{T+7}", f"v_sin_f32 v{W256+1}, v{T+7}",
                     f"v_cos_f32 v{W1}, v{T+9}", f"v_sin_f32 v{W1+1}, v{T+9}"]
            setup += self.cmul(T + 10, p + 4, p + 2)
            setup += [f"v_pk_mul_f32 {vr(W8,2)}, {vr(W8,2)}, {vr(T+4,2)} op_sel_hi:[1,0]",
                      f"v_pk_mul_f32 {vr(W256,2)}, {vr(W256,2)}, {vr(T+6,2)} op_sel_hi:[1,0]",
                      f"v_pk_mul_f32 {vr(W1,2)}, {vr(W1,2)}, {vr(T+8,2)} op_sel_hi:[1,0]",
                      f"v_pk_mul_f32 {vr(C0,2)}, {vr(T+10,2)}, {vr(DT,2)} op_sel_hi:[1,0]"]
            Vv = lambda j: W8 if j == 1 else CH + 2 * j
            vchain = []
            for j in range(2, 32): vchain += self.cmul(Vv(j), Vv(j - 1), W8)
            vcvt = [f"v_mov_b32 v{CH}, 0x3f80"] + [f"v_cvt_pk_bf16_f32 v{CH+2*j}, v{Vv(j)}, v{Vv(j)+1}" for j in range(1, 32)]
            vwr = [f"ds_write_addtid_b32 v{CH+2*j} offset:{TP*j}" for j in range(32)]
            Ur = lambda i: C0 if i == 0 else CH + 2 * i
            uchain = []
            for i in range(1, 8): uchain += self.cmul(Ur(i), Ur(i - 1), W1)
            for i, s in ((8, 0), (9, 2), (10, 4), (11, 6), (12, 8), (13, 10), (14, 12), (15, 13), (16, 14), (17, 16), (18, 17), (19, 18), (20, 19)):
                uchain += self.cmul(Ur(i), Ur(s), W256)
            ucvt = [f"v_cvt_pk_bf16_f32 v{Ur(i)}, v{Ur(i)}, -v{Ur(i)+1}" for i in range(21)]
            uwr = [f"ds_write_addtid_b32 v{Ur(i)} offset:{TP*(i if i < 20 else 23)}" for i in range(21)]
            E = lambda L: [a(x) for x in L]
            ypos = o.get("ypos", 2)
            assert ypos == 2 or fxpos in (2, 3)
            chk = lambda: (E([self.poll_check("y0", 2, False, V_FY, "s86"), self.st("ypoll")]), self.only2(a, "fx", fx) if fxpos == 2 else None)
            ng = {0: 5, 1: 4, 2: 2}[ypos]
            grp = [yl[len(yl) * k // ng:len(yl) * (k + 1) // ng] for k in range(ng)] if c == 2 else [[]] * 5
            grp = [[]] * (5 - ng) + grp
            E(setup[:6])
            if c == 0: a(self.st('kg.p'))
            if c: E(self.kreads(UF))
            if c == 1 and fypos == 1: self.only2(a, "fy", fy + xst[:5])
            if c == 2 and ypos == 1: E([self.poll_load(2, False, V_FY, "s86")])
            E(setup[6:])
            if c == 2 and fxpos == 0: self.only2(a, "fx", fx)
            if c == 2 and ypos == 0: chk()
            E(grp[0] + vchain)
            if c == 0:
                E(vcvt)
                a(self.st('kg.v'))
                self.only2(a, "p1", P1 + (["s_waitcnt vmcnt(10)"] if p1pos and not burst else []) + (w2d if w2pos == 0 else []) + (fy if fypos == 3 else []),
                           [self.spin("f", 16, False)] + (["s_waitcnt vmcnt(0)"] if p1pos else []))
                a(self.st('kg.f'))
                E([m0tab] + vwr)
            else:
                E(vcvt[:18])
                if c == 1 and not burst: self.only2(a, "x2", (fy + xst if fypos == 2 else xst[5:]) + w2r)
                if c == 1 and fxpos == 3: self.only2(a, "fx", fx)
                if c == 2 and fxpos == 1: self.only2(a, "fx", fx)
                if c == 2 and ypos == 2: E([self.poll_load(2, False, V_FY, "s86")])
                if c == 2 and ypos == 1: chk()
                E(grp[1])
                mf = self.kmf(c == 1)
                for k in range(8): E([mf[k]] + vwr[4 * k:4 * k + 4] + vcvt[18 + 2 * k:20 + 2 * k])
            E(uchain[:8] + self.kreads(VF) + grp[2])
            if c == 1 and not burst: self.only2(a, "w2", w2s)
            if c == 0 and fypos == 4: self.only2(a, "fy", fy)
            E(uchain[8:] + ucvt)
            if c == 1 and ypos == 0: E([self.poll_load(2, False, V_FY, "s86")])
            if c == 2 and ypos == 2: chk()
            E(grp[3] + uwr + grp[4])
            if c == 0 and fypos == 0: self.only2(a, "fy", fy + xst[:5])
            a(self.st(f"kg{c}"))
        for x in self.kreads(UF): a(x)
        a("s_waitcnt lgkmcnt(0)")

    def wave3b(self, a):
        o = self.o
        nl = o.get("nl", 3)
        if o.get("pfwait", 0): a("s_waitcnt vmcnt(0)\n" + self.st("w3.pf"))
        if o.get("hold", 0): a(self.spin("3", 24 if o.get("burst", 0) == 3 else 16, False))
        a(f"L_dma:\ns_waitcnt vmcnt({o.get('dcap', 24)})")
        self.step(a)
        a(f"s_add_u32 s73, s73, 1\ns_cmp_lt_u32 s73, {20-nl}\ns_cbranch_scc1 L_dma")
        if not o.get("hold", 0): a(self.spin("3", 16, False))
        a(self.poll_load(4, False, V_FY, "s86"))
        for _ in range(nl): self.step(a)
        a(self.st("w3.dma"))
        a(self.poll_check("y3", 4, False, V_FY, "s86"))
        a(self.st("ypoll"))
        ny = o.get("ny", 8)
        for x in self.yloads()[:ny]: a(x)
        a(f"s_waitcnt vmcnt({ny})")

    def flag_scalars(self):
        return [f"s_lshl_b32 s81, s8, 4", f"s_add_u32 s81, s81, s9", f"s_lshl_b32 s81, s81, 2", f"s_add_u32 s81, s81, {WAVE}",
               f"s_lshl_b32 s81, s81, 8", f"s_add_u32 s81, s81, {FH}",
               f"s_lshr_b32 s86, s12, 1", f"s_lshl_b32 s86, s86, 2", f"s_add_u32 s86, s86, {WAVE}", f"s_lshl_b32 s86, s86, 12",
               f"s_and_b32 s80, s12, 1", f"s_lshl_b32 s80, s80, 9", f"s_add_u32 s86, s86, s80", f"s_add_u32 s86, s86, {FH}",
               f"s_lshl_b32 s82, s12, 4", f"s_add_u32 s82, s82, {WAVE}", f"s_mul_i32 s82, s82, {12*1024}", f"s_add_u32 s82, s82, {HF}"]

    def late_consts(self):
        return super().late_consts() + [f"v_lshlrev_b32 v{VFH}, 6, v{VFH}"]

    def late_consts2(self):
        L = super().late_consts2()
        t = 233
        new = [f"s_mul_i32 s73, {WAVE}, 27", f"s_and_b32 s73, s73, 0x7c", f"v_and_b32 v{t}, 31, v0", f"v_add_u32 v{t}, s73, v{t}", f"v_min_u32 v{t}, 107, v{t}",
               f"v_lshlrev_b32 v{VFS}, 8, v{t}"]
        return L[:5] + new + L[10:]

    def slow_paths(self, a):
        for name, dst, wide, vaddr, soff in self.slow:
            a(f"""
            L_slow_{name}:
            s_mov_b32 s87, 0
            L_spin_{name}:
            s_sleep {self.o.get("slw", 12) if name[0] == "x" else self.o.get("sl", 2)}
            {self.poll_load(dst, wide, vaddr, soff)}
            s_add_u32 s87, s87, 1
            s_cmp_gt_u32 s87, 0x40000
            s_cbranch_scc1 L_ok_{name}
            s_waitcnt vmcnt(0)
            {self.poll_cmp(dst, wide)}
            s_cbranch_scc1 L_spin_{name}
            s_branch L_ok_{name}
            """)

    def conv(self, a, role):
        o = self.o
        seq = []
        if role == 0:
            blocks = [4, 5, 6, 7, 1]
            for r in range(8):
                for c in range(8):
                    if c == 4: seq += [(0, r, 1, 0), (0, r, 0, 1)]
                    for e in range(7, -1, -1):
                        if e + c in (4, 5, 6, 7): seq.append((0, r, e, c))
            acc = lambda ch, b: 2 + 4 * blocks.index(b)
        else:
            for r in range(8):
                for ch in range(3):
                    for c in range(4):
                        for e in range(3, -1, -1):
                            if e + c in (0, 2, 3): seq.append((ch, r, e, c))
            acc = lambda ch, b: 2 + 12 * ch + 4 * (2, None, 0, 1)[b]
        uses = [[("B", ch, r, c), ("A", ch, r, e)] for ch, r, e, c in seq]
        def reads(f, reg):
            k, ch, r, i = f
            if k == "B":
                return [f"ds_read_b128 {vr(reg,4)}, v{VCB} offset:{ch*CBP+U_OFF+480+512*i-64*r}"]
            off = ch * CBP + 4032 - 512 * i - 64 * r
            return [f"ds_read_b64 {vr(reg,2)}, v{VCA} offset:{off}", f"ds_read_b64 {vr(reg+2,2)}, v{VCA} offset:{off+8}"]
        pool = list(range(88, 128, 4)) + list(range(48, 88, 4))
        fr = FragStream(uses, reads, pool, lead=12, pre=o.get("cvpre", 9), name="cv")
        for x in fr.pro + self.tail: a(x)
        a(self.st("g1.tail"))
        n = len(seq)
        seen = set()
        main = []
        for ch, r, e, c in seq:
            d = vr(acc(ch, e + c), 4)
            cin = d if (ch, e + c) in seen else "0"
            seen.add((ch, e + c))
            main.append(lambda d=d, cin=cin, A=("A", ch, r, e), B=("B", ch, r, c): f"v_mfma_f32_16x16x32_bf16 {d}, {vr(fr.reg[A],4)}, {vr(fr.reg[B],4)}, {cin}")
        sc_ = lambda x: x * n // 224
        mf, mp, mc = sc_(o.get("mf", 60)), sc_(o.get("mp", 125)), sc_(o.get("mc", 165))
        S = [fr]
        S.append(Stream(self.w2rest, 4, sc_(o.get("wend", 166)), name="w2f"))
        sal = [f"v_mov_b32 v232, {TAG}"] + self.flag_scalars()
        S.append(Stream(sal, 1, mf - 2, name="sal"))
        S.append(Stream(["WAITVM hst\n" + self.fstore(232, "s81") + "\n" + self.st("cv.fh")], mf, mf + 1))
        side = self.late_consts() + [f"v_accvgpr_write_b32 a{k}, 0" for k in (241, 243, 245, 247, 249, 250, 251)]
        side += [f"global_load_ushort a{240+2*jb}, v{VB2}, {sp('b2')} offset:{32*jb}" for jb in range(5)]
        side += [f"buffer_load_dwordx4 v{VX+i}, {SX}, s14 offen lds @xdma\ns_add_u32 m0, m0, 1024" for i in range(2)]
        side += [f"s_mov_b64 exec, 0xffffffff\nbuffer_load_dwordx4 v{VX+2}, {SX}, s14 offen lds @xdma\ns_mov_b64 exec, -1"]
        if o.get("opf", 0):
            side += [f"v_lshrrev_b32 v233, 1, v0", f"v_and_b32 v233, 15, v233", f"v_mul_u32_u24 v233, 1280, v233", f"v_and_b32 v234, 1, v0", f"v_mul_u32_u24 v234, 156, v234",
                     f"v_add_u32 v233, v233, v234", f"buffer_load_dword v231, v233, {SOUT}, s14 offen"]
        S.append(Stream(side, 4, mp - 2, name="side"))
        S.append(Stream([self.poll_load(231, False, VFH, "s86")], mp, mp + 1))
        nh = o.get("nh", 11)
        hl = self.hloads(0) + self.hloads(1)
        hpf = []
        if o.get("hpf", 0):
            side2 = [f"v_min_u32 v233, 47, v0", f"v_cmp_lt_u32 vcc, 23, v233", f"v_lshlrev_b32 v234, 7, v233", f"s_add_u32 s73, s11, 3", f"s_and_b32 s73, s73, 3",
                     f"s_mul_i32 s73, s73, {48*1024}", f"s_mul_i32 s80, s11, {48*1024}", f"s_sub_u32 s80, s80, 3072", f"v_mov_b32 v235, s73", f"v_mov_b32 v233, s80",
                     f"v_cndmask_b32 v235, v235, v233, vcc", f"v_add_u32 v234, v234, v235", f"s_lshr_b32 s73, {JJ}, 3", f"s_mul_i32 s73, s73, 3072", f"s_add_u32 s83, s82, s73"]
            S.append(Stream(side2, mp, mc - 1, name="side2"))
            hpf = [f"buffer_load_dword v231, v234, {SWS}, s83 offen{SC}"]
        k = o.get("hpfpos", 7)
        S.append(Stream([self.poll_check(f"h{role}", 231, False, VFH, "s86") + "\n" + self.st("hpoll")] + hl[:min(k, nh)] + hpf + hl[min(k, nh):nh], mc, n, ahead=0, name="h"))
        gap_sched(a, main, S, f"conv{role}", vspace=o.get("vs", 64), budget=lambda m: o.get(f"cbud{role}", (2, 2.75)[role]))
        a(self.st("cv.main"))
        order = [4, 0, 1, 2, 3] if role == 0 else list(range(9))
        for q in order:
            a(f"v_cvt_pk_bf16_f32 v{96+2*q}, v{2+4*q}, v{3+4*q}\nv_cvt_pk_bf16_f32 v{97+2*q}, v{4+4*q}, v{5+4*q}")
        for q in order:
            a(f"ds_write_b64 v{VCW}, {vr(96+2*q,2)} offset:{512*q}")
        a(hl[nh])
        if role == 0:
            a(f"s_lshl_b32 s73, {JJ}, 2\ns_add_u32 s73, s73, {WAVE}\ns_mul_i32 s7, {WAVE}, {SP}\ns_add_u32 s7, s7, {S_ROW}\ns_cmp_eq_u32 s73, 106\ns_cselect_b32 s7, {WS_BYTES}, s7")
            for q in range(3): a(f"ds_read_b128 {vr(96+4*q,4)}, v{VPW} offset:{1024*q}")
            a(hl[nh + 1])
            for q in range(2): a(f"buffer_store_dwordx4 {vr(96+4*q,4)}, v1, {SWS}, s7 offen offset:{2048+1024*q}{SC} @sst")
            a(f"s_waitcnt lgkmcnt(0)\ns_mov_b64 exec, 0xffffffff\nbuffer_store_dwordx4 v[104:107], v1, {SWS}, s7 offen offset:512{SC} @sst\ns_mov_b64 exec, -1")
        else:
            for ch in range(3):
                a(f"ds_read_b128 {vr(96+8*ch,4)}, v{VPW} offset:{1536*ch}\nds_read_b128 {vr(100+8*ch,4)}, v{VPW} offset:{1536*ch+1024}")
            a(hl[nh + 1])
            a(f"s_add_u32 s7, {S_ROW}, {SP}\ns_add_u32 s73, {S_ROW}, {2*SP}\ns_cmp_eq_u32 {JJ}, 26\ns_cselect_b32 s73, {WS_BYTES}, s73")
            sr = [S_ROW, "s7", "s73"]
            for ch in range(3): a(f"buffer_store_dwordx4 {vr(96+8*ch,4)}, v1, {SWS}, {sr[ch]} offen offset:1024{SC} @sst")
            a("s_waitcnt lgkmcnt(0)\ns_mov_b64 exec, 0xffffffff")
            for ch in range(3): a(f"buffer_store_dwordx4 {vr(100+8*ch,4)}, v1, {SWS}, {sr[ch]} offen{SC} @sst")
            a("s_mov_b64 exec, -1")
        assert nh + 2 >= 13
        self.hrest = hl[nh + 2:]
        a(self.st("cv.out"))

    def gemm2f(self, a):
        o = self.o
        AC = (2, 22)
        main, idx = [], {}
        for rho in range(4):
            for jb in range(5):
                d = vr(AC[rho & 1] + 4 * jb, 4)
                idx[(rho, jb)] = len(main)
                if rho == 0: main.append(f"v_mfma_f32_16x16x32_bf16 {d}, {ar(240+2*jb,4)}, {vr(V_ONE,4)}, 0")
                for kk in range(12):
                    main.append(f"v_mfma_f32_16x16x32_bf16 {d}, {ar(self.w2reg(jb*12+kk),4)}, {vr(self.breg(rho,kk),4)}, {d}")
        for rho in (1, 2, 3): main[idx[(rho, 0)]] = self.st(f"g2.r{rho}") + "\n" + main[idx[(rho, 0)]]
        main[13] = self.st("g2.c1") + "\n" + main[13]
        for gi in (78, 100, 138, 168): main[gi] = self.st(f'q{gi}') + '\n' + main[gi]
        idx[(4, 0)] = n = len(main)
        nxt = lambda rho, jb: idx[(rho, jb + 1)] if jb < 4 else idx[(rho + 1, 0)]
        a(f"s_mul_i32 s7, {WAVE}, 10240\ns_add_u32 m0, s7, 32768")
        ring = []
        for rho in range(3):
            par = rho & 1
            def wr(jb):
                g = nxt(rho, jb) + 3
                return [Item(f"ds_write_addtid_b32 v{AC[par]+4*jb+k} offset:{RING-32768+5120*par+1024*jb+256*k} @pw", lo=g, hi=g + 3) for k in range(4)]
            def rd(jb, g):
                return [Item(f"ds_read2st64_b32 {vr(AC[par^1]+4*jb+2*k,2)}, v{VPR} offset0:{20*par+4*jb+2*k} offset1:{20*par+4*jb+2*k+1}", lo=g, hi=g + 6) for k in range(2)]
            b1, b2 = nxt(rho, 2) + 10, nxt(rho, 4) + 10
            ring += wr(0) + wr(1) + wr(2) + [Item("WAITLG pw\ns_barrier", lo=b1, hi=b1)] + rd(0, b1 + 1) + rd(1, b1 + 1) + rd(2, b1 + 1)
            ring += wr(3) + wr(4) + [Item("WAITLG pw\ns_barrier", lo=b2, hi=b2)] + rd(3, b2 + 1) + rd(4, b2 + 1)
        rs = Stream(ring, 0, n, ahead=0, name="ring")
        for it in rs.items: it.ideal = it.lo - 5
        S = [rs]
        hlead = o.get("hlead", 14)
        hh = [Item(x, hi=idx[(1, 0)] - hlead) for x in self.hrest] + [Item(x, hi=idx[(2, 0)] - hlead) for x in self.hloads(2)]
        hh += [Item(x, lo=idx[(1, 0)], hi=idx[(3, 0)] - hlead) for x in self.hloads(3)]
        S.append(Stream(hh, 0, o.get("hend", 150), ahead=30, name="h"))
        ms = o.get("ms", 62)
        S.append(Stream(self.late_consts2(), 0, 44, name="lc2"))
        sal = [f"s_lshl_b32 s81, {SID}, 2", f"s_add_u32 s81, s81, {WAVE}", f"s_lshl_b32 s81, s81, 8", f"s_add_u32 s81, s81, {FS}",
               f"s_lshl_b32 s86, s13, 15", f"s_add_u32 s86, s86, {FS}",
               f"s_lshl_b32 s76, s13, 2", f"s_add_u32 s76, s76, {WAVE}", f"s_mul_i32 s76, s76, {20*SP}",
               f"s_lshl_b32 s80, s12, 7", f"s_add_u32 s76, s76, s80", f"s_add_u32 s76, s76, {ST}",
               f"s_add_u32 s77, s76, {8*SP}", f"s_add_u32 s78, s76, {16*SP}", f"s_mov_b32 s74, {fbits(-1.4426950408889634)}"]
        S.append(Stream(sal, 0, ms - 2, name="sal"))
        S.append(Stream(["WAITVM sst\n" + self.fstore(232, "s81") + "\n" + self.st("g2.fs")], ms, ms + 1))
        XR, XF, SR, SD = 96, 176, 106, 116
        S.append(Stream(["WAITVM xdma"] + [f"ds_read_b64 {vr(XR+2*jb,2)}, v{VXD} offset:{32*jb}" for jb in range(5)], idx[(1, 3)], idx[(2, 0)], name="xr"))
        xu = []
        for q in range(10): xu += [f"v_lshlrev_b32 v{XF+2*q}, 16, v{XR+q}", f"v_and_b32 v{XF+2*q+1}, 0xffff0000, v{XR+q}"]
        S.append(Stream(xu, idx[(2, 1)], idx[(3, 0)], ahead=0, name="xu"))
        mp, mc = o.get("g2p", 134), o.get("g2c", 170)
        assert mp >= idx[(2, 0)]
        S.append(Stream([self.poll_load(196, False, VFS, "s86")], mp, mp + 1))
        S.append(Stream([self.poll_check("s", 196, False, VFS, "s86") + "\n" + self.st("spoll"),
                         f"buffer_load_dwordx4 {vr(SD,4)}, v{VSG}, {SWS}, s76 offen{SC}",
                         f"buffer_load_dwordx4 {vr(SD+4,4)}, v{VSG}, {SWS}, s77 offen{SC}",
                         f"s_mov_b64 exec, 0xffffffff\nbuffer_load_dwordx4 {vr(SD+8,4)}, v{VSG}, {SWS}, s78 offen{SC} @sld\ns_mov_b64 exec, -1"], mc, mc + 10, ahead=0))
        Z = AC[1]
        def silu(jb):
            T = 200
            z = Z + 4 * jb
            L = [f"v_mul_f32 v{T+k}, s74, v{z+k}" for k in range(4)] + [f"v_exp_f32 v{T+k}, v{T+k}" for k in range(4)]
            L += [f"v_add_f32 v{T+k}, 1.0, v{T+k}" for k in range(4)] + [f"v_rcp_f32 v{T+k}, v{T+k}" for k in range(4)]
            L += [f"v_mul_f32 v{z+k}, v{z+k}, v{T+k}" for k in range(4)]
            return L
        def comb(jb):
            L = []
            for q in (2 * jb, 2 * jb + 1):
                L += [f"v_lshlrev_b32 v204, 16, v{SR+q}", f"v_and_b32 v205, 0xffff0000, v{SR+q}",
                      f"v_pk_fma_f32 v[204:205], v[204:205], {vr(Z+2*q,2)}, {vr(XF+2*q,2)}", f"v_cvt_pk_bf16_f32 v{XR+q}, v204, v205"]
            return L
        sw = [f"ds_write_b64 v{VSL}, {vr(SD+2*i,2)} offset:{256*(i>>1)+8*(i&1)}" for i in range(4)]
        sw += [f"WAITVM sld\ns_mov_b64 exec, 0xffffffff\nds_write_b128 v{VSL}, {vr(SD+8,4)} offset:512\ns_mov_b64 exec, -1"]
        srd = [f"ds_read_b64_tr_b16 {vr(SR+2*jb,2)}, v{VSR} offset:{512*jb}" for jb in range(5)]
        spos = o.get("spos", 226)
        nsil = 3
        if spos < n:
            S.append(Stream(sw + [Item("s_waitcnt lgkmcnt(0)\ns_barrier", lo=spos + 12)] + srd, spos, n, ahead=3, name="sw"))
            nsil = o.get("nsil", 2)
        sl = []
        for jb in range(nsil):
            L = [Item(x) for x in silu(jb)]
            L[0].lo = nxt(3, jb) + 2
            sl += L
        S.append(Stream(sl, nxt(3, 0) + 2, n, ahead=12, name="silu"))
        gap_sched(a, main, S, "g2", vspace=o.get("vs", 64))
        a(self.st("g2.mfma"))
        def silu_pk(jb):
            T = 200
            z = Z + 4 * jb
            L = [f"v_pk_mul_f32 {vr(T+k,2)}, {vr(z+k,2)}, v[206:207] op_sel_hi:[1,0]" for k in (0, 2)] + [f"v_exp_f32 v{T+k}, v{T+k}" for k in range(4)]
            L += [f"v_pk_add_f32 {vr(T+k,2)}, {vr(T+k,2)}, v[206:207] op_sel:[0,1]" for k in (0, 2)] + [f"v_rcp_f32 v{T+k}, v{T+k}" for k in range(4)]
            L += [f"v_pk_mul_f32 {vr(z+k,2)}, {vr(z+k,2)}, {vr(T+k,2)}" for k in (0, 2)]
            return L
        ow = lambda jb: f"ds_write_b64 v{VXD}, {vr(XR+2*jb,2)} offset:{32*jb}"
        a("v_mov_b32 v206, s74\nv_mov_b32 v207, 1.0")
        if spos >= n:
            seq = sw + silu_pk(3) + ["s_waitcnt lgkmcnt(0)\ns_barrier"] + srd + silu_pk(4)
            seq += comb(0) + comb(1) + comb(2) + [ow(0), ow(1), ow(2)] + comb(3) + comb(4) + [ow(3), ow(4)]
        else:
            seq = []
            for jb in range(nsil, 4): seq += silu_pk(jb)
            seq += comb(0) + comb(1) + comb(2) + comb(3) + [ow(0), ow(1), ow(2), ow(3)] + silu_pk(4) + comb(4) + [ow(4)]
        for x in seq: a(x)
        a("s_nop 3")
        for i in range(3): a(f"ds_read_b128 {vr(SD+4*i,4)}, v{VXL} offset:{1024*i}")
        osc = o.get("osc", SC)
        for i in range(2): a(f"buffer_store_dwordx4 {vr(SD+4*i,4)}, v{VX+i}, {SOUT}, s14 offen{osc}")
        a(f"s_waitcnt lgkmcnt(0)\ns_mov_b64 exec, 0xffffffff\nbuffer_store_dwordx4 {vr(SD+8,4)}, v{VX+2}, {SOUT}, s14 offen{osc}")
        a(self.st("g2.done"))

if __name__ == "__main__":
    opt = parse(sys.argv[2:])
    for k_, v_ in dict(burst=3, fypos=4, fxpos=3, mxp=40, mx=64).items(): opt.setdefault(k_, v_)
    for k_, v_ in dict(w1pf=0, n0=3, dscap=4, fypos=0, hold=1, t4=1, yrot=0).items(): opt.setdefault(k_, v_)
    open(sys.argv[1], "w").write(gen4.build("min" if "min" in sys.argv[2:] else "prof" in sys.argv[2:], opt, cls=F10))
```

```python
import sys, struct, math
from dsl import Item, Stream, FragStream, gap_sched, weave, interleave
import gen3, gen4, gen7, gen8, gen10
from gen4 import *
from gen10 import CBP, CB0, FY, FH, FS, WS_BYTES
gen7.WS_BYTES = WS_BYTES

YT, XT = 0, 10496

class F11(gen10.F10):
    def start(self, a):
        o = self.o
        t4 = o.get("t4", 0)
        a(f"""
        s_load_dwordx16 s[16:31], s[0:1], 0
        s_load_dwordx16 s[32:47], s[0:1], 64
        s_load_dwordx2 s[48:49], s[0:1], 128
        s_cmp_ge_u32 s2, 256
        s_cbranch_scc1 L_end
        s_getpc_b64 s[72:73]
        L_pc:
        v_lshrrev_b32 v1, 6, v0
        s_lshr_b32 {JJ}, s2, 3
        v_and_b32 v0, 63, v0
        s_lshl_b32 s7, {JJ}, 4
        v_lshl_add_u32 v8, v1, 2, v0
        v_readfirstlane_b32 {WAVE}, v1
        v_add_lshl_u32 v8, v8, s7, 7
        v_min_u32 v8, L_code_end-L_pc-4, v8
        v_mov_b32 v{V_CNT}, {CNT}
        v_mov_b64 v[4:5], 0
        v_mov_b64 v[6:7], 0
        s_mov_b64 exec, 15
        global_load_dword v{V_DUM}, v8, s[72:73]
        ds_write_b128 v{V_CNT}, v[4:7]
        s_mov_b64 exec, -1
        s_and_b32 {XCD}, s2, 7
        s_lshl_b32 {SID}, {XCD}, 5
        s_add_u32 {SID}, {SID}, {JJ}
        v_lshrrev_b32 v2, 4, v0
        v_and_b32 v3, 15, v0
        v_lshrrev_b32 v4, 5, v0
        v_and_b32 v5, 31, v0
        v_mul_u32_u24 v7, 1280, v4
        v_lshl_add_u32 v7, v5, 3, v7
        s_lshl_b32 s72, {SID}, 2
        s_add_u32 s72, s72, {WAVE}
        s_mul_i32 s72, s72, 2560
        s_mov_b32 s54, 2621440
        s_mov_b32 s55, 0x20000
        s_mov_b32 s70, {WS_BYTES}
        s_mov_b32 s71, 0x20000
        s_mov_b32 s73, {FLG}
        s_lshr_b32 s9, {JJ}, {3 if t4 else 2}
        s_and_b32 s7, {XCD}, {3 if t4 else 1}
        s_lshl_b32 s7, s7, {2 if t4 else 3}
        s_mul_i32 s83, s9, 10
        s_add_u32 s9, s9, s7
        s_lshr_b32 s83, s83, {2 if t4 else 3}
        s_mul_i32 s83, s83, {1 if o.get("yrot", 1) else 0}
        s_and_b32 s7, s9, 1
        s_mul_i32 {S_PAIR}, s9, 192
        s_add_u32 {S_SNG}, {S_PAIR}, 128
        s_lshl_b32 s74, s7, 6
        s_add_u32 {S_PAIR}, {S_PAIR}, s74
        s_lshl_b32 s74, s7, 7
        s_sub_u32 {S_SNG}, {S_SNG}, s74
        s_mov_b32 s58, 1966080
        s_mov_b32 s59, 0x20000
        s_mov_b32 s62, 1966080
        s_mov_b32 s63, 0x20000
        s_lshl_b32 s7, {WAVE}, 1
        v_add_u32 v4, s7, v4
        v_mul_u32_u24 v204, {PY}, v4
        v_mul_u32_u24 v205, {PX}, v4
        s_bitcmp1_b32 {JJ}, {2 if t4 else 1}
        s_cselect_b32 s87, 3, 13
        s_lshl_b32 s87, s87, 12
        s_add_u32 s87, s87, {PAIR}
        v_lshl_add_u32 v6, v5, 3, s87
        v_add_u32 v204, v204, v6
        v_add_u32 v205, v205, v6
        v_lshl_add_u32 v30, v5, 1, {S_PAIR}
        v_lshl_add_u32 v31, v5, 1, {S_SNG}
        v_mov_b64 v[240:241], 0
        v_mov_b64 v[242:243], 0
        v_mov_b64 v[244:245], 0
        v_mov_b64 v[246:247], 0
        s_waitcnt lgkmcnt(0)
        s_mov_b64 s[52:53], {sp('x')}
        s_mov_b64 s[68:69], {sp('ws')}
        """)
        for i in range(5):
            a(f"buffer_load_dwordx2 {vr(110+2*i,2)}, v7, {SX}, s72 offen offset:{256*i}")
        a(f"buffer_load_dword v109, off, {SWS}, s73{SC}")
        self.pstart(a)
        self.bias(a)
        a('s_barrier')
        a(f"""
        s_mov_b64 s[56:57], {sp('w1')}
        s_mov_b64 s[60:61], {sp('w2')}
        s_mov_b64 s[64:65], {sp('out')}
        s_mov_b32 s66, 2621440
        s_mov_b32 s67, 0x20000
        s_cmp_eq_u32 {WAVE}, 3
        s_cbranch_scc1 L_st3
        s_mul_i32 s7, {JJ}, 3
        s_add_u32 s11, s7, {WAVE}
        s_min_u32 s11, s11, 79
        s_mul_i32 s7, {XCD}, 80
        s_add_u32 s11, s11, s7
        s_mul_i32 s7, s11, 384
        v_lshl_add_u32 v8, v0, 1, s7
        s_lshl_b32 s7, s11, 1
        v_mov_b32 v6, s7
        """)
        for k in list(range(10, 30, 2)) + [40, 42, 44, 196, 200, 202]: a(f"v_mov_b64 {vr(k,2)}, 0")
        a(f"global_load_short_d16_hi v28, v6, {sp('ldt')}\nglobal_load_short_d16_hi v29, v6, {sp('dsk')}")
        for c in range(3):
            for k, n in enumerate(("are", "aim", "bre", "bim", "cre", "cim")):
                a(f"global_load_short_d16_hi v{10+6*c+k}, v8, {sp(n)} offset:{128*c}")
        a("s_branch L_stj\nL_st3:")
        self.w3pre(a)
        if o.get("c3late", 0): a("v_lshlrev_b32 v1, 4, v0\ns_branch L_noc")
        a("L_stj:")

    def consts(self, a):
        p, self.prof = self.prof, False
        skip = ("s[56:57]", "s[60:61]", "s[64:65]", "s62,", "s63,", "s66,", "s67,")
        super().consts(lambda t: a("\n".join(l for l in t.split("\n") if not any(k in l for k in skip))))
        self.prof = p

        if self.o.get("sdef", 0):
            a(f"v_lshrrev_b32 v4, 2, v0\nv_mul_u32_u24 v229, 3072, v4\nv_and_b32 v4, 3, v0\nv_lshl_add_u32 v229, v4, 4, v229")

    def step2(self, a, single):
        if not self.o.get("sdef", 0): return self.step(a)
        a(f"s_lshl_b32 s7, s82, 1\ns_add_u32 m0, s7, {PAIR}\ns_add_u32 s7, s80, {S_PAIR}")
        for k in range(4): a(f"buffer_load_dwordx4 v{40+k}, {SW1}, s7 offen offset:{1024*k} lds")
        if single is not None:
            a(f"s_mov_b32 m0, {SNG+2048*single}\ns_add_u32 s7, {S_SNG}, {32*3072*single}")
            for k in range(2): a(f"buffer_load_dwordx4 v{44+k}, {SW1}, s7 offen offset:{1024*k} lds")
        a(f"""
        s_add_u32 s82, s82, 2048
        s_add_u32 s80, s80, {32*3072}
        s_cmp_eq_u32 s82, 40960
        s_cselect_b32 s82, 0, s82
        s_cselect_b32 s80, 0, s80
        """)

    def w3pre(self, a):
        o = self.o
        t4 = o.get("t4", 0)
        a(f"""
        v_min_u32 v4, 59, v0
        v_mul_u32_u24 v5, {10923 if t4 else 5462}, v4
        v_lshrrev_b32 v5, 16, v5
        v_mul_u32_u24 v5, {3072-(6 if t4 else 12)*128}, v5
        v_lshl_add_u32 v46, v4, 7, v5
        v_add_u32 v47, {5*3072}, v46
        s_mul_i32 s74, {JJ}, {20*3072}
        s_and_b32 s7, {XCD}, {3 if t4 else 1}
        s_mul_i32 s7, s7, {768 if t4 else 1536}
        s_add_u32 s74, s74, s7
        s_add_u32 s75, s74, {10*3072}
        v_lshrrev_b32 v4, 3, v0
        v_mul_u32_u24 v40, 3072, v4
        v_lshrrev_b32 v4, 2, v0
        v_mul_u32_u24 v44, 3072, v4
        v_xor_b32 v4, v4, v2
        v_and_b32 v4, 1, v4
        v_lshl_add_u32 v40, v4, 6, v40
        v_and_b32 v4, 3, v0
        v_lshl_add_u32 v40, v4, 4, v40
        v_lshl_add_u32 v44, v4, 4, v44
        v_add_u32 v41, {24576-1024}, v40
        v_add_u32 v42, {24576-1024}, v41
        v_add_u32 v43, {24576-1024}, v42
        v_add_u32 v45, {49152-1024}, v44
        s_and_b32 s7, {JJ}, {7 if t4 else 3}
        s_mul_i32 s80, s7, 5
        s_lshr_b32 s80, s80, {1 if t4 else 0}
        s_lshl_b32 s82, s80, 11
        s_lshl_b32 s7, s83, 1
        s_add_u32 s80, s80, s7
        s_sub_u32 s7, s80, 20
        s_cselect_b32 s80, s80, s7
        s_mul_i32 s80, s80, {32*3072}
        """)
        self.w2_pre(a)
        a('v_add_u32 v196, s87, v196\nv_add_u32 v198, s87, v198')
        assert o.get('n0', 3) <= 3
        a(f"s_mov_b32 m0, {W2S}")
        for h in range(2):
            for k in range(4): a(f"buffer_load_dwordx4 v{200+k}, {SW2}, s84 offen offset:{1024*k} lds")
            if h == 0: a(f"s_mov_b32 m0, {W2S+4096}\ns_add_u32 s84, s84, {4*5120}")
        self.npf = 0
        if o.get("w1pf", 1):
            for i in (range(0, 4, 2) if t4 else range(4)):
                a(f"buffer_load_dword v{V_DUM}, v{46+(i&1)}, {SW1}, s{74+(i>>1)} offen"); self.npf += 1
        a(f"v_min_u32 v4, 9, v0\nv_lshlrev_b32 v4, 7, v4\nglobal_load_dword v{V_DUM}, v4, {sp('b2')}")
        for _ in range(o.get("n0", 3)): self.step(a)
        self.npf += 1 + 6 * o.get("n0", 3)
        self.n3 = 8 + self.npf

    def w2_pre(self, a):
        a(f"""
        v_and_b32 v4, 7, v0
        v_lshrrev_b32 v5, 3, v0
        v_mul_u32_u24 v196, {PY}, v4
        v_lshl_add_u32 v196, v5, 4, v196
        v_lshlrev_b32 v197, 9, v5
        v_lshl_add_u32 v197, v4, 4, v197
        v_bfe_u32 v4, v0, 2, 2
        v_and_b32 v5, 3, v0
        v_mul_u32_u24 v198, {PX}, v4
        v_lshl_add_u32 v198, v2, 5, v198
        v_lshl_add_u32 v198, v5, 3, v198
        v_lshrrev_b32 v4, 5, v0
        v_lshlrev_b32 v199, 12, v4
        v_bfe_u32 v4, v0, 2, 3
        v_lshl_add_u32 v199, v4, 8, v199
        v_lshl_add_u32 v199, v5, 3, v199
        v_mul_u32_u24 v200, 1280, v2
        v_lshl_add_u32 v200, v3, 4, v200
        v_add_u32 v201, {5120-1024}, v200
        v_add_u32 v202, {5120-1024}, v201
        v_add_u32 v203, {5120-1024}, v202
        s_min_u32 s7, s2, 239
        s_mul_i32 s14, s7, 52429
        s_lshr_b32 s14, s14, 18
        s_mul_i32 s15, s14, 5
        s_sub_u32 s15, s7, s15
        s_mul_i32 s84, s14, 40960
        s_lshl_b32 s7, s15, 8
        s_add_u32 s84, s84, s7
        s_mul_i32 s15, s15, {8*48}
        s_add_u32 s14, s14, s15
        s_lshl_b32 s14, s14, 10
        s_add_u32 s14, s14, {W2F}
        s_lshr_b32 s15, {SID}, 2
        s_mul_i32 s15, s15, 40960
        s_and_b32 s7, {SID}, 3
        s_lshl_b32 s7, s7, 7
        s_add_u32 s15, s15, s7
        s_lshr_b32 s81, {SID}, 4
        s_lshl_b32 s81, s81, 8
        s_and_b32 s7, {SID}, 15
        s_lshl_b32 s7, s7, 2
        s_add_u32 s81, s81, s7
        s_add_u32 s85, s81, {FX}
        s_lshl_b32 s81, {SID}, 8
        s_add_u32 s81, s81, {FY}
        s_mul_i32 s79, {SID}, {XP}
        s_add_u32 s79, s79, {XNT}
        """)

    def s_compute3(self, a):
        X = 120
        a.auto = False
        a("L_noc:")
        if self.prof:
            for r in self.STAMPS[1:]: a(f"s_mov_b32 s{r}, 0")
        a(f"""
        s_mov_b32 s74, {fbits(1/640)}
        s_mov_b32 s75, {fbits(1e-5)}
        s_cmp_eq_u32 {WAVE}, 3
        s_cbranch_scc1 L_xw3
        s_waitcnt vmcnt(23)
        s_branch L_xwj
        L_xw3:
        s_waitcnt vmcnt({self.n3+3})
        L_xwj:
        """)
        a.auto = True
        a.vmq = []
        a(self.st("s.x"))
        for k in range(10):
            a(f"v_lshlrev_b32 v{X+2*k}, 16, v{110+k}\nv_and_b32 v{X+2*k+1}, 0xffff0000, v{110+k}")
        a(f"v_pk_add_f32 v[140:141], {vr(X,2)}, {vr(X+2,2)}")
        for k in range(2, 10):
            a(f"v_pk_add_f32 v[140:141], v[140:141], {vr(X+2*k,2)}")
        a("v_add_f32 v140, v140, v141")
        self.reduce32(a, 140, 141)
        a("v_mul_f32 v142, s74, v140")
        for k in range(10):
            a(f"v_pk_add_f32 {vr(X+2*k,2)}, {vr(X+2*k,2)}, v[142:143] op_sel_hi:[1,0] neg_lo:[0,1] neg_hi:[0,1]")
        a(f"v_pk_mul_f32 v[140:141], {vr(X,2)}, {vr(X,2)}")
        for k in range(1, 10):
            a(f"v_pk_fma_f32 v[140:141], {vr(X+2*k,2)}, {vr(X+2*k,2)}, v[140:141]")
        a(f"""
        v_add_f32 v140, v140, v141
        v_cvt_pk_bf16_f32 v148, v142, v142
        v_readfirstlane_b32 s7, v109
        v_add_f32_dpp v140, v140, v140 quad_perm:[1,0,3,2] row_mask:0xf bank_mask:0xf
        v_lshlrev_b32 v148, 16, v148
        s_mul_i32 s7, s7, 1664525
        v_add_f32_dpp v140, v140, v140 quad_perm:[2,3,0,1] row_mask:0xf bank_mask:0xf
        v_sub_f32 v148, v142, v148
        s_add_u32 {TAG}, s7, 1013904223
        v_add_f32_dpp v140, v140, v140 row_half_mirror row_mask:0xf bank_mask:0xf
        s_mov_b32 s51, {TAG}
        v_add_f32_dpp v140, v140, v140 row_mirror row_mask:0xf bank_mask:0xf
        v_mov_b32 v141, v140
        v_permlane16_swap_b32 v140, v141
        v_add_f32 v140, v140, v141
        v_mul_f32 v140, s74, v140
        """)
        self.rbf(a, 141, 140)
        a("v_add_f32 v141, s75, v141")
        self.rbf(a, 141, 141)
        a("v_sqrt_f32 v141, v141")
        self.rbf(a, 141, 141)
        a("v_rcp_f32 v144, v141")
        a("v_mul_f32 v140, v140, v144\nv_mul_f32 v140, v140, v144")
        self.rbf(a, 141, 140)
        a("v_add_f32 v141, s75, v141")
        self.rbf(a, 141, 141)
        a("v_sqrt_f32 v141, v141\nv_mul_f32 v148, v148, v144")
        self.rbf(a, 141, 141)
        a("v_rcp_f32 v146, v141")
        for k in range(10):
            a(f"v_pk_fma_f32 v[150:151], {vr(X+2*k,2)}, v[144:145], v[148:149] op_sel_hi:[1,0,0]")
            if k == 0: a("v_mul_f32 v146, v146, v144")
            a(f"v_cvt_pk_bf16_f32 v{152+k}, v150, v151")
        for k in range(10):
            a(f"v_pk_mul_f32 v[150:151], {vr(X+2*k,2)}, v[146:147] op_sel_hi:[1,0]")
            a(f"v_cvt_pk_bf16_f32 v{110+k}, v150, v151")
        a(f"s_lshl_b32 s7, {WAVE}, 2\nv_add_u32 v5, s7, v{V_CNT}\nv_mov_b32 v4, 1")
        for i in range(5): a(f"ds_write_b64 v204, {vr(110+2*i,2)} offset:{YT+256*i}")
        for i in range(5): a(f"ds_write_b64 v205, {vr(152+2*i,2)} offset:{XT+256*i}")
        a("s_mov_b64 exec, 1\nds_write_b32 v5, v4\ns_mov_b64 exec, -1")

    def kgen4(self, a):
        o = self.o
        VF, UF, CH = self.VF, self.UF, 112
        W1, W8, W256, T, C0 = 176, 178, 180, 182, 194
        DT, DTL = 30, 31
        L2E = 1.4426950408889634
        f32 = lambda x: struct.unpack("<f", struct.pack("<f", x))[0]
        I2P = 1 / (2 * math.pi)
        head = (f"""
        s_mov_b32 s72, {fbits(f32(L2E))}
        s_mov_b32 s73, {fbits(L2E-f32(L2E))}
        s_mov_b32 s76, {fbits(math.log(2))}
        v_mul_f32 v{T}, s72, v28
        v_fma_f32 v{T+1}, v28, s72, -v{T}
        v_fma_f32 v{T+1}, v28, s73, v{T+1}
        v_exp_f32 v{T}, v{T}
        v_mul_f32 v{T+1}, s76, v{T+1}
        v_cmp_eq_u32 vcc, 0, v0
        v_fma_f32 v{T}, v{T}, v{T+1}, v{T}
        v_cvt_pk_bf16_f32 v{DT}, v{T}, v{T}
        v_lshlrev_b32 v{DT}, 16, v{DT}
        v_cndmask_b32 v29, 0, v29, vcc
        v_mul_f32 v{DTL}, s72, v{DT}
        s_mov_b32 s74, {fbits(f32(I2P))}
        s_mov_b32 s75, {fbits(I2P-f32(I2P))}
        s_mov_b32 s77, {fbits(256.0)}
        s_mov_b32 s78, {fbits(8.0)}
        """)
        pass
        yl = self.yloads()[:o.get("ny", 8)]
        m0tab = f"s_mul_i32 m0, {WAVE}, {TABSZ}"
        a.vmq = [({("v", r)}, set()) for r in [28, 29] + list(range(10, 28))]
        a(head)
        a(m0tab)
        for c in range(3):
            p = 10 + 6 * c
            setup = [f"v_mul_f32 v{T}, v{p}, v{DTL}", f"v_mul_f32 v{T+1}, v{p+1}, v{DT}",
                     f"v_mul_f32 v{T+2}, s74, v{T+1}", f"v_fma_f32 v{T+3}, v{T+1}, s74, -v{T+2}",
                     f"v_fma_f32 v{T+3}, v{T+1}, s75, v{T+3}",
                     f"v_mul_f32 v{T+4}, s78, v{T}", f"v_mul_f32 v{T+5}, s78, v{T+2}",
                     f"v_mul_f32 v{T+6}, s77, v{T}", f"v_mul_f32 v{T+7}, s77, v{T+2}",
                     f"v_exp_f32 v{T+4}, v{T+4}", f"v_fract_f32 v{T+5}, v{T+5}",
                     f"v_exp_f32 v{T+6}, v{T+6}", f"v_fract_f32 v{T+7}, v{T+7}",
                     f"v_exp_f32 v{T+8}, v{T}", f"v_fract_f32 v{T+9}, v{T+2}",
                     f"v_fma_f32 v{T+5}, v{T+3}, s78, v{T+5}", f"v_fma_f32 v{T+7}, v{T+3}, s77, v{T+7}",
                     f"v_add_f32 v{T+9}, v{T+3}, v{T+9}",
                     f"v_cos_f32 v{W8}, v{T+5}", f"v_sin_f32 v{W8+1}, v{T+5}",
                     f"v_cos_f32 v{W256}, v{T+7}", f"v_sin_f32 v{W256+1}, v{T+7}",
                     f"v_cos_f32 v{W1}, v{T+9}", f"v_sin_f32 v{W1+1}, v{T+9}"]
            setup += self.cmul(T + 10, p + 4, p + 2)
            setup += [f"v_pk_mul_f32 {vr(W8,2)}, {vr(W8,2)}, {vr(T+4,2)} op_sel_hi:[1,0]",
                      f"v_pk_mul_f32 {vr(W256,2)}, {vr(W256,2)}, {vr(T+6,2)} op_sel_hi:[1,0]",
                      f"v_pk_mul_f32 {vr(W1,2)}, {vr(W1,2)}, {vr(T+8,2)} op_sel_hi:[1,0]",
                      f"v_pk_mul_f32 {vr(C0,2)}, {vr(T+10,2)}, {vr(DT,2)} op_sel_hi:[1,0]"]
            Vv = lambda j: W8 if j == 1 else CH + 2 * j
            vchain = []
            for j in range(2, 32): vchain += self.cmul(Vv(j), Vv(j - 1), W8)
            vcvt = [f"v_mov_b32 v{CH}, 0x3f80"] + [f"v_cvt_pk_bf16_f32 v{CH+2*j}, v{Vv(j)}, v{Vv(j)+1}" for j in range(1, 32)]
            vwr = [f"ds_write_addtid_b32 v{CH+2*j} offset:{TP*j}" for j in range(32)]
            Ur = lambda i: C0 if i == 0 else CH + 2 * i
            uchain = []
            for i in range(1, 8): uchain += self.cmul(Ur(i), Ur(i - 1), W1)
            for i, s in ((8, 0), (9, 2), (10, 4), (11, 6), (12, 8), (13, 10), (14, 12), (15, 13), (16, 14), (17, 16), (18, 17), (19, 18), (20, 19)):
                uchain += self.cmul(Ur(i), Ur(s), W256)
            ucvt = [f"v_cvt_pk_bf16_f32 v{Ur(i)}, v{Ur(i)}, -v{Ur(i)+1}" for i in range(21)]
            uwr = [f"ds_write_addtid_b32 v{Ur(i)} offset:{TP*(i if i < 20 else 23)}" for i in range(21)]
            E = lambda L: [a(x) for x in L]
            ypos = o.get("ypos", 2)
            chk = lambda: E([self.poll_check("y0", 2, False, V_FY, "s86"), self.st("ypoll")])
            ng = {0: 5, 1: 4, 2: 2}[ypos]
            grp = [yl[len(yl) * k // ng:len(yl) * (k + 1) // ng] for k in range(ng)] if c == 2 else [[]] * 5
            grp = [[]] * (5 - ng) + grp
            E(setup[:6])
            if c == 0: a(self.st('kg.p'))
            if c: E(self.kreads(UF))
            if c == 2 and ypos == 1: E([self.poll_load(2, False, V_FY, "s86")])
            E(setup[6:])
            if c == 2 and ypos == 0: chk()
            E(grp[0] + vchain)
            if c == 0:
                E(vcvt + vwr)
            else:
                E(vcvt[:18])
                if c == 2 and ypos == 2: E([self.poll_load(2, False, V_FY, "s86")])
                if c == 2 and ypos == 1: chk()
                E(grp[1])
                mf = self.kmf(c == 1)
                for k in range(8): E([mf[k]] + vwr[4 * k:4 * k + 4] + vcvt[18 + 2 * k:20 + 2 * k])
            E(uchain[:8] + self.kreads(VF) + grp[2])
            E(uchain[8:] + ucvt)
            if c == 1 and ypos == 0: E([self.poll_load(2, False, V_FY, "s86")])
            if c == 2 and ypos == 2: chk()
            E(grp[3] + uwr + grp[4])
            a(self.st(f"kg{c}"))
        for x in self.kreads(UF): a(x)
        a("s_waitcnt lgkmcnt(0)")

    def wave3(self, a):
        o = self.o
        a(f"""
        v_mov_b32 v206, {TAG}
        L_spa:
        ds_read_b128 v[4:7], v{V_CNT}
        s_waitcnt lgkmcnt(0)
        v_and_b32 v4, v4, v5
        v_and_b32 v4, v4, v6
        v_readfirstlane_b32 s7, v4
        s_cmp_eq_u32 s7, 0
        s_cbranch_scc1 L_spa
        """)
        for I in range(10): a(f"ds_read_b128 {vr(110+4*I,4)}, v196 offset:{YT+128*I}")
        for I in range(10):
            a(f"buffer_store_dwordx4 {vr(110+4*I,4)}, v197, {SWS}, s15 offen{SC} @yst" + ("\ns_add_u32 s15, s15, 4096" if I < 9 else ""))
            if I == 4:
                for K in range(10):
                    a(f"ds_read_b64_tr_b16 {vr(150+4*K,2)}, v198 offset:{XT+128*K}\nds_read_b64_tr_b16 {vr(152+4*K,2)}, v198 offset:{XT+128*K+4*PX}")
        a(self.st("p.yst"))
        fl = lambda r, n: a(f"s_mov_b64 exec, 1\nbuffer_store_dword v206, off, {SWS}, {r}{SC}\ns_mov_b64 exec, -1\n" + self.st(n))
        def xs():
            for I in range(10):
                a(("s_add_u32 s79, s79, 4096\n" if I in (4, 8) else "") + f"buffer_store_dwordx4 {vr(150+4*I,4)}, v1, {SWS}, s79 offen offset:{1024*(I%4)}{SC} @xst")
        def ws(younger):
            a(f"s_waitcnt vmcnt({min(62, younger + self.npf)})")
            for db in range(8):
                a(f"ds_read_b64_tr_b16 {vr(48+4*db,2)}, v199 offset:{W2S+32*db}\nds_read_b64_tr_b16 {vr(50+4*db,2)}, v199 offset:{W2S+32*db+2048}")
            for db in range(8):
                a(f"buffer_store_dwordx4 {vr(48+4*db,4)}, v1, {SWS}, s14 offen{SC} @xst" + (f"\ns_add_u32 s14, s14, {48*1024}" if db < 7 else ""))
        n1, n2, nl, dcap = o.get("n1", 2), o.get("n2", 3), o.get("nl", 3), o.get("dcap", 24)
        if o.get("late", 0):
            a("s_waitcnt lgkmcnt(0)")
            for q in range(n1): self.step2(a, q)
            if o.get("c3late", 0): self.consts(a)
            if o.get("stub", 1): a("s_call_b64 s[88:89], L_stub1\ns_call_b64 s[88:89], L_stub2")
            a("WAITVM yst"); fl("s81", "p.fy")
            xs(); ws(21 + 6 * n1)
        else:
            xs(); ws(20)
            if o.get("c3late", 0): self.consts(a)
            for q in range(n1): self.step2(a, q)
            a("WAITVM yst"); fl("s81", "p.fy")
        for q in range(n2): self.step2(a, n1 + q)
        assert not o.get('sdef', 0) or (n1 + n2 == 10 and not o.get('yrot', 1))
        a("WAITVM xst"); fl("s85", "p.fx")
        a(f"s_mov_b32 s73, {n1+n2+o.get('n0', 3)}\nL_dma:\ns_waitcnt vmcnt({dcap})")
        self.step2(a, None)
        a(f"s_add_u32 s73, s73, 1\ns_cmp_lt_u32 s73, {20-nl}\ns_cbranch_scc1 L_dma")
        a(self.poll_load(4, False, V_FY, "s86"))
        for _ in range(nl): self.step2(a, None)
        a(self.st("w3.dma"))
        a(self.poll_check("y3", 4, False, V_FY, "s86"))
        a(self.st("ypoll"))
        ny = o.get("ny", 8)
        for x in self.yloads()[:ny]: a(x)
        a(f"s_waitcnt vmcnt({ny})")

    def gemm1f(self, a):
        o = self.o
        ACC = (48, 64, 32)
        uses = [[] for _ in range(10)]
        for ks in range(40): uses += [[(0, ks)], [(1, ks)]]
        uses += [[] for _ in range(41)]
        def reads(f, reg):
            p, ks = f
            base = V_P0 + p
            off = ks * 2048 - (65536 if ks >= 32 else 0)
            pre = [f"v_add_u32 v{base}, 0x10000, v{base}"] if ks == 32 else []
            return pre + [f"ds_read_b64_tr_b16 {vr(reg,2)}, v{base} offset:{off}", f"ds_read_b64_tr_b16 {vr(reg+2,2)}, v{base} offset:{off+512}"]
        fr = FragStream(uses, reads, list(range(112, 144, 4)), lead=6, name="pair")
        main = self.kmf(False)
        main += [f"v_mfma_f32_32x32x16_bf16 {vr(ACC[p],16)}, {vr(V_B1+2*p,4)}, {vr(V_ONE,4)}, 0" for p in range(2)]
        for ks in range(40):
            for p in range(2):
                main.append(lambda p=p, ks=ks: f"v_mfma_f32_32x32x16_bf16 {vr(ACC[p],16)}, {vr(fr.reg[(p,ks)],4)}, {ar(4*ks,4)}, {vr(ACC[p],16)}")
        main.append(self.st("g1.ab") + f"\nv_mfma_f32_32x32x16_bf16 {vr(ACC[2],16)}, {vr(V_B1+4,4)}, {vr(V_ONE,4)}, 0")
        for ks in range(40):
            main.append(f"v_mfma_f32_32x32x16_bf16 {vr(ACC[2],16)}, {self.creg(ks)[0]}, {ar(4*ks,4)}, {vr(ACC[2],16)}")
        mb = o.get("mb", 86)
        S = [fr]
        cpre = []
        for ks in range(40):
            cpre += [f"ds_read_b64_tr_b16 {self.creg(ks)[1](h)}, v{V_S} offset:{ks*1024+256*h}" for h in range(2)]
        if o.get("sdef", 0):
            sb = o.get("sb", 44)
            cpre = [Item(x, lo=(sb + 1 if i >= 40 else None)) for i, x in enumerate(cpre)]
            sd = [f"s_mul_i32 s80, {WAVE}, {80*3072}\ns_add_u32 s80, s80, {S_SNG}\ns_add_u32 s80, s80, {320*3072}\ns_mul_i32 s81, {WAVE}, 5120\ns_add_u32 m0, s81, {SNG+20480}"]
            sd += [Item(f"buffer_load_dwordx4 v229, {SW1}, s80 offen lds @sng" + (f"\ns_add_u32 m0, m0, 1024\ns_add_u32 s80, s80, {16*3072}" if i < 4 else ""), hi=2 * i + 1) for i in range(5)]
            S.append(Stream(sd, 0, 10, ahead=0, name="sd"))
            S.append(Stream(["WAITVM sng\ns_barrier"], sb, sb + 1))
        S.append(Stream(cpre, 0, mb - 3, ahead=3, name="cpre"))
        ny = o.get("ny", 8)
        yl = [Item(x, hi=max(0, 10 + 2 * (ny + i) - o.get("ylead", 20))) for i, x in enumerate(self.yloads()[ny:])]
        S.append(Stream(yl, 0, o.get("yend", 60), ahead=3, name="y"))
        t1, t2 = self.ktail3()
        S.append(Stream(t1, 10, 36, name="t1"))
        S.append(Stream(t2, 41, mb - 4, name="t2"))
        misc = self.late_scalars() + [f"s_mov_b32 s74, {fbits(-1.5957691216057308*1.4426950408889634)}",
                f"s_mov_b32 s75, {fbits(-1.5957691216057308*0.044715*1.4426950408889634)}",
                "v_mov_b32 v8, s74", "v_mov_b32 v9, s75", "v_mov_b32 v30, 1.0", "v_mov_b32 v31, 1.0"]
        mxp, mx = o.get("mxp", 56), o.get("mx", 78)
        S.append(Stream(misc, 0, mx - 2, name="misc"))
        S.append(Stream([f"s_mov_b32 s84, {FX}\n" + self.poll_load(2, True, V_FX, "s84")], mxp, mxp + 1))
        S.append(Stream([self.poll_check("x", 2, True, V_FX, "s84") + "\n" + self.st("xpoll")] +
                        [("" if i == 0 else f"s_add_u32 s83, s83, {16*XP}\n") + f"buffer_load_dwordx4 {ar(240+4*i,4)}, v{V_UG}, {SWS}, s83 offen{SC}" for i in range(4)],
                        mx, mx + 12, ahead=0))
        nw = o.get("nw", 14)
        S.append(Stream([Item(x, lo=92 + i) for i, x in enumerate(self.w2f_items()[:nw])], max(93, mx + 12), 131, name="w2f"))
        S.append(Stream([f"s_lshl_b32 s7, {WAVE}, 10\ns_add_u32 m0, s7, {CB0}\ns_waitcnt lgkmcnt(0)\ns_barrier"], mb, mb + 1))
        exr, exw = [], []
        e0, e1 = mb + 1, o.get("exend", 124)
        for q in range(12):
            ch, row = divmod(q, 4)
            E, O = 80 + 2 * (q % 6), 92 + (q % 4)
            d = ch * CBP + row * 256
            g0 = e0 + 4 + (e1 - e0 - 4) * q // 12
            g1 = e0 + 4 + (e1 - e0 - 4) * (q + 1) // 12
            prev = e0 + 4 + (e1 - e0 - 4) * (q - 5) // 12 if q >= 6 else e0
            exr.append(Item(f"ds_read2_b32 {vr(E,2)}, v{V_ES+ch} offset0:{64*row} offset1:{64*row+1}", lo=prev + 1, hi=max(prev + 1, g0 - 3)))
            exw += [Item(f"ds_write_addtid_b32 v{E} offset:{d}", lo=g0, hi=g1), Item(f"ds_write_addtid_b32 v{E} offset:{d+2*CPITCH-4}", hi=g1),
                    Item(f"v_alignbit_b32 v{O}, v{E+1}, v{E}, 16", hi=g1),
                    Item(f"ds_write_addtid_b32 v{O} offset:{d+CPITCH}"), Item(f"ds_write_addtid_b32 v{O} offset:{d+3*CPITCH-4}")]
        exw += [f"ds_write_b32 v{V_Z1}, v26", f"ds_write_b64 v{V_Z2}, v[26:27]"]
        S.append(Stream(exr, e0, e1 - 6, ahead=100, name="exr"))
        S.append(Stream(exw, e0 + 4, e1 + 2, ahead=3, name="exw"))
        nG = o.get("nG", 6)
        gl = self.gelu4(ACC[0], 10, range(min(nG, 8)))
        hs = self.hstore(10, S_HA, 0)
        if nG >= 4: gl.insert(60, hs[0])
        if nG >= 8: gl += [hs[1]] + self.gelu4(ACC[1], 18, range(nG - 8))
        S.append(Stream(gl, 91, 131, ahead=4, name="gelu"))
        uw = [f"ds_write_b64 v{V_UL}, {ar(240+2*i,2)} offset:{256*(i>>1)+8*(i&1)}" for i in range(8)]
        ush = o.get("ush", 0)
        if ush: S.append(Stream(uw, ush, 130, ahead=0, name="uw"))
        gap_sched(a, main, S, "g1", dscap=lambda m: int(o.get("dscap", 3.5) * (m + 1)) - int(o.get("dscap", 3.5) * m))
        a(self.st("g1.c"))
        gp = lambda acc_, out, first=0: [x.replace("v[10:11]", "v[30:31]") for x in self.gelu_packed(acc_, out, 2)][first // 2 * 20:]
        assert nG % 2 == 0
        w2l = self.w2f_items()[nw:]
        groups = []
        for p, out, sreg, off in ((0, 10, S_HA, 0), (1, 18, S_HA, 1024), (2, 80, S_HC, 0)):
            g = gp(ACC[p], out)
            for k in range(4):
                if 8 * p + 2 * k < nG: continue
                groups.append((g[20 * k:20 * k + 20], self.hstore(out, sreg, off)[k // 2] if k & 1 else None))
        nbar = len(groups) - o.get("nlast", 2)
        seq, self.tail = [], []
        uwg = [] if ush else [uw[2 * i:2 * i + 2] for i in range(4)]
        k = 0
        for gi, (g, st_) in enumerate(groups):
            dst = seq if gi < nbar else self.tail
            mid = []
            if uwg and gi >= nbar - 5: mid = uwg.pop(0)
            dst += g[:10] + mid + [w2l[k]] + g[10:]
            k += 1
            if st_: dst.append(st_)
            elif o.get("nt2", 0):
                dst.append(w2l[k]); k += 1
        assert not uwg
        for x in seq: a(x)
        a("s_waitcnt lgkmcnt(0)\ns_barrier")
        self.w2rest = w2l[k:]

    def conv(self, a, role):
        o = self.o
        seq = []
        if role == 0:
            blocks = [4, 5, 6, 7, 1]
            for r in range(8):
                for c in range(8):
                    if c == 4: seq += [(0, r, 1, 0), (0, r, 0, 1)]
                    for e in range(7, -1, -1):
                        if e + c in (4, 5, 6, 7): seq.append((0, r, e, c))
            acc = lambda ch, b: 2 + 4 * blocks.index(b)
        else:
            for ch in range(3):
                for r in range(8):
                    for c in range(4):
                        for e in range(3, -1, -1):
                            if e + c in (0, 2, 3): seq.append((ch, r, e, c))
            acc = lambda ch, b: 2 + 12 * ch + 4 * (2, None, 0, 1)[b]
        uses = [[("B", ch, r, c), ("A", ch, r, e)] for ch, r, e, c in seq]
        def reads(f, reg):
            k, ch, r, i = f
            if k == "B":
                return [f"ds_read_b128 {vr(reg,4)}, v{VCB} offset:{ch*CBP+U_OFF+480+512*i-64*r}"]
            off = ch * CBP + 4032 - 512 * i - 64 * r
            return [f"ds_read_b64 {vr(reg,2)}, v{VCA} offset:{off}", f"ds_read_b64 {vr(reg+2,2)}, v{VCA} offset:{off+8}"]
        pool = getattr(self, 'POOL', None) or list(range(88, 128, 4)) + list(range(48, 88, 4))
        fr = FragStream(uses, reads, pool, lead=12, pre=o.get("cvpre", 9), name="cv")
        for x in fr.pro + self.tail: a(x)
        a(self.st("g1.tail"))
        n = len(seq)
        seen = set()
        main = []
        for ch, r, e, c in seq:
            d = vr(acc(ch, e + c), 4)
            cin = d if (ch, e + c) in seen else "0"
            seen.add((ch, e + c))
            main.append(lambda d=d, cin=cin, A=("A", ch, r, e), B=("B", ch, r, c): f"v_mfma_f32_16x16x32_bf16 {d}, {vr(fr.reg[A],4)}, {vr(fr.reg[B],4)}, {cin}")
        sc_ = lambda x: x * n // 224
        mf, mp, mc = sc_(o.get("mf", 60)), sc_(o.get("mp", 125)), sc_(o.get("mc", 165))
        S = [fr]
        S.append(Stream(self.w2rest, 4, sc_(o.get("wend", 166)), name="w2f"))
        sal = [f"v_mov_b32 v232, {TAG}"] + self.flag_scalars()
        S.append(Stream(sal, 1, mf - 2, name="sal"))
        S.append(Stream(["WAITVM hst\n" + self.fstore(232, "s81") + "\n" + self.st("cv.fh")], mf, mf + 1))
        lc = self.late_consts()
        VH = 221
        first = [f"v_and_b32 v233, 15, v0", f"v_lshrrev_b32 v234, 4, v0", f"s_mul_i32 s73, {WAVE}, 10240", f"s_add_u32 s73, s73, {RING}",
                 f"v_lshl_add_u32 v235, v234, 3, s73", f"v_lshl_add_u32 v{VCW}, v233, 5, v235", f"v_and_b32 v233, 4, v0", f"v_lshlrev_b32 v233, 2, v233",
                 f"v_xor_b32 v{VCW}, v{VCW}, v233", f"v_and_b32 v233, 8, v0", f"v_lshlrev_b32 v233, 1, v233", f"v_xor_b32 v233, v233, v1", f"v_add_u32 v{VPW}, s73, v233",
                 f"v_lshrrev_b32 v233, 5, v0", f"v_lshl_add_u32 v{VH}, v233, 30, v1"]
        k0 = next(i for i, x in enumerate(lc) if "10240" in x)
        lc = [Item(x, hi=40) for x in first] + lc[:k0] + lc[k0 + 5:]
        def outp(ch):
            A = 2 + 12 * ch
            L = [f"v_cvt_pk_bf16_f32 v{A+2*q+h}, v{A+4*q+2*h}, v{A+4*q+2*h+1}" for q in range(3) for h in range(2)]
            L += [f"ds_write_b64 v{VCW}, {vr(A+2*q,2)} offset:{1536*ch+512*q}" for q in range(3)]
            R = [f"ds_read_b128 {vr(A,4)}, v{VPW} offset:{1536*ch}", f"ds_read_b128 {vr(A+4,4)}, v{VPW} offset:{1536*ch+1024}"]
            pre = "" if ch == 0 else f"s_add_u32 {S_ROW}, {S_ROW}, {SP}\n" + (f"s_cmp_eq_u32 {JJ}, 26\ns_cselect_b32 {S_ROW}, {WS_BYTES}, {S_ROW}\n" if ch == 2 else "")
            T = [pre + f"buffer_store_dwordx4 {vr(A,4)}, v1, {SWS}, {S_ROW} offen offset:1024{SC} @sst", f"buffer_store_dwordx4 {vr(A+4,4)}, v{VH}, {SWS}, {S_ROW} offen{SC} @sst"]
            return L, R, T
        if role == 1:
            for ch in range(2):
                L, R, T = outp(ch)
                g = 64 * (ch + 1) + 3
                S.append(Stream(L + [Item(x, lo=g + 14) for x in R] + [Item(x, lo=g + 24) for x in T], g, g + 36, ahead=3, name="out"))
        side = lc + [f"v_accvgpr_write_b32 a{k}, 0" for k in (241, 243, 245, 247, 249, 250, 251)]
        side += [f"global_load_ushort a{240+2*jb}, v{VB2}, {sp('b2')} offset:{32*jb}" for jb in range(5)]
        side += [("s_add_u32 m0, m0, 1024\ns_nop 0\n" if i else "") + f"buffer_load_dwordx4 v{VX+i}, {SX}, s14 offen lds @xdma" for i in range(3)]
        if o.get("opf", 0):
            side += [f"v_lshrrev_b32 v233, 1, v0", f"v_and_b32 v233, 15, v233", f"v_mul_u32_u24 v233, 1280, v233", f"v_and_b32 v234, 1, v0", f"v_mul_u32_u24 v234, 156, v234",
                     f"v_add_u32 v233, v233, v234", f"buffer_load_dword v231, v233, {SOUT}, s14 offen"]
        S.append(Stream(side, 4, mp - 2, name="side"))
        S.append(Stream([self.poll_load(231, False, VFH, "s86")], mp, mp + 1))
        nh = o.get("nh", 11)
        hl = self.hloads(0) + self.hloads(1)
        hpf = []
        if o.get("hpf", 0):
            side2 = [f"v_min_u32 v233, 47, v0", f"v_cmp_lt_u32 vcc, 23, v233", f"v_lshlrev_b32 v234, 7, v233", f"s_add_u32 s73, s11, 3", f"s_and_b32 s73, s73, 3",
                     f"s_mul_i32 s73, s73, {48*1024}", f"s_mul_i32 s80, s11, {48*1024}", f"s_sub_u32 s80, s80, 3072", f"v_mov_b32 v235, s73", f"v_mov_b32 v233, s80",
                     f"v_cndmask_b32 v235, v235, v233, vcc", f"v_add_u32 v234, v234, v235", f"s_lshr_b32 s73, {JJ}, 3", f"s_mul_i32 s73, s73, 3072", f"s_add_u32 s83, s82, s73"]
            S.append(Stream(side2, mp, mc - 1, name="side2"))
            hpf = [f"buffer_load_dword v231, v234, {SWS}, s83 offen{SC}"]
        k = o.get("hpfpos", 7)
        S.append(Stream([self.poll_check(f"h{role}", 231, False, VFH, "s86") + "\n" + self.st("hpoll")] + hl[:min(k, nh)] + hpf + hl[min(k, nh):nh], mc, n, ahead=0, name="h"))
        gap_sched(a, main, S, f"conv{role}", vspace=o.get("vs", 64), budget=lambda m: o.get(f"cbud{role}", (2, 2.85)[role]))
        a(self.st("cv.main"))
        if role == 0:
            order = [4, 0, 1, 2, 3]
            for q in order:
                a(f"v_cvt_pk_bf16_f32 v{96+2*q}, v{2+4*q}, v{3+4*q}\nv_cvt_pk_bf16_f32 v{97+2*q}, v{4+4*q}, v{5+4*q}")
            for q in order:
                a(f"ds_write_b64 v{VCW}, {vr(96+2*q,2)} offset:{512*q}")
            a(hl[nh])
            a(f"s_lshl_b32 s73, {JJ}, 2\ns_add_u32 s73, s73, {WAVE}\ns_mul_i32 s7, {WAVE}, {SP}\ns_add_u32 s7, s7, {S_ROW}\ns_cmp_eq_u32 s73, 106\ns_cselect_b32 s7, {WS_BYTES}, s7")
            for q in range(3): a(f"ds_read_b128 {vr(96+4*q,4)}, v{VPW} offset:{1024*q}")
            a(hl[nh + 1])
            for q in range(2): a(f"buffer_store_dwordx4 {vr(96+4*q,4)}, v1, {SWS}, s7 offen offset:{2048+1024*q}{SC} @sst")
            a(f"buffer_store_dwordx4 v[104:107], v{VH}, {SWS}, s7 offen offset:512{SC} @sst")
        else:
            L, R, T = outp(2)
            for x in [hl[nh]] + L + [hl[nh + 1]] + R + T: a(x)
        assert nh + 2 >= 13
        self.hrest = hl[nh + 2:]
        a(self.st("cv.out"))

    def gemm2f(self, a):
        o = self.o
        AC = (2, 22)
        main, idx = [], {}
        for rho in range(4):
            for jb in range(5):
                d = vr(AC[rho & 1] + 4 * jb, 4)
                idx[(rho, jb)] = len(main)
                if rho == 0: main.append(f"v_mfma_f32_16x16x32_bf16 {d}, {ar(240+2*jb,4)}, {vr(V_ONE,4)}, 0")
                for kk in range(12):
                    main.append(f"v_mfma_f32_16x16x32_bf16 {d}, {ar(self.w2reg(jb*12+kk),4)}, {vr(self.breg(rho,kk),4)}, {d}")
        for rho in (1, 2, 3): main[idx[(rho, 0)]] = self.st(f"g2.r{rho}") + "\n" + main[idx[(rho, 0)]]
        main[13] = self.st("g2.c1") + "\n" + main[13]
        for gi in (78, 100, 138, 168): main[gi] = self.st(f'q{gi}') + '\n' + main[gi]
        idx[(4, 0)] = n = len(main)
        nxt = lambda rho, jb: idx[(rho, jb + 1)] if jb < 4 else idx[(rho + 1, 0)]
        a(f"s_mul_i32 s7, {WAVE}, 10240\ns_add_u32 m0, s7, 32768")
        ring = []
        for rho in range(3):
            par = rho & 1
            def wr(jb):
                g = nxt(rho, jb) + 3
                return [Item(f"ds_write_addtid_b32 v{AC[par]+4*jb+k} offset:{RING-32768+5120*par+1024*jb+256*k} @pw", lo=g, hi=g + 3) for k in range(4)]
            def rd(jb, g):
                return [Item(f"ds_read2st64_b32 {vr(AC[par^1]+4*jb+2*k,2)}, v{VPR} offset0:{20*par+4*jb+2*k} offset1:{20*par+4*jb+2*k+1}", lo=g, hi=g + 6) for k in range(2)]
            b1, b2 = nxt(rho, 2) + 10, nxt(rho, 4) + 10
            ring += wr(0) + wr(1) + wr(2) + [Item("WAITLG pw\ns_barrier", lo=b1, hi=b1)] + rd(0, b1 + 1) + rd(1, b1 + 1) + rd(2, b1 + 1)
            ring += wr(3) + wr(4) + [Item("WAITLG pw\ns_barrier", lo=b2, hi=b2)] + rd(3, b2 + 1) + rd(4, b2 + 1)
        rs = Stream(ring, 0, n, ahead=0, name="ring")
        for it in rs.items: it.ideal = it.lo - 5
        S = [rs]
        hlead = o.get("hlead", 14)
        hh = [Item(x, hi=idx[(1, 0)] - hlead) for x in self.hrest] + [Item(x, hi=idx[(2, 0)] - hlead) for x in self.hloads(2)]
        hh += [Item(x, lo=idx[(1, 0)], hi=idx[(3, 0)] - hlead) for x in self.hloads(3)]
        S.append(Stream(hh, 0, o.get("hend", 150), ahead=30, name="h"))
        ms = o.get("ms", 62)
        S.append(Stream(self.late_consts2(), 0, 44, name="lc2"))
        sal = [f"s_lshl_b32 s81, {SID}, 2", f"s_add_u32 s81, s81, {WAVE}", f"s_lshl_b32 s81, s81, 8", f"s_add_u32 s81, s81, {FS}",
               f"s_lshl_b32 s86, s13, 15", f"s_add_u32 s86, s86, {FS}",
               f"s_lshl_b32 s76, s13, 2", f"s_add_u32 s76, s76, {WAVE}", f"s_mul_i32 s76, s76, {20*SP}",
               f"s_lshl_b32 s80, s12, 7", f"s_add_u32 s76, s76, s80", f"s_add_u32 s76, s76, {ST}",
               f"s_add_u32 s77, s76, {8*SP}", f"s_add_u32 s78, s76, {16*SP}", f"s_mov_b32 s74, {fbits(-1.4426950408889634)}"]
        S.append(Stream(sal, 0, ms - 2, name="sal"))
        S.append(Stream(["WAITVM sst\n" + self.fstore(232, "s81") + "\n" + self.st("g2.fs")], ms, ms + 1))
        XR, XF, SR, SD = 96, 176, 106, 116
        S.append(Stream(["WAITVM xdma"] + [f"ds_read_b64 {vr(XR+2*jb,2)}, v{VXD} offset:{32*jb}" for jb in range(5)], idx[(1, 3)], idx[(2, 0)], name="xr"))
        xu = []
        for q in range(10): xu += [f"v_lshlrev_b32 v{XF+2*q}, 16, v{XR+q}", f"v_and_b32 v{XF+2*q+1}, 0xffff0000, v{XR+q}"]
        S.append(Stream(xu, idx[(2, 1)], idx[(3, 0)], ahead=0, name="xu"))
        mp, mc = o.get("g2p", 134), o.get("g2c", 170)
        assert mp >= idx[(2, 0)]
        S.append(Stream([self.poll_load(196, False, VFS, "s86")], mp, mp + 1))
        S.append(Stream([self.poll_check("s", 196, False, VFS, "s86") + "\n" + self.st("spoll"),
                         f"buffer_load_dwordx4 {vr(SD,4)}, v{VSG}, {SWS}, s76 offen{SC}",
                         f"buffer_load_dwordx4 {vr(SD+4,4)}, v{VSG}, {SWS}, s77 offen{SC}",
                         f"buffer_load_dwordx4 {vr(SD+8,4)}, v222, {SWS}, s78 offen{SC}"], mc, mc + 10, ahead=0))
        Z = AC[1]
        def silu(jb):
            T = 200
            z = Z + 4 * jb
            L = [f"v_mul_f32 v{T+k}, s74, v{z+k}" for k in range(4)] + [f"v_exp_f32 v{T+k}, v{T+k}" for k in range(4)]
            L += [f"v_add_f32 v{T+k}, 1.0, v{T+k}" for k in range(4)] + [f"v_rcp_f32 v{T+k}, v{T+k}" for k in range(4)]
            L += [f"v_mul_f32 v{z+k}, v{z+k}, v{T+k}" for k in range(4)]
            return L
        def comb(jb):
            L = []
            for q in (2 * jb, 2 * jb + 1):
                L += [f"v_lshlrev_b32 v204, 16, v{SR+q}", f"v_and_b32 v205, 0xffff0000, v{SR+q}",
                      f"v_pk_fma_f32 v[204:205], v[204:205], {vr(Z+2*q,2)}, {vr(XF+2*q,2)}", f"v_cvt_pk_bf16_f32 v{XR+q}, v204, v205"]
            return L
        sw = [f"ds_write_b128 v{VSL}, {vr(SD,4)}", f"ds_write_b128 v{VSL}, {vr(SD+4,4)} offset:256", f"ds_write_b128 v223, {vr(SD+8,4)} offset:512"]
        srd = [f"ds_read_b64_tr_b16 {vr(SR+2*jb,2)}, v{VSR} offset:{512*jb}" for jb in range(5)]
        spos = o.get("spos", 226)
        nsil = 3
        if spos < n:
            S.append(Stream(sw + [Item("s_waitcnt lgkmcnt(0)\ns_barrier", lo=spos + 12)] + srd, spos, n, ahead=3, name="sw"))
            nsil = o.get("nsil", 2)
        sl = []
        for jb in range(nsil):
            L = [Item(x) for x in silu(jb)]
            L[0].lo = nxt(3, jb) + 2
            sl += L
        S.append(Stream(sl, nxt(3, 0) + 2, n, ahead=12, name="silu"))
        gap_sched(a, main, S, "g2", vspace=o.get("vs", 64))
        a(self.st("g2.mfma"))
        def silu_pk(jb):
            T = 200
            z = Z + 4 * jb
            L = [f"v_pk_mul_f32 {vr(T+k,2)}, {vr(z+k,2)}, v[206:207] op_sel_hi:[1,0]" for k in (0, 2)] + [f"v_exp_f32 v{T+k}, v{T+k}" for k in range(4)]
            L += [f"v_pk_add_f32 {vr(T+k,2)}, {vr(T+k,2)}, v[206:207] op_sel:[0,1]" for k in (0, 2)] + [f"v_rcp_f32 v{T+k}, v{T+k}" for k in range(4)]
            L += [f"v_pk_mul_f32 {vr(z+k,2)}, {vr(z+k,2)}, {vr(T+k,2)}" for k in (0, 2)]
            return L
        ow = lambda jb: f"ds_write_b64 v{VXD}, {vr(XR+2*jb,2)} offset:{32*jb}"
        a("v_mov_b32 v206, s74\nv_mov_b32 v207, 1.0")
        if spos >= n:
            seq = sw + silu_pk(3) + ["s_waitcnt lgkmcnt(0)\ns_barrier"] + srd + silu_pk(4)
            seq += comb(0) + comb(1) + comb(2) + [ow(0), ow(1), ow(2)] + comb(3) + comb(4) + [ow(3), ow(4)]
        else:
            seq = []
            for jb in range(nsil, 4): seq += silu_pk(jb)
            seq += comb(0) + comb(1) + comb(2) + comb(3) + [ow(0), ow(1), ow(2), ow(3)] + silu_pk(4) + comb(4) + [ow(4)]
        for x in seq: a(x)
        a("s_nop 3")
        for i in range(3): a(f"ds_read_b128 {vr(SD+4*i,4)}, v{VXL} offset:{1024*i}")
        osc = o.get("osc", SC)
        for i in range(3): a(f"buffer_store_dwordx4 {vr(SD+4*i,4)}, v{VX+i}, {SOUT}, s14 offen{osc}")
        a(self.st("g2.done"))

    def late_consts(self):
        L = super().late_consts()
        t = 233
        new = [f"s_mov_b32 s73, 0x40000000"]
        for i in range(3):
            new += [f"v_add_u32 v{t}, {64*i}, v0", f"v_mul_u32_u24 v{t+1}, 5958, v{t}", f"v_lshrrev_b32 v{t+1}, 16, v{t+1}",
                    f"v_mul_u32_u24 v{t+2}, 11, v{t+1}", f"v_sub_u32 v{t}, v{t}, v{t+2}"]
            if i == 2: new += [f"v_lshrrev_b32 v{t+2}, 4, v{t+1}", f"v_lshl_add_u32 v{t}, v{t+2}, 4, v{t}"]
            new += [f"v_cmp_gt_u32 vcc, 10, v{t}", f"v_mul_u32_u24 v{t+1}, 1280, v{t+1}", f"v_lshl_add_u32 v{t}, v{t}, 4, v{t+1}", f"v_mov_b32 v{t+1}, s73",
                    f"v_cndmask_b32 v{VX+i}, v{t+1}, v{t}, vcc"]
        return new + [x.replace(f"v{VXD}, 160,", f"v{VXD}, 176,") for x in L[15:]]

    def late_consts2(self):
        L = [x.replace("2560", "2592") for x in super().late_consts2()]
        return L + [f"v_lshrrev_b32 v233, 5, v0", f"v_lshl_add_u32 v222, v233, 30, v{VSG}", f"v_lshl_add_u32 v223, v233, 14, v{VSL}"]

    def ktail3(self):
        t1, t2 = super().ktail3()
        T, O = V_T, 10
        t2 = t2[:16] + [f"ds_write_b128 v{T+5}, {vr(O,4)}", f"ds_write_b128 v{T+5}, {vr(O+4,4)} offset:16"] + t2[20:]
        return t1, t2

if __name__ == "__main__":
    opt = parse(sys.argv[2:])
    for k_, v_ in dict(w1pf=0, dscap=4, t4=1, yrot=0, mxp=40, mx=64, late=1, n1=4, n2=5, ms=44, g2p=126, g2c=176, spos=230, mp=115, mc=155, nh=13).items(): opt.setdefault(k_, v_)
    open(sys.argv[1], "w").write(gen7.build("min" if "min" in sys.argv[2:] else "prof" in sys.argv[2:], opt, cls=F11))
```

```python
import sys, struct, math
from dsl import align8, Asm, interleave, Item, Stream, FragStream, gap_sched
import gen3
from gen import (NAME, fbits, FLG, PROF, WS_BYTES, PY, PX, CBP, CPITCH, U_OFF, LDS_BYTES, sp, SX, SW1, SW2, SOUT, SWS,
                 WAVE, XCD, JJ, SID, vr, ar, kdesc, khead, header)
from gen2 import FY, FX, FH, FS, TAG, SC, S_PAIR, S_SNG, S_HA, S_HC, S_Y, S_ROW
from gen3 import XNT, XP, W2F, HF, ST, SP, TABSZ, TP, RP, KC, CB0, SNG, PAIR, RING, G2X, G2S, parse

YT, XT, W2S, CNT = 0, 10496, 26112, 34304
S_YB, S_YE = "s96", "s97"
V_FX, V_FY, V_KR, V_CNT = 208, 209, 210, 211
VCA, VCB = 212, 213
V_T = 214
V_UG, V_UL, V_ES, V_Z1, V_Z2 = 222, 223, 224, 227, 228
V_P0, V_P1, V_S, V_HF = 236, 237, 238, 239
V_B1, V_DUM, V_ONE = 240, 248, 252
VSL, VCW, VPW, VPR, VXL, VXD, VSR = 214, 215, 216, 217, 218, 219, 220
VX, VFH, VFS, VSG, VB2 = 224, 227, 228, 229, 230
for k in ("V_FX V_FY V_KR VCA VCB V_T V_P0 V_P1 V_S V_HF V_B1 V_DUM V_ONE VSL VCW VPW VPR VXL VXD VSR VX VFH VFS VSG VB2").split():
    setattr(gen3, k, globals()[k])

class F4(gen3.F3):
    def start(self, a):
        o = self.o
        a(f"""
        s_load_dwordx16 s[16:31], s[0:1], 0
        s_load_dwordx16 s[32:47], s[0:1], 64
        s_load_dwordx2 s[48:49], s[0:1], 128
        s_cmp_ge_u32 s2, 256
        s_cbranch_scc1 L_end
        s_getpc_b64 s[72:73]
        L_pc:
        v_lshrrev_b32 v1, 6, v0
        s_lshr_b32 {JJ}, s2, 3
        v_and_b32 v0, 63, v0
        s_lshl_b32 s7, {JJ}, 4
        v_lshl_add_u32 v8, v1, 2, v0
        v_readfirstlane_b32 {WAVE}, v1
        v_add_lshl_u32 v8, v8, s7, 7
        v_mov_b32 v{V_CNT}, {CNT}
        v_min_u32 v8, L_code_end-L_pc-4, v8
        v_mov_b64 v[4:5], 0
        v_mov_b64 v[6:7], 0
        s_mov_b64 exec, 15
        global_load_dword v{V_DUM}, v8, s[72:73]
        ds_write_b128 v{V_CNT}, v[4:7]
        ds_write_b64 v{V_CNT}, v[4:5] offset:16
        s_mov_b64 exec, -1
        s_and_b32 {XCD}, s2, 7
        s_lshl_b32 {SID}, {XCD}, 5
        s_add_u32 {SID}, {SID}, {JJ}
        v_lshrrev_b32 v2, 4, v0
        v_and_b32 v3, 15, v0
        s_lshr_b32 s9, {JJ}, 2
        s_and_b32 s7, {XCD}, 1
        s_lshl_b32 s7, s7, 3
        s_mul_i32 s83, s9, 10
        s_add_u32 s9, s9, s7
        s_lshr_b32 s83, s83, 3
        s_mul_i32 s83, s83, {1 if o.get("yrot", 1) else 0}
        s_and_b32 s7, s9, 1
        s_mul_i32 {S_PAIR}, s9, 192
        s_add_u32 {S_SNG}, {S_PAIR}, 128
        s_lshl_b32 s74, s7, 6
        s_add_u32 {S_PAIR}, {S_PAIR}, s74
        s_lshl_b32 s74, s7, 7
        s_sub_u32 {S_SNG}, {S_SNG}, s74
        s_mov_b32 s54, 2621440
        s_mov_b32 s55, 0x20000
        s_mov_b32 s58, 1966080
        s_mov_b32 s59, 0x20000
        s_mov_b32 s70, {WS_BYTES}
        s_mov_b32 s71, 0x20000
        s_cmp_eq_u32 {WAVE}, 3
        s_cbranch_scc1 L_w3
        v_mul_u32_u24 v7, 1280, v2
        v_lshl_add_u32 v7, v3, 4, v7
        s_lshl_b32 s72, {SID}, 1
        s_add_u32 s72, s72, {WAVE}
        s_mul_i32 s72, s72, 5120
        s_cmp_eq_u32 {WAVE}, 2
        s_cselect_b32 s72, 0x1000000, s72
        s_cselect_b32 s73, {FLG}, s70
        s_mul_i32 s10, {XCD}, 80
        s_mul_i32 s7, {JJ}, 3
        s_add_u32 s10, s10, s7
        s_add_u32 s11, s10, {WAVE}
        s_min_u32 s11, s11, 639
        s_mul_i32 s7, s11, 384
        v_lshl_add_u32 v8, v0, 1, s7
        s_lshl_b32 s7, s11, 1
        v_mov_b32 v6, s7
        """)
        for k in list(range(10, 30, 2)) + [40, 42, 44]: a(f"v_mov_b64 {vr(k,2)}, 0")
        a(f"""
        s_waitcnt lgkmcnt(0)
        s_mov_b64 s[52:53], {sp('x')}
        s_add_u32 s68, s48, {self.o.get("wsoff", 0)}
        s_addc_u32 s69, s49, 0
        """)
        for i in range(5):
            a(f"buffer_load_dwordx4 {vr(48+4*i,4)}, v7, {SX}, s72 offen offset:{256*i}{o.get('xnt', '')}")
        a(f"buffer_load_dword v9, off, {SWS}, s73{SC}")
        self.pstart(a)
        a(f"global_load_short_d16_hi v28, v6, {sp('ldt')}\nglobal_load_short_d16_hi v29, v6, {sp('dsk')}")
        for c in range(3):
            for k, n in enumerate(("are", "aim", "bre", "bim", "cre", "cim")):
                a(f"global_load_short_d16_hi v{10+6*c+k}, v8, {sp(n)} offset:{128*c}{o.get('pnt', '')}")
        a("s_barrier")

    def pstart(self, a):
        if self.prof:
            a("s_memrealtime s[100:101]\ns_waitcnt lgkmcnt(0)\ns_mov_b32 s99, s100")
            a(self.st("start"))

    def consts(self, a):
        T = V_T
        a(f"""
        v_and_b32 v5, 31, v0
        v_lshl_add_u32 v8, v5, 1, {S_PAIR}
        v_lshl_add_u32 v6, v5, 1, {S_SNG}
        """)
        for k in range(V_B1, V_B1 + 8, 2): a(f"v_mov_b64 {vr(k,2)}, 0")
        a(f"""
        s_mov_b32 s62, 1966080
        s_mov_b32 s63, 0x20000
        s_mov_b32 s66, 2621440
        s_mov_b32 s67, 0x20000
        s_mov_b64 s[56:57], {sp('w1')}
        s_mov_b64 s[60:61], {sp('w2')}
        s_mov_b64 s[64:65], {sp('out')}
        global_load_ushort v{V_B1}, v8, {sp('b1')}
        global_load_ushort v{V_B1+2}, v8, {sp('b1')} offset:64
        global_load_ushort v{V_B1+4}, v6, {sp('b1')}
        """)
        if self.prof:
            for r in self.STAMPS[1:]: a(f"s_mov_b32 s{r}, 0")
        a(f"""
        v_lshlrev_b32 v1, 4, v0
        v_lshrrev_b32 v4, 5, v0
        s_mul_i32 s7, {WAVE}, {TABSZ}
        v_mul_u32_u24 v{V_KR}, {TP}, v5
        v_lshl_add_u32 v6, v4, 4, s7
        v_add_u32 v{V_KR}, v{V_KR}, v6
        s_mul_i32 s7, {WAVE}, {RP}
        v_lshl_add_u32 v6, v4, 4, s7
        v_lshl_add_u32 v{T}, v5, 5, v6
        v_cmp_gt_u32 vcc, 32, v0
        v_lshl_add_u32 v6, v5, 4, s7
        v_lshl_add_u32 v7, v5, 3, s7
        v_add_u32 v8, 1024, v6
        v_add_u32 v30, 1536, v7
        v_cndmask_b32 v{T+1}, v30, v8, vcc
        v_add_u32 v8, 1032, v6
        v_add_u32 v30, 1792, v7
        v_cndmask_b32 v{T+2}, v30, v8, vcc
        v_mov_b32 v8, 0x3f80
        v_cndmask_b32 v{V_ONE}, 0, v8, vcc
        v_mov_b32 v{V_ONE+1}, 0
        v_mov_b64 {vr(V_ONE+2,2)}, 0
        v_sub_u32 v6, 63, v0
        v_lshl_add_u32 v{T+3}, v6, 3, s7
        v_lshl_add_u32 v{T+4}, v6, 4, s7
        v_lshl_add_u32 v{T+5}, v0, 5, s7
        v_lshl_add_u32 v{T+6}, v0, 4, s7
        v_lshl_add_u32 v{T+7}, v0, 3, s7
        s_lshl_b32 s7, {WAVE}, 10
        v_lshl_add_u32 v{V_ES}, v0, 2, s7
        v_add_u32 v{V_ES+1}, {RP}, v{V_ES}
        v_add_u32 v{V_ES+2}, {2*RP}, v{V_ES}
        s_add_u32 s74, s7, {CB0+U_OFF+512}
        v_and_b32 v6, 3, v0
        v_lshrrev_b32 v7, 2, v0
        v_min_u32 v8, 2, v6
        v_mul_u32_u24 v{V_UG}, {XP}, v7
        v_lshl_add_u32 v{V_UG}, v8, 4, v{V_UG}
        v_mul_u32_u24 v{V_UL}, {CBP}, v8
        v_lshl_add_u32 v30, v7, 4, s74
        v_add_u32 v{V_UL}, v{V_UL}, v30
        v_lshlrev_b32 v{V_FX}, 8, v7
        v_lshl_add_u32 v{V_FX}, v6, 4, v{V_FX}
        v_lshlrev_b32 v{V_FY}, 2, v6
        s_min_u32 s7, {WAVE}, 2
        s_mul_i32 s7, s7, {CBP}
        s_add_u32 s74, s7, {CB0+4096}
        s_add_u32 s7, s7, {CB0+U_OFF}
        v_lshl_add_u32 v{V_Z2}, v0, 3, s7
        v_sub_u32 v8, v3, v4
        v_lshl_add_u32 v8, v8, 2, s74
        v_mul_u32_u24 v{V_Z1}, {CPITCH}, v2
        v_add_u32 v{V_Z1}, v{V_Z1}, v8
        v_and_b32 v8, 1, v2
        v_lshlrev_b32 v6, 3, v6
        v_lshl_add_u32 v6, v8, 5, v6
        v_and_b32 v7, 3, v7
        v_lshl_add_u32 v7, v4, 3, v7
        v_lshl_add_u32 v{V_S}, v7, 6, v6
        v_add_u32 v{V_S}, {SNG}, v{V_S}
        v_lshl_add_u32 v{V_P0}, v7, 7, v6
        v_and_b32 v7, 8, v0
        v_lshl_add_u32 v{V_P0}, v7, 3, v{V_P0}
        v_add_u32 v{V_P0}, {PAIR}, v{V_P0}
        v_xor_b32 v{V_P1}, 64, v{V_P0}
        v_mul_u32_u24 v{V_HF}, 49152, v8
        v_lshl_add_u32 v{V_HF}, v4, 8, v{V_HF}
        v_lshl_add_u32 v{V_HF}, v3, 4, v{V_HF}
        s_cmp_eq_u32 {WAVE}, 3
        s_cselect_b32 s7, 0, {WAVE}
        s_mul_i32 s7, s7, {CBP}
        s_add_u32 s7, s7, {CB0}
        v_lshl_add_u32 v6, v2, 4, s7
        v_lshl_add_u32 v{VCB}, v3, 5, v6
        v_sub_u32 v7, 15, v3
        v_and_b32 v8, 3, v7
        v_and_b32 v7, 12, v7
        v_lshl_add_u32 v6, v7, 1, v6
        v_mul_u32_u24 v{VCA}, {CPITCH}, v8
        v_add_u32 v{VCA}, v{VCA}, v6
        s_lshr_b32 s8, {XCD}, 1
        s_lshl_b32 s12, s8, 3
        s_lshl_b32 s8, s8, 2
        s_and_b32 s7, {JJ}, 3
        s_add_u32 s8, s8, s7
        s_and_b32 s7, {JJ}, 7
        s_add_u32 s12, s12, s7
        s_and_b32 s13, {XCD}, 1
        s_lshl_b32 s13, s13, 2
        s_lshr_b32 s7, {JJ}, 3
        s_add_u32 s13, s13, s7
        s_add_u32 s11, {"s7" if self.o.get("hrot", 0) else "0"}, {WAVE}
        s_and_b32 s11, s11, 3
        s_lshl_b32 {S_YB}, s8, 2
        s_add_u32 {S_YB}, {S_YB}, {WAVE}
        s_mul_i32 {S_HA}, {S_YB}, 96
        s_mul_i32 {S_YB}, {S_YB}, 40960
        s_add_u32 {S_YE}, {S_YB}, 40960
        s_lshl_b32 s7, s83, 12
        s_add_u32 {S_Y}, {S_YB}, s7
        s_lshl_b32 s86, s8, 8
        s_lshl_b32 s7, {WAVE}, 4
        s_add_u32 s86, s86, s7
        s_add_u32 s86, s86, {FY}
        """)

    def late_scalars(self):
        return [f"s_mul_i32 s73, s9, 3", f"s_add_u32 {S_HA}, {S_HA}, s73", f"s_lshl_b32 {S_HA}, {S_HA}, 10", f"s_add_u32 {S_HA}, {S_HA}, {HF}",
                f"s_add_u32 {S_HC}, {S_HA}, 2048", f"s_and_b32 s73, s9, 1", f"s_lshl_b32 s73, s73, 10", f"s_add_u32 {S_HA}, {S_HA}, s73",
                f"s_lshl_b32 s73, s73, 1", f"s_sub_u32 {S_HC}, {S_HC}, s73",
                f"s_mul_i32 s10, {XCD}, 80", f"s_mul_i32 s73, {JJ}, 3", f"s_add_u32 s10, s10, s73",
                f"s_cmp_lt_u32 {JJ}, 27\ns_cselect_b32 s10, s10, 0x20000", f"s_mul_i32 {S_ROW}, s10, {SP}", f"s_add_u32 {S_ROW}, {S_ROW}, {ST}",
                f"s_lshl_b32 s83, s10, 4", f"s_mul_i32 s73, {WAVE}, {64*XP}", f"s_add_u32 s83, s83, s73",
                f"s_cmp_lt_u32 {JJ}, 27\ns_cselect_b32 s83, s83, 0x1000000", f"s_add_u32 s83, s83, {XNT}",
                f"s_mul_i32 s85, s13, 20", f"s_add_u32 s85, s85, {WAVE}", f"s_mul_i32 s85, s85, {12*1024}", f"s_add_u32 s85, s85, {W2F}"]

    def step(self, a):
        a(f"s_lshl_b32 s7, s82, 1\ns_add_u32 m0, s7, {PAIR}\ns_add_u32 s7, s80, {S_PAIR}")
        for k in range(4): a(f"buffer_load_dwordx4 v{40+k}, {SW1}, s7 offen offset:{1024*k} lds")
        a(f"s_add_u32 m0, s82, {SNG}\ns_add_u32 s7, s80, {S_SNG}")
        for k in range(2): a(f"buffer_load_dwordx4 v{44+k}, {SW1}, s7 offen offset:{1024*k} lds")
        a(f"""
        s_add_u32 s82, s82, 2048
        s_add_u32 s80, s80, {32*3072}
        s_cmp_eq_u32 s82, 40960
        s_cselect_b32 s82, 0, s82
        s_cmp_eq_u32 s80, {640*3072}
        s_cselect_b32 s80, 0, s80
        """)

    def wave3a(self, a):
        o = self.o
        a(f"""
        v_lshrrev_b32 v4, 3, v0
        v_mul_u32_u24 v40, 3072, v4
        v_lshrrev_b32 v4, 2, v0
        v_mul_u32_u24 v44, 3072, v4
        v_xor_b32 v4, v4, v2
        v_and_b32 v4, 1, v4
        v_lshl_add_u32 v40, v4, 6, v40
        v_and_b32 v4, 3, v0
        v_lshl_add_u32 v40, v4, 4, v40
        v_lshl_add_u32 v44, v4, 4, v44
        v_add_u32 v41, {24576-1024}, v40
        v_add_u32 v42, {24576-1024}, v41
        v_add_u32 v43, {24576-1024}, v42
        v_add_u32 v45, {49152-1024}, v44
        s_and_b32 s7, {JJ}, 3
        s_mul_i32 s82, s7, 10240
        s_mul_i32 s80, s7, 5
        s_lshl_b32 s7, s83, 1
        s_add_u32 s80, s80, s7
        s_sub_u32 s7, s80, 20
        s_cselect_b32 s80, s80, s7
        s_mul_i32 s80, s80, {32*3072}
        s_mov_b32 s73, {o.get("n0", 4)}
        v_min_u32 v4, 59, v0
        v_mul_u32_u24 v5, 5462, v4
        v_lshrrev_b32 v5, 16, v5
        v_mul_u32_u24 v5, {3072-12*128}, v5
        v_lshl_add_u32 v46, v4, 7, v5
        v_add_u32 v47, {5*3072}, v46
        s_mul_i32 s74, {JJ}, {20*3072}
        s_and_b32 s7, {XCD}, 1
        s_mul_i32 s7, s7, 1536
        s_add_u32 s74, s74, s7
        s_add_u32 s75, s74, {10*3072}
        s_waitcnt lgkmcnt(0)
        s_mov_b64 s[52:53], {sp('x')}
        s_add_u32 s68, s48, {self.o.get("wsoff", 0)}
        s_addc_u32 s69, s49, 0
        s_mov_b64 s[56:57], {sp('w1')}
        """)
        self.pstart(a)
        a("s_barrier")
        if o.get("w1pf", 0):
            for i in range(4): a(f"buffer_load_dword v{V_DUM}, v{46+(i&1)}, {SW1}, s{74+(i>>1)} offen{o.get('w1nt', '')}")
        for _ in range(o.get("n0", 4)): self.step(a)

    def spin(self, name, off, both):
        t = (f"L_sp{name}:\nds_read_b64 v[4:5], v{V_CNT} offset:{off}\ns_waitcnt lgkmcnt(0)\n")
        if both: t += "v_and_b32 v4, v4, v5\n"
        t += f"v_readfirstlane_b32 s7, v4\ns_cmp_eq_u32 s7, 0\ns_cbranch_scc1 L_sp{name}"
        if not both: t += f"\nv_readfirstlane_b32 {TAG}, v5\nv_readfirstlane_b32 s51, v5"
        return t

    def wave3b(self, a):
        a(f"L_dma:\ns_waitcnt vmcnt({self.o.get('dcap', 24)})")
        self.step(a)
        a(f"s_add_u32 s73, s73, 1\ns_cmp_lt_u32 s73, 20\ns_cbranch_scc1 L_dma")
        a(self.st("w3.dma"))
        a(self.spin("3", 16, False))
        a(self.poll_load(4, False, V_FY, "s86"))
        a(self.poll_check("y3", 4, False, V_FY, "s86"))
        a(self.st("ypoll"))
        for x in self.yloads()[:self.o.get("ny", 8)]: a(x)

    def red16(self, v, fill):
        L = []
        for i, m in enumerate(("quad_perm:[1,0,3,2]", "quad_perm:[2,3,0,1]", "row_half_mirror", "row_mirror")):
            L += fill[2 * i:2 * i + 2] + [f"v_add_f32_dpp v{v}, v{v}, v{v} {m} row_mask:0xf bank_mask:0xf"]
        return L + fill[8:]

    def s4(self, a):
        R, X = 48, 112
        for k in range(20):
            a(f"v_lshlrev_b32 v{X+2*k}, 16, v{R+k}\nv_and_b32 v{X+2*k+1}, 0xffff0000, v{R+k}")
            if k == 0: a(self.st("s.x"))
        a(f"v_pk_add_f32 v[160:161], {vr(X,2)}, {vr(X+2,2)}")
        for k in range(2, 20): a(f"v_pk_add_f32 v[160:161], v[160:161], {vr(X+2*k,2)}")
        a("v_add_f32 v160, v160, v161")
        fill = [f"s_lshl_b32 s7, {WAVE}, 2", "v_add_u32 v6, s7, v2", f"v_add_u32 v8, s7, v{V_CNT}", f"v_mul_u32_u24 v4, {PY}, v6",
                f"v_mul_u32_u24 v5, {PX}, v6", "v_lshl_add_u32 v4, v3, 4, v4", "v_lshl_add_u32 v5, v3, 4, v5", f"s_mov_b32 s74, {fbits(1/640)}"]
        for x in self.red16(160, fill): a(x)
        a("v_mul_f32 v162, s74, v160")
        for k in range(20):
            a(f"v_pk_add_f32 {vr(X+2*k,2)}, {vr(X+2*k,2)}, v[162:163] op_sel_hi:[1,0] neg_lo:[0,1] neg_hi:[0,1]")
        a(f"v_pk_mul_f32 v[160:161], {vr(X,2)}, {vr(X,2)}")
        for k in range(1, 20): a(f"v_pk_fma_f32 v[160:161], {vr(X+2*k,2)}, {vr(X+2*k,2)}, v[160:161]")
        a("v_add_f32 v160, v160, v161")
        fill = ["v_cvt_pk_bf16_f32 v168, v162, v162", f"s_mov_b32 s75, {fbits(1e-5)}", "v_lshlrev_b32 v168, 16, v168", "v_mov_b32 v7, 1",
                "v_sub_f32 v168, v162, v168", "v_mov_b64 v[196:197], 0", "v_mov_b64 v[200:201], 0", "v_mov_b64 v[202:203], 0"]
        for x in self.red16(160, fill): a(x)
        a("v_mul_f32 v160, s74, v160")
        self.rbf(a, 161, 160)
        a("v_add_f32 v161, s75, v161")
        self.rbf(a, 161, 161)
        a("v_sqrt_f32 v161, v161")
        self.rbf(a, 161, 161)
        a("v_rcp_f32 v164, v161")
        a("v_mul_f32 v160, v160, v164\nv_mul_f32 v160, v160, v164")
        self.rbf(a, 161, 160)
        a("v_add_f32 v161, s75, v161")
        self.rbf(a, 161, 161)
        a("v_sqrt_f32 v161, v161\nv_mul_f32 v168, v168, v164")
        self.rbf(a, 161, 161)
        a("v_rcp_f32 v166, v161\nv_mul_f32 v166, v166, v164")
        for k in range(20):
            a(f"v_pk_mul_f32 v[170:171], {vr(X+2*k,2)}, v[166:167] op_sel_hi:[1,0]\nv_cvt_pk_bf16_f32 v{R+k}, v170, v171")
        for i in range(5): a(f"ds_write_b128 v4, {vr(R+4*i,4)} offset:{YT+256*i}")
        a("s_mov_b64 exec, 1\nds_write_b32 v8, v7\ns_mov_b64 exec, -1")
        pass
        for k in range(20):
            a(f"v_pk_fma_f32 v[170:171], {vr(X+2*k,2)}, v[164:165], v[168:169] op_sel_hi:[1,0,0]\nv_cvt_pk_bf16_f32 v{R+20+k}, v170, v171")
        for i in range(5): a(f"ds_write_b128 v5, {vr(R+20+4*i,4)} offset:{XT+256*i}")
        a("s_mov_b64 exec, 1\nds_write_b32 v8, v7 offset:8\ns_mov_b64 exec, -1")
        a(self.st("s.done"))

    def w2_pre(self, a):
        a(f"""
        v_and_b32 v4, 7, v0
        v_lshrrev_b32 v5, 3, v0
        v_mul_u32_u24 v196, {PY}, v4
        v_lshl_add_u32 v196, v5, 4, v196
        v_lshlrev_b32 v197, 9, v5
        v_lshl_add_u32 v197, v4, 4, v197
        v_bfe_u32 v4, v0, 2, 2
        v_and_b32 v5, 3, v0
        v_mul_u32_u24 v198, {PX}, v4
        v_lshl_add_u32 v198, v2, 5, v198
        v_lshl_add_u32 v198, v5, 3, v198
        v_lshrrev_b32 v4, 5, v0
        v_lshlrev_b32 v199, 12, v4
        v_bfe_u32 v4, v0, 2, 3
        v_lshl_add_u32 v199, v4, 8, v199
        v_lshl_add_u32 v199, v5, 3, v199
        v_mul_u32_u24 v200, 1280, v2
        v_lshl_add_u32 v200, v3, 4, v200
        v_add_u32 v201, {5120-1024}, v200
        v_add_u32 v202, {5120-1024}, v201
        v_add_u32 v203, {5120-1024}, v202
        s_min_u32 s7, s2, 239
        s_mul_i32 s14, s7, 52429
        s_lshr_b32 s14, s14, 18
        s_mul_i32 s15, s14, 5
        s_sub_u32 s15, s7, s15
        s_mul_i32 s84, s14, 40960
        s_lshl_b32 s7, s15, 8
        s_add_u32 s84, s84, s7
        s_mul_i32 s15, s15, {8*48}
        s_add_u32 s14, s14, s15
        s_lshl_b32 s14, s14, 10
        s_add_u32 s14, s14, {W2F}
        s_lshr_b32 s15, {SID}, 2
        s_mul_i32 s15, s15, 40960
        s_and_b32 s7, {SID}, 3
        s_lshl_b32 s7, s7, 7
        s_add_u32 s15, s15, s7
        s_lshr_b32 s81, {SID}, 4
        s_lshl_b32 s81, s81, 8
        s_and_b32 s7, {SID}, 15
        s_lshl_b32 s7, s7, 2
        s_add_u32 s81, s81, s7
        s_add_u32 s81, s81, {FY}
        s_mul_i32 s79, {SID}, {XP}
        s_add_u32 s79, s79, {XNT}
        v_readfirstlane_b32 s7, v9
        s_mul_i32 s7, s7, 1664525
        s_add_u32 {TAG}, s7, 1013904223
        s_mov_b32 s51, {TAG}
        v_mov_b32 v204, 1
        v_mov_b32 v205, {TAG}
        """)

    def only2(self, a, name, body, other=None):
        a(f"s_cmp_eq_u32 {WAVE}, 2\ns_cbranch_scc0 L_o{name}")
        st0 = a.state()
        for x in body: a(x)
        if other:
            a(f"s_branch L_j{name}\nL_o{name}:")
            st1 = a.state(); a.set_state(st0)
            for x in other: a(x)
            a(f"L_j{name}:")
            a.merge([st1, a.state()])
        else:
            a(f"L_o{name}:")
            st1 = a.state()
            a.merge([st0, st1])
        a.vmq = [(set(r), set(t)) for r, t in st1[0]]

    def kgen4(self, a):
        o = self.o
        VF, UF, CH = self.VF, self.UF, 112
        W1, W8, W256, T, C0 = 176, 178, 180, 182, 194
        DT, DTL = 30, 31
        L2E = 1.4426950408889634
        f32 = lambda x: struct.unpack("<f", struct.pack("<f", x))[0]
        I2P = 1 / (2 * math.pi)
        head = (f"""
        s_mov_b32 s72, {fbits(f32(L2E))}
        s_mov_b32 s73, {fbits(L2E-f32(L2E))}
        s_mov_b32 s76, {fbits(math.log(2))}
        v_mul_f32 v{T}, s72, v28
        v_fma_f32 v{T+1}, v28, s72, -v{T}
        v_fma_f32 v{T+1}, v28, s73, v{T+1}
        v_exp_f32 v{T}, v{T}
        v_mul_f32 v{T+1}, s76, v{T+1}
        v_cmp_eq_u32 vcc, 0, v0
        v_fma_f32 v{T}, v{T}, v{T+1}, v{T}
        v_cvt_pk_bf16_f32 v{DT}, v{T}, v{T}
        v_lshlrev_b32 v{DT}, 16, v{DT}
        v_cndmask_b32 v29, 0, v29, vcc
        v_mul_f32 v{DTL}, s72, v{DT}
        s_mov_b32 s74, {fbits(f32(I2P))}
        s_mov_b32 s75, {fbits(I2P-f32(I2P))}
        s_mov_b32 s77, {fbits(256.0)}
        s_mov_b32 s78, {fbits(8.0)}
        """)
        pass
        yl = self.yloads()[:o.get("ny", 8)]
        m0tab = f"s_mul_i32 m0, {WAVE}, {TABSZ}"
        P1 = [self.spin("y", 0, True)] + [f"ds_read_b128 {ar(4*I,4)}, v196 offset:{YT+128*I}" for I in range(10)]
        for I in range(10):
            P1.append(f"buffer_store_dwordx4 {ar(4*I,4)}, v197, {SWS}, s15 offen{SC} @yst" + ("\ns_add_u32 s15, s15, 4096" if I < 9 else ""))
        P1 += [self.st("p.yst"), self.spin("x", 8, True)]
        for I in range(10):
            P1 += [f"ds_read_b64_tr_b16 {ar(40+4*I,2)}, v198 offset:{XT+128*I}", f"ds_read_b64_tr_b16 {ar(42+4*I,2)}, v198 offset:{XT+128*I+4*PX}"]
        P1.append(f"s_mov_b64 exec, 1\nds_write_b64 v{V_CNT}, v[204:205] offset:16\ns_mov_b64 exec, -1")
        w2d = [f"s_mov_b32 m0, {W2S}"]
        for h in range(2):
            w2d += [f"buffer_load_dwordx4 v{200+k}, {SW2}, s84 offen offset:{1024*k}{o.get('wnt', '')} lds @w2dma" for k in range(4)]
            if h == 0: w2d.append(f"s_mov_b32 m0, {W2S+4096}\ns_add_u32 s84, s84, {4*5120}")
        xst = []
        for I in range(10):
            xst.append(("s_add_u32 s79, s79, 4096\n" if I in (4, 8) else "") + f"buffer_store_dwordx4 {ar(40+4*I,4)}, v1, {SWS}, s79 offen offset:{1024*(I%4)}{SC}")
        w2r = ["WAITVM w2dma"]
        for db in range(8):
            w2r += [f"ds_read_b64_tr_b16 {ar(80+4*db,2)}, v199 offset:{W2S+32*db}", f"ds_read_b64_tr_b16 {ar(82+4*db,2)}, v199 offset:{W2S+32*db+2048}"]
        w2s = [f"buffer_store_dwordx4 {ar(80+4*db,4)}, v1, {SWS}, s14 offen{SC}" + (f"\ns_add_u32 s14, s14, {48*1024}" if db < 7 else "") for db in range(8)]
        fy = ["WAITVM yst", f"s_mov_b64 exec, 1\nbuffer_store_dword v205, off, {SWS}, s81{SC}\ns_mov_b64 exec, -1", self.st("p.fy")]
        fx = [f"s_add_u32 s81, s81, {FX-FY}\ns_mov_b64 exec, 1\nbuffer_store_dword v205, off, {SWS}, s81{SC}\ns_mov_b64 exec, -1", ""]
        fypos = o.get("fypos", 1)
        p1pos = o.get("p1pos", 1)
        if p1pos == 0:
            self.only2(a, "p0", P1 + ["s_waitcnt vmcnt(10)"], ["s_waitcnt vmcnt(0)"])
            P1 = []
        a(head)
        for c in range(3):
            p = 10 + 6 * c
            setup = [f"v_mul_f32 v{T}, v{p}, v{DTL}", f"v_mul_f32 v{T+1}, v{p+1}, v{DT}",
                     f"v_mul_f32 v{T+2}, s74, v{T+1}", f"v_fma_f32 v{T+3}, v{T+1}, s74, -v{T+2}",
                     f"v_fma_f32 v{T+3}, v{T+1}, s75, v{T+3}",
                     f"v_mul_f32 v{T+4}, s78, v{T}", f"v_mul_f32 v{T+5}, s78, v{T+2}",
                     f"v_mul_f32 v{T+6}, s77, v{T}", f"v_mul_f32 v{T+7}, s77, v{T+2}",
                     f"v_exp_f32 v{T+4}, v{T+4}", f"v_fract_f32 v{T+5}, v{T+5}",
                     f"v_exp_f32 v{T+6}, v{T+6}", f"v_fract_f32 v{T+7}, v{T+7}",
                     f"v_exp_f32 v{T+8}, v{T}", f"v_fract_f32 v{T+9}, v{T+2}",
                     f"v_fma_f32 v{T+5}, v{T+3}, s78, v{T+5}", f"v_fma_f32 v{T+7}, v{T+3}, s77, v{T+7}",
                     f"v_add_f32 v{T+9}, v{T+3}, v{T+9}",
                     f"v_cos_f32 v{W8}, v{T+5}", f"v_sin_f32 v{W8+1}, v{T+5}",
                     f"v_cos_f32 v{W256}, v{T+7}", f"v_sin_f32 v{W256+1}, v{T+7}",
                     f"v_cos_f32 v{W1}, v{T+9}", f"v_sin_f32 v{W1+1}, v{T+9}"]
            setup += self.cmul(T + 10, p + 4, p + 2)
            setup += [f"v_pk_mul_f32 {vr(W8,2)}, {vr(W8,2)}, {vr(T+4,2)} op_sel_hi:[1,0]",
                      f"v_pk_mul_f32 {vr(W256,2)}, {vr(W256,2)}, {vr(T+6,2)} op_sel_hi:[1,0]",
                      f"v_pk_mul_f32 {vr(W1,2)}, {vr(W1,2)}, {vr(T+8,2)} op_sel_hi:[1,0]",
                      f"v_pk_mul_f32 {vr(C0,2)}, {vr(T+10,2)}, {vr(DT,2)} op_sel_hi:[1,0]"]
            Vv = lambda j: W8 if j == 1 else CH + 2 * j
            vchain = []
            for j in range(2, 32): vchain += self.cmul(Vv(j), Vv(j - 1), W8)
            vcvt = [f"v_mov_b32 v{CH}, 0x3f80"] + [f"v_cvt_pk_bf16_f32 v{CH+2*j}, v{Vv(j)}, v{Vv(j)+1}" for j in range(1, 32)]
            vwr = [f"ds_write_addtid_b32 v{CH+2*j} offset:{TP*j}" for j in range(32)]
            Ur = lambda i: C0 if i == 0 else CH + 2 * i
            uchain = []
            for i in range(1, 8): uchain += self.cmul(Ur(i), Ur(i - 1), W1)
            for i, s in ((8, 0), (9, 2), (10, 4), (11, 6), (12, 8), (13, 10), (14, 12), (15, 13), (16, 14), (17, 16), (18, 17), (19, 18), (20, 19)):
                uchain += self.cmul(Ur(i), Ur(s), W256)
            ucvt = [f"v_cvt_pk_bf16_f32 v{Ur(i)}, v{Ur(i)}, -v{Ur(i)+1}" for i in range(21)]
            uwr = [f"ds_write_addtid_b32 v{Ur(i)} offset:{TP*(i if i < 20 else 23)}" for i in range(21)]
            E = lambda L: [a(x) for x in L]
            ypos = o.get("ypos", 2)
            chk = lambda: (E([self.poll_check("y0", 2, False, V_FY, "s86"), self.st("ypoll")]), self.only2(a, "fx", fx))
            ng = {0: 5, 1: 4, 2: 2}[ypos]
            grp = [yl[len(yl) * k // ng:len(yl) * (k + 1) // ng] for k in range(ng)] if c == 2 else [[]] * 5
            grp = [[]] * (5 - ng) + grp
            E(setup[:6])
            if c: E(self.kreads(UF))
            if c == 1 and fypos == 1: self.only2(a, "fy", fy + xst[:5])
            if c == 2 and ypos == 1: E([self.poll_load(2, False, V_FY, "s86")])
            E(setup[6:])
            if c == 2 and ypos == 0: chk()
            E(grp[0] + vchain)
            if c == 0:
                E(vcvt + (["s_waitcnt vmcnt(0)"] if p1pos else []))
                self.only2(a, "p1", P1 + (fy + xst[:5] if fypos == 3 else []) + w2d, [self.spin("f", 16, False)])
                E([m0tab] + vwr)
            else:
                E(vcvt[:18])
                if c == 1: self.only2(a, "x2", (fy + xst if fypos == 2 else xst[5:]) + w2r)
                if c == 2 and ypos == 2: E([self.poll_load(2, False, V_FY, "s86")])
                if c == 2 and ypos == 1: chk()
                E(grp[1])
                mf = self.kmf(c == 1)
                for k in range(8): E([mf[k]] + vwr[4 * k:4 * k + 4] + vcvt[18 + 2 * k:20 + 2 * k])
            E(uchain[:8] + self.kreads(VF) + grp[2])
            if c == 1: self.only2(a, "w2", w2s)
            E(uchain[8:] + ucvt)
            if c == 1 and ypos == 0: E([self.poll_load(2, False, V_FY, "s86")])
            if c == 2 and ypos == 2: chk()
            E(grp[3] + uwr + grp[4])
            if c == 0 and fypos == 0: self.only2(a, "fy", fy + xst[:5])
            a(self.st(f"kg{c}"))
        for x in self.kreads(UF): a(x)
        a("s_waitcnt lgkmcnt(0)")

    def yloads(self):
        L = []
        for ks in range(40):
            x = f"buffer_load_dwordx4 {ar(4*ks,4)}, v1, {SWS}, {S_Y} offen offset:{1024*(ks%4)}{SC}"
            if ks % 4 == 0 and ks:
                x = f"s_add_u32 {S_Y}, {S_Y}, 4096\ns_cmp_eq_u32 {S_Y}, {S_YE}\ns_cselect_b32 {S_Y}, {S_YB}, {S_Y}\n" + x
            L.append(x)
        return L

    def gemm1f(self, a):
        o = self.o
        ACC = (48, 64, 32)
        uses = [[] for _ in range(10)]
        for ks in range(40): uses += [[(0, ks)], [(1, ks)]]
        uses += [[] for _ in range(41)]
        def reads(f, reg):
            p, ks = f
            base = V_P0 + p
            off = ks * 2048 - (65536 if ks >= 32 else 0)
            pre = [f"v_add_u32 v{base}, 0x10000, v{base}"] if ks == 32 else []
            return pre + [f"ds_read_b64_tr_b16 {vr(reg,2)}, v{base} offset:{off}", f"ds_read_b64_tr_b16 {vr(reg+2,2)}, v{base} offset:{off+512}"]
        fr = FragStream(uses, reads, list(range(112, 144, 4)), lead=6, name="pair")
        main = self.kmf(False)
        main += [f"v_mfma_f32_32x32x16_bf16 {vr(ACC[p],16)}, {vr(V_B1+2*p,4)}, {vr(V_ONE,4)}, 0" for p in range(2)]
        for ks in range(40):
            for p in range(2):
                main.append(lambda p=p, ks=ks: f"v_mfma_f32_32x32x16_bf16 {vr(ACC[p],16)}, {vr(fr.reg[(p,ks)],4)}, {ar(4*ks,4)}, {vr(ACC[p],16)}")
        main.append(self.st("g1.ab") + f"\nv_mfma_f32_32x32x16_bf16 {vr(ACC[2],16)}, {vr(V_B1+4,4)}, {vr(V_ONE,4)}, 0")
        for ks in range(40):
            main.append(f"v_mfma_f32_32x32x16_bf16 {vr(ACC[2],16)}, {self.creg(ks)[0]}, {ar(4*ks,4)}, {vr(ACC[2],16)}")
        for gidx in (10, 26, 42, 58, 70):
            t0 = main[gidx]
            st_ = self.st(f"m{gidx}")
            main[gidx] = (lambda t0=t0, st_=st_: st_ + "\n" + t0())
        mb = o.get("mb", 58)
        S = [fr]
        cpre = []
        for ks in range(40):
            cpre += [f"ds_read_b64_tr_b16 {self.creg(ks)[1](h)}, v{V_S} offset:{ks*1024+256*h}" for h in range(2)]
        S.append(Stream(cpre, 0, mb - 3, ahead=8, name="cpre"))
        ny = o.get("ny", 8)
        yl = [Item(x, hi=max(0, 10 + 2 * (ny + i) - o.get("ylead", 20))) for i, x in enumerate(self.yloads()[ny:])]
        S.append(Stream(yl, 0, o.get("yend", 60), ahead=3, name="y"))
        t1, t2 = self.ktail3()
        S.append(Stream(t1, 10, 26, name="t1"))
        S.append(Stream(t2, 30, mb - 4, name="t2"))
        misc = self.late_scalars() + [f"s_mov_b32 s74, {fbits(-1.5957691216057308*1.4426950408889634)}",
                f"s_mov_b32 s75, {fbits(-1.5957691216057308*0.044715*1.4426950408889634)}",
                "v_mov_b32 v8, s74", "v_mov_b32 v9, s75", "v_mov_b32 v30, 1.0", "v_mov_b32 v31, 1.0"]
        mxp, mx = o.get("mxp", 56), o.get("mx", 78)
        S.append(Stream(misc, 0, mx - 2, name="misc"))
        S.append(Stream([f"s_mov_b32 s84, {FX}\n" + self.poll_load(2, True, V_FX, "s84")], mxp, mxp + 1))
        S.append(Stream([self.poll_check("x", 2, True, V_FX, "s84") + "\n" + self.st("xpoll")] +
                        [("" if i == 0 else f"s_add_u32 s83, s83, {16*XP}\n") + f"buffer_load_dwordx4 {ar(240+4*i,4)}, v{V_UG}, {SWS}, s83 offen{SC}" for i in range(4)],
                        mx, mx + 12, ahead=0))
        nw = o.get("nw", 14)
        S.append(Stream([Item(x, lo=92 + i) for i, x in enumerate(self.w2f_items()[:nw])], max(93, mx + 12), 131, name="w2f"))
        S.append(Stream([f"s_lshl_b32 s7, {WAVE}, 10\ns_add_u32 m0, s7, {CB0}\ns_waitcnt lgkmcnt(0)\ns_barrier"], mb, mb + 1))
        exr, exw = [], []
        e0, e1 = mb + 1, o.get("exend", 89)
        for q in range(12):
            ch, row = divmod(q, 4)
            E, O = 10 + 2 * (q % 6), 22 + (q % 4)
            d = ch * CBP + row * 256
            g0 = e0 + 4 + (e1 - e0 - 4) * q // 12
            g1 = e0 + 4 + (e1 - e0 - 4) * (q + 1) // 12
            prev = e0 + 4 + (e1 - e0 - 4) * (q - 5) // 12 if q >= 6 else e0
            exr.append(Item(f"ds_read2_b32 {vr(E,2)}, v{V_ES+ch} offset0:{64*row} offset1:{64*row+1}", lo=prev + 1, hi=max(prev + 1, g0 - 3)))
            exw += [Item(f"ds_write_addtid_b32 v{E} offset:{d}", lo=g0, hi=g1), Item(f"ds_write_addtid_b32 v{E} offset:{d+2*CPITCH-4}", hi=g1),
                    Item(f"v_alignbit_b32 v{O}, v{E+1}, v{E}, 16", hi=g1),
                    Item(f"ds_write_addtid_b32 v{O} offset:{d+CPITCH}"), Item(f"ds_write_addtid_b32 v{O} offset:{d+3*CPITCH-4}")]
        exw += [f"ds_write_b32 v{V_Z1}, v26", f"ds_write_b64 v{V_Z2}, v[26:27]"]
        S.append(Stream(exr, e0, e1 - 6, ahead=100, name="exr"))
        S.append(Stream(exw, e0 + 4, e1 + 2, ahead=3, name="exw"))
        nB = o.get("nB", 2)
        S.append(Stream(self.gelu4(ACC[0], 10, range(8)) + self.hstore(10, S_HA, 0) + self.gelu4(ACC[1], 18, range(nB)), e1 + 3, 131, ahead=4, name="gelu"))
        gap_sched(a, main, S, "g1")
        a(self.st("g1.c"))
        gp = lambda acc_, out: [x.replace("v[10:11]", "v[30:31]") for x in self.gelu_packed(acc_, out, 2)]
        w2l = self.w2f_items()[nw:]
        nt = o.get("nt", 8)
        for x in gp(64, 18)[nB // 2 * 20:] + self.hstore(18, S_HA, 1024) + w2l[:nt // 2]: a(x)
        for i in range(4): a(f"ds_write_b128 v{V_UL}, {ar(240+4*i,4)} offset:{256*i}")
        gc = gp(32, 80)
        for x in gc[:20]: a(x)
        a("s_waitcnt lgkmcnt(0)\ns_barrier")
        self.tail = gc[20:40] + self.hstore(80, S_HC, 0)[:1] + w2l[nt // 2:nt] + gc[40:] + self.hstore(80, S_HC, 0)[1:]
        self.w2rest = w2l[nt:]

    def late_consts(self):
        t = 233
        L = []
        for i in range(3):
            L += [f"v_add_u32 v{t}, {64*i}, v0", f"v_mul_u32_u24 v{t+1}, 6554, v{t}", f"v_lshrrev_b32 v{t+1}, 16, v{t+1}",
                  f"v_mul_u32_u24 v{t+1}, 1120, v{t+1}", f"v_lshl_add_u32 v{VX+i}, v{t}, 4, v{t+1}"]
        L += [f"v_and_b32 v{t}, 15, v0", f"v_lshrrev_b32 v{t+1}, 4, v0", f"s_mul_i32 s73, s13, 160", f"v_lshl_add_u32 v{VB2}, v{t}, 1, s73",
              f"s_lshl_b32 s14, s12, 2", f"s_add_u32 s14, s14, s11", f"s_mul_i32 s14, s14, {16*1280}", f"s_add_u32 s14, s14, s73",
              f"v_cmp_gt_u32 vcc, 16, v0", f"s_mul_i32 s15, {WAVE}, 3072", f"s_add_u32 s15, s15, {G2X}", f"v_cndmask_b32 v{V_ONE}, 0, v{V_ONE}, vcc",
              f"s_mov_b32 m0, s15", f"v_add_u32 v{VXL}, s15, v1",
              f"v_mul_u32_u24 v{VXD}, 160, v{t}", f"v_lshl_add_u32 v{t+2}, v{t+1}, 3, s15", f"v_add_u32 v{VXD}, v{VXD}, v{t+2}",
              f"s_mul_i32 s73, {WAVE}, 10240", f"s_add_u32 s73, s73, {RING}", f"v_add_u32 v{VPW}, s73, v1",
              f"v_lshl_add_u32 v{t+2}, v{t+1}, 3, s73", f"v_lshl_add_u32 v{VCW}, v{t}, 5, v{t+2}",
              f"v_and_b32 v{t}, 3, v0", f"v_and_b32 v{t+1}, 4, v0", f"v_lshl_add_u32 v{VFH}, v{t}, 4, v{t+1}"]
        return L

    def late_consts2(self):
        t = 233
        return [f"s_add_u32 s73, {WAVE}, 1", f"s_and_b32 s73, s73, 3", f"s_mul_i32 s73, s73, 10240", f"s_add_u32 s73, s73, {RING}",
                f"v_lshl_add_u32 v{VPR}, v0, 2, s73",
                f"v_min_u32 v{t}, 26, v0", f"v_lshrrev_b32 v{t+1}, 2, v{t}", f"v_and_b32 v{t}, 3, v{t}", f"v_lshlrev_b32 v{VFS}, 8, v{t+1}",
                f"v_lshl_add_u32 v{VFS}, v{t}, 4, v{VFS}",
                f"v_lshrrev_b32 v{t}, 3, v0", f"v_and_b32 v{t+1}, 7, v0", f"v_mul_u32_u24 v{VSG}, {SP}, v{t}", f"v_lshl_add_u32 v{VSG}, v{t+1}, 4, v{VSG}",
                f"v_lshrrev_b32 v{t+1}, 1, v{t+1}", f"v_mul_u32_u24 v{VSL}, 2560, v{t+1}", f"v_lshl_add_u32 v{VSL}, v{t}, 5, v{VSL}",
                f"s_mul_i32 s73, {WAVE}, 640", f"s_add_u32 s73, s73, {G2S}",
                f"v_and_b32 v{t+1}, 1, v0", f"v_lshl_add_u32 v{t+1}, v{t+1}, 4, s73", f"v_add_u32 v{VSL}, v{VSL}, v{t+1}",
                f"s_mul_i32 s73, s11, 2560", f"s_add_u32 s73, s73, {G2S}", f"v_lshl_add_u32 v{VSR}, v0, 3, s73"]

    def conv(self, a, role):
        o = self.o
        seq = []
        if role == 0:
            blocks = [4, 5, 6, 7, 0]
            for r in range(8):
                for c in range(8):
                    if c == 4: seq.append((0, r, 0, 0))
                    for e in range(7, -1, -1):
                        if e + c in (4, 5, 6, 7): seq.append((0, r, e, c))
            acc = lambda ch, b: 2 + 4 * blocks.index(b)
        else:
            for r in range(8):
                for ch in range(3):
                    for c in range(4):
                        for e in range(3, -1, -1):
                            if e + c in (1, 2, 3): seq.append((ch, r, e, c))
            acc = lambda ch, b: 2 + 12 * ch + 4 * (b - 1)
        uses = [[("B", ch, r, c), ("A", ch, r, e)] for ch, r, e, c in seq]
        def reads(f, reg):
            k, ch, r, i = f
            if k == "B":
                return [f"ds_read_b128 {vr(reg,4)}, v{VCB} offset:{ch*CBP+U_OFF+480+512*i-64*r}"]
            off = ch * CBP + 4032 - 512 * i - 64 * r
            return [f"ds_read_b64 {vr(reg,2)}, v{VCA} offset:{off}", f"ds_read_b64 {vr(reg+2,2)}, v{VCA} offset:{off+8}"]
        pool = list(range(88, 128, 4)) + list(range(48, 88, 4))
        fr = FragStream(uses, reads, pool, lead=12, pre=o.get("cvpre", 9), name="cv")
        for x in fr.pro + self.tail: a(x)
        a(self.st("g1.tail"))
        n = len(seq)
        seen = set()
        main = []
        for ch, r, e, c in seq:
            d = vr(acc(ch, e + c), 4)
            cin = d if (ch, e + c) in seen else "0"
            seen.add((ch, e + c))
            main.append(lambda d=d, cin=cin, A=("A", ch, r, e), B=("B", ch, r, c): f"v_mfma_f32_16x16x32_bf16 {d}, {vr(fr.reg[A],4)}, {vr(fr.reg[B],4)}, {cin}")
        mf, mp, mc = o.get("mf", 66), o.get("mp", 150), o.get("mc", 190)
        S = [fr]
        S.append(Stream(self.w2rest, 4, o.get("wend", 190), name="w2f"))
        sal = [f"s_lshl_b32 s81, s8, 2", f"s_lshr_b32 s80, s9, 2", f"s_add_u32 s81, s81, s80", f"s_lshl_b32 s81, s81, 8",
               f"s_and_b32 s80, s9, 3", f"s_lshl_b32 s80, s80, 2", f"s_add_u32 s80, s80, {WAVE}", f"s_lshl_b32 s80, s80, 2",
               f"s_add_u32 s81, s81, s80", f"s_add_u32 s81, s81, {FH}", f"v_mov_b32 v232, {TAG}",
               f"s_lshr_b32 s86, s12, 1", f"s_lshl_b32 s86, s86, 2", f"s_add_u32 s86, s86, {WAVE}", f"s_lshl_b32 s86, s86, 8",
               f"s_and_b32 s80, s12, 1", f"s_lshl_b32 s80, s80, 3", f"s_add_u32 s86, s86, s80", f"s_add_u32 s86, s86, {FH}",
               f"s_lshl_b32 s82, s12, 4", f"s_add_u32 s82, s82, {WAVE}", f"s_mul_i32 s82, s82, {12*1024}", f"s_add_u32 s82, s82, {HF}"]
        S.append(Stream(sal, 1, mf - 2, name="sal"))
        S.append(Stream([f"WAITVM hst\ns_mov_b64 exec, 1\nbuffer_store_dword v232, off, {SWS}, s81{SC}\ns_mov_b64 exec, -1\n" + ""], mf, mf + 1))
        side = self.late_consts() + [f"v_accvgpr_write_b32 a{k}, 0" for k in (241, 243, 245, 247, 249, 250, 251)]
        side += [f"global_load_ushort a{240+2*jb}, v{VB2}, {sp('b2')} offset:{32*jb}" for jb in range(5)]
        S.append(Stream(side, 4, mp - 2, name="side"))
        S.append(Stream([self.poll_load(231, False, VFH, "s86")], mp, mp + 1))
        nh = o.get("nh", 7)
        hl = self.hloads(0) + self.hloads(1)
        S.append(Stream([self.poll_check(f"h{role}", 231, False, VFH, "s86") + "\n" + self.st("hpoll")] + hl[:nh], mc, n, ahead=0, name="h"))
        gap_sched(a, main, S, f"conv{role}")
        a(self.st("cv.main"))
        order = [4, 0, 1, 2, 3] if role == 0 else list(range(9))
        for q in order:
            a(f"v_cvt_pk_bf16_f32 v{96+2*q}, v{2+4*q}, v{3+4*q}\nv_cvt_pk_bf16_f32 v{97+2*q}, v{4+4*q}, v{5+4*q}")
        for q in order:
            a(f"ds_write_b64 v{VCW}, {vr(96+2*q,2)} offset:{512*q}")
        k1 = nh + 3
        for x in hl[nh:k1]: a(x)
        k2 = max(k1, 13)
        if role == 0:
            a(f"s_mul_i32 s7, {WAVE}, {SP}\ns_add_u32 s7, s7, {S_ROW}")
            for q in range(3): a(f"ds_read_b128 {vr(96+4*q,4)}, v{VPW} offset:{1024*q}")
            for x in hl[k1:k2]: a(x)
            for q in range(2): a(f"buffer_store_dwordx4 {vr(96+4*q,4)}, v1, {SWS}, s7 offen offset:{2048+1024*q}{SC} @sst")
            a(f"s_waitcnt lgkmcnt(0)\ns_mov_b64 exec, 0xffffffff\nbuffer_store_dwordx4 v[104:107], v1, {SWS}, s7 offen{SC} @sst\ns_mov_b64 exec, -1")
        else:
            for ch in range(3):
                a(f"ds_read_b128 {vr(96+8*ch,4)}, v{VPW} offset:{1536*ch}\nds_read_b128 {vr(100+8*ch,4)}, v{VPW} offset:{1536*ch+1024}")
            for x in hl[k1:k2]: a(x)
            a(f"s_add_u32 s7, {S_ROW}, {SP}\ns_add_u32 s73, {S_ROW}, {2*SP}")
            sr = [S_ROW, "s7", "s73"]
            for ch in range(3): a(f"buffer_store_dwordx4 {vr(96+8*ch,4)}, v1, {SWS}, {sr[ch]} offen offset:512{SC} @sst")
            a("s_waitcnt lgkmcnt(0)\ns_mov_b64 exec, 0xffffffff")
            for ch in range(3): a(f"buffer_store_dwordx4 {vr(100+8*ch,4)}, v1, {SWS}, {sr[ch]} offen offset:1536{SC} @sst")
            a("s_mov_b64 exec, -1")
        self.hrest = hl[k2:]
        a(self.st("cv.out"))

    def gemm2f(self, a):
        o = self.o
        AC = (2, 22)
        main, idx = [], {}
        for rho in range(4):
            for jb in range(5):
                d = vr(AC[rho & 1] + 4 * jb, 4)
                idx[(rho, jb)] = len(main)
                if rho == 0: main.append(f"v_mfma_f32_16x16x32_bf16 {d}, {ar(240+2*jb,4)}, {vr(V_ONE,4)}, 0")
                for kk in range(12):
                    main.append(f"v_mfma_f32_16x16x32_bf16 {d}, {ar(self.w2reg(jb*12+kk),4)}, {vr(self.breg(rho,kk),4)}, {d}")
        for rho in (1, 2, 3): main[idx[(rho, 0)]] = (self.st(f"g2.r{rho}") if rho != 2 else "") + "\n" + main[idx[(rho, 0)]]
        main[13] = "" + "\n" + main[13]
        idx[(4, 0)] = n = len(main)
        nxt = lambda rho, jb: idx[(rho, jb + 1)] if jb < 4 else idx[(rho + 1, 0)]
        for i in range(2): a(f"buffer_load_dwordx4 v{VX+i}, {SX}, s14 offen lds @xdma\ns_add_u32 m0, m0, 1024")
        a(f"s_mov_b64 exec, 0xffffffff\nbuffer_load_dwordx4 v{VX+2}, {SX}, s14 offen lds @xdma\ns_mov_b64 exec, -1")
        a(f"s_mul_i32 s7, {WAVE}, 10240\ns_add_u32 m0, s7, 32768")
        ring = []
        for rho in range(3):
            par = rho & 1
            def wr(jb):
                g = nxt(rho, jb) + 3
                return [Item(f"ds_write_addtid_b32 v{AC[par]+4*jb+k} offset:{RING-32768+5120*par+1024*jb+256*k} @pw", lo=g, hi=g + 3) for k in range(4)]
            def rd(jb, g):
                return [Item(f"ds_read2st64_b32 {vr(AC[par^1]+4*jb+2*k,2)}, v{VPR} offset0:{20*par+4*jb+2*k} offset1:{20*par+4*jb+2*k+1}", lo=g, hi=g + 6) for k in range(2)]
            b1, b2 = nxt(rho, 2) + 10, nxt(rho, 4) + 10
            ring += wr(0) + wr(1) + wr(2) + [Item("WAITLG pw\ns_barrier", lo=b1, hi=b1)] + rd(0, b1 + 1) + rd(1, b1 + 1) + rd(2, b1 + 1)
            ring += wr(3) + wr(4) + [Item("WAITLG pw\ns_barrier", lo=b2, hi=b2)] + rd(3, b2 + 1) + rd(4, b2 + 1)
        rs = Stream(ring, 0, n, ahead=0, name="ring")
        for it in rs.items: it.ideal = it.lo - 5
        S = [rs]
        S.append(Stream(self.hrest + self.hloads(2) + [Item(x, lo=idx[(1, 0)]) for x in self.hloads(3)], 0, o.get("hend", 130), name="h"))
        ms = o.get("ms", 62)
        S.append(Stream(self.late_consts2(), 0, 44, name="lc2"))
        sal = [f"s_lshl_b32 s81, {XCD}, 3", f"s_lshr_b32 s80, {JJ}, 2", f"s_add_u32 s81, s81, s80", f"s_lshl_b32 s81, s81, 8",
               f"s_and_b32 s80, {JJ}, 3", f"s_lshl_b32 s80, s80, 2", f"s_add_u32 s80, s80, {WAVE}", f"s_lshl_b32 s80, s80, 2",
               f"s_add_u32 s81, s81, s80", f"s_add_u32 s81, s81, {FS}",
               f"s_lshl_b32 s86, s13, 11", f"s_add_u32 s86, s86, {FS}",
               f"s_lshl_b32 s76, s13, 2", f"s_add_u32 s76, s76, {WAVE}", f"s_mul_i32 s76, s76, {20*SP}",
               f"s_lshl_b32 s80, s12, 7", f"s_add_u32 s76, s76, s80", f"s_add_u32 s76, s76, {ST}",
               f"s_add_u32 s77, s76, {8*SP}", f"s_add_u32 s78, s76, {16*SP}", f"s_mov_b32 s74, {fbits(-1.4426950408889634)}"]
        S.append(Stream(sal, 0, ms - 2, name="sal"))
        S.append(Stream([f"WAITVM sst\ns_mov_b64 exec, 1\nbuffer_store_dword v232, off, {SWS}, s81{SC}\ns_mov_b64 exec, -1\n" + ""], ms, ms + 1))
        XR, XF, SR, SD = 96, 176, 106, 116
        S.append(Stream(["WAITVM xdma"] + [f"ds_read_b64 {vr(XR+2*jb,2)}, v{VXD} offset:{32*jb}" for jb in range(5)], idx[(1, 3)], idx[(2, 0)], name="xr"))
        xu = []
        for q in range(10): xu += [f"v_lshlrev_b32 v{XF+2*q}, 16, v{XR+q}", f"v_and_b32 v{XF+2*q+1}, 0xffff0000, v{XR+q}"]
        S.append(Stream(xu, idx[(2, 1)], idx[(3, 0)], ahead=0, name="xu"))
        mp, mc = o.get("g2p", 140), o.get("g2c", 180)
        S.append(Stream([self.poll_load(196, True, VFS, "s86")], mp, mp + 1))
        S.append(Stream([self.poll_check("s", 196, True, VFS, "s86") + "\n" + self.st("spoll"),
                         f"buffer_load_dwordx4 {vr(SD,4)}, v{VSG}, {SWS}, s76 offen{SC}",
                         f"buffer_load_dwordx4 {vr(SD+4,4)}, v{VSG}, {SWS}, s77 offen{SC}",
                         f"s_mov_b64 exec, 0xffffffff\nbuffer_load_dwordx4 {vr(SD+8,4)}, v{VSG}, {SWS}, s78 offen{SC}\ns_mov_b64 exec, -1"], mc, mc + 5, ahead=0))
        Z = AC[1]
        def silu(jb):
            T = 200
            z = Z + 4 * jb
            L = [f"v_mul_f32 v{T+k}, s74, v{z+k}" for k in range(4)] + [f"v_exp_f32 v{T+k}, v{T+k}" for k in range(4)]
            L += [f"v_add_f32 v{T+k}, 1.0, v{T+k}" for k in range(4)] + [f"v_rcp_f32 v{T+k}, v{T+k}" for k in range(4)]
            L += [f"v_mul_f32 v{z+k}, v{z+k}, v{T+k}" for k in range(4)]
            return L
        sl = []
        for jb in range(3):
            L = [Item(x) for x in silu(jb)]
            L[0].lo = nxt(3, jb) + 2
            sl += L
        S.append(Stream(sl, nxt(3, 0) + 2, n, ahead=6, name="silu"))
        gap_sched(a, main, S, "g2")
        a(self.st("g2.mfma"))
        a(f"""
        ds_write_b128 v{VSL}, {vr(SD,4)}
        ds_write_b128 v{VSL}, {vr(SD+4,4)} offset:256
        s_waitcnt vmcnt(0)
        s_mov_b64 exec, 0xffffffff
        ds_write_b128 v{VSL}, {vr(SD+8,4)} offset:512
        s_mov_b64 exec, -1
        """)
        for x in silu(3): a(x)
        a("s_waitcnt lgkmcnt(0)\ns_barrier")
        pass
        for jb in range(5): a(f"ds_read_b64_tr_b16 {vr(SR+2*jb,2)}, v{VSR} offset:{512*jb}")
        for x in silu(4): a(x)
        T = 204
        for q in range(10):
            a(f"""
            v_lshlrev_b32 v{T}, 16, v{SR+q}
            v_and_b32 v{T+1}, 0xffff0000, v{SR+q}
            v_pk_fma_f32 {vr(T,2)}, {vr(T,2)}, {vr(Z+2*q,2)}, {vr(XF+2*q,2)}
            v_cvt_pk_bf16_f32 v{XR+q}, v{T}, v{T+1}
            """)
        for jb in range(5): a(f"ds_write_b64 v{VXD}, {vr(XR+2*jb,2)} offset:{32*jb}")
        a("s_waitcnt lgkmcnt(0)")
        for i in range(3): a(f"ds_read_b128 {vr(SD+4*i,4)}, v{VXL} offset:{1024*i}")
        osc = o.get("osc", SC)
        for i in range(2): a(f"buffer_store_dwordx4 {vr(SD+4*i,4)}, v{VX+i}, {SOUT}, s14 offen{osc}")
        a(f"s_waitcnt lgkmcnt(0)\ns_mov_b64 exec, 0xffffffff\nbuffer_store_dwordx4 {vr(SD+8,4)}, v{VX+2}, {SOUT}, s14 offen{osc}")
        a(self.st("g2.done"))

def build(prof=False, opt=None, cls=F4):
    g = cls(prof, opt or {})
    if prof == "min":
        full = g.st
        g.st = lambda n: full(n) if n in ("start", "end") else ""
    elif prof:
        g.st("start"); g.st("w3.dma")
    if (opt or {}).get("only"):
        lst_ = ["start"] + opt["only"].strip().split(",") + ["end"]
        pairs = [34, 16, 36, 40, 44, 46, 48, 18, 20, 22, 24, 26, 28, 30, 32]
        g.STAMPS = pairs + [p + 1 for p in pairs]
        g.names = list(lst_)
        g.st = lambda n: (f"S_MEMTIME s[{pairs[lst_.index(n)]}:{pairs[lst_.index(n)]+1}]" + ("\ns_waitcnt lgkmcnt(0)" if n in ("start", "end") else "")) if n in lst_ else ""
    if (opt or {}).get("rt"):
        st0_ = g.st
        g.st = lambda n: st0_(n).replace("s_memtime", "s_memrealtime")
    enc = (opt or {}).get("enc")
    if enc:
        g.st = lambda n: "s_memrealtime s[98:99]\ns_waitcnt lgkmcnt(0)" if n == enc.strip() else ""
    dbg = (opt or {}).get("dbg")
    if dbg:
        op, wsel, lst = dbg.strip().split(":")
        lst = ["start"] + lst.split(",") + ["end"]
        g.prof = True
        g.STAMPS = [r for r in g.STAMPS if r not in (46, 47)]
        g.names = list(lst)
        full2 = g.st
        g.st = lambda n: full2(n) if n in lst else ""
        def dump(a):
            a("s_mov_b64 exec, -1\ns_waitcnt vmcnt(0)")
            a(g.st("end"))
            a("s_memrealtime s[100:101]\ns_waitcnt lgkmcnt(0)\ns_sub_u32 s100, s100, s99\nv_mov_b32 v2, s100")
            for i in range(1, len(lst)):
                a(f"s_sub_u32 s7, s{g.STAMPS[i]}, s{g.STAMPS[0]}\ns_cmp_eq_u32 s{g.STAMPS[i]}, 0\ns_cselect_b32 s7, 0, s7\nv_writelane_b32 v2, s7, {i}")
            a(f"v_lshlrev_b32 v3, 2, v0\ns_cmp_eq_u32 {WAVE}, {wsel}\ns_cbranch_scc0 L_end\ns_mov_b64 exec, {(1 << len(lst)) - 1}\nglobal_atomic_{op} v3, v2, s[46:47]")
        g.dump = dump
    a = Asm(auto=True)
    if enc: a("s_memrealtime s[98:99]")
    g.start(a)
    a("L_consts:")
    g.consts(a)
    pass
    a(f"s_cmp_eq_u32 {WAVE}, 3\ns_cbranch_scc1 L_w3b\ns_cmp_eq_u32 {WAVE}, 2\ns_cbranch_scc1 L_w2")
    st0 = a.state()
    g.s4(a)
    a("s_branch L_kg\nL_w2:")
    st1 = a.state(); a.set_state(st0)
    g.w2_pre(a)
    a("L_kg:")
    a.merge([st1, a.state()])
    g.kgen4(a)
    a("s_branch L_g1\nL_w3:")
    st1 = a.state()
    a.set_state(([], []))
    g.wave3a(a)
    a("s_branch L_consts\nL_w3b:")
    g.wave3b(a)
    if (opt or {}).get("pad") is not None:
        a(f"s_branch L_g1\n.p2align 7\n.fill {opt['pad']}, 4, 0xbf800000")
    a("L_g1:")
    a.merge([st1, a.state()])
    a(g.st("g1.arrive"))
    a("s_barrier")
    g.gemm1f(a)
    a(f"s_cmp_eq_u32 {WAVE}, 3\ns_cbranch_scc1 L_cv3")
    st0 = a.state()
    g.conv(a, 0)
    a("s_branch L_g2\nL_stub1:\ns_setpc_b64 s[88:89]\nL_cv3:")
    st1 = a.state()
    a.set_state(st0)
    g.conv(a, 1)
    a("s_branch L_g2\nL_stub2:\ns_setpc_b64 s[88:89]\nL_g2:")
    a.merge([st1, a.state()])
    g.gemm2f(a)
    a(f"s_xor_b32 s7, {WAVE}, 3\ns_or_b32 s7, s2, s7\ns_cbranch_scc1 L_fin\ns_mov_b32 s7, {FLG}")
    a(g.flag_store("s7", 4))
    a("L_fin:")
    if enc:
        a(f"s_cmp_eq_u32 s2, {opt.get('ewg', 77)}\ns_cbranch_scc0 L_end\ns_cmp_eq_u32 {WAVE}, {opt.get('ewv', 0)}\ns_cbranch_scc0 L_end")
        a("s_add_u32 s98, s98, 4000\nL_spin:\ns_memrealtime s[100:101]\ns_waitcnt lgkmcnt(0)\ns_sub_u32 s7, s98, s100\ns_cmp_gt_u32 s7, 4000\ns_cbranch_scc0 L_spin")
    g.dump(a)
    a("L_end:\ns_endpgm")
    g.slow_paths(a)
    a("L_code_end:")
    body = a.finish().replace("S_MEMTIME", "s_memtime")
    if (opt or {}).get("dry"):
        body = body.replace(f"s_mov_b32 s70, {WS_BYTES}", "s_mov_b32 s70, 0").replace("s_mov_b32 s58, 1966080", "s_mov_b32 s58, 0")
        body = body.replace("s_mov_b32 s66, 2621440", "s_mov_b32 s66, 0")
        import re
        body = re.sub(r"s_cbranch_scc1 L_slow_\w+", "s_nop 0", body)
        body = body.replace("L_fin:\n", f"L_fin:\n    s_mov_b32 s70, {WS_BYTES}\n")
    if (opt or {}).get("al", 1): body = align8(body)
    out = header()
    out += f"; @launch grid=(256,1,1) block=(256,1,1) lds={LDS_BYTES}\n"
    if prof: out += "; stamps2: " + " ".join(g.names) + "\n"
    out += "; layout v3\n"
    out += '.amdgcn_target "amdgcn-amd-amdhsa--gfx950"\n.text\n'
    out += khead(NAME + "_kernel") + body
    out += '.section .rodata,"a"\n.p2align 6\n' + kdesc(NAME + "_kernel")
    print("instructions", sum(1 for i in a.ins if i.mn), "nops inserted", a.nops)
    return out

if __name__ == "__main__":
    open(sys.argv[1], "w").write(build("min" if "min" in sys.argv[2:] else "prof" in sys.argv[2:], parse(sys.argv[2:])))
```

```python
import sys, struct, math
from dsl import align8, Asm, interleave, Item, Stream, FragStream, gap_sched
import gen3
from gen import (NAME, fbits, FLG, PROF, WS_BYTES, PY, PX, CBP, CPITCH, U_OFF, LDS_BYTES, sp, SX, SW1, SW2, SOUT, SWS,
                 WAVE, XCD, JJ, SID, vr, ar, kdesc, khead, header)
from gen2 import FY, FX, FH, FS, TAG, SC, S_PAIR, S_SNG, S_HA, S_HC, S_Y, S_ROW
from gen3 import XNT, XP, W2F, HF, ST, SP, TABSZ, TP, RP, KC, CB0, SNG, PAIR, RING, G2X, G2S, parse

YT, XT, W2S, CNT = 40960, 51456, 26112, 34304
S_YB, S_YE = "s96", "s97"
V_FX, V_FY, V_KR, V_CNT = 208, 209, 210, 211
VCA, VCB = 212, 213
V_T = 214
V_UG, V_UL, V_ES, V_Z1, V_Z2 = 222, 223, 224, 227, 228
V_P0, V_P1, V_S, V_HF = 236, 237, 238, 239
V_B1, V_DUM, V_ONE = 240, 248, 252
VSL, VCW, VPW, VPR, VXL, VXD, VSR = 214, 215, 216, 217, 218, 219, 220
VX, VFH, VFS, VSG, VB2 = 224, 227, 228, 229, 230
for k in ("V_FX V_FY V_KR VCA VCB V_T V_P0 V_P1 V_S V_HF V_B1 V_DUM V_ONE VSL VCW VPW VPR VXL VXD VSR VX VFH VFS VSG VB2").split():
    setattr(gen3, k, globals()[k])

class F4(gen3.F3):
    def start(self, a):
        o = self.o
        a(f"""
        s_load_dwordx16 s[16:31], s[0:1], 0
        s_load_dwordx16 s[32:47], s[0:1], 64
        s_load_dwordx2 s[48:49], s[0:1], 128
        s_cmp_ge_u32 s2, 256
        s_cbranch_scc1 L_end
        s_getpc_b64 s[72:73]
        L_pc:
        v_lshrrev_b32 v1, 6, v0
        s_lshr_b32 {JJ}, s2, 3
        v_and_b32 v0, 63, v0
        s_lshl_b32 s7, {JJ}, 4
        v_lshl_add_u32 v8, v1, 2, v0
        v_readfirstlane_b32 {WAVE}, v1
        v_add_lshl_u32 v8, v8, s7, 7
        v_min_u32 v8, L_code_end-L_pc-4, v8
        s_mov_b64 exec, 15
        global_load_dword v{V_DUM}, v8, s[72:73]
        s_mov_b64 exec, -1
        s_and_b32 {XCD}, s2, 7
        s_lshl_b32 {SID}, {XCD}, 5
        s_add_u32 {SID}, {SID}, {JJ}
        v_lshrrev_b32 v2, 4, v0
        v_and_b32 v3, 15, v0
        v_lshrrev_b32 v4, 5, v0
        v_and_b32 v5, 31, v0
        v_mul_u32_u24 v7, 1280, v4
        v_lshl_add_u32 v7, v5, 3, v7
        s_lshl_b32 s72, {SID}, 2
        s_add_u32 s72, s72, {WAVE}
        s_mul_i32 s72, s72, 2560
        s_mov_b32 s54, 2621440
        s_mov_b32 s55, 0x20000
        s_mov_b32 s70, {WS_BYTES}
        s_mov_b32 s71, 0x20000
        s_mov_b32 s73, {FLG}
        s_lshr_b32 s9, {JJ}, 2
        s_and_b32 s7, {XCD}, 1
        s_lshl_b32 s7, s7, 3
        s_mul_i32 s83, s9, 10
        s_add_u32 s9, s9, s7
        s_lshr_b32 s83, s83, 3
        s_mul_i32 s83, s83, {1 if o.get("yrot", 1) else 0}
        s_and_b32 s7, s9, 1
        s_mul_i32 {S_PAIR}, s9, 192
        s_add_u32 {S_SNG}, {S_PAIR}, 128
        s_lshl_b32 s74, s7, 6
        s_add_u32 {S_PAIR}, {S_PAIR}, s74
        s_lshl_b32 s74, s7, 7
        s_sub_u32 {S_SNG}, {S_SNG}, s74
        s_mov_b32 s58, 1966080
        s_mov_b32 s59, 0x20000
        s_mov_b32 s62, 1966080
        s_mov_b32 s63, 0x20000
        s_lshl_b32 s7, {WAVE}, 1
        v_add_u32 v4, s7, v4
        v_mul_u32_u24 v204, {PY}, v4
        v_mul_u32_u24 v205, {PX}, v4
        v_lshl_add_u32 v204, v5, 3, v204
        v_lshl_add_u32 v205, v5, 3, v205
        s_waitcnt lgkmcnt(0)
        s_mov_b64 s[52:53], {sp('x')}
        s_mov_b64 s[68:69], {sp('ws')}
        """)
        for i in range(5):
            a(f"buffer_load_dwordx2 {vr(110+2*i,2)}, v7, {SX}, s72 offen offset:{256*i}")
        a(f"buffer_load_dword v109, off, {SWS}, s73{SC}")
        self.pstart(a)
        a(f"""
        s_mov_b64 s[56:57], {sp('w1')}
        s_mov_b64 s[60:61], {sp('w2')}
        s_cmp_eq_u32 {WAVE}, 3
        s_cbranch_scc1 L_st3
        s_mul_i32 s10, {XCD}, 80
        s_mul_i32 s7, {JJ}, 3
        s_add_u32 s10, s10, s7
        s_add_u32 s11, s10, {WAVE}
        s_min_u32 s11, s11, 639
        s_mul_i32 s7, s11, 384
        v_lshl_add_u32 v8, v0, 1, s7
        s_lshl_b32 s7, s11, 1
        v_mov_b32 v6, s7
        """)
        for k in list(range(10, 30, 2)) + [40, 42, 44, 196, 200, 202]: a(f"v_mov_b64 {vr(k,2)}, 0")
        a(f"global_load_short_d16_hi v28, v6, {sp('ldt')}\nglobal_load_short_d16_hi v29, v6, {sp('dsk')}")
        for c in range(3):
            for k, n in enumerate(("are", "aim", "bre", "bim", "cre", "cim")):
                a(f"global_load_short_d16_hi v{10+6*c+k}, v8, {sp(n)} offset:{128*c}")
        a("s_branch L_stj\nL_st3:")
        self.w3pre(a)
        a("L_stj:")

    def w3pre(self, a):
        o = self.o
        a(f"""
        v_min_u32 v4, 59, v0
        v_mul_u32_u24 v5, 5462, v4
        v_lshrrev_b32 v5, 16, v5
        v_mul_u32_u24 v5, {3072-12*128}, v5
        v_lshl_add_u32 v46, v4, 7, v5
        v_add_u32 v47, {5*3072}, v46
        s_mul_i32 s74, {JJ}, {20*3072}
        s_and_b32 s7, {XCD}, 1
        s_mul_i32 s7, s7, 1536
        s_add_u32 s74, s74, s7
        s_add_u32 s75, s74, {10*3072}
        v_lshrrev_b32 v4, 3, v0
        v_mul_u32_u24 v40, 3072, v4
        v_lshrrev_b32 v4, 2, v0
        v_mul_u32_u24 v44, 3072, v4
        v_xor_b32 v4, v4, v2
        v_and_b32 v4, 1, v4
        v_lshl_add_u32 v40, v4, 6, v40
        v_and_b32 v4, 3, v0
        v_lshl_add_u32 v40, v4, 4, v40
        v_lshl_add_u32 v44, v4, 4, v44
        v_add_u32 v41, {24576-1024}, v40
        v_add_u32 v42, {24576-1024}, v41
        v_add_u32 v43, {24576-1024}, v42
        v_add_u32 v45, {49152-1024}, v44
        s_and_b32 s7, {JJ}, 3
        s_mul_i32 s82, s7, 10240
        s_mul_i32 s80, s7, 5
        s_lshl_b32 s7, s83, 1
        s_add_u32 s80, s80, s7
        s_sub_u32 s7, s80, 20
        s_cselect_b32 s80, s80, s7
        s_mul_i32 s80, s80, {32*3072}
        """)
        self.w2_pre(a)
        self.n3 = 0
        if o.get("w1pf", 1):
            for i in range(4): a(f"buffer_load_dword v{V_DUM}, v{46+(i&1)}, {SW1}, s{74+(i>>1)} offen")
            self.n3 += 4
        for _ in range(o.get("n0", 0)): self.step(a)
        self.n3 += 6 * o.get("n0", 0)

    def pstart(self, a):
        if self.prof:
            a("s_memrealtime s[100:101]\ns_waitcnt lgkmcnt(0)\ns_mov_b32 s99, s100")
            a(self.st("start"))

    def consts(self, a):
        T = V_T
        a(f"""
        v_and_b32 v5, 31, v0
        v_lshl_add_u32 v8, v5, 1, {S_PAIR}
        v_lshl_add_u32 v6, v5, 1, {S_SNG}
        """)
        for k in range(V_B1, V_B1 + 8, 2): a(f"v_mov_b64 {vr(k,2)}, 0")
        a(f"""
        s_mov_b32 s66, 2621440
        s_mov_b32 s67, 0x20000
        s_mov_b64 s[64:65], {sp('out')}
        global_load_ushort v{V_B1}, v8, {sp('b1')}
        global_load_ushort v{V_B1+2}, v8, {sp('b1')} offset:64
        global_load_ushort v{V_B1+4}, v6, {sp('b1')}
        """)
        if self.prof:
            for r in self.STAMPS[1:]: a(f"s_mov_b32 s{r}, 0")
        a(f"""
        v_lshlrev_b32 v1, 4, v0
        v_lshrrev_b32 v4, 5, v0
        s_mul_i32 s7, {WAVE}, {TABSZ}
        v_mul_u32_u24 v{V_KR}, {TP}, v5
        v_lshl_add_u32 v6, v4, 4, s7
        v_add_u32 v{V_KR}, v{V_KR}, v6
        s_mul_i32 s7, {WAVE}, {RP}
        v_lshl_add_u32 v6, v4, 4, s7
        v_lshl_add_u32 v{T}, v5, 5, v6
        v_cmp_gt_u32 vcc, 32, v0
        v_lshl_add_u32 v6, v5, 4, s7
        v_lshl_add_u32 v7, v5, 3, s7
        v_add_u32 v8, 1024, v6
        v_add_u32 v30, 1536, v7
        v_cndmask_b32 v{T+1}, v30, v8, vcc
        v_add_u32 v8, 1032, v6
        v_add_u32 v30, 1792, v7
        v_cndmask_b32 v{T+2}, v30, v8, vcc
        v_mov_b32 v8, 0x3f80
        v_cndmask_b32 v{V_ONE}, 0, v8, vcc
        v_mov_b32 v{V_ONE+1}, 0
        v_mov_b64 {vr(V_ONE+2,2)}, 0
        v_sub_u32 v6, 63, v0
        v_lshl_add_u32 v{T+3}, v6, 3, s7
        v_lshl_add_u32 v{T+4}, v6, 4, s7
        v_lshl_add_u32 v{T+5}, v0, 5, s7
        v_lshl_add_u32 v{T+6}, v0, 4, s7
        v_lshl_add_u32 v{T+7}, v0, 3, s7
        s_lshl_b32 s7, {WAVE}, 10
        v_lshl_add_u32 v{V_ES}, v0, 2, s7
        v_add_u32 v{V_ES+1}, {RP}, v{V_ES}
        v_add_u32 v{V_ES+2}, {2*RP}, v{V_ES}
        s_add_u32 s74, s7, {CB0+U_OFF+512}
        v_and_b32 v6, 3, v0
        v_lshrrev_b32 v7, 2, v0
        v_min_u32 v8, 2, v6
        v_mul_u32_u24 v{V_UG}, {XP}, v7
        v_lshl_add_u32 v{V_UG}, v8, 4, v{V_UG}
        v_mul_u32_u24 v{V_UL}, {CBP}, v8
        v_lshl_add_u32 v30, v7, 4, s74
        v_add_u32 v{V_UL}, v{V_UL}, v30
        v_lshlrev_b32 v{V_FX}, 8, v7
        v_lshl_add_u32 v{V_FX}, v6, 4, v{V_FX}
        v_lshlrev_b32 v{V_FY}, 2, v6
        s_min_u32 s7, {WAVE}, 2
        s_mul_i32 s7, s7, {CBP}
        s_add_u32 s74, s7, {CB0+4096}
        s_add_u32 s7, s7, {CB0+U_OFF}
        v_lshl_add_u32 v{V_Z2}, v0, 3, s7
        v_sub_u32 v8, v3, v4
        v_lshl_add_u32 v8, v8, 2, s74
        v_mul_u32_u24 v{V_Z1}, {CPITCH}, v2
        v_add_u32 v{V_Z1}, v{V_Z1}, v8
        v_and_b32 v8, 1, v2
        v_lshlrev_b32 v6, 3, v6
        v_lshl_add_u32 v6, v8, 5, v6
        v_and_b32 v7, 3, v7
        v_lshl_add_u32 v7, v4, 3, v7
        v_lshl_add_u32 v{V_S}, v7, 6, v6
        v_add_u32 v{V_S}, {SNG}, v{V_S}
        v_lshl_add_u32 v{V_P0}, v7, 7, v6
        v_and_b32 v7, 8, v0
        v_lshl_add_u32 v{V_P0}, v7, 3, v{V_P0}
        v_add_u32 v{V_P0}, {PAIR}, v{V_P0}
        v_xor_b32 v{V_P1}, 64, v{V_P0}
        v_mul_u32_u24 v{V_HF}, 49152, v8
        v_lshl_add_u32 v{V_HF}, v4, 8, v{V_HF}
        v_lshl_add_u32 v{V_HF}, v3, 4, v{V_HF}
        s_cmp_eq_u32 {WAVE}, 3
        s_cselect_b32 s7, 0, {WAVE}
        s_mul_i32 s7, s7, {CBP}
        s_add_u32 s7, s7, {CB0}
        v_lshl_add_u32 v6, v2, 4, s7
        v_lshl_add_u32 v{VCB}, v3, 5, v6
        v_sub_u32 v7, 15, v3
        v_and_b32 v8, 3, v7
        v_and_b32 v7, 12, v7
        v_lshl_add_u32 v6, v7, 1, v6
        v_mul_u32_u24 v{VCA}, {CPITCH}, v8
        v_add_u32 v{VCA}, v{VCA}, v6
        s_lshr_b32 s8, {XCD}, 1
        s_lshl_b32 s12, s8, 3
        s_lshl_b32 s8, s8, 2
        s_and_b32 s7, {JJ}, 3
        s_add_u32 s8, s8, s7
        s_and_b32 s7, {JJ}, 7
        s_add_u32 s12, s12, s7
        s_and_b32 s13, {XCD}, 1
        s_lshl_b32 s13, s13, 2
        s_lshr_b32 s7, {JJ}, 3
        s_add_u32 s13, s13, s7
        s_add_u32 s11, {"s7" if self.o.get("hrot", 0) else "0"}, {WAVE}
        s_and_b32 s11, s11, 3
        s_lshl_b32 {S_YB}, s8, 2
        s_add_u32 {S_YB}, {S_YB}, {WAVE}
        s_mul_i32 {S_HA}, {S_YB}, 96
        s_mul_i32 {S_YB}, {S_YB}, 40960
        s_add_u32 {S_YE}, {S_YB}, 40960
        s_lshl_b32 s7, s83, 12
        s_add_u32 {S_Y}, {S_YB}, s7
        s_lshl_b32 s86, s8, 8
        s_lshl_b32 s7, {WAVE}, 4
        s_add_u32 s86, s86, s7
        s_add_u32 s86, s86, {FY}
        """)

    def late_scalars(self):
        return [f"s_mul_i32 s73, s9, 3", f"s_add_u32 {S_HA}, {S_HA}, s73", f"s_lshl_b32 {S_HA}, {S_HA}, 10", f"s_add_u32 {S_HA}, {S_HA}, {HF}",
                f"s_add_u32 {S_HC}, {S_HA}, 2048", f"s_and_b32 s73, s9, 1", f"s_lshl_b32 s73, s73, 10", f"s_add_u32 {S_HA}, {S_HA}, s73",
                f"s_lshl_b32 s73, s73, 1", f"s_sub_u32 {S_HC}, {S_HC}, s73",
                f"s_mul_i32 s10, {XCD}, 80", f"s_mul_i32 s73, {JJ}, 3", f"s_add_u32 s10, s10, s73",
                f"s_cmp_lt_u32 {JJ}, 27\ns_cselect_b32 s10, s10, 0x20000", f"s_mul_i32 {S_ROW}, s10, {SP}", f"s_add_u32 {S_ROW}, {S_ROW}, {ST}",
                f"s_lshl_b32 s83, s10, 4", f"s_mul_i32 s73, {WAVE}, {64*XP}", f"s_add_u32 s83, s83, s73",
                f"s_cmp_lt_u32 {JJ}, 27\ns_cselect_b32 s83, s83, 0x1000000", f"s_add_u32 s83, s83, {XNT}",
                f"s_mul_i32 s85, s13, 20", f"s_add_u32 s85, s85, {WAVE}", f"s_mul_i32 s85, s85, {12*1024}", f"s_add_u32 s85, s85, {W2F}"]

    def step(self, a):
        a(f"s_lshl_b32 s7, s82, 1\ns_add_u32 m0, s7, {PAIR}\ns_add_u32 s7, s80, {S_PAIR}")
        for k in range(4): a(f"buffer_load_dwordx4 v{40+k}, {SW1}, s7 offen offset:{1024*k} lds")
        a(f"s_add_u32 m0, s82, {SNG}\ns_add_u32 s7, s80, {S_SNG}")
        for k in range(2): a(f"buffer_load_dwordx4 v{44+k}, {SW1}, s7 offen offset:{1024*k} lds")
        a(f"""
        s_add_u32 s82, s82, 2048
        s_add_u32 s80, s80, {32*3072}
        s_cmp_eq_u32 s82, 40960
        s_cselect_b32 s82, 0, s82
        s_cmp_eq_u32 s80, {640*3072}
        s_cselect_b32 s80, 0, s80
        """)

    def s_compute3(self, a):
        X = 120
        a.auto = False
        a(f"""
        s_mov_b32 s74, {fbits(1/640)}
        s_mov_b32 s75, {fbits(1e-5)}
        s_cmp_eq_u32 {WAVE}, 3
        s_cbranch_scc1 L_xw3
        s_waitcnt vmcnt(23)
        s_branch L_xwj
        L_xw3:
        s_waitcnt vmcnt({self.n3+3})
        L_xwj:
        """)
        a.auto = True
        a.vmq = []
        a(self.st("s.x"))
        for k in range(10):
            a(f"v_lshlrev_b32 v{X+2*k}, 16, v{110+k}\nv_and_b32 v{X+2*k+1}, 0xffff0000, v{110+k}")
        a(f"v_pk_add_f32 v[140:141], {vr(X,2)}, {vr(X+2,2)}")
        for k in range(2, 10):
            a(f"v_pk_add_f32 v[140:141], v[140:141], {vr(X+2*k,2)}")
        a("v_add_f32 v140, v140, v141")
        self.reduce32(a, 140, 141)
        a("v_mul_f32 v142, s74, v140")
        for k in range(10):
            a(f"v_pk_add_f32 {vr(X+2*k,2)}, {vr(X+2*k,2)}, v[142:143] op_sel_hi:[1,0] neg_lo:[0,1] neg_hi:[0,1]")
        a(f"v_pk_mul_f32 v[140:141], {vr(X,2)}, {vr(X,2)}")
        for k in range(1, 10):
            a(f"v_pk_fma_f32 v[140:141], {vr(X+2*k,2)}, {vr(X+2*k,2)}, v[140:141]")
        a(f"""
        v_add_f32 v140, v140, v141
        v_cvt_pk_bf16_f32 v148, v142, v142
        v_readfirstlane_b32 s7, v109
        v_add_f32_dpp v140, v140, v140 quad_perm:[1,0,3,2] row_mask:0xf bank_mask:0xf
        v_lshlrev_b32 v148, 16, v148
        s_mul_i32 s7, s7, 1664525
        v_add_f32_dpp v140, v140, v140 quad_perm:[2,3,0,1] row_mask:0xf bank_mask:0xf
        v_sub_f32 v148, v142, v148
        s_add_u32 {TAG}, s7, 1013904223
        v_add_f32_dpp v140, v140, v140 row_half_mirror row_mask:0xf bank_mask:0xf
        s_mov_b32 s51, {TAG}
        v_add_f32_dpp v140, v140, v140 row_mirror row_mask:0xf bank_mask:0xf
        v_mov_b32 v141, v140
        v_permlane16_swap_b32 v140, v141
        v_add_f32 v140, v140, v141
        v_mul_f32 v140, s74, v140
        """)
        self.rbf(a, 141, 140)
        a("v_add_f32 v141, s75, v141")
        self.rbf(a, 141, 141)
        a("v_sqrt_f32 v141, v141")
        self.rbf(a, 141, 141)
        a("v_rcp_f32 v144, v141")
        a("v_mul_f32 v140, v140, v144\nv_mul_f32 v140, v140, v144")
        self.rbf(a, 141, 140)
        a("v_add_f32 v141, s75, v141")
        self.rbf(a, 141, 141)
        a("v_sqrt_f32 v141, v141\nv_mul_f32 v148, v148, v144")
        self.rbf(a, 141, 141)
        a("v_rcp_f32 v146, v141")
        for k in range(10):
            a(f"v_pk_fma_f32 v[150:151], {vr(X+2*k,2)}, v[144:145], v[148:149] op_sel_hi:[1,0,0]")
            if k == 0: a("v_mul_f32 v146, v146, v144")
            a(f"v_cvt_pk_bf16_f32 v{152+k}, v150, v151")
        for k in range(10):
            a(f"v_pk_mul_f32 v[150:151], {vr(X+2*k,2)}, v[146:147] op_sel_hi:[1,0]")
            a(f"v_cvt_pk_bf16_f32 v{110+k}, v150, v151")
        for i in range(5): a(f"ds_write_b64 v204, {vr(110+2*i,2)} offset:{YT+256*i}")
        for i in range(5): a(f"ds_write_b64 v205, {vr(152+2*i,2)} offset:{XT+256*i}")

    def wave3(self, a):
        o = self.o
        n0, n1 = o.get("n0", 0), o.get("n1", 4)
        a(f"v_mov_b32 v206, {TAG}\ns_waitcnt lgkmcnt(0)\ns_barrier")
        for I in range(10): a(f"ds_read_b128 {vr(110+4*I,4)}, v196 offset:{YT+128*I}")
        for I in range(10):
            a(f"buffer_store_dwordx4 {vr(110+4*I,4)}, v197, {SWS}, s15 offen{SC} @yst" + ("\ns_add_u32 s15, s15, 4096" if I < 9 else ""))
            if I == 4:
                for K in range(10):
                    a(f"ds_read_b64_tr_b16 {vr(150+4*K,2)}, v198 offset:{XT+128*K}\nds_read_b64_tr_b16 {vr(152+4*K,2)}, v198 offset:{XT+128*K+4*PX}")
        a("s_waitcnt lgkmcnt(0)")
        assert n0 == 0
        a(self.st("p.yst"))
        a(f"s_mov_b32 m0, {W2S}")
        for h in range(2):
            for k in range(4): a(f"buffer_load_dwordx4 v{200+k}, {SW2}, s84 offen offset:{1024*k} lds @w2dma")
            if h == 0: a(f"s_mov_b32 m0, {W2S+4096}\ns_add_u32 s84, s84, {4*5120}")
        for _ in range(n1): self.step(a)
        a(f"WAITVM yst\ns_mov_b64 exec, 1\nbuffer_store_dword v206, off, {SWS}, s81{SC}\ns_mov_b64 exec, -1")
        a(self.st("p.fy"))
        st = []
        for I in range(10):
            st.append(("s_add_u32 s79, s79, 4096\n" if I in (4, 8) else "") + f"buffer_store_dwordx4 {vr(150+4*I,4)}, v1, {SWS}, s79 offen offset:{1024*(I%4)}{SC}")
        st += [f"buffer_store_dwordx4 {vr(48+4*db,4)}, v1, {SWS}, s14 offen{SC}" + (f"\ns_add_u32 s14, s14, {48*1024}" if db < 7 else "") for db in range(8)]
        per = o.get("per", 3)
        dcap = o.get("dcap", 36)
        skip = o.get("skip", 0)
        done = n0 + n1
        if skip:
            a(f"s_mov_b32 s73, 0\nL_dma0:\ns_waitcnt vmcnt({dcap})")
            self.step(a)
            a(f"s_add_u32 s73, s73, 1\ns_cmp_lt_u32 s73, {skip}\ns_cbranch_scc1 L_dma0")
            done += skip
        for k in range(0, 18, per):
            if k <= 10 - per < k + per or (per > 10 and k == 0):
                a("WAITVM w2dma")
                for db in range(8):
                    a(f"ds_read_b64_tr_b16 {vr(48+4*db,2)}, v199 offset:{W2S+32*db}\nds_read_b64_tr_b16 {vr(50+4*db,2)}, v199 offset:{W2S+32*db+2048}")
            a(f"s_waitcnt vmcnt({dcap})")
            for x in st[k:k + per]: a(x)
            if done < 20:
                self.step(a); done += 1
        fx = f"s_add_u32 s81, s81, {FX-FY}\ns_mov_b64 exec, 1\nbuffer_store_dword v206, off, {SWS}, s81{SC}\ns_mov_b64 exec, -1\n" + self.st("p.fx")
        mid = done + (dcap + 5) // 6
        a(f"s_mov_b32 s73, {done}")
        for lab, end in (("L_dma1", min(mid, 20)), ("L_dma2", 20)):
            if done < end:
                a(f"{lab}:\ns_waitcnt vmcnt({dcap})")
                self.step(a)
                a(f"s_add_u32 s73, s73, 1\ns_cmp_lt_u32 s73, {end}\ns_cbranch_scc1 {lab}")
                done = end
            if lab == "L_dma1" and mid <= 20: a(fx)
        a(self.st("w3.dma"))
        a(self.poll_load(4, False, V_FY, "s86"))
        a(self.poll_check("y3", 4, False, V_FY, "s86"))
        a(self.st("ypoll"))
        if mid > 20: a(fx)
        for x in self.yloads()[:o.get("ny", 8)]: a(x)

    def w2_pre(self, a):
        a(f"""
        v_and_b32 v4, 7, v0
        v_lshrrev_b32 v5, 3, v0
        v_mul_u32_u24 v196, {PY}, v4
        v_lshl_add_u32 v196, v5, 4, v196
        v_lshlrev_b32 v197, 9, v5
        v_lshl_add_u32 v197, v4, 4, v197
        v_bfe_u32 v4, v0, 2, 2
        v_and_b32 v5, 3, v0
        v_mul_u32_u24 v198, {PX}, v4
        v_lshl_add_u32 v198, v2, 5, v198
        v_lshl_add_u32 v198, v5, 3, v198
        v_lshrrev_b32 v4, 5, v0
        v_lshlrev_b32 v199, 12, v4
        v_bfe_u32 v4, v0, 2, 3
        v_lshl_add_u32 v199, v4, 8, v199
        v_lshl_add_u32 v199, v5, 3, v199
        v_mul_u32_u24 v200, 1280, v2
        v_lshl_add_u32 v200, v3, 4, v200
        v_add_u32 v201, {5120-1024}, v200
        v_add_u32 v202, {5120-1024}, v201
        v_add_u32 v203, {5120-1024}, v202
        s_min_u32 s7, s2, 239
        s_mul_i32 s14, s7, 52429
        s_lshr_b32 s14, s14, 18
        s_mul_i32 s15, s14, 5
        s_sub_u32 s15, s7, s15
        s_mul_i32 s84, s14, 40960
        s_lshl_b32 s7, s15, 8
        s_add_u32 s84, s84, s7
        s_mul_i32 s15, s15, {8*48}
        s_add_u32 s14, s14, s15
        s_lshl_b32 s14, s14, 10
        s_add_u32 s14, s14, {W2F}
        s_lshr_b32 s15, {SID}, 2
        s_mul_i32 s15, s15, 40960
        s_and_b32 s7, {SID}, 3
        s_lshl_b32 s7, s7, 7
        s_add_u32 s15, s15, s7
        s_lshr_b32 s81, {SID}, 4
        s_lshl_b32 s81, s81, 8
        s_and_b32 s7, {SID}, 15
        s_lshl_b32 s7, s7, 2
        s_add_u32 s81, s81, s7
        s_add_u32 s81, s81, {FY}
        s_mul_i32 s79, {SID}, {XP}
        s_add_u32 s79, s79, {XNT}
        """)

    def only2(self, a, name, body, other=None):
        a(f"s_cmp_eq_u32 {WAVE}, 2\ns_cbranch_scc0 L_o{name}")
        st0 = a.state()
        for x in body: a(x)
        if other:
            a(f"s_branch L_j{name}\nL_o{name}:")
            st1 = a.state(); a.set_state(st0)
            for x in other: a(x)
            a(f"L_j{name}:")
            a.merge([st1, a.state()])
        else:
            a(f"L_o{name}:")
            st1 = a.state()
            a.merge([st0, st1])
        a.vmq = [(set(r), set(t)) for r, t in st1[0]]

    def kgen4(self, a):
        o = self.o
        VF, UF, CH = self.VF, self.UF, 112
        W1, W8, W256, T, C0 = 176, 178, 180, 182, 194
        DT, DTL = 30, 31
        L2E = 1.4426950408889634
        f32 = lambda x: struct.unpack("<f", struct.pack("<f", x))[0]
        I2P = 1 / (2 * math.pi)
        head = (f"""
        s_mov_b32 s72, {fbits(f32(L2E))}
        s_mov_b32 s73, {fbits(L2E-f32(L2E))}
        s_mov_b32 s76, {fbits(math.log(2))}
        v_mul_f32 v{T}, s72, v28
        v_fma_f32 v{T+1}, v28, s72, -v{T}
        v_fma_f32 v{T+1}, v28, s73, v{T+1}
        v_exp_f32 v{T}, v{T}
        v_mul_f32 v{T+1}, s76, v{T+1}
        v_cmp_eq_u32 vcc, 0, v0
        v_fma_f32 v{T}, v{T}, v{T+1}, v{T}
        v_cvt_pk_bf16_f32 v{DT}, v{T}, v{T}
        v_lshlrev_b32 v{DT}, 16, v{DT}
        v_cndmask_b32 v29, 0, v29, vcc
        v_mul_f32 v{DTL}, s72, v{DT}
        s_mov_b32 s74, {fbits(f32(I2P))}
        s_mov_b32 s75, {fbits(I2P-f32(I2P))}
        s_mov_b32 s77, {fbits(256.0)}
        s_mov_b32 s78, {fbits(8.0)}
        """)
        pass
        yl = self.yloads()[:o.get("ny", 8)]
        m0tab = f"s_mul_i32 m0, {WAVE}, {TABSZ}"
        a.vmq = [({("v", r)}, set()) for r in [28, 29] + list(range(10, 28))] + [({("v", r) for r in range(V_B1, V_B1 + 6)}, set())] * 3
        a("s_waitcnt lgkmcnt(0)\ns_barrier")
        a(head)
        a(m0tab)
        for c in range(3):
            p = 10 + 6 * c
            setup = [f"v_mul_f32 v{T}, v{p}, v{DTL}", f"v_mul_f32 v{T+1}, v{p+1}, v{DT}",
                     f"v_mul_f32 v{T+2}, s74, v{T+1}", f"v_fma_f32 v{T+3}, v{T+1}, s74, -v{T+2}",
                     f"v_fma_f32 v{T+3}, v{T+1}, s75, v{T+3}",
                     f"v_mul_f32 v{T+4}, s78, v{T}", f"v_mul_f32 v{T+5}, s78, v{T+2}",
                     f"v_mul_f32 v{T+6}, s77, v{T}", f"v_mul_f32 v{T+7}, s77, v{T+2}",
                     f"v_exp_f32 v{T+4}, v{T+4}", f"v_fract_f32 v{T+5}, v{T+5}",
                     f"v_exp_f32 v{T+6}, v{T+6}", f"v_fract_f32 v{T+7}, v{T+7}",
                     f"v_exp_f32 v{T+8}, v{T}", f"v_fract_f32 v{T+9}, v{T+2}",
                     f"v_fma_f32 v{T+5}, v{T+3}, s78, v{T+5}", f"v_fma_f32 v{T+7}, v{T+3}, s77, v{T+7}",
                     f"v_add_f32 v{T+9}, v{T+3}, v{T+9}",
                     f"v_cos_f32 v{W8}, v{T+5}", f"v_sin_f32 v{W8+1}, v{T+5}",
                     f"v_cos_f32 v{W256}, v{T+7}", f"v_sin_f32 v{W256+1}, v{T+7}",
                     f"v_cos_f32 v{W1}, v{T+9}", f"v_sin_f32 v{W1+1}, v{T+9}"]
            setup += self.cmul(T + 10, p + 4, p + 2)
            setup += [f"v_pk_mul_f32 {vr(W8,2)}, {vr(W8,2)}, {vr(T+4,2)} op_sel_hi:[1,0]",
                      f"v_pk_mul_f32 {vr(W256,2)}, {vr(W256,2)}, {vr(T+6,2)} op_sel_hi:[1,0]",
                      f"v_pk_mul_f32 {vr(W1,2)}, {vr(W1,2)}, {vr(T+8,2)} op_sel_hi:[1,0]",
                      f"v_pk_mul_f32 {vr(C0,2)}, {vr(T+10,2)}, {vr(DT,2)} op_sel_hi:[1,0]"]
            Vv = lambda j: W8 if j == 1 else CH + 2 * j
            vchain = []
            for j in range(2, 32): vchain += self.cmul(Vv(j), Vv(j - 1), W8)
            vcvt = [f"v_mov_b32 v{CH}, 0x3f80"] + [f"v_cvt_pk_bf16_f32 v{CH+2*j}, v{Vv(j)}, v{Vv(j)+1}" for j in range(1, 32)]
            vwr = [f"ds_write_addtid_b32 v{CH+2*j} offset:{TP*j}" for j in range(32)]
            Ur = lambda i: C0 if i == 0 else CH + 2 * i
            uchain = []
            for i in range(1, 8): uchain += self.cmul(Ur(i), Ur(i - 1), W1)
            for i, s in ((8, 0), (9, 2), (10, 4), (11, 6), (12, 8), (13, 10), (14, 12), (15, 13), (16, 14), (17, 16), (18, 17), (19, 18), (20, 19)):
                uchain += self.cmul(Ur(i), Ur(s), W256)
            ucvt = [f"v_cvt_pk_bf16_f32 v{Ur(i)}, v{Ur(i)}, -v{Ur(i)+1}" for i in range(21)]
            uwr = [f"ds_write_addtid_b32 v{Ur(i)} offset:{TP*(i if i < 20 else 23)}" for i in range(21)]
            E = lambda L: [a(x) for x in L]
            ypos = o.get("ypos", 2)
            chk = lambda: E([self.poll_check("y0", 2, False, V_FY, "s86"), self.st("ypoll")])
            ng = {0: 5, 1: 4, 2: 2}[ypos]
            grp = [yl[len(yl) * k // ng:len(yl) * (k + 1) // ng] for k in range(ng)] if c == 2 else [[]] * 5
            grp = [[]] * (5 - ng) + grp
            E(setup[:6])
            if c: E(self.kreads(UF))
            if c == 2 and ypos == 1: E([self.poll_load(2, False, V_FY, "s86")])
            E(setup[6:])
            if c == 2 and ypos == 0: chk()
            E(grp[0] + vchain)
            if c == 0:
                E(vcvt + vwr)
            else:
                E(vcvt[:18])
                if c == 2 and ypos == 2: E([self.poll_load(2, False, V_FY, "s86")])
                if c == 2 and ypos == 1: chk()
                E(grp[1])
                mf = self.kmf(c == 1)
                for k in range(8): E([mf[k]] + vwr[4 * k:4 * k + 4] + vcvt[18 + 2 * k:20 + 2 * k])
            E(uchain[:8] + self.kreads(VF) + grp[2])
            E(uchain[8:] + ucvt)
            if c == 1 and ypos == 0: E([self.poll_load(2, False, V_FY, "s86")])
            if c == 2 and ypos == 2: chk()
            E(grp[3] + uwr + grp[4])
            a(self.st(f"kg{c}"))
        for x in self.kreads(UF): a(x)
        a("s_waitcnt lgkmcnt(0)")

    def yloads(self):
        L = []
        for ks in range(40):
            x = f"buffer_load_dwordx4 {ar(4*ks,4)}, v1, {SWS}, {S_Y} offen offset:{1024*(ks%4)}{SC}"
            if ks % 4 == 0 and ks:
                x = f"s_add_u32 {S_Y}, {S_Y}, 4096\ns_cmp_eq_u32 {S_Y}, {S_YE}\ns_cselect_b32 {S_Y}, {S_YB}, {S_Y}\n" + x
            L.append(x)
        return L

    def gemm1f(self, a):
        o = self.o
        ACC = (48, 64, 32)
        uses = [[] for _ in range(10)]
        for ks in range(40): uses += [[(0, ks)], [(1, ks)]]
        uses += [[] for _ in range(41)]
        def reads(f, reg):
            p, ks = f
            base = V_P0 + p
            off = ks * 2048 - (65536 if ks >= 32 else 0)
            pre = [f"v_add_u32 v{base}, 0x10000, v{base}"] if ks == 32 else []
            return pre + [f"ds_read_b64_tr_b16 {vr(reg,2)}, v{base} offset:{off}", f"ds_read_b64_tr_b16 {vr(reg+2,2)}, v{base} offset:{off+512}"]
        fr = FragStream(uses, reads, list(range(112, 144, 4)), lead=6, name="pair")
        main = self.kmf(False)
        main += [f"v_mfma_f32_32x32x16_bf16 {vr(ACC[p],16)}, {vr(V_B1+2*p,4)}, {vr(V_ONE,4)}, 0" for p in range(2)]
        for ks in range(40):
            for p in range(2):
                main.append(lambda p=p, ks=ks: f"v_mfma_f32_32x32x16_bf16 {vr(ACC[p],16)}, {vr(fr.reg[(p,ks)],4)}, {ar(4*ks,4)}, {vr(ACC[p],16)}")
        main.append(self.st("g1.ab") + f"\nv_mfma_f32_32x32x16_bf16 {vr(ACC[2],16)}, {vr(V_B1+4,4)}, {vr(V_ONE,4)}, 0")
        for ks in range(40):
            main.append(f"v_mfma_f32_32x32x16_bf16 {vr(ACC[2],16)}, {self.creg(ks)[0]}, {ar(4*ks,4)}, {vr(ACC[2],16)}")
        mb = o.get("mb", 58)
        S = [fr]
        cpre = []
        for ks in range(40):
            cpre += [f"ds_read_b64_tr_b16 {self.creg(ks)[1](h)}, v{V_S} offset:{ks*1024+256*h}" for h in range(2)]
        S.append(Stream(cpre, 0, mb - 3, ahead=8, name="cpre"))
        ny = o.get("ny", 8)
        yl = [Item(x, hi=max(0, 10 + 2 * (ny + i) - o.get("ylead", 20))) for i, x in enumerate(self.yloads()[ny:])]
        S.append(Stream(yl, 0, o.get("yend", 60), ahead=3, name="y"))
        t1, t2 = self.ktail3()
        S.append(Stream(t1, 10, 26, name="t1"))
        S.append(Stream(t2, 30, mb - 4, name="t2"))
        misc = self.late_scalars() + [f"s_mov_b32 s74, {fbits(-1.5957691216057308*1.4426950408889634)}",
                f"s_mov_b32 s75, {fbits(-1.5957691216057308*0.044715*1.4426950408889634)}",
                "v_mov_b32 v8, s74", "v_mov_b32 v9, s75", "v_mov_b32 v30, 1.0", "v_mov_b32 v31, 1.0"]
        mxp, mx = o.get("mxp", 56), o.get("mx", 78)
        S.append(Stream(misc, 0, mx - 2, name="misc"))
        S.append(Stream([f"s_mov_b32 s84, {FX}\n" + self.poll_load(2, True, V_FX, "s84")], mxp, mxp + 1))
        S.append(Stream([self.poll_check("x", 2, True, V_FX, "s84") + "\n" + self.st("xpoll")] +
                        [("" if i == 0 else f"s_add_u32 s83, s83, {16*XP}\n") + f"buffer_load_dwordx4 {ar(240+4*i,4)}, v{V_UG}, {SWS}, s83 offen{SC}" for i in range(4)],
                        mx, mx + 12, ahead=0))
        nw = o.get("nw", 14)
        S.append(Stream([Item(x, lo=92 + i) for i, x in enumerate(self.w2f_items()[:nw])], max(93, mx + 12), 131, name="w2f"))
        S.append(Stream([f"s_lshl_b32 s7, {WAVE}, 10\ns_add_u32 m0, s7, {CB0}\ns_waitcnt lgkmcnt(0)\ns_barrier"], mb, mb + 1))
        exr, exw = [], []
        e0, e1 = mb + 1, o.get("exend", 89)
        for q in range(12):
            ch, row = divmod(q, 4)
            E, O = 10 + 2 * (q % 6), 22 + (q % 4)
            d = ch * CBP + row * 256
            g0 = e0 + 4 + (e1 - e0 - 4) * q // 12
            g1 = e0 + 4 + (e1 - e0 - 4) * (q + 1) // 12
            prev = e0 + 4 + (e1 - e0 - 4) * (q - 5) // 12 if q >= 6 else e0
            exr.append(Item(f"ds_read2_b32 {vr(E,2)}, v{V_ES+ch} offset0:{64*row} offset1:{64*row+1}", lo=prev + 1, hi=max(prev + 1, g0 - 3)))
            exw += [Item(f"ds_write_addtid_b32 v{E} offset:{d}", lo=g0, hi=g1), Item(f"ds_write_addtid_b32 v{E} offset:{d+2*CPITCH-4}", hi=g1),
                    Item(f"v_alignbit_b32 v{O}, v{E+1}, v{E}, 16", hi=g1),
                    Item(f"ds_write_addtid_b32 v{O} offset:{d+CPITCH}"), Item(f"ds_write_addtid_b32 v{O} offset:{d+3*CPITCH-4}")]
        exw += [f"ds_write_b32 v{V_Z1}, v26", f"ds_write_b64 v{V_Z2}, v[26:27]"]
        S.append(Stream(exr, e0, e1 - 6, ahead=100, name="exr"))
        S.append(Stream(exw, e0 + 4, e1 + 2, ahead=3, name="exw"))
        nB = o.get("nB", 2)
        S.append(Stream(self.gelu4(ACC[0], 10, range(8)) + self.hstore(10, S_HA, 0) + self.gelu4(ACC[1], 18, range(nB)), e1 + 3, 131, ahead=4, name="gelu"))
        gap_sched(a, main, S, "g1")
        a(self.st("g1.c"))
        gp = lambda acc_, out: [x.replace("v[10:11]", "v[30:31]") for x in self.gelu_packed(acc_, out, 2)]
        w2l = self.w2f_items()[nw:]
        nt = o.get("nt", 8)
        for x in gp(64, 18)[nB // 2 * 20:] + self.hstore(18, S_HA, 1024) + w2l[:nt // 2]: a(x)
        for i in range(4): a(f"ds_write_b128 v{V_UL}, {ar(240+4*i,4)} offset:{256*i}")
        gc = gp(32, 80)
        for x in gc[:20]: a(x)
        a("s_waitcnt lgkmcnt(0)\ns_barrier")
        self.tail = gc[20:40] + self.hstore(80, S_HC, 0)[:1] + w2l[nt // 2:nt] + gc[40:] + self.hstore(80, S_HC, 0)[1:]
        self.w2rest = w2l[nt:]

    def late_consts(self):
        t = 233
        L = []
        for i in range(3):
            L += [f"v_add_u32 v{t}, {64*i}, v0", f"v_mul_u32_u24 v{t+1}, 6554, v{t}", f"v_lshrrev_b32 v{t+1}, 16, v{t+1}",
                  f"v_mul_u32_u24 v{t+1}, 1120, v{t+1}", f"v_lshl_add_u32 v{VX+i}, v{t}, 4, v{t+1}"]
        L += [f"v_and_b32 v{t}, 15, v0", f"v_lshrrev_b32 v{t+1}, 4, v0", f"s_mul_i32 s73, s13, 160", f"v_lshl_add_u32 v{VB2}, v{t}, 1, s73",
              f"s_lshl_b32 s14, s12, 2", f"s_add_u32 s14, s14, s11", f"s_mul_i32 s14, s14, {16*1280}", f"s_add_u32 s14, s14, s73",
              f"v_cmp_gt_u32 vcc, 16, v0", f"s_mul_i32 s15, {WAVE}, 3072", f"s_add_u32 s15, s15, {G2X}", f"v_cndmask_b32 v{V_ONE}, 0, v{V_ONE}, vcc",
              f"s_mov_b32 m0, s15", f"v_add_u32 v{VXL}, s15, v1",
              f"v_mul_u32_u24 v{VXD}, 160, v{t}", f"v_lshl_add_u32 v{t+2}, v{t+1}, 3, s15", f"v_add_u32 v{VXD}, v{VXD}, v{t+2}",
              f"s_mul_i32 s73, {WAVE}, 10240", f"s_add_u32 s73, s73, {RING}", f"v_add_u32 v{VPW}, s73, v1",
              f"v_lshl_add_u32 v{t+2}, v{t+1}, 3, s73", f"v_lshl_add_u32 v{VCW}, v{t}, 5, v{t+2}",
              f"v_and_b32 v{t}, 3, v0", f"v_and_b32 v{t+1}, 4, v0", f"v_lshl_add_u32 v{VFH}, v{t}, 4, v{t+1}"]
        return L

    def late_consts2(self):
        t = 233
        return [f"s_add_u32 s73, {WAVE}, 1", f"s_and_b32 s73, s73, 3", f"s_mul_i32 s73, s73, 10240", f"s_add_u32 s73, s73, {RING}",
                f"v_lshl_add_u32 v{VPR}, v0, 2, s73",
                f"v_min_u32 v{t}, 26, v0", f"v_lshrrev_b32 v{t+1}, 2, v{t}", f"v_and_b32 v{t}, 3, v{t}", f"v_lshlrev_b32 v{VFS}, 8, v{t+1}",
                f"v_lshl_add_u32 v{VFS}, v{t}, 4, v{VFS}",
                f"v_lshrrev_b32 v{t}, 3, v0", f"v_and_b32 v{t+1}, 7, v0", f"v_mul_u32_u24 v{VSG}, {SP}, v{t}", f"v_lshl_add_u32 v{VSG}, v{t+1}, 4, v{VSG}",
                f"v_lshrrev_b32 v{t+1}, 1, v{t+1}", f"v_mul_u32_u24 v{VSL}, 2560, v{t+1}", f"v_lshl_add_u32 v{VSL}, v{t}, 5, v{VSL}",
                f"s_mul_i32 s73, {WAVE}, 640", f"s_add_u32 s73, s73, {G2S}",
                f"v_and_b32 v{t+1}, 1, v0", f"v_lshl_add_u32 v{t+1}, v{t+1}, 4, s73", f"v_add_u32 v{VSL}, v{VSL}, v{t+1}",
                f"s_mul_i32 s73, s11, 2560", f"s_add_u32 s73, s73, {G2S}", f"v_lshl_add_u32 v{VSR}, v0, 3, s73"]

    def conv(self, a, role):
        o = self.o
        seq = []
        if role == 0:
            blocks = [4, 5, 6, 7, 0]
            for r in range(8):
                for c in range(8):
                    if c == 4: seq.append((0, r, 0, 0))
                    for e in range(7, -1, -1):
                        if e + c in (4, 5, 6, 7): seq.append((0, r, e, c))
            acc = lambda ch, b: 2 + 4 * blocks.index(b)
        else:
            for r in range(8):
                for ch in range(3):
                    for c in range(4):
                        for e in range(3, -1, -1):
                            if e + c in (1, 2, 3): seq.append((ch, r, e, c))
            acc = lambda ch, b: 2 + 12 * ch + 4 * (b - 1)
        uses = [[("B", ch, r, c), ("A", ch, r, e)] for ch, r, e, c in seq]
        def reads(f, reg):
            k, ch, r, i = f
            if k == "B":
                return [f"ds_read_b128 {vr(reg,4)}, v{VCB} offset:{ch*CBP+U_OFF+480+512*i-64*r}"]
            off = ch * CBP + 4032 - 512 * i - 64 * r
            return [f"ds_read_b64 {vr(reg,2)}, v{VCA} offset:{off}", f"ds_read_b64 {vr(reg+2,2)}, v{VCA} offset:{off+8}"]
        pool = list(range(88, 128, 4)) + list(range(48, 88, 4))
        fr = FragStream(uses, reads, pool, lead=12, pre=o.get("cvpre", 9), name="cv")
        for x in fr.pro + self.tail: a(x)
        a(self.st("g1.tail"))
        n = len(seq)
        seen = set()
        main = []
        for ch, r, e, c in seq:
            d = vr(acc(ch, e + c), 4)
            cin = d if (ch, e + c) in seen else "0"
            seen.add((ch, e + c))
            main.append(lambda d=d, cin=cin, A=("A", ch, r, e), B=("B", ch, r, c): f"v_mfma_f32_16x16x32_bf16 {d}, {vr(fr.reg[A],4)}, {vr(fr.reg[B],4)}, {cin}")
        mf, mp, mc = o.get("mf", 66), o.get("mp", 150), o.get("mc", 190)
        S = [fr]
        S.append(Stream(self.w2rest, 4, o.get("wend", 190), name="w2f"))
        sal = [f"s_lshl_b32 s81, s8, 2", f"s_lshr_b32 s80, s9, 2", f"s_add_u32 s81, s81, s80", f"s_lshl_b32 s81, s81, 8",
               f"s_and_b32 s80, s9, 3", f"s_lshl_b32 s80, s80, 2", f"s_add_u32 s80, s80, {WAVE}", f"s_lshl_b32 s80, s80, 2",
               f"s_add_u32 s81, s81, s80", f"s_add_u32 s81, s81, {FH}", f"v_mov_b32 v232, {TAG}",
               f"s_lshr_b32 s86, s12, 1", f"s_lshl_b32 s86, s86, 2", f"s_add_u32 s86, s86, {WAVE}", f"s_lshl_b32 s86, s86, 8",
               f"s_and_b32 s80, s12, 1", f"s_lshl_b32 s80, s80, 3", f"s_add_u32 s86, s86, s80", f"s_add_u32 s86, s86, {FH}",
               f"s_lshl_b32 s82, s12, 4", f"s_add_u32 s82, s82, {WAVE}", f"s_mul_i32 s82, s82, {12*1024}", f"s_add_u32 s82, s82, {HF}"]
        S.append(Stream(sal, 1, mf - 2, name="sal"))
        S.append(Stream([f"WAITVM hst\ns_mov_b64 exec, 1\nbuffer_store_dword v232, off, {SWS}, s81{SC}\ns_mov_b64 exec, -1\n" + self.st("cv.fh")], mf, mf + 1))
        side = self.late_consts() + [f"v_accvgpr_write_b32 a{k}, 0" for k in (241, 243, 245, 247, 249, 250, 251)]
        side += [f"global_load_ushort a{240+2*jb}, v{VB2}, {sp('b2')} offset:{32*jb}" for jb in range(5)]
        S.append(Stream(side, 4, mp - 2, name="side"))
        S.append(Stream([self.poll_load(231, False, VFH, "s86")], mp, mp + 1))
        nh = o.get("nh", 7)
        hl = self.hloads(0) + self.hloads(1)
        hpf = []
        if o.get("hpf", 0):
            side2 = [f"v_min_u32 v233, 47, v0", f"v_cmp_lt_u32 vcc, 23, v233", f"v_lshlrev_b32 v234, 7, v233", f"s_add_u32 s73, s11, 3", f"s_and_b32 s73, s73, 3",
                     f"s_mul_i32 s73, s73, {48*1024}", f"s_mul_i32 s80, s11, {48*1024}", f"s_sub_u32 s80, s80, 3072", f"v_mov_b32 v235, s73", f"v_mov_b32 v233, s80",
                     f"v_cndmask_b32 v235, v235, v233, vcc", f"v_add_u32 v234, v234, v235", f"s_lshr_b32 s73, {JJ}, 3", f"s_mul_i32 s73, s73, 3072", f"s_add_u32 s83, s82, s73"]
            S.append(Stream(side2, mp, mc - 1, name="side2"))
            hpf = [f"buffer_load_dword v231, v234, {SWS}, s83 offen{SC}"]
        k = o.get("hpfpos", 7)
        S.append(Stream([self.poll_check(f"h{role}", 231, False, VFH, "s86") + "\n" + self.st("hpoll")] + hl[:min(k, nh)] + hpf + hl[min(k, nh):nh], mc, n, ahead=0, name="h"))
        gap_sched(a, main, S, f"conv{role}")
        a(self.st("cv.main"))
        order = [4, 0, 1, 2, 3] if role == 0 else list(range(9))
        for q in order:
            a(f"v_cvt_pk_bf16_f32 v{96+2*q}, v{2+4*q}, v{3+4*q}\nv_cvt_pk_bf16_f32 v{97+2*q}, v{4+4*q}, v{5+4*q}")
        for q in order:
            a(f"ds_write_b64 v{VCW}, {vr(96+2*q,2)} offset:{512*q}")
        k1 = nh + 3
        for x in hl[nh:k1]: a(x)
        k2 = max(k1, 13)
        if role == 0:
            a(f"s_mul_i32 s7, {WAVE}, {SP}\ns_add_u32 s7, s7, {S_ROW}")
            for q in range(3): a(f"ds_read_b128 {vr(96+4*q,4)}, v{VPW} offset:{1024*q}")
            for x in hl[k1:k2]: a(x)
            for q in range(2): a(f"buffer_store_dwordx4 {vr(96+4*q,4)}, v1, {SWS}, s7 offen offset:{2048+1024*q}{SC} @sst")
            a(f"s_waitcnt lgkmcnt(0)\ns_mov_b64 exec, 0xffffffff\nbuffer_store_dwordx4 v[104:107], v1, {SWS}, s7 offen{SC} @sst\ns_mov_b64 exec, -1")
        else:
            for ch in range(3):
                a(f"ds_read_b128 {vr(96+8*ch,4)}, v{VPW} offset:{1536*ch}\nds_read_b128 {vr(100+8*ch,4)}, v{VPW} offset:{1536*ch+1024}")
            for x in hl[k1:k2]: a(x)
            a(f"s_add_u32 s7, {S_ROW}, {SP}\ns_add_u32 s73, {S_ROW}, {2*SP}")
            sr = [S_ROW, "s7", "s73"]
            for ch in range(3): a(f"buffer_store_dwordx4 {vr(96+8*ch,4)}, v1, {SWS}, {sr[ch]} offen offset:512{SC} @sst")
            a("s_waitcnt lgkmcnt(0)\ns_mov_b64 exec, 0xffffffff")
            for ch in range(3): a(f"buffer_store_dwordx4 {vr(100+8*ch,4)}, v1, {SWS}, {sr[ch]} offen offset:1536{SC} @sst")
            a("s_mov_b64 exec, -1")
        self.hrest = hl[k2:]
        a(self.st("cv.out"))

    def gemm2f(self, a):
        o = self.o
        AC = (2, 22)
        main, idx = [], {}
        for rho in range(4):
            for jb in range(5):
                d = vr(AC[rho & 1] + 4 * jb, 4)
                idx[(rho, jb)] = len(main)
                if rho == 0: main.append(f"v_mfma_f32_16x16x32_bf16 {d}, {ar(240+2*jb,4)}, {vr(V_ONE,4)}, 0")
                for kk in range(12):
                    main.append(f"v_mfma_f32_16x16x32_bf16 {d}, {ar(self.w2reg(jb*12+kk),4)}, {vr(self.breg(rho,kk),4)}, {d}")
        for rho in (1, 2, 3): main[idx[(rho, 0)]] = self.st(f"g2.r{rho}") + "\n" + main[idx[(rho, 0)]]
        main[13] = self.st("g2.c1") + "\n" + main[13]
        idx[(4, 0)] = n = len(main)
        nxt = lambda rho, jb: idx[(rho, jb + 1)] if jb < 4 else idx[(rho + 1, 0)]
        for i in range(2): a(f"buffer_load_dwordx4 v{VX+i}, {SX}, s14 offen lds @xdma\ns_add_u32 m0, m0, 1024")
        a(f"s_mov_b64 exec, 0xffffffff\nbuffer_load_dwordx4 v{VX+2}, {SX}, s14 offen lds @xdma\ns_mov_b64 exec, -1")
        a(f"s_mul_i32 s7, {WAVE}, 10240\ns_add_u32 m0, s7, 32768")
        ring = []
        for rho in range(3):
            par = rho & 1
            def wr(jb):
                g = nxt(rho, jb) + 3
                return [Item(f"ds_write_addtid_b32 v{AC[par]+4*jb+k} offset:{RING-32768+5120*par+1024*jb+256*k} @pw", lo=g, hi=g + 3) for k in range(4)]
            def rd(jb, g):
                return [Item(f"ds_read2st64_b32 {vr(AC[par^1]+4*jb+2*k,2)}, v{VPR} offset0:{20*par+4*jb+2*k} offset1:{20*par+4*jb+2*k+1}", lo=g, hi=g + 6) for k in range(2)]
            b1, b2 = nxt(rho, 2) + 10, nxt(rho, 4) + 10
            ring += wr(0) + wr(1) + wr(2) + [Item("WAITLG pw\ns_barrier", lo=b1, hi=b1)] + rd(0, b1 + 1) + rd(1, b1 + 1) + rd(2, b1 + 1)
            ring += wr(3) + wr(4) + [Item("WAITLG pw\ns_barrier", lo=b2, hi=b2)] + rd(3, b2 + 1) + rd(4, b2 + 1)
        rs = Stream(ring, 0, n, ahead=0, name="ring")
        for it in rs.items: it.ideal = it.lo - 5
        S = [rs]
        S.append(Stream(self.hrest + self.hloads(2) + [Item(x, lo=idx[(1, 0)]) for x in self.hloads(3)], 0, o.get("hend", 130), name="h"))
        ms = o.get("ms", 62)
        S.append(Stream(self.late_consts2(), 0, 44, name="lc2"))
        sal = [f"s_lshl_b32 s81, {XCD}, 3", f"s_lshr_b32 s80, {JJ}, 2", f"s_add_u32 s81, s81, s80", f"s_lshl_b32 s81, s81, 8",
               f"s_and_b32 s80, {JJ}, 3", f"s_lshl_b32 s80, s80, 2", f"s_add_u32 s80, s80, {WAVE}", f"s_lshl_b32 s80, s80, 2",
               f"s_add_u32 s81, s81, s80", f"s_add_u32 s81, s81, {FS}",
               f"s_lshl_b32 s86, s13, 11", f"s_add_u32 s86, s86, {FS}",
               f"s_lshl_b32 s76, s13, 2", f"s_add_u32 s76, s76, {WAVE}", f"s_mul_i32 s76, s76, {20*SP}",
               f"s_lshl_b32 s80, s12, 7", f"s_add_u32 s76, s76, s80", f"s_add_u32 s76, s76, {ST}",
               f"s_add_u32 s77, s76, {8*SP}", f"s_add_u32 s78, s76, {16*SP}", f"s_mov_b32 s74, {fbits(-1.4426950408889634)}"]
        S.append(Stream(sal, 0, ms - 2, name="sal"))
        S.append(Stream([f"WAITVM sst\ns_mov_b64 exec, 1\nbuffer_store_dword v232, off, {SWS}, s81{SC}\ns_mov_b64 exec, -1\n" + self.st("g2.fs")], ms, ms + 1))
        XR, XF, SR, SD = 96, 176, 106, 116
        S.append(Stream(["WAITVM xdma"] + [f"ds_read_b64 {vr(XR+2*jb,2)}, v{VXD} offset:{32*jb}" for jb in range(5)], idx[(1, 3)], idx[(2, 0)], name="xr"))
        xu = []
        for q in range(10): xu += [f"v_lshlrev_b32 v{XF+2*q}, 16, v{XR+q}", f"v_and_b32 v{XF+2*q+1}, 0xffff0000, v{XR+q}"]
        S.append(Stream(xu, idx[(2, 1)], idx[(3, 0)], ahead=0, name="xu"))
        mp, mc = o.get("g2p", 140), o.get("g2c", 180)
        S.append(Stream([self.poll_load(196, True, VFS, "s86")], mp, mp + 1))
        S.append(Stream([self.poll_check("s", 196, True, VFS, "s86") + "\n" + self.st("spoll"),
                         f"buffer_load_dwordx4 {vr(SD,4)}, v{VSG}, {SWS}, s76 offen{SC}",
                         f"buffer_load_dwordx4 {vr(SD+4,4)}, v{VSG}, {SWS}, s77 offen{SC}",
                         f"s_mov_b64 exec, 0xffffffff\nbuffer_load_dwordx4 {vr(SD+8,4)}, v{VSG}, {SWS}, s78 offen{SC}\ns_mov_b64 exec, -1"], mc, mc + 5, ahead=0))
        Z = AC[1]
        def silu(jb):
            T = 200
            z = Z + 4 * jb
            L = [f"v_mul_f32 v{T+k}, s74, v{z+k}" for k in range(4)] + [f"v_exp_f32 v{T+k}, v{T+k}" for k in range(4)]
            L += [f"v_add_f32 v{T+k}, 1.0, v{T+k}" for k in range(4)] + [f"v_rcp_f32 v{T+k}, v{T+k}" for k in range(4)]
            L += [f"v_mul_f32 v{z+k}, v{z+k}, v{T+k}" for k in range(4)]
            return L
        sl = []
        for jb in range(3):
            L = [Item(x) for x in silu(jb)]
            L[0].lo = nxt(3, jb) + 2
            sl += L
        S.append(Stream(sl, nxt(3, 0) + 2, n, ahead=6, name="silu"))
        gap_sched(a, main, S, "g2")
        a(self.st("g2.mfma"))
        a(f"""
        ds_write_b128 v{VSL}, {vr(SD,4)}
        ds_write_b128 v{VSL}, {vr(SD+4,4)} offset:256
        s_waitcnt vmcnt(0)
        s_mov_b64 exec, 0xffffffff
        ds_write_b128 v{VSL}, {vr(SD+8,4)} offset:512
        s_mov_b64 exec, -1
        """)
        for x in silu(3): a(x)
        a("s_waitcnt lgkmcnt(0)\ns_barrier")
        a(self.st("g2.bar"))
        for jb in range(5): a(f"ds_read_b64_tr_b16 {vr(SR+2*jb,2)}, v{VSR} offset:{512*jb}")
        for x in silu(4): a(x)
        T = 204
        for q in range(10):
            a(f"""
            v_lshlrev_b32 v{T}, 16, v{SR+q}
            v_and_b32 v{T+1}, 0xffff0000, v{SR+q}
            v_pk_fma_f32 {vr(T,2)}, {vr(T,2)}, {vr(Z+2*q,2)}, {vr(XF+2*q,2)}
            v_cvt_pk_bf16_f32 v{XR+q}, v{T}, v{T+1}
            """)
        for jb in range(5): a(f"ds_write_b64 v{VXD}, {vr(XR+2*jb,2)} offset:{32*jb}")
        a("s_waitcnt lgkmcnt(0)")
        for i in range(3): a(f"ds_read_b128 {vr(SD+4*i,4)}, v{VXL} offset:{1024*i}")
        osc = o.get("osc", SC)
        for i in range(2): a(f"buffer_store_dwordx4 {vr(SD+4*i,4)}, v{VX+i}, {SOUT}, s14 offen{osc}")
        a(f"s_waitcnt lgkmcnt(0)\ns_mov_b64 exec, 0xffffffff\nbuffer_store_dwordx4 {vr(SD+8,4)}, v{VX+2}, {SOUT}, s14 offen{osc}")
        a(self.st("g2.done"))

def build(prof=False, opt=None, cls=F4):
    g = cls(prof, opt or {})
    if prof == "min":
        full = g.st
        g.st = lambda n: full(n) if n in ("start", "end") else ""
    elif prof:
        g.st("start"); g.st("w3.dma")
    if (opt or {}).get("only"):
        lst_ = ["start"] + opt["only"].strip().split(",") + ["end"]
        pairs = [34, 16, 36, 40, 44, 46, 48, 18, 20, 22, 24, 26, 28, 30, 32]
        g.STAMPS = pairs + [p + 1 for p in pairs]
        g.names = list(lst_)
        g.st = lambda n: (f"S_MEMTIME s[{pairs[lst_.index(n)]}:{pairs[lst_.index(n)]+1}]" + ("\ns_waitcnt lgkmcnt(0)" if n in ("start", "end") else "")) if n in lst_ else ""
    if (opt or {}).get("rt"):
        st0_ = g.st
        g.st = lambda n: st0_(n).replace("s_memtime", "s_memrealtime")
    enc = (opt or {}).get("enc")
    if enc:
        g.st = lambda n: "s_memrealtime s[98:99]\ns_waitcnt lgkmcnt(0)" if n == enc.strip() else ""
    dbg = (opt or {}).get("dbg")
    if dbg:
        op, wsel, lst = dbg.strip().split(":")
        lst = ["start"] + lst.split(",") + ["end"]
        g.prof = True
        g.STAMPS = [r for r in g.STAMPS if r not in (46, 47)]
        g.names = list(lst)
        full2 = g.st
        g.st = lambda n: full2(n) if n in lst else ""
        def dump(a):
            a("s_mov_b64 exec, -1\ns_waitcnt vmcnt(0)")
            a(g.st("end"))
            a("s_memrealtime s[100:101]\ns_waitcnt lgkmcnt(0)\ns_sub_u32 s100, s100, s99\nv_mov_b32 v2, s100")
            for i in range(1, len(lst)):
                a(f"s_sub_u32 s7, s{g.STAMPS[i]}, s{g.STAMPS[0]}\ns_cmp_eq_u32 s{g.STAMPS[i]}, 0\ns_cselect_b32 s7, 0, s7\nv_writelane_b32 v2, s7, {i}")
            a(f"v_lshlrev_b32 v3, 2, v0\ns_cmp_eq_u32 {WAVE}, {wsel}\ns_cbranch_scc0 L_end\ns_mov_b64 exec, {(1 << len(lst)) - 1}\nglobal_atomic_{op} v3, v2, s[46:47]")
        g.dump = dump
    a = Asm(auto=True)
    if enc: a("s_memrealtime s[98:99]")
    g.start(a)
    g.consts(a)
    g.s_compute3(a)
    a(g.st("s.done"))
    a(f"s_cmp_eq_u32 {WAVE}, 3\ns_cbranch_scc1 L_w3")
    st0 = a.state()
    g.kgen4(a)
    a("s_branch L_g1\nL_w3:")
    st1 = a.state()
    a.set_state(st0)
    g.wave3(a)
    if (opt or {}).get("pad") is not None:
        a(f"s_branch L_g1\n.p2align 7\n.fill {opt['pad']}, 4, 0xbf800000")
    a("L_g1:")
    a.merge([st1, a.state()])
    a(g.st("g1.arrive"))
    a("s_barrier")
    g.gemm1f(a)
    a(f"s_cmp_eq_u32 {WAVE}, 3\ns_cbranch_scc1 L_cv3")
    st0 = a.state()
    g.conv(a, 0)
    a("s_branch L_g2\nL_stub1:\ns_setpc_b64 s[88:89]\nL_cv3:")
    st1 = a.state()
    a.set_state(st0)
    g.conv(a, 1)
    a("s_branch L_g2\nL_stub2:\ns_setpc_b64 s[88:89]\nL_g2:")
    a.merge([st1, a.state()])
    g.gemm2f(a)
    a(f"s_or_b32 s7, s2, {WAVE}\ns_cbranch_scc1 L_fin\ns_mov_b32 s7, {FLG}")
    a(g.flag_store("s7", 4))
    a("L_fin:")
    if enc:
        a(f"s_cmp_eq_u32 s2, {opt.get('ewg', 77)}\ns_cbranch_scc0 L_end\ns_cmp_eq_u32 {WAVE}, {opt.get('ewv', 0)}\ns_cbranch_scc0 L_end")
        a("s_add_u32 s98, s98, 4000\nL_spin:\ns_memrealtime s[100:101]\ns_waitcnt lgkmcnt(0)\ns_sub_u32 s7, s98, s100\ns_cmp_gt_u32 s7, 4000\ns_cbranch_scc0 L_spin")
    g.dump(a)
    a("L_end:\ns_endpgm")
    g.slow_paths(a)
    a("L_code_end:")
    body = a.finish().replace("S_MEMTIME", "s_memtime")
    if (opt or {}).get("dry"):
        body = body.replace(f"s_mov_b32 s70, {WS_BYTES}", "s_mov_b32 s70, 0").replace("s_mov_b32 s58, 1966080", "s_mov_b32 s58, 0")
        body = body.replace("s_mov_b32 s66, 2621440", "s_mov_b32 s66, 0")
        import re
        body = re.sub(r"s_cbranch_scc1 L_slow_\w+", "s_nop 0", body)
        body = body.replace("L_fin:\n", f"L_fin:\n    s_mov_b32 s70, {WS_BYTES}\n")
    if (opt or {}).get("al", 1): body = align8(body)
    out = header()
    out += f"; @launch grid=(256,1,1) block=(256,1,1) lds={LDS_BYTES}\n"
    if prof: out += "; stamps2: " + " ".join(g.names) + "\n"
    out += "; layout v3\n"
    out += '.amdgcn_target "amdgcn-amd-amdhsa--gfx950"\n.text\n'
    out += khead(NAME + "_kernel") + body
    out += '.section .rodata,"a"\n.p2align 6\n' + kdesc(NAME + "_kernel")
    print("instructions", sum(1 for i in a.ins if i.mn), "nops inserted", a.nops)
    return out

if __name__ == "__main__":
    open(sys.argv[1], "w").write(build("min" if "min" in sys.argv[2:] else "prof" in sys.argv[2:], parse(sys.argv[2:])))
```

```python
import sys, struct, math
from dsl import Item, Stream, FragStream, gap_sched, weave, interleave
import gen3, gen4, gen7, gen8, gen10, gen11
from gen4 import *
from gen11 import CBP, CB0, FY, FH, FS, WS_BYTES
PAIR, SNG, RING = 40960, 122880, 81920
for m_ in (gen4, gen8, gen10, gen11): m_.PAIR, m_.SNG, m_.RING = PAIR, SNG, RING

class F13(gen11.F11):
    POOL = list(range(112, 128, 4)) + list(range(48, 80, 4)) + [88, 92] + list(range(96, 112, 4)) + [80, 84]

    def gemm1f(self, a):
        o = self.o
        ACC = (48, 64, 96)
        ns = o.get("ns", 14)
        order = [(p, ks) for ks in range(40 - ns) for p in range(3)] + [(p, ks) for p in range(3) for ks in range(40 - ns, 40)]
        H = 11
        pos = {f: H + i for i, f in enumerate(order)}
        uses = [[] for _ in range(H)] + [[f] for f in order]
        def reads(f, reg):
            p, ks = f
            if p == 2: return [f"ds_read_b64_tr_b16 {vr(reg+2*h,2)}, v{V_S} offset:{ks*1024+256*h}" for h in range(2)]
            base = V_P0 + p
            off = ks * 2048 - (65536 if ks >= 32 else 0)
            pre = [f"v_add_u32 v{base}, 0x10000, v{base}"] if ks == 32 else []
            return pre + [f"ds_read_b64_tr_b16 {vr(reg,2)}, v{base} offset:{off}", f"ds_read_b64_tr_b16 {vr(reg+2,2)}, v{base} offset:{off+512}"]
        fr = FragStream(uses, reads, list(range(112, 208, 4)), lead=6, name="w1")
        main = self.kmf(False) + [f"v_mfma_f32_32x32x16_bf16 {vr(ACC[p],16)}, {vr(V_B1+2*p,4)}, {vr(V_ONE,4)}, 0" for p in range(3)]
        for f in order:
            main.append(lambda f=f: f"v_mfma_f32_32x32x16_bf16 {vr(ACC[f[0]],16)}, {vr(fr.reg[f],4)}, {ar(4*f[1],4)}, {vr(ACC[f[0]],16)}")
        n = len(main)
        eA, eB = pos[(0, 39)], pos[(1, 39)]
        t0 = main[eA + 1]
        main[eA + 1] = lambda: self.st("g1.ab") + "\n" + t0()
        S = [fr]
        ny = o.get("ny", 8)
        yl = [Item(x, hi=max(0, pos[(0, ny + i)] - o.get("ylead", 18))) for i, x in enumerate(self.yloads()[ny:])]
        S.append(Stream(yl, 0, o.get("yend", 70), ahead=4, name="y"))
        t1, t2 = self.ktail3()
        S.append(Stream(t1, 10, 30, name="t1"))
        mb = o.get("mb", 66)
        S.append(Stream(t2, 35, mb - 4, name="t2"))
        misc = self.late_scalars() + [f"s_mov_b32 s74, {fbits(-1.5957691216057308*1.4426950408889634)}",
                f"s_mov_b32 s75, {fbits(-1.5957691216057308*0.044715*1.4426950408889634)}",
                "v_mov_b32 v8, s74", "v_mov_b32 v9, s75", "v_mov_b32 v30, 1.0", "v_mov_b32 v31, 1.0"]
        mxp, mx = o.get("mxp", 20), o.get("mx", 46)
        S.append(Stream(misc, 0, mx - 2, name="misc"))
        S.append(Stream([f"s_mov_b32 s84, {FX}\n" + self.poll_load(2, True, V_FX, "s84")], mxp, mxp + 1))
        ul = [("" if i == 0 else f"s_add_u32 s83, s83, {16*XP}\n") + f"buffer_load_dwordx4 {ar(240+4*i,4)}, v{V_UG}, {SWS}, s83 offen{SC}" for i in range(4)]
        nw = o.get("nw", 24)
        wl = [Item(x, lo=(pos[(2, i - 20)] if i >= 20 else None)) for i, x in enumerate(self.w2f_items()[:nw])]
        S.append(Stream([self.poll_check("x", 2, True, V_FX, "s84") + "\n" + self.st("xpoll")] + ul, mx, mx + 24, ahead=0, name="u"))
        S.append(Stream(wl, max(mx + 2, o.get("wbeg", 72)), n, ahead=2, name="w2f"))
        bar = Item(f"s_lshl_b32 s7, {WAVE}, 10\ns_add_u32 m0, s7, {CB0}\ns_waitcnt lgkmcnt(0)\ns_barrier")
        S.append(Stream([bar], mb, mb + 1))
        class Chk:
            name = "chk"
            def peek(s_, m): return None
            def after_main(s_, m):
                if m == mb: assert all((p, ks) in fr.reg and not any(q.f == (p, ks) for q in fr.pend) for p in range(2) for ks in range(20)), "pair reads not issued before the barrier"
        S.append(Chk())
        exr, exw = [], []
        e0, e1 = mb + 1, o.get("exend", 100)
        for q in range(12):
            ch, row = divmod(q, 4)
            E, O = 80 + 2 * (q % 6), 92 + (q % 4)
            d = ch * CBP + row * 256
            g0 = e0 + 4 + (e1 - e0 - 4) * q // 12
            g1 = e0 + 4 + (e1 - e0 - 4) * (q + 1) // 12
            prev = e0 + 4 + (e1 - e0 - 4) * (q - 5) // 12 if q >= 6 else e0
            exr.append(Item(f"ds_read2_b32 {vr(E,2)}, v{V_ES+ch} offset0:{64*row} offset1:{64*row+1}", lo=prev + 1, hi=max(prev + 1, g0 - 3)))
            exw += [Item(f"ds_write_addtid_b32 v{E} offset:{d}", lo=g0, hi=g1), Item(f"ds_write_addtid_b32 v{E} offset:{d+2*CPITCH-4}", hi=g1),
                    Item(f"v_alignbit_b32 v{O}, v{E+1}, v{E}, 16", hi=g1),
                    Item(f"ds_write_addtid_b32 v{O} offset:{d+CPITCH}"), Item(f"ds_write_addtid_b32 v{O} offset:{d+3*CPITCH-4}")]
        exw += [f"ds_write_b32 v{V_Z1}, v26", f"ds_write_b64 v{V_Z2}, v[26:27]"]
        S.append(Stream(exr, e0, e1 - 6, ahead=100, name="exr"))
        S.append(Stream(exw, e0 + 4, e1 + 2, ahead=3, name="exw"))
        uw = [f"ds_write_b64 v{V_UL}, {ar(240+2*i,2)} offset:{256*(i>>1)+8*(i&1)}" for i in range(8)]
        ush = o.get("ush", 102)
        S.append(Stream(uw, ush, min(ush + 20, n - 2), ahead=0, name="uw"))
        nG = o.get("nG", 6)
        gl = self.gelu4(ACC[0], 10, range(min(nG, 8)))
        hs = self.hstore(10, S_HA, 0)
        if nG >= 4: gl.insert(60, hs[0])
        if nG >= 8: gl += [hs[1]] + self.gelu4(ACC[1], 18, range(nG - 8))
        if gl: S.append(Stream(gl, eA + 2, n, ahead=4, name="gelu"))
        dc = o.get("dscap", 3.5)
        gap_sched(a, main, S, "g1", dscap=lambda m: int(dc * (m + 1)) - int(dc * m))
        a(self.st("g1.c"))
        gp = lambda acc_, out: [x.replace("v[10:11]", "v[30:31]") for x in self.gelu_packed(acc_, out, 2)]
        w2l = self.w2f_items()[nw:]
        groups = []
        for p, out, sreg, off in ((0, 10, S_HA, 0), (1, 18, S_HA, 1024), (2, 80, S_HC, 0)):
            g = gp(ACC[p], out)
            for k in range(4):
                if 8 * p + 2 * k < nG: continue
                groups.append((g[20 * k:20 * k + 20], self.hstore(out, sreg, off)[k // 2] if k & 1 else None))
        nbar = len(groups) - o.get("nlast", 2)
        seq, self.tail = [], []
        k = 0
        for gi, (g, st_) in enumerate(groups):
            dst = seq if gi < nbar else self.tail
            dst += g
            if st_: dst.append(st_)
            elif o.get("nt", 1):
                dst.append(w2l[k]); k += 1
        for x in seq: a(x)
        a("s_waitcnt lgkmcnt(0)\ns_barrier")
        self.w2rest = w2l[k:]

DEF = dict(w1pf=0, t4=1, yrot=0, late=1, n1=4, n2=5, ms=44, g2p=126, g2c=176, spos=230, mp=115, mc=155, nh=13, wend=150)
def make(args, cls=F13):
    opt = parse(args)
    for k_, v_ in DEF.items(): opt.setdefault(k_, v_)
    return gen7.build("min" if "min" in args else "prof" in args, opt, cls=cls)

if __name__ == "__main__":
    open(sys.argv[1], "w").write(make(sys.argv[2:]))
```

```python
import sys, struct, math
from dsl import Item, Stream, FragStream, gap_sched, weave, interleave
import gen3, gen4, gen7, gen8, gen10
from gen4 import *
from gen10 import CBP, CB0, FY, FH, FS, WS_BYTES
gen7.WS_BYTES = WS_BYTES

YT, XT = 0, 10496

class F11(gen10.F10):
    def start(self, a):
        o = self.o
        t4 = o.get("t4", 0)
        a(f"""
        s_load_dwordx16 s[16:31], s[0:1], 0
        s_load_dwordx16 s[32:47], s[0:1], 64
        s_load_dwordx2 s[48:49], s[0:1], 128
        s_cmp_ge_u32 s2, 256
        s_cbranch_scc1 L_end
        s_getpc_b64 s[72:73]
        L_pc:
        v_lshrrev_b32 v1, 6, v0
        s_lshr_b32 {JJ}, s2, 3
        v_and_b32 v0, 63, v0
        s_lshl_b32 s7, {JJ}, 4
        v_lshl_add_u32 v8, v1, 2, v0
        v_readfirstlane_b32 {WAVE}, v1
        v_add_lshl_u32 v8, v8, s7, 7
        v_min_u32 v8, L_code_end-L_pc-4, v8
        v_mov_b32 v{V_CNT}, {CNT}
        v_mov_b64 v[4:5], 0
        v_mov_b64 v[6:7], 0
        s_mov_b64 exec, 15
        global_load_dword v{V_DUM}, v8, s[72:73]
        ds_write_b128 v{V_CNT}, v[4:7]
        s_mov_b64 exec, -1
        s_and_b32 {XCD}, s2, 7
        s_lshl_b32 {SID}, {XCD}, 5
        s_add_u32 {SID}, {SID}, {JJ}
        v_lshrrev_b32 v2, 4, v0
        v_and_b32 v3, 15, v0
        v_lshrrev_b32 v4, 5, v0
        v_and_b32 v5, 31, v0
        v_mul_u32_u24 v7, 1280, v4
        v_lshl_add_u32 v7, v5, 3, v7
        s_lshl_b32 s72, {SID}, 2
        s_add_u32 s72, s72, {WAVE}
        s_mul_i32 s72, s72, 2560
        s_mov_b32 s54, 2621440
        s_mov_b32 s55, 0x20000
        s_mov_b32 s70, {WS_BYTES}
        s_mov_b32 s71, 0x20000
        s_mov_b32 s73, {FLG}
        s_lshr_b32 s9, {JJ}, {3 if t4 else 2}
        s_and_b32 s7, {XCD}, {3 if t4 else 1}
        s_lshl_b32 s7, s7, {2 if t4 else 3}
        s_mul_i32 s83, s9, 10
        s_add_u32 s9, s9, s7
        s_lshr_b32 s83, s83, {2 if t4 else 3}
        s_mul_i32 s83, s83, {1 if o.get("yrot", 1) else 0}
        s_and_b32 s7, s9, 1
        s_mul_i32 {S_PAIR}, s9, 192
        s_add_u32 {S_SNG}, {S_PAIR}, 128
        s_lshl_b32 s74, s7, 6
        s_add_u32 {S_PAIR}, {S_PAIR}, s74
        s_lshl_b32 s74, s7, 7
        s_sub_u32 {S_SNG}, {S_SNG}, s74
        s_mov_b32 s58, 1966080
        s_mov_b32 s59, 0x20000
        s_mov_b32 s62, 1966080
        s_mov_b32 s63, 0x20000
        s_lshl_b32 s7, {WAVE}, 1
        v_add_u32 v4, s7, v4
        v_mul_u32_u24 v204, {PY}, v4
        v_mul_u32_u24 v205, {PX}, v4
        s_bitcmp1_b32 {JJ}, {2 if t4 else 1}
        s_cselect_b32 s87, 3, 13
        s_lshl_b32 s87, s87, 12
        s_add_u32 s87, s87, {PAIR}
        v_lshl_add_u32 v6, v5, 3, s87
        v_add_u32 v204, v204, v6
        v_add_u32 v205, v205, v6
        v_lshl_add_u32 v30, v5, 1, {S_PAIR}
        v_lshl_add_u32 v31, v5, 1, {S_SNG}
        v_mov_b64 v[240:241], 0
        v_mov_b64 v[242:243], 0
        v_mov_b64 v[244:245], 0
        v_mov_b64 v[246:247], 0
        s_waitcnt lgkmcnt(0)
        s_mov_b64 s[52:53], {sp('x')}
        s_mov_b64 s[68:69], {sp('ws')}
        """)
        for i in range(5):
            a(f"buffer_load_dwordx2 {vr(110+2*i,2)}, v7, {SX}, s72 offen offset:{256*i}")
        a(f"buffer_load_dword v109, off, {SWS}, s73{SC}")
        self.pstart(a)
        self.bias(a)
        a('s_barrier')
        a(f"""
        s_mov_b64 s[56:57], {sp('w1')}
        s_mov_b64 s[60:61], {sp('w2')}
        s_mov_b64 s[64:65], {sp('out')}
        s_mov_b32 s66, 2621440
        s_mov_b32 s67, 0x20000
        s_cmp_eq_u32 {WAVE}, 3
        s_cbranch_scc1 L_st3
        s_mul_i32 s7, {JJ}, 3
        s_add_u32 s11, s7, {WAVE}
        s_min_u32 s11, s11, 79
        s_mul_i32 s7, {XCD}, 80
        s_add_u32 s11, s11, s7
        s_mul_i32 s7, s11, 384
        v_lshl_add_u32 v8, v0, 1, s7
        s_lshl_b32 s7, s11, 1
        v_mov_b32 v6, s7
        """)
        for k in list(range(10, 30, 2)) + [40, 42, 44, 196, 200, 202]: a(f"v_mov_b64 {vr(k,2)}, 0")
        a(f"global_load_short_d16_hi v28, v6, {sp('ldt')}\nglobal_load_short_d16_hi v29, v6, {sp('dsk')}")
        for c in range(3):
            for k, n in enumerate(("are", "aim", "bre", "bim", "cre", "cim")):
                a(f"global_load_short_d16_hi v{10+6*c+k}, v8, {sp(n)} offset:{128*c}")
        a("s_branch L_stj\nL_st3:")
        self.w3pre(a)
        if o.get("c3late", 0): a("v_lshlrev_b32 v1, 4, v0\ns_branch L_noc")
        a("L_stj:")

    def consts(self, a):
        p, self.prof = self.prof, False
        skip = ("s[56:57]", "s[60:61]", "s[64:65]", "s62,", "s63,", "s66,", "s67,")
        super().consts(lambda t: a("\n".join(l for l in t.split("\n") if not any(k in l for k in skip))))
        self.prof = p

        if self.o.get("sdef", 0):
            a(f"v_lshrrev_b32 v4, 2, v0\nv_mul_u32_u24 v229, 3072, v4\nv_and_b32 v4, 3, v0\nv_lshl_add_u32 v229, v4, 4, v229")

    def step2(self, a, single):
        if not self.o.get("sdef", 0): return self.step(a)
        a(f"s_lshl_b32 s7, s82, 1\ns_add_u32 m0, s7, {PAIR}\ns_add_u32 s7, s80, {S_PAIR}")
        for k in range(4): a(f"buffer_load_dwordx4 v{40+k}, {SW1}, s7 offen offset:{1024*k} lds")
        if single is not None:
            a(f"s_mov_b32 m0, {SNG+2048*single}\ns_add_u32 s7, {S_SNG}, {32*3072*single}")
            for k in range(2): a(f"buffer_load_dwordx4 v{44+k}, {SW1}, s7 offen offset:{1024*k} lds")
        a(f"""
        s_add_u32 s82, s82, 2048
        s_add_u32 s80, s80, {32*3072}
        s_cmp_eq_u32 s82, 40960
        s_cselect_b32 s82, 0, s82
        s_cselect_b32 s80, 0, s80
        """)

    def w3pre(self, a):
        o = self.o
        t4 = o.get("t4", 0)
        a(f"""
        v_min_u32 v4, 59, v0
        v_mul_u32_u24 v5, {10923 if t4 else 5462}, v4
        v_lshrrev_b32 v5, 16, v5
        v_mul_u32_u24 v5, {3072-(6 if t4 else 12)*128}, v5
        v_lshl_add_u32 v46, v4, 7, v5
        v_add_u32 v47, {5*3072}, v46
        s_mul_i32 s74, {JJ}, {20*3072}
        s_and_b32 s7, {XCD}, {3 if t4 else 1}
        s_mul_i32 s7, s7, {768 if t4 else 1536}
        s_add_u32 s74, s74, s7
        s_add_u32 s75, s74, {10*3072}
        v_lshrrev_b32 v4, 3, v0
        v_mul_u32_u24 v40, 3072, v4
        v_lshrrev_b32 v4, 2, v0
        v_mul_u32_u24 v44, 3072, v4
        v_xor_b32 v4, v4, v2
        v_and_b32 v4, 1, v4
        v_lshl_add_u32 v40, v4, 6, v40
        v_and_b32 v4, 3, v0
        v_lshl_add_u32 v40, v4, 4, v40
        v_lshl_add_u32 v44, v4, 4, v44
        v_add_u32 v41, {24576-1024}, v40
        v_add_u32 v42, {24576-1024}, v41
        v_add_u32 v43, {24576-1024}, v42
        v_add_u32 v45, {49152-1024}, v44
        s_and_b32 s7, {JJ}, {7 if t4 else 3}
        s_mul_i32 s80, s7, 5
        s_lshr_b32 s80, s80, {1 if t4 else 0}
        s_lshl_b32 s82, s80, 11
        s_lshl_b32 s7, s83, 1
        s_add_u32 s80, s80, s7
        s_sub_u32 s7, s80, 20
        s_cselect_b32 s80, s80, s7
        s_mul_i32 s80, s80, {32*3072}
        """)
        self.w2_pre(a)
        a('v_add_u32 v196, s87, v196\nv_add_u32 v198, s87, v198')
        assert o.get('n0', 3) <= 3
        a(f"s_mov_b32 m0, {W2S}")
        for h in range(2):
            for k in range(4): a(f"buffer_load_dwordx4 v{200+k}, {SW2}, s84 offen offset:{1024*k} lds")
            if h == 0: a(f"s_mov_b32 m0, {W2S+4096}\ns_add_u32 s84, s84, {4*5120}")
        self.npf = 0
        if o.get("w1pf", 1):
            for i in (range(0, 4, 2) if t4 else range(4)):
                a(f"buffer_load_dword v{V_DUM}, v{46+(i&1)}, {SW1}, s{74+(i>>1)} offen"); self.npf += 1
        a(f"v_min_u32 v4, 9, v0\nv_lshlrev_b32 v4, 7, v4\nglobal_load_dword v{V_DUM}, v4, {sp('b2')}")
        for _ in range(o.get("n0", 3)): self.step(a)
        self.npf += 1 + 6 * o.get("n0", 3)
        self.n3 = 8 + self.npf

    def w2_pre(self, a):
        a(f"""
        v_and_b32 v4, 7, v0
        v_lshrrev_b32 v5, 3, v0
        v_mul_u32_u24 v196, {PY}, v4
        v_lshl_add_u32 v196, v5, 4, v196
        v_lshlrev_b32 v197, 9, v5
        v_lshl_add_u32 v197, v4, 4, v197
        v_bfe_u32 v4, v0, 2, 2
        v_and_b32 v5, 3, v0
        v_mul_u32_u24 v198, {PX}, v4
        v_lshl_add_u32 v198, v2, 5, v198
        v_lshl_add_u32 v198, v5, 3, v198
        v_lshrrev_b32 v4, 5, v0
        v_lshlrev_b32 v199, 12, v4
        v_bfe_u32 v4, v0, 2, 3
        v_lshl_add_u32 v199, v4, 8, v199
        v_lshl_add_u32 v199, v5, 3, v199
        v_mul_u32_u24 v200, 1280, v2
        v_lshl_add_u32 v200, v3, 4, v200
        v_add_u32 v201, {5120-1024}, v200
        v_add_u32 v202, {5120-1024}, v201
        v_add_u32 v203, {5120-1024}, v202
        s_min_u32 s7, s2, 239
        s_mul_i32 s14, s7, 52429
        s_lshr_b32 s14, s14, 18
        s_mul_i32 s15, s14, 5
        s_sub_u32 s15, s7, s15
        s_mul_i32 s84, s14, 40960
        s_lshl_b32 s7, s15, 8
        s_add_u32 s84, s84, s7
        s_mul_i32 s15, s15, {8*48}
        s_add_u32 s14, s14, s15
        s_lshl_b32 s14, s14, 10
        s_add_u32 s14, s14, {W2F}
        s_lshr_b32 s15, {SID}, 2
        s_mul_i32 s15, s15, 40960
        s_and_b32 s7, {SID}, 3
        s_lshl_b32 s7, s7, 7
        s_add_u32 s15, s15, s7
        s_lshr_b32 s81, {SID}, 4
        s_lshl_b32 s81, s81, 8
        s_and_b32 s7, {SID}, 15
        s_lshl_b32 s7, s7, 2
        s_add_u32 s81, s81, s7
        s_add_u32 s85, s81, {FX}
        s_lshl_b32 s81, {SID}, 8
        s_add_u32 s81, s81, {FY}
        s_mul_i32 s79, {SID}, {XP}
        s_add_u32 s79, s79, {XNT}
        """)

    def s_compute3(self, a):
        X = 120
        a.auto = False
        a("L_noc:")
        if self.prof:
            for r in self.STAMPS[1:]: a(f"s_mov_b32 s{r}, 0")
        a(f"""
        s_mov_b32 s74, {fbits(1/640)}
        s_mov_b32 s75, {fbits(1e-5)}
        s_cmp_eq_u32 {WAVE}, 3
        s_cbranch_scc1 L_xw3
        s_waitcnt vmcnt(23)
        s_branch L_xwj
        L_xw3:
        s_waitcnt vmcnt({self.n3+3})
        L_xwj:
        """)
        a.auto = True
        a.vmq = []
        a(self.st("s.x"))
        for k in range(10):
            a(f"v_lshlrev_b32 v{X+2*k}, 16, v{110+k}\nv_and_b32 v{X+2*k+1}, 0xffff0000, v{110+k}")
        a(f"v_pk_add_f32 v[140:141], {vr(X,2)}, {vr(X+2,2)}")
        for k in range(2, 10):
            a(f"v_pk_add_f32 v[140:141], v[140:141], {vr(X+2*k,2)}")
        a("v_add_f32 v140, v140, v141")
        self.reduce32(a, 140, 141)
        a("v_mul_f32 v142, s74, v140")
        for k in range(10):
            a(f"v_pk_add_f32 {vr(X+2*k,2)}, {vr(X+2*k,2)}, v[142:143] op_sel_hi:[1,0] neg_lo:[0,1] neg_hi:[0,1]")
        a(f"v_pk_mul_f32 v[140:141], {vr(X,2)}, {vr(X,2)}")
        for k in range(1, 10):
            a(f"v_pk_fma_f32 v[140:141], {vr(X+2*k,2)}, {vr(X+2*k,2)}, v[140:141]")
        a(f"""
        v_add_f32 v140, v140, v141
        v_cvt_pk_bf16_f32 v148, v142, v142
        v_readfirstlane_b32 s7, v109
        v_add_f32_dpp v140, v140, v140 quad_perm:[1,0,3,2] row_mask:0xf bank_mask:0xf
        v_lshlrev_b32 v148, 16, v148
        s_mul_i32 s7, s7, 1664525
        v_add_f32_dpp v140, v140, v140 quad_perm:[2,3,0,1] row_mask:0xf bank_mask:0xf
        v_sub_f32 v148, v142, v148
        s_add_u32 {TAG}, s7, 1013904223
        v_add_f32_dpp v140, v140, v140 row_half_mirror row_mask:0xf bank_mask:0xf
        s_mov_b32 s51, {TAG}
        v_add_f32_dpp v140, v140, v140 row_mirror row_mask:0xf bank_mask:0xf
        v_mov_b32 v141, v140
        v_permlane16_swap_b32 v140, v141
        v_add_f32 v140, v140, v141
        v_mul_f32 v140, s74, v140
        """)
        self.rbf(a, 141, 140)
        a("v_add_f32 v141, s75, v141")
        self.rbf(a, 141, 141)
        a("v_sqrt_f32 v141, v141")
        self.rbf(a, 141, 141)
        a("v_rcp_f32 v144, v141")
        a("v_mul_f32 v140, v140, v144\nv_mul_f32 v140, v140, v144")
        self.rbf(a, 141, 140)
        a("v_add_f32 v141, s75, v141")
        self.rbf(a, 141, 141)
        a("v_sqrt_f32 v141, v141\nv_mul_f32 v148, v148, v144")
        self.rbf(a, 141, 141)
        a("v_rcp_f32 v146, v141")
        for k in range(10):
            a(f"v_pk_fma_f32 v[150:151], {vr(X+2*k,2)}, v[144:145], v[148:149] op_sel_hi:[1,0,0]")
            if k == 0: a("v_mul_f32 v146, v146, v144")
            a(f"v_cvt_pk_bf16_f32 v{152+k}, v150, v151")
        for k in range(10):
            a(f"v_pk_mul_f32 v[150:151], {vr(X+2*k,2)}, v[146:147] op_sel_hi:[1,0]")
            a(f"v_cvt_pk_bf16_f32 v{110+k}, v150, v151")
        a(f"s_lshl_b32 s7, {WAVE}, 2\nv_add_u32 v5, s7, v{V_CNT}\nv_mov_b32 v4, 1")
        for i in range(5): a(f"ds_write_b64 v204, {vr(110+2*i,2)} offset:{YT+256*i}")
        for i in range(5): a(f"ds_write_b64 v205, {vr(152+2*i,2)} offset:{XT+256*i}")
        a("s_mov_b64 exec, 1\nds_write_b32 v5, v4\ns_mov_b64 exec, -1")

    def kgen4(self, a):
        o = self.o
        VF, UF, CH = self.VF, self.UF, 112
        W1, W8, W256, T, C0 = 176, 178, 180, 182, 194
        DT, DTL = 30, 31
        L2E = 1.4426950408889634
        f32 = lambda x: struct.unpack("<f", struct.pack("<f", x))[0]
        I2P = 1 / (2 * math.pi)
        head = (f"""
        s_mov_b32 s72, {fbits(f32(L2E))}
        s_mov_b32 s73, {fbits(L2E-f32(L2E))}
        s_mov_b32 s76, {fbits(math.log(2))}
        v_mul_f32 v{T}, s72, v28
        v_fma_f32 v{T+1}, v28, s72, -v{T}
        v_fma_f32 v{T+1}, v28, s73, v{T+1}
        v_exp_f32 v{T}, v{T}
        v_mul_f32 v{T+1}, s76, v{T+1}
        v_cmp_eq_u32 vcc, 0, v0
        v_fma_f32 v{T}, v{T}, v{T+1}, v{T}
        v_cvt_pk_bf16_f32 v{DT}, v{T}, v{T}
        v_lshlrev_b32 v{DT}, 16, v{DT}
        v_cndmask_b32 v29, 0, v29, vcc
        v_mul_f32 v{DTL}, s72, v{DT}
        s_mov_b32 s74, {fbits(f32(I2P))}
        s_mov_b32 s75, {fbits(I2P-f32(I2P))}
        s_mov_b32 s77, {fbits(256.0)}
        s_mov_b32 s78, {fbits(8.0)}
        """)
        pass
        yl = self.yloads()[:o.get("ny", 8)]
        m0tab = f"s_mul_i32 m0, {WAVE}, {TABSZ}"
        a.vmq = [({("v", r)}, set()) for r in [28, 29] + list(range(10, 28))]
        a(head)
        a(m0tab)
        for c in range(3):
            p = 10 + 6 * c
            setup = [f"v_mul_f32 v{T}, v{p}, v{DTL}", f"v_mul_f32 v{T+1}, v{p+1}, v{DT}",
                     f"v_mul_f32 v{T+2}, s74, v{T+1}", f"v_fma_f32 v{T+3}, v{T+1}, s74, -v{T+2}",
                     f"v_fma_f32 v{T+3}, v{T+1}, s75, v{T+3}",
                     f"v_mul_f32 v{T+4}, s78, v{T}", f"v_mul_f32 v{T+5}, s78, v{T+2}",
                     f"v_mul_f32 v{T+6}, s77, v{T}", f"v_mul_f32 v{T+7}, s77, v{T+2}",
                     f"v_exp_f32 v{T+4}, v{T+4}", f"v_fract_f32 v{T+5}, v{T+5}",
                     f"v_exp_f32 v{T+6}, v{T+6}", f"v_fract_f32 v{T+7}, v{T+7}",
                     f"v_exp_f32 v{T+8}, v{T}", f"v_fract_f32 v{T+9}, v{T+2}",
                     f"v_fma_f32 v{T+5}, v{T+3}, s78, v{T+5}", f"v_fma_f32 v{T+7}, v{T+3}, s77, v{T+7}",
                     f"v_add_f32 v{T+9}, v{T+3}, v{T+9}",
                     f"v_cos_f32 v{W8}, v{T+5}", f"v_sin_f32 v{W8+1}, v{T+5}",
                     f"v_cos_f32 v{W256}, v{T+7}", f"v_sin_f32 v{W256+1}, v{T+7}",
                     f"v_cos_f32 v{W1}, v{T+9}", f"v_sin_f32 v{W1+1}, v{T+9}"]
            setup += self.cmul(T + 10, p + 4, p + 2)
            setup += [f"v_pk_mul_f32 {vr(W8,2)}, {vr(W8,2)}, {vr(T+4,2)} op_sel_hi:[1,0]",
                      f"v_pk_mul_f32 {vr(W256,2)}, {vr(W256,2)}, {vr(T+6,2)} op_sel_hi:[1,0]",
                      f"v_pk_mul_f32 {vr(W1,2)}, {vr(W1,2)}, {vr(T+8,2)} op_sel_hi:[1,0]",
                      f"v_pk_mul_f32 {vr(C0,2)}, {vr(T+10,2)}, {vr(DT,2)} op_sel_hi:[1,0]"]
            Vv = lambda j: W8 if j == 1 else CH + 2 * j
            vchain = []
            for j in range(2, 32): vchain += self.cmul(Vv(j), Vv(j - 1), W8)
            vcvt = [f"v_mov_b32 v{CH}, 0x3f80"] + [f"v_cvt_pk_bf16_f32 v{CH+2*j}, v{Vv(j)}, v{Vv(j)+1}" for j in range(1, 32)]
            vwr = [f"ds_write_addtid_b32 v{CH+2*j} offset:{TP*j}" for j in range(32)]
            Ur = lambda i: C0 if i == 0 else CH + 2 * i
            uchain = []
            for i in range(1, 8): uchain += self.cmul(Ur(i), Ur(i - 1), W1)
            for i, s in ((8, 0), (9, 2), (10, 4), (11, 6), (12, 8), (13, 10), (14, 12), (15, 13), (16, 14), (17, 16), (18, 17), (19, 18), (20, 19)):
                uchain += self.cmul(Ur(i), Ur(s), W256)
            ucvt = [f"v_cvt_pk_bf16_f32 v{Ur(i)}, v{Ur(i)}, -v{Ur(i)+1}" for i in range(21)]
            uwr = [f"ds_write_addtid_b32 v{Ur(i)} offset:{TP*(i if i < 20 else 23)}" for i in range(21)]
            E = lambda L: [a(x) for x in L]
            ypos = o.get("ypos", 2)
            chk = lambda: E([self.poll_check("y0", 2, False, V_FY, "s86"), self.st("ypoll")])
            ng = {0: 5, 1: 4, 2: 2}[ypos]
            grp = [yl[len(yl) * k // ng:len(yl) * (k + 1) // ng] for k in range(ng)] if c == 2 else [[]] * 5
            grp = [[]] * (5 - ng) + grp
            E(setup[:6])
            if c == 0: a(self.st('kg.p'))
            if c: E(self.kreads(UF))
            if c == 2 and ypos == 1: E([self.poll_load(2, False, V_FY, "s86")])
            E(setup[6:])
            if c == 2 and ypos == 0: chk()
            E(grp[0] + vchain)
            if c == 0:
                E(vcvt + vwr)
            else:
                E(vcvt[:18])
                if c == 2 and ypos == 2: E([self.poll_load(2, False, V_FY, "s86")])
                if c == 2 and ypos == 1: chk()
                E(grp[1])
                mf = self.kmf(c == 1)
                for k in range(8): E([mf[k]] + vwr[4 * k:4 * k + 4] + vcvt[18 + 2 * k:20 + 2 * k])
            E(uchain[:8] + self.kreads(VF) + grp[2])
            E(uchain[8:] + ucvt)
            if c == 1 and ypos == 0: E([self.poll_load(2, False, V_FY, "s86")])
            if c == 2 and ypos == 2: chk()
            E(grp[3] + uwr + grp[4])
            a(self.st(f"kg{c}"))
        for x in self.kreads(UF): a(x)
        a("s_waitcnt lgkmcnt(0)")

    def wave3(self, a):
        o = self.o
        a(f"""
        v_mov_b32 v206, {TAG}
        L_spa:
        ds_read_b128 v[4:7], v{V_CNT}
        s_waitcnt lgkmcnt(0)
        v_and_b32 v4, v4, v5
        v_and_b32 v4, v4, v6
        v_readfirstlane_b32 s7, v4
        s_cmp_eq_u32 s7, 0
        s_cbranch_scc1 L_spa
        """)
        for I in range(10): a(f"ds_read_b128 {vr(110+4*I,4)}, v196 offset:{YT+128*I}")
        for I in range(10):
            a(f"buffer_store_dwordx4 {vr(110+4*I,4)}, v197, {SWS}, s15 offen{SC} @yst" + ("\ns_add_u32 s15, s15, 4096" if I < 9 else ""))
            if I == 4:
                for K in range(10):
                    a(f"ds_read_b64_tr_b16 {vr(150+4*K,2)}, v198 offset:{XT+128*K}\nds_read_b64_tr_b16 {vr(152+4*K,2)}, v198 offset:{XT+128*K+4*PX}")
        a(self.st("p.yst"))
        fl = lambda r, n: a(f"s_mov_b64 exec, 1\nbuffer_store_dword v206, off, {SWS}, {r}{SC}\ns_mov_b64 exec, -1\n" + self.st(n))
        def xs():
            for I in range(10):
                a(("s_add_u32 s79, s79, 4096\n" if I in (4, 8) else "") + f"buffer_store_dwordx4 {vr(150+4*I,4)}, v1, {SWS}, s79 offen offset:{1024*(I%4)}{SC} @xst")
        def ws(younger):
            a(f"s_waitcnt vmcnt({min(62, younger + self.npf)})")
            for db in range(8):
                a(f"ds_read_b64_tr_b16 {vr(48+4*db,2)}, v199 offset:{W2S+32*db}\nds_read_b64_tr_b16 {vr(50+4*db,2)}, v199 offset:{W2S+32*db+2048}")
            for db in range(8):
                a(f"buffer_store_dwordx4 {vr(48+4*db,4)}, v1, {SWS}, s14 offen{SC} @xst" + (f"\ns_add_u32 s14, s14, {48*1024}" if db < 7 else ""))
        n1, n2, nl, dcap = o.get("n1", 2), o.get("n2", 3), o.get("nl", 3), o.get("dcap", 24)
        if o.get("late", 0):
            a("s_waitcnt lgkmcnt(0)")
            for q in range(n1): self.step2(a, q)
            if o.get("c3late", 0): self.consts(a)
            if o.get("stub", 1): a("s_call_b64 s[88:89], L_stub1\ns_call_b64 s[88:89], L_stub2")
            a("WAITVM yst"); fl("s81", "p.fy")
            xs(); ws(21 + 6 * n1)
        else:
            xs(); ws(20)
            if o.get("c3late", 0): self.consts(a)
            for q in range(n1): self.step2(a, q)
            a("WAITVM yst"); fl("s81", "p.fy")
        for q in range(n2): self.step2(a, n1 + q)
        assert not o.get('sdef', 0) or (n1 + n2 == 10 and not o.get('yrot', 1))
        a("WAITVM xst"); fl("s85", "p.fx")
        a(f"s_mov_b32 s73, {n1+n2+o.get('n0', 3)}\nL_dma:\ns_waitcnt vmcnt({dcap})")
        self.step2(a, None)
        a(f"s_add_u32 s73, s73, 1\ns_cmp_lt_u32 s73, {20-nl}\ns_cbranch_scc1 L_dma")
        a(self.poll_load(4, False, V_FY, "s86"))
        for _ in range(nl): self.step2(a, None)
        a(self.st("w3.dma"))
        a(self.poll_check("y3", 4, False, V_FY, "s86"))
        a(self.st("ypoll"))
        ny = o.get("ny", 8)
        for x in self.yloads()[:ny]: a(x)
        a(f"s_waitcnt vmcnt({ny})")

    def gemm1f(self, a):
        o = self.o
        ACC = (48, 64, 32)
        uses = [[] for _ in range(10)]
        for ks in range(40): uses += [[(0, ks)], [(1, ks)]]
        uses += [[] for _ in range(41)]
        def reads(f, reg):
            p, ks = f
            base = V_P0 + p
            off = ks * 2048 - (65536 if ks >= 32 else 0)
            pre = [f"v_add_u32 v{base}, 0x10000, v{base}"] if ks == 32 else []
            return pre + [f"ds_read_b64_tr_b16 {vr(reg,2)}, v{base} offset:{off}", f"ds_read_b64_tr_b16 {vr(reg+2,2)}, v{base} offset:{off+512}"]
        fr = FragStream(uses, reads, list(range(112, 144, 4)), lead=6, name="pair")
        main = self.kmf(False)
        main += [f"v_mfma_f32_32x32x16_bf16 {vr(ACC[p],16)}, {vr(V_B1+2*p,4)}, {vr(V_ONE,4)}, 0" for p in range(2)]
        for ks in range(40):
            for p in range(2):
                main.append(lambda p=p, ks=ks: f"v_mfma_f32_32x32x16_bf16 {vr(ACC[p],16)}, {vr(fr.reg[(p,ks)],4)}, {ar(4*ks,4)}, {vr(ACC[p],16)}")
        main.append(self.st("g1.ab") + f"\nv_mfma_f32_32x32x16_bf16 {vr(ACC[2],16)}, {vr(V_B1+4,4)}, {vr(V_ONE,4)}, 0")
        for ks in range(40):
            main.append(f"v_mfma_f32_32x32x16_bf16 {vr(ACC[2],16)}, {self.creg(ks)[0]}, {ar(4*ks,4)}, {vr(ACC[2],16)}")
        mb = o.get("mb", 86)
        S = [fr]
        cpre = []
        for ks in range(40):
            cpre += [f"ds_read_b64_tr_b16 {self.creg(ks)[1](h)}, v{V_S} offset:{ks*1024+256*h}" for h in range(2)]
        if o.get("sdef", 0):
            sb = o.get("sb", 44)
            cpre = [Item(x, lo=(sb + 1 if i >= 40 else None)) for i, x in enumerate(cpre)]
            sd = [f"s_mul_i32 s80, {WAVE}, {80*3072}\ns_add_u32 s80, s80, {S_SNG}\ns_add_u32 s80, s80, {320*3072}\ns_mul_i32 s81, {WAVE}, 5120\ns_add_u32 m0, s81, {SNG+20480}"]
            sd += [Item(f"buffer_load_dwordx4 v229, {SW1}, s80 offen lds @sng" + (f"\ns_add_u32 m0, m0, 1024\ns_add_u32 s80, s80, {16*3072}" if i < 4 else ""), hi=2 * i + 1) for i in range(5)]
            S.append(Stream(sd, 0, 10, ahead=0, name="sd"))
            S.append(Stream(["WAITVM sng\ns_barrier"], sb, sb + 1))
        S.append(Stream(cpre, 0, mb - 3, ahead=3, name="cpre"))
        ny = o.get("ny", 8)
        yl = [Item(x, hi=max(0, 10 + 2 * (ny + i) - o.get("ylead", 20))) for i, x in enumerate(self.yloads()[ny:])]
        S.append(Stream(yl, 0, o.get("yend", 60), ahead=3, name="y"))
        t1, t2 = self.ktail3()
        S.append(Stream(t1, 10, 36, name="t1"))
        S.append(Stream(t2, 41, mb - 4, name="t2"))
        misc = self.late_scalars() + [f"s_mov_b32 s74, {fbits(-1.5957691216057308*1.4426950408889634)}",
                f"s_mov_b32 s75, {fbits(-1.5957691216057308*0.044715*1.4426950408889634)}",
                "v_mov_b32 v8, s74", "v_mov_b32 v9, s75", "v_mov_b32 v30, 1.0", "v_mov_b32 v31, 1.0"]
        mxp, mx = o.get("mxp", 56), o.get("mx", 78)
        S.append(Stream(misc, 0, mx - 2, name="misc"))
        S.append(Stream([f"s_mov_b32 s84, {FX}\n" + self.poll_load(2, True, V_FX, "s84")], mxp, mxp + 1))
        S.append(Stream([self.poll_check("x", 2, True, V_FX, "s84") + "\n" + self.st("xpoll")] +
                        [("" if i == 0 else f"s_add_u32 s83, s83, {16*XP}\n") + f"buffer_load_dwordx4 {ar(240+4*i,4)}, v{V_UG}, {SWS}, s83 offen{SC}" for i in range(4)],
                        mx, mx + 12, ahead=0))
        nw = o.get("nw", 14)
        S.append(Stream([Item(x, lo=92 + i) for i, x in enumerate(self.w2f_items()[:nw])], max(93, mx + 12), 131, name="w2f"))
        S.append(Stream([f"s_lshl_b32 s7, {WAVE}, 10\ns_add_u32 m0, s7, {CB0}\ns_waitcnt lgkmcnt(0)\ns_barrier"], mb, mb + 1))
        exr, exw = [], []
        e0, e1 = mb + 1, o.get("exend", 124)
        for q in range(12):
            ch, row = divmod(q, 4)
            E, O = 80 + 2 * (q % 6), 92 + (q % 4)
            d = ch * CBP + row * 256
            g0 = e0 + 4 + (e1 - e0 - 4) * q // 12
            g1 = e0 + 4 + (e1 - e0 - 4) * (q + 1) // 12
            prev = e0 + 4 + (e1 - e0 - 4) * (q - 5) // 12 if q >= 6 else e0
            exr.append(Item(f"ds_read2_b32 {vr(E,2)}, v{V_ES+ch} offset0:{64*row} offset1:{64*row+1}", lo=prev + 1, hi=max(prev + 1, g0 - 3)))
            exw += [Item(f"ds_write_addtid_b32 v{E} offset:{d}", lo=g0, hi=g1), Item(f"ds_write_addtid_b32 v{E} offset:{d+2*CPITCH-4}", hi=g1),
                    Item(f"v_alignbit_b32 v{O}, v{E+1}, v{E}, 16", hi=g1),
                    Item(f"ds_write_addtid_b32 v{O} offset:{d+CPITCH}"), Item(f"ds_write_addtid_b32 v{O} offset:{d+3*CPITCH-4}")]
        exw += [f"ds_write_b32 v{V_Z1}, v26", f"ds_write_b64 v{V_Z2}, v[26:27]"]
        S.append(Stream(exr, e0, e1 - 6, ahead=100, name="exr"))
        S.append(Stream(exw, e0 + 4, e1 + 2, ahead=3, name="exw"))
        nG = o.get("nG", 6)
        gl = self.gelu4(ACC[0], 10, range(min(nG, 8)))
        hs = self.hstore(10, S_HA, 0)
        if nG >= 4: gl.insert(60, hs[0])
        if nG >= 8: gl += [hs[1]] + self.gelu4(ACC[1], 18, range(nG - 8))
        S.append(Stream(gl, 91, 131, ahead=4, name="gelu"))
        uw = [f"ds_write_b64 v{V_UL}, {ar(240+2*i,2)} offset:{256*(i>>1)+8*(i&1)}" for i in range(8)]
        ush = o.get("ush", 0)
        if ush: S.append(Stream(uw, ush, 130, ahead=0, name="uw"))
        gap_sched(a, main, S, "g1", dscap=lambda m: int(o.get("dscap", 3.5) * (m + 1)) - int(o.get("dscap", 3.5) * m))
        a(self.st("g1.c"))
        gp = lambda acc_, out, first=0: [x.replace("v[10:11]", "v[30:31]") for x in self.gelu_packed(acc_, out, 2)][first // 2 * 20:]
        assert nG % 2 == 0
        w2l = self.w2f_items()[nw:]
        groups = []
        for p, out, sreg, off in ((0, 10, S_HA, 0), (1, 18, S_HA, 1024), (2, 80, S_HC, 0)):
            g = gp(ACC[p], out)
            for k in range(4):
                if 8 * p + 2 * k < nG: continue
                groups.append((g[20 * k:20 * k + 20], self.hstore(out, sreg, off)[k // 2] if k & 1 else None))
        nbar = len(groups) - o.get("nlast", 2)
        seq, self.tail = [], []
        uwg = [] if ush else [uw[2 * i:2 * i + 2] for i in range(4)]
        k = 0
        for gi, (g, st_) in enumerate(groups):
            dst = seq if gi < nbar else self.tail
            mid = []
            if uwg and gi >= nbar - 5: mid = uwg.pop(0)
            dst += g[:10] + mid + [w2l[k]] + g[10:]
            k += 1
            if st_: dst.append(st_)
            elif o.get("nt2", 0):
                dst.append(w2l[k]); k += 1
        assert not uwg
        for x in seq: a(x)
        a("s_waitcnt lgkmcnt(0)\ns_barrier")
        self.w2rest = w2l[k:]

    def conv(self, a, role):
        o = self.o
        seq = []
        if role == 0:
            blocks = [4, 5, 6, 7, 1]
            for r in range(8):
                for c in range(8):
                    if c == 4: seq += [(0, r, 1, 0), (0, r, 0, 1)]
                    for e in range(7, -1, -1):
                        if e + c in (4, 5, 6, 7): seq.append((0, r, e, c))
            acc = lambda ch, b: 2 + 4 * blocks.index(b)
        else:
            for ch in range(3):
                for r in range(8):
                    for c in range(4):
                        for e in range(3, -1, -1):
                            if e + c in (0, 2, 3): seq.append((ch, r, e, c))
            acc = lambda ch, b: 2 + 12 * ch + 4 * (2, None, 0, 1)[b]
        uses = [[("B", ch, r, c), ("A", ch, r, e)] for ch, r, e, c in seq]
        def reads(f, reg):
            k, ch, r, i = f
            if k == "B":
                return [f"ds_read_b128 {vr(reg,4)}, v{VCB} offset:{ch*CBP+U_OFF+480+512*i-64*r}"]
            off = ch * CBP + 4032 - 512 * i - 64 * r
            return [f"ds_read_b64 {vr(reg,2)}, v{VCA} offset:{off}", f"ds_read_b64 {vr(reg+2,2)}, v{VCA} offset:{off+8}"]
        pool = getattr(self, 'POOL', None) or list(range(88, 128, 4)) + list(range(48, 88, 4))
        fr = FragStream(uses, reads, pool, lead=12, pre=o.get("cvpre", 9), name="cv")
        for x in fr.pro + self.tail: a(x)
        a(self.st("g1.tail"))
        n = len(seq)
        seen = set()
        main = []
        for ch, r, e, c in seq:
            d = vr(acc(ch, e + c), 4)
            cin = d if (ch, e + c) in seen else "0"
            seen.add((ch, e + c))
            main.append(lambda d=d, cin=cin, A=("A", ch, r, e), B=("B", ch, r, c): f"v_mfma_f32_16x16x32_bf16 {d}, {vr(fr.reg[A],4)}, {vr(fr.reg[B],4)}, {cin}")
        sc_ = lambda x: x * n // 224
        mf, mp, mc = sc_(o.get("mf", 60)), sc_(o.get("mp", 125)), sc_(o.get("mc", 165))
        S = [fr]
        S.append(Stream(self.w2rest, 4, sc_(o.get("wend", 166)), name="w2f"))
        sal = [f"v_mov_b32 v232, {TAG}"] + self.flag_scalars()
        S.append(Stream(sal, 1, mf - 2, name="sal"))
        S.append(Stream(["WAITVM hst\n" + self.fstore(232, "s81") + "\n" + self.st("cv.fh")], mf, mf + 1))
        lc = self.late_consts()
        VH = 221
        first = [f"v_and_b32 v233, 15, v0", f"v_lshrrev_b32 v234, 4, v0", f"s_mul_i32 s73, {WAVE}, 10240", f"s_add_u32 s73, s73, {RING}",
                 f"v_lshl_add_u32 v235, v234, 3, s73", f"v_lshl_add_u32 v{VCW}, v233, 5, v235", f"v_and_b32 v233, 4, v0", f"v_lshlrev_b32 v233, 2, v233",
                 f"v_xor_b32 v{VCW}, v{VCW}, v233", f"v_and_b32 v233, 8, v0", f"v_lshlrev_b32 v233, 1, v233", f"v_xor_b32 v233, v233, v1", f"v_add_u32 v{VPW}, s73, v233",
                 f"v_lshrrev_b32 v233, 5, v0", f"v_lshl_add_u32 v{VH}, v233, 30, v1"]
        k0 = next(i for i, x in enumerate(lc) if "10240" in x)
        lc = [Item(x, hi=40) for x in first] + lc[:k0] + lc[k0 + 5:]
        def outp(ch):
            A = 2 + 12 * ch
            L = [f"v_cvt_pk_bf16_f32 v{A+2*q+h}, v{A+4*q+2*h}, v{A+4*q+2*h+1}" for q in range(3) for h in range(2)]
            L += [f"ds_write_b64 v{VCW}, {vr(A+2*q,2)} offset:{1536*ch+512*q}" for q in range(3)]
            R = [f"ds_read_b128 {vr(A,4)}, v{VPW} offset:{1536*ch}", f"ds_read_b128 {vr(A+4,4)}, v{VPW} offset:{1536*ch+1024}"]
            pre = "" if ch == 0 else f"s_add_u32 {S_ROW}, {S_ROW}, {SP}\n" + (f"s_cmp_eq_u32 {JJ}, 26\ns_cselect_b32 {S_ROW}, {WS_BYTES}, {S_ROW}\n" if ch == 2 else "")
            T = [pre + f"buffer_store_dwordx4 {vr(A,4)}, v1, {SWS}, {S_ROW} offen offset:1024{SC} @sst", f"buffer_store_dwordx4 {vr(A+4,4)}, v{VH}, {SWS}, {S_ROW} offen{SC} @sst"]
            return L, R, T
        if role == 1:
            for ch in range(2):
                L, R, T = outp(ch)
                g = 64 * (ch + 1) + 3
                S.append(Stream(L + [Item(x, lo=g + 14) for x in R] + [Item(x, lo=g + 24) for x in T], g, g + 36, ahead=3, name="out"))
        side = lc + [f"v_accvgpr_write_b32 a{k}, 0" for k in (241, 243, 245, 247, 249, 250, 251)]
        side += [f"global_load_ushort a{240+2*jb}, v{VB2}, {sp('b2')} offset:{32*jb}" for jb in range(5)]
        side += [("s_add_u32 m0, m0, 1024\ns_nop 0\n" if i else "") + f"buffer_load_dwordx4 v{VX+i}, {SX}, s14 offen lds @xdma" for i in range(3)]
        if o.get("opf", 0):
            side += [f"v_lshrrev_b32 v233, 1, v0", f"v_and_b32 v233, 15, v233", f"v_mul_u32_u24 v233, 1280, v233", f"v_and_b32 v234, 1, v0", f"v_mul_u32_u24 v234, 156, v234",
                     f"v_add_u32 v233, v233, v234", f"buffer_load_dword v231, v233, {SOUT}, s14 offen"]
        S.append(Stream(side, 4, mp - 2, name="side"))
        S.append(Stream([self.poll_load(231, False, VFH, "s86")], mp, mp + 1))
        nh = o.get("nh", 11)
        hl = self.hloads(0) + self.hloads(1)
        hpf = []
        if o.get("hpf", 0):
            side2 = [f"v_min_u32 v233, 47, v0", f"v_cmp_lt_u32 vcc, 23, v233", f"v_lshlrev_b32 v234, 7, v233", f"s_add_u32 s73, s11, 3", f"s_and_b32 s73, s73, 3",
                     f"s_mul_i32 s73, s73, {48*1024}", f"s_mul_i32 s80, s11, {48*1024}", f"s_sub_u32 s80, s80, 3072", f"v_mov_b32 v235, s73", f"v_mov_b32 v233, s80",
                     f"v_cndmask_b32 v235, v235, v233, vcc", f"v_add_u32 v234, v234, v235", f"s_lshr_b32 s73, {JJ}, 3", f"s_mul_i32 s73, s73, 3072", f"s_add_u32 s83, s82, s73"]
            S.append(Stream(side2, mp, mc - 1, name="side2"))
            hpf = [f"buffer_load_dword v231, v234, {SWS}, s83 offen{SC}"]
        k = o.get("hpfpos", 7)
        S.append(Stream([self.poll_check(f"h{role}", 231, False, VFH, "s86") + "\n" + self.st("hpoll")] + hl[:min(k, nh)] + hpf + hl[min(k, nh):nh], mc, n, ahead=0, name="h"))
        gap_sched(a, main, S, f"conv{role}", vspace=o.get("vs", 64), budget=lambda m: o.get(f"cbud{role}", (2, 2.85)[role]))
        a(self.st("cv.main"))
        if role == 0:
            order = [4, 0, 1, 2, 3]
            for q in order:
                a(f"v_cvt_pk_bf16_f32 v{96+2*q}, v{2+4*q}, v{3+4*q}\nv_cvt_pk_bf16_f32 v{97+2*q}, v{4+4*q}, v{5+4*q}")
            for q in order:
                a(f"ds_write_b64 v{VCW}, {vr(96+2*q,2)} offset:{512*q}")
            a(hl[nh])
            a(f"s_lshl_b32 s73, {JJ}, 2\ns_add_u32 s73, s73, {WAVE}\ns_mul_i32 s7, {WAVE}, {SP}\ns_add_u32 s7, s7, {S_ROW}\ns_cmp_eq_u32 s73, 106\ns_cselect_b32 s7, {WS_BYTES}, s7")
            for q in range(3): a(f"ds_read_b128 {vr(96+4*q,4)}, v{VPW} offset:{1024*q}")
            a(hl[nh + 1])
            for q in range(2): a(f"buffer_store_dwordx4 {vr(96+4*q,4)}, v1, {SWS}, s7 offen offset:{2048+1024*q}{SC} @sst")
            a(f"buffer_store_dwordx4 v[104:107], v{VH}, {SWS}, s7 offen offset:512{SC} @sst")
        else:
            L, R, T = outp(2)
            for x in [hl[nh]] + L + [hl[nh + 1]] + R + T: a(x)
        assert nh + 2 >= 13
        self.hrest = hl[nh + 2:]
        a(self.st("cv.out"))

    def gemm2f(self, a):
        o = self.o
        AC = (2, 22)
        main, idx = [], {}
        for rho in range(4):
            for jb in range(5):
                d = vr(AC[rho & 1] + 4 * jb, 4)
                idx[(rho, jb)] = len(main)
                if rho == 0: main.append(f"v_mfma_f32_16x16x32_bf16 {d}, {ar(240+2*jb,4)}, {vr(V_ONE,4)}, 0")
                for kk in range(12):
                    main.append(f"v_mfma_f32_16x16x32_bf16 {d}, {ar(self.w2reg(jb*12+kk),4)}, {vr(self.breg(rho,kk),4)}, {d}")
        for rho in (1, 2, 3): main[idx[(rho, 0)]] = self.st(f"g2.r{rho}") + "\n" + main[idx[(rho, 0)]]
        main[13] = self.st("g2.c1") + "\n" + main[13]
        for gi in (78, 100, 138, 168): main[gi] = self.st(f'q{gi}') + '\n' + main[gi]
        idx[(4, 0)] = n = len(main)
        nxt = lambda rho, jb: idx[(rho, jb + 1)] if jb < 4 else idx[(rho + 1, 0)]
        a(f"s_mul_i32 s7, {WAVE}, 10240\ns_add_u32 m0, s7, 32768")
        ring = []
        for rho in range(3):
            par = rho & 1
            def wr(jb):
                g = nxt(rho, jb) + 3
                return [Item(f"ds_write_addtid_b32 v{AC[par]+4*jb+k} offset:{RING-32768+5120*par+1024*jb+256*k} @pw", lo=g, hi=g + 3) for k in range(4)]
            def rd(jb, g):
                return [Item(f"ds_read2st64_b32 {vr(AC[par^1]+4*jb+2*k,2)}, v{VPR} offset0:{20*par+4*jb+2*k} offset1:{20*par+4*jb+2*k+1}", lo=g, hi=g + 6) for k in range(2)]
            b1, b2 = nxt(rho, 2) + 10, nxt(rho, 4) + 10
            ring += wr(0) + wr(1) + wr(2) + [Item("WAITLG pw\ns_barrier", lo=b1, hi=b1)] + rd(0, b1 + 1) + rd(1, b1 + 1) + rd(2, b1 + 1)
            ring += wr(3) + wr(4) + [Item("WAITLG pw\ns_barrier", lo=b2, hi=b2)] + rd(3, b2 + 1) + rd(4, b2 + 1)
        rs = Stream(ring, 0, n, ahead=0, name="ring")
        for it in rs.items: it.ideal = it.lo - 5
        S = [rs]
        hlead = o.get("hlead", 14)
        hh = [Item(x, hi=idx[(1, 0)] - hlead) for x in self.hrest] + [Item(x, hi=idx[(2, 0)] - hlead) for x in self.hloads(2)]
        hh += [Item(x, lo=idx[(1, 0)], hi=idx[(3, 0)] - hlead) for x in self.hloads(3)]
        S.append(Stream(hh, 0, o.get("hend", 150), ahead=30, name="h"))
        ms = o.get("ms", 62)
        S.append(Stream(self.late_consts2(), 0, 44, name="lc2"))
        sal = [f"s_lshl_b32 s81, {SID}, 2", f"s_add_u32 s81, s81, {WAVE}", f"s_lshl_b32 s81, s81, 8", f"s_add_u32 s81, s81, {FS}",
               f"s_lshl_b32 s86, s13, 15", f"s_add_u32 s86, s86, {FS}",
               f"s_lshl_b32 s76, s13, 2", f"s_add_u32 s76, s76, {WAVE}", f"s_mul_i32 s76, s76, {20*SP}",
               f"s_lshl_b32 s80, s12, 7", f"s_add_u32 s76, s76, s80", f"s_add_u32 s76, s76, {ST}",
               f"s_add_u32 s77, s76, {8*SP}", f"s_add_u32 s78, s76, {16*SP}", f"s_mov_b32 s74, {fbits(-1.4426950408889634)}"]
        S.append(Stream(sal, 0, ms - 2, name="sal"))
        S.append(Stream(["WAITVM sst\n" + self.fstore(232, "s81") + "\n" + self.st("g2.fs")], ms, ms + 1))
        XR, XF, SR, SD = 96, 176, 106, 116
        S.append(Stream(["WAITVM xdma"] + [f"ds_read_b64 {vr(XR+2*jb,2)}, v{VXD} offset:{32*jb}" for jb in range(5)], idx[(1, 3)], idx[(2, 0)], name="xr"))
        xu = []
        for q in range(10): xu += [f"v_lshlrev_b32 v{XF+2*q}, 16, v{XR+q}", f"v_and_b32 v{XF+2*q+1}, 0xffff0000, v{XR+q}"]
        S.append(Stream(xu, idx[(2, 1)], idx[(3, 0)], ahead=0, name="xu"))
        mp, mc = o.get("g2p", 134), o.get("g2c", 170)
        assert mp >= idx[(2, 0)]
        S.append(Stream([self.poll_load(196, False, VFS, "s86")], mp, mp + 1))
        S.append(Stream([self.poll_check("s", 196, False, VFS, "s86") + "\n" + self.st("spoll"),
                         f"buffer_load_dwordx4 {vr(SD,4)}, v{VSG}, {SWS}, s76 offen{SC}",
                         f"buffer_load_dwordx4 {vr(SD+4,4)}, v{VSG}, {SWS}, s77 offen{SC}",
                         f"buffer_load_dwordx4 {vr(SD+8,4)}, v222, {SWS}, s78 offen{SC}"] +
                        ([f"buffer_load_dword v197, v234, {SOUT}, s14 offen"] if o.get("opf2", 0) == 1 else []), mc, mc + 12, ahead=0))
        if o.get("opf2", 0):
            S.append(Stream([f"v_bfe_u32 v233, v0, 1, 4", f"v_mul_u32_u24 v233, 1280, v233", f"v_and_b32 v234, 1, v0", f"v_mul_u32_u24 v234, 156, v234", f"v_add_u32 v234, v233, v234"], 50, 100))
            if o["opf2"] > 1: S.append(Stream([f"buffer_load_dword v197, v234, {SOUT}, s14 offen"], o["opf2"], o["opf2"] + 1))
        Z = AC[1]
        def silu(jb):
            T = 200
            z = Z + 4 * jb
            L = [f"v_mul_f32 v{T+k}, s74, v{z+k}" for k in range(4)] + [f"v_exp_f32 v{T+k}, v{T+k}" for k in range(4)]
            L += [f"v_add_f32 v{T+k}, 1.0, v{T+k}" for k in range(4)] + [f"v_rcp_f32 v{T+k}, v{T+k}" for k in range(4)]
            L += [f"v_mul_f32 v{z+k}, v{z+k}, v{T+k}" for k in range(4)]
            return L
        def comb(jb):
            L = []
            for q in (2 * jb, 2 * jb + 1):
                L += [f"v_lshlrev_b32 v204, 16, v{SR+q}", f"v_and_b32 v205, 0xffff0000, v{SR+q}",
                      f"v_pk_fma_f32 v[204:205], v[204:205], {vr(Z+2*q,2)}, {vr(XF+2*q,2)}", f"v_cvt_pk_bf16_f32 v{XR+q}, v204, v205"]
            return L
        sw = [f"ds_write_b128 v{VSL}, {vr(SD,4)}", f"ds_write_b128 v{VSL}, {vr(SD+4,4)} offset:256", f"ds_write_b128 v223, {vr(SD+8,4)} offset:512"]
        srd = [f"ds_read_b64_tr_b16 {vr(SR+2*jb,2)}, v{VSR} offset:{512*jb}" for jb in range(5)]
        spos = o.get("spos", 226)
        nsil = 3
        if spos < n:
            S.append(Stream(sw + [Item("s_waitcnt lgkmcnt(0)\ns_barrier", lo=spos + 12)] + srd, spos, n, ahead=3, name="sw"))
            nsil = o.get("nsil", 2)
        sl = []
        for jb in range(nsil):
            L = [Item(x) for x in silu(jb)]
            L[0].lo = nxt(3, jb) + 2
            sl += L
        S.append(Stream(sl, nxt(3, 0) + 2, n, ahead=12, name="silu"))
        gap_sched(a, main, S, "g2", vspace=o.get("vs", 64))
        a(self.st("g2.mfma"))
        def silu_pk(jb):
            T = 200
            z = Z + 4 * jb
            L = [f"v_pk_mul_f32 {vr(T+k,2)}, {vr(z+k,2)}, v[206:207] op_sel_hi:[1,0]" for k in (0, 2)] + [f"v_exp_f32 v{T+k}, v{T+k}" for k in range(4)]
            L += [f"v_pk_add_f32 {vr(T+k,2)}, {vr(T+k,2)}, v[206:207] op_sel:[0,1]" for k in (0, 2)] + [f"v_rcp_f32 v{T+k}, v{T+k}" for k in range(4)]
            L += [f"v_pk_mul_f32 {vr(z+k,2)}, {vr(z+k,2)}, {vr(T+k,2)}" for k in (0, 2)]
            return L
        ow = lambda jb: f"ds_write_b64 v{VXD}, {vr(XR+2*jb,2)} offset:{32*jb}"
        a("v_mov_b32 v206, s74\nv_mov_b32 v207, 1.0")
        if spos >= n:
            seq = sw + silu_pk(3) + ["s_waitcnt lgkmcnt(0)\ns_barrier"] + srd + silu_pk(4)
            seq += comb(0) + comb(1) + comb(2) + [ow(0), ow(1), ow(2)] + comb(3) + comb(4) + [ow(3), ow(4)]
        else:
            seq = []
            for jb in range(nsil, 4): seq += silu_pk(jb)
            seq += comb(0) + comb(1) + comb(2) + comb(3) + [ow(0), ow(1), ow(2), ow(3)] + silu_pk(4) + comb(4) + [ow(4)]
        for x in seq: a(x)
        a("s_nop 3")
        for i in range(3): a(f"ds_read_b128 {vr(SD+4*i,4)}, v{VXL} offset:{1024*i}")
        osc = o.get("osc", SC)
        for i in range(3): a(f"buffer_store_dwordx4 {vr(SD+4*i,4)}, v{VX+i}, {SOUT}, s14 offen{osc}")
        a(self.st("g2.done"))

    def late_consts(self):
        L = super().late_consts()
        t = 233
        new = [f"s_mov_b32 s73, 0x40000000"]
        for i in range(3):
            new += [f"v_add_u32 v{t}, {64*i}, v0", f"v_mul_u32_u24 v{t+1}, 5958, v{t}", f"v_lshrrev_b32 v{t+1}, 16, v{t+1}",
                    f"v_mul_u32_u24 v{t+2}, 11, v{t+1}", f"v_sub_u32 v{t}, v{t}, v{t+2}"]
            if i == 2: new += [f"v_lshrrev_b32 v{t+2}, 4, v{t+1}", f"v_lshl_add_u32 v{t}, v{t+2}, 4, v{t}"]
            new += [f"v_cmp_gt_u32 vcc, 10, v{t}", f"v_mul_u32_u24 v{t+1}, 1280, v{t+1}", f"v_lshl_add_u32 v{t}, v{t}, 4, v{t+1}", f"v_mov_b32 v{t+1}, s73",
                    f"v_cndmask_b32 v{VX+i}, v{t+1}, v{t}, vcc"]
        return new + [x.replace(f"v{VXD}, 160,", f"v{VXD}, 176,") for x in L[15:]]

    def late_consts2(self):
        L = [x.replace("2560", "2592") for x in super().late_consts2()]
        return L + [f"v_lshrrev_b32 v233, 5, v0", f"v_lshl_add_u32 v222, v233, 30, v{VSG}", f"v_lshl_add_u32 v223, v233, 14, v{VSL}"]

    def ktail3(self):
        t1, t2 = super().ktail3()
        T, O = V_T, 10
        t2 = t2[:16] + [f"ds_write_b128 v{T+5}, {vr(O,4)}", f"ds_write_b128 v{T+5}, {vr(O+4,4)} offset:16"] + t2[20:]
        return t1, t2

if __name__ == "__main__":
    opt = parse(sys.argv[2:])
    for k_, v_ in dict(w1pf=0, dscap=4, t4=1, yrot=0, mxp=40, mx=64, late=1, n1=4, n2=5, ms=44, g2p=126, g2c=176, spos=230, mp=115, mc=155, nh=13).items(): opt.setdefault(k_, v_)
    open(sys.argv[1], "w").write(gen7.build("min" if "min" in sys.argv[2:] else "prof" in sys.argv[2:], opt, cls=F11))
```
